```python
import torch

def _softmax(x, axis=-1):
    return torch.softmax(x, dim=axis)
def _gelu(x):
    return torch.nn.functional.gelu(x, approximate="tanh")
def _silu(x):
    return torch.nn.functional.silu(x)
def _sigmoid(x):
    return torch.sigmoid(x)
def _layernorm(x, axis=-1, eps=1e-5):
    m = x.mean(dim=axis, keepdim=True)
    v = x.var(dim=axis, keepdim=True, unbiased=False)
    return (x - m) / torch.sqrt(v + eps)
def _scatter_add(tgt, idx, src, axis=0):
    return tgt.clone().index_add_(axis, idx, src)
def _segment_sum(src, seg, n):
    out = torch.zeros((n,) + src.shape[1:], dtype=src.dtype)
    return out.index_add_(0, seg, src)
def _pad(x, pw):
    flat = tuple(v for pair in reversed(pw) for v in pair)
    return torch.nn.functional.pad(x, flat)

kernel_name = 'gated_mix__softmax_full_mha__dense_activation_mish__prompt'

def setup_inputs():

    _w = (lambda a: (lambda t: t.to(torch.bfloat16) if t.is_floating_point() else t)(torch.as_tensor(a)))
    def _A_setup():
        B, S, D = 1, 2048, 512
        return {
            "x": _w((lambda *s: torch.randn(*s, dtype=torch.bfloat16) * 0.05)(B, S, D)),
            "wqkv": _w((lambda *s: torch.randn(*s, dtype=torch.bfloat16) * 0.8)(D, 3 * D)),
            "wo": _w((lambda *s: torch.randn(*s, dtype=torch.bfloat16) * 0.05)(D, D)),
        }
    _A_in = _A_setup()

    def _B_setup():
        B, S, D, F = 1, 2048, 512, 1792
        return {
            "x": _w((lambda *s: torch.randn(*s, dtype=torch.bfloat16) * 0.05)(B, S, D)),
            "w1": _w((lambda *s: torch.randn(*s, dtype=torch.bfloat16) * 12.8)(D, F) * (D ** -0.5)),
            "b1": _w((lambda *s: torch.randn(*s, dtype=torch.bfloat16) * 0.2)(F)),
            "w2": _w((lambda *s: torch.randn(*s, dtype=torch.bfloat16) * 0.1)(F, D) * (F ** -0.5)),
        }
    _B_in = _B_setup()

    return {
        "A_x": _A_in["x"],
        "A_wqkv": _A_in["wqkv"],
        "A_wo": _A_in["wo"],
        "B_x": _B_in["x"],
        "B_w1": _B_in["w1"],
        "B_b1": _B_in["b1"],
        "B_w2": _B_in["w2"],
        "gate_w": _w((lambda *s: torch.randn(*s, dtype=torch.bfloat16) * 0.05)(512) * 16.0),
    }

def reference(A_x, A_wqkv, A_wo, B_x, B_w1, B_b1, B_w2, gate_w):
    def _A_ref(x, wqkv, wo):
        B, S, D = x.shape
        H = 32; Dh = D // H
        qkv = (lambda x, *d: x.permute(*d))((x @ wqkv).reshape(B, S, 3, H, Dh), 2, 0, 3, 1, 4)
        q, k, v = qkv[0], qkv[1], qkv[2]
        scale = Dh ** -0.5
        scores = torch.einsum("bhqd,bhkd->bhqk", q, k) * scale
        p = _softmax(scores, axis=-1)
        o = torch.einsum("bhqk,bhkd->bhqd", p, v)
        return (lambda x, *d: x.permute(*d))(o, 0, 2, 1, 3).reshape(B, S, D) @ wo

    def _B_ref(x, w1, b1, w2):
        h = torch.einsum("bsd,df->bsf", x, w1) + b1
        sp = torch.log1p(torch.exp(-torch.abs(h))) + torch.where(h > 0, h, torch.zeros_like(h))
        act = h * torch.tanh(sp)
        return torch.einsum("bsf,fd->bsd", act, w2)

    x = A_x
    g = _sigmoid((x * gate_w).sum(-1, keepdims=True))
    a = _A_ref(x, A_wqkv, A_wo)
    b = _B_ref(x, B_w1, B_b1, B_w2)
    return g * a + (1 - g) * b
```

```python
import re

TRANS = ("v_exp_f32", "v_log_f32", "v_rcp_f32", "v_rsq_f32", "v_sqrt_f32", "v_sin_f32", "v_cos_f32",
         "v_exp_f16", "v_log_f16", "v_rcp_f16", "v_rcp_iflag_f32")

def regs_of(tok):
    tok = tok.strip()
    tok = tok.lstrip("-")
    if tok.startswith("|") and tok.endswith("|"):
        tok = tok[1:-1]
    m = re.fullmatch(r"abs\((.*)\)", tok)
    if m: tok = m.group(1)
    m = re.fullmatch(r"([vsa])\[(\d+):(\d+)\]", tok)
    if m:
        return {(m.group(1), i) for i in range(int(m.group(2)), int(m.group(3)) + 1)}
    m = re.fullmatch(r"([vsa])(\d+)", tok)
    if m:
        return {(m.group(1), int(m.group(2)))}
    if tok in ("vcc", "vcc_lo", "vcc_hi"): return {("x", "vcc")}
    if tok in ("exec", "exec_lo", "exec_hi"): return {("x", "exec")}
    if tok == "m0": return {("x", "m0")}
    return set()

def split_ops(s):
    ops, depth, cur = [], 0, ""
    for ch in s:
        if ch in "[(": depth += 1
        if ch in "])": depth -= 1
        if ch == "," and depth == 0:
            ops.append(cur.strip()); cur = ""
        else:
            cur += ch
    if cur.strip(): ops.append(cur.strip())
    return ops

class Inst:
    def __init__(self, text):
        self.text = text
        t = text.split(";")[0].strip()
        parts = t.split(None, 1)
        self.op = parts[0]
        rest = parts[1] if len(parts) > 1 else ""
        ops = split_ops(rest)
        mods = ""
        if ops:
            lp = ops[-1].split(None, 1)
            ops[-1] = lp[0]
            mods = lp[1] if len(lp) > 1 else ""
        self.ops, self.mods = ops, mods
        op = self.op
        self.kind = "other"
        self.wr, self.rd = set(), set()
        self.srcA = self.srcB = self.srcC = set()
        self.passes = 0
        self.nop = 1
        self.store_data = set()
        R = [regs_of(o) for o in ops]
        if op == "s_nop":
            self.kind = "nop"; self.nop = int(ops[0], 0) + 1
        elif op.startswith("v_mfma"):
            self.kind = "mfma"
            self.wr = R[0]; self.srcA, self.srcB, self.srcC = R[1], R[2], R[3]
            self.rd = R[1] | R[2] | R[3]
            self.passes = 8 if "32x32" in op else 4
        elif op.startswith("v_"):
            self.kind = "valu"
            if op.startswith("v_permlane") and "swap" in op:
                self.wr = R[0] | R[1]; self.rd = R[0] | R[1]
            elif op.startswith("v_cmp"):
                self.wr = R[0]; self.rd = set().union(*R[1:])
            elif op.startswith(("v_add_co", "v_sub_co", "v_subrev_co", "v_addc_co", "v_subb_co")):
                self.wr = R[0] | R[1]; self.rd = set().union(*R[2:])
            else:
                self.wr = R[0]; self.rd = set().union(*R[1:]) if len(R) > 1 else set()
                if op.startswith(("v_fmac", "v_dot2c", "v_pk_fmac", "v_writelane")): self.rd |= R[0]
                if op.startswith("v_cndmask") and len(ops) == 3: self.rd |= {("x", "vcc")}
            self.trans = op.replace("_e32", "").replace("_e64", "") in TRANS
            self.dpp = ("_dpp" in op) or ("quad_perm" in mods) or ("row_" in mods)
            if self.dpp: self.rd |= R[0]
        elif op.startswith("ds_"):
            self.kind = "ds"
            if op.startswith(("ds_read", "ds_bpermute", "ds_permute", "ds_swizzle")):
                self.wr = R[0]; self.rd = set().union(*R[1:])
            else:
                self.rd = set().union(*R)
        elif op.startswith(("buffer_", "global_", "flat_")):
            self.kind = "vmem"
            allm = text
            if "_lds" in op or re.search(r"\blds\b", mods):
                self.rd = set().union(*R) | {("x", "m0")}
                self.ldsdma = True
            elif "load" in op:
                self.wr = R[0]; self.rd = set().union(*R[1:])
            elif "store" in op:
                self.rd = set().union(*R)
                d = R[0] if op.startswith("buffer_") else R[1]
                if "x3" in op or "x4" in op: self.store_data = d
            elif "atomic" in op:
                self.rd = set().union(*R)
                if "sc0" in mods: self.wr = R[0]
            elif op in ("buffer_wbl2", "buffer_inv"):
                pass
        elif op.startswith("s_"):
            self.kind = "salu"
            if op.startswith(("s_cmp", "s_cbranch", "s_branch", "s_waitcnt", "s_barrier", "s_endpgm", "s_setprio", "s_sleep", "s_bitcmp")):
                self.rd = set().union(*R) if R else set()
            else:
                self.wr = R[0] if R else set(); self.rd = set().union(*R[1:]) if len(R) > 1 else set()
                if "saveexec" in op: self.wr |= {("x", "exec")}

def vonly(S): return {r for r in S if r[0] in "va"}
def sonly(S): return {r for r in S if r[0] == "s" or r == ("x", "vcc")}

def required_gap(p, c):
    need = 0
    if p.kind == "valu":
        pw = vonly(p.wr)
        if c.kind == "mfma" and pw & c.rd: need = max(need, 2)
        if c.kind == "valu":
            if p.trans and not c.trans and pw & c.rd: need = max(need, 1)
            if p.trans and c.trans and pw & c.rd: need = max(need, 1)
            if c.op.startswith("v_permlane") and pw & c.rd: need = max(need, 2)
            if c.dpp and pw & c.rd: need = max(need, 2)
            if c.op.startswith(("v_readfirstlane", "v_readlane")) and pw & c.rd: need = max(need, 1)
            if ("op_sel" in p.mods or "sdwa" in p.op) and not p.op.startswith("v_pk_") and pw & (c.rd | c.wr): need = max(need, 1)
        ps = sonly(p.wr)
        if ps:
            if c.kind == "vmem" and ps & c.rd: need = max(need, 5)
            if c.kind == "valu" and ps & c.rd:
                need = max(need, 4 if c.op.startswith(("v_readlane", "v_writelane")) else 2)
            if c.kind == "salu" and ps & c.rd: need = max(need, 1)
    if p.kind == "mfma":
        big = p.passes == 8
        if c.kind == "mfma":
            if p.wr & (c.srcA | c.srcB): need = max(need, 12 if big else 8)
            if p.wr & c.srcC and not (p.wr == c.srcC and p.passes == c.passes): need = max(need, 10 if big else 6)
            if p.wr & c.wr and not (p.wr == c.srcC or p.wr == c.wr): need = max(need, 10 if big else 6)
        elif c.kind in ("valu", "ds", "vmem"):
            if p.wr & (c.rd | c.wr): need = max(need, 12 if big else 8)
            if c.kind == "valu" and p.srcC & c.wr: need = max(need, 7 if big else 3)
    if p.kind == "salu" and ("x", "m0") in p.wr and getattr(c, "ldsdma", False): need = max(need, 1)
    if p.kind == "vmem" and p.store_data and (p.store_data & c.wr): need = max(need, 2)
    return need

class Asm:
    def __init__(self):
        self.lines = []
        self.window = []
        self.nops_added = 0
    def raw(self, s):
        self.lines.append(s)
    def comment(self, s):
        self.lines.append("    ; " + s)
    def label(self, l):
        self.lines.append(l + ":")
    def __call__(self, text):
        for t in text.strip().split("\n"):
            t = t.strip()
            if not t: continue
            if t.startswith(";"):
                self.lines.append("    " + t); continue
            if t.endswith(":") and " " not in t:
                self.lines.append(t); continue
            self._emit(t)
    def _emit(self, t):
        ins = Inst(t)
        dist = 0; need_total = 0
        for p in reversed(self.window):
            g = required_gap(p, ins)
            if g > dist: need_total = max(need_total, g - dist)
            dist += p.nop
            if dist > 24: break
        while need_total > 0:
            n = min(need_total, 16)
            nop = Inst(f"s_nop {n-1}")
            self.lines.append(f"    s_nop {n-1}")
            self.window.append(nop)
            self.nops_added += n
            need_total -= n
        self.lines.append("    " + t)
        self.window.append(ins)
        if len(self.window) > 40: self.window = self.window[-40:]
    def fence(self):
        self._emit("s_nop 15")
    def text(self):
        return "\n".join(self.lines) + "\n"

def check_loop(lines_body):
    a = Asm()
    insts = [l.strip() for l in lines_body if l.strip() and not l.strip().startswith(";") and not l.strip().endswith(":") and not l.strip().startswith(".")]
    for t in insts: a._emit(t)
    n0 = a.nops_added
    for t in insts: a._emit(t)
    return a.nops_added - n0, n0

def vr(base, n=1):
    return f"v{base}" if n == 1 else f"v[{base}:{base+n-1}]"
def sr(base, n=1):
    return f"s{base}" if n == 1 else f"s[{base}:{base+n-1}]"

def kernel_header(name):
    return f""".globl {name}
.p2align 8
.type {name},@function
{name}:
"""

def kernel_desc(name, nvgpr, nsgpr=96, accum=None):
    if accum is None: accum = (nvgpr + 3) // 4 * 4
    return f""".p2align 6
.amdhsa_kernel {name}
  .amdhsa_next_free_vgpr {nvgpr}
  .amdhsa_next_free_sgpr {nsgpr}
  .amdhsa_accum_offset {accum}
  .amdhsa_group_segment_fixed_size 0
  .amdhsa_kernarg_size 88
  .amdhsa_user_sgpr_count 2
  .amdhsa_user_sgpr_kernarg_segment_ptr 1
  .amdhsa_system_sgpr_workgroup_id_x 1
.end_amdhsa_kernel
"""
```

```python
from asmlib import *
from layout import *

NAME = "k1_proj_kernel"
XS = 16384
WQS = 12288
W1S = 16384
X_BASE = 0
WQ_BASE = 3 * XS
W1_BASE = WQ_BASE + 3 * WQS
LDS_BYTES = W1_BASE + 3 * W1S

def gen():
    a = Asm()
    a.raw(kernel_header(NAME))
    sX, sWQ, sW1, sWS, sB1, sGW = 16, 20, 24, 28, 32, 36
    sWAVE, sW, sI, sJ = 40, 41, 42, 43
    sSOX, sSOW = 44, 45
    sOX, sOW = 46, 47
    sN, sD, sDW = 48, 49, 50
    sC = 51
    sMX = [52, 53, 54]
    sMW = [55, 56, 57, 58]
    sT0, sT1, sT2 = 60, 61, 62
    a(f"""
    s_cmp_ge_u32 s2, 256
    s_cbranch_scc1 L_k1_end
    s_load_dwordx4 s[4:7], s[0:1], 0
    s_load_dwordx4 s[8:11], s[0:1], 32
    s_load_dwordx2 s[12:13], s[0:1], 56
    s_load_dwordx2 s[14:15], s[0:1], 80
    v_lshrrev_b32 v1, 6, v0
    v_and_b32 v0, 63, v0
    v_readfirstlane_b32 s{sWAVE}, v1
    s_and_b32 s{sT0}, s2, 7
    s_lshr_b32 s{sT1}, s2, 3
    s_and_b32 s{sI}, s{sT0}, 1
    s_lshl_b32 s{sI}, s{sI}, 3
    s_and_b32 s{sT2}, s{sT1}, 7
    s_add_u32 s{sI}, s{sI}, s{sT2}
    s_lshr_b32 s{sJ}, s{sT0}, 1
    s_lshl_b32 s{sJ}, s{sJ}, 2
    s_lshr_b32 s{sT2}, s{sT1}, 3
    s_add_u32 s{sJ}, s{sJ}, s{sT2}
    s_and_b32 s{sW}, s{sWAVE}, 3
    s_mov_b32 s{sX+2}, {2048*512*2}
    s_mov_b32 s{sX+3}, 0x00020000
    s_mov_b32 s{sWQ+2}, {512*1536*2}
    s_mov_b32 s{sWQ+3}, 0x00020000
    s_mov_b32 s{sW1+2}, {512*1792*2}
    s_mov_b32 s{sW1+3}, 0x00020000
    s_mov_b32 s{sWS+2}, {WS_SIZE}
    s_mov_b32 s{sWS+3}, 0x00020000
    s_mov_b32 s{sB1+2}, {1792*2}
    s_mov_b32 s{sB1+3}, 0x00020000
    s_mov_b32 s{sGW+2}, {512*2}
    s_mov_b32 s{sGW+3}, 0x00020000
    s_lshl_b32 s{sSOX}, s{sI}, 17
    s_mov_b32 s{sSOW}, 0
    s_mov_b32 s{sOX}, 0
    s_mov_b32 s{sOW}, 0
    s_mov_b32 s{sC}, 0
    """)
    vL = 0
    vN16, vG, vR, vC = 2, 3, 4, 5
    vT0, vT1, vT2, vT3 = 6, 7, 8, 9
    vXr = [10, 11]
    vXd = [12, 13, 14]
    vWd = [15, 16, 17, 18]
    vWr = list(range(20, 27))
    vGX, vGW = 28, 36
    vF = 44
    FSZ = 36
    vACC = vF + 2 * FSZ
    NV = vACC + 56
    a(f"""
    v_and_b32 v{vN16}, 15, v0
    v_lshrrev_b32 v{vG}, 4, v0
    v_bfe_u32 v{vR}, v0, 2, 2
    v_and_b32 v{vC}, 3, v0
    s_lshl_b32 s{sT0}, s{sW}, 12
    v_lshrrev_b32 v{vT0}, 1, v{vN16}
    v_xor_b32 v{vT0}, v{vG}, v{vT0}
    v_lshlrev_b32 v{vT0}, 4, v{vT0}
    v_lshl_add_u32 v{vT0}, v{vN16}, 7, v{vT0}
    v_add_u32 v{vXr[0]}, s{sT0}, v{vT0}
    v_xor_b32 v{vXr[1]}, 64, v{vXr[0]}
    v_and_b32 v{vT0}, 7, v0
    v_xor_b32 v{vT0}, v{vT0}, v{vG}
    v_lshlrev_b32 v{vT0}, 4, v{vT0}
    v_lshrrev_b32 v{vT1}, 3, v0
    v_lshl_add_u32 v{vT0}, v{vT1}, 10, v{vT0}
    s_waitcnt lgkmcnt(0)
    s_mov_b32 s{sX}, s4
    s_mov_b32 s{sX+1}, s5
    s_mov_b32 s{sWQ}, s6
    s_mov_b32 s{sWQ+1}, s7
    s_mov_b32 s{sW1}, s8
    s_mov_b32 s{sW1+1}, s9
    s_mov_b32 s{sB1}, s10
    s_mov_b32 s{sB1+1}, s11
    s_mov_b32 s{sGW}, s12
    s_mov_b32 s{sGW+1}, s13
    s_mov_b32 s{sWS}, s14
    s_mov_b32 s{sWS+1}, s15
    s_cmp_ge_u32 s{sWAVE}, 4
    s_cbranch_scc1 L_k1_ffn
    """)

    def frag_regs(buf):
        base = vF + buf * FSZ
        X = [base, base + 4]
        W = [base + 8 + 4 * i for i in range(7)]
        return X, W

    def role(name, nt, nx, nw, isq):
        wslot = WQS if isq else W1S
        srdW = sWQ if isq else sW1
        wadv = 64 * 3072 if isq else 64 * 3584
        ndma = nx + nw
        def dma_list():
            L = []
            for q in range(nx):
                L.append([f"s_add_u32 m0, s{sMX[q]}, s{sOX}",
                          f"buffer_load_dwordx4 v{vXd[q]}, s[{sX}:{sX+3}], s{sSOX} offen lds"])
            for q in range(nw):
                L.append([f"s_add_u32 m0, s{sMW[q]}, s{sOW}",
                          f"buffer_load_dwordx4 v{vWd[q]}, s[{srdW}:{srdW+3}], s{sSOW} offen lds"])
            return L
        def adv_src():
            return [f"s_add_u32 s{sSOX}, s{sSOX}, 128", f"s_add_u32 s{sSOW}, s{sSOW}, {wadv}"]
        def slot_next():
            return [f"s_add_u32 s{sN}, s{sOX}, {XS}",
                    f"s_cmp_eq_u32 s{sN}, {3*XS}",
                    f"s_cselect_b32 s{sN}, 0, s{sN}",
                    f"s_sub_u32 s{sD}, s{sN}, s{sOX}",
                    f"s_mov_b32 s{sOX}, s{sN}",
                    f"s_add_u32 s{sN}, s{sOW}, {wslot}",
                    f"s_cmp_eq_u32 s{sN}, {3*wslot}",
                    f"s_cselect_b32 s{sN}, 0, s{sN}",
                    f"s_sub_u32 s{sDW}, s{sN}, s{sOW}",
                    f"s_mov_b32 s{sOW}, s{sN}"]
        def reads(buf, s2):
            X, W = frag_regs(buf)
            L = []
            for t in range(2):
                L.append(f"ds_read_b128 {vr(X[t],4)}, v{vXr[s2]} offset:{t*2048}")
            for ct in range(nt):
                for t2 in range(2):
                    if isq:
                        va = vWr[ct & 1]; off = (32 * s2 + 4 * t2) * 192 + ct * 32
                    else:
                        va = vWr[ct]; off = (32 * s2 + 4 * t2) * 256
                    L.append(f"ds_read_b64_tr_b16 {vr(W[ct]+2*t2,2)}, v{va} offset:{off}")
            return L
        def mfmas(buf):
            X, W = frag_regs(buf)
            L = []
            for ct in range(nt):
                for t in range(2):
                    acc = vACC + (ct * 2 + t) * 4
                    if isq and ct >= 4:
                        L.append(f"v_mfma_f32_16x16x32_bf16 {vr(acc,4)}, {vr(X[t],4)}, {vr(W[ct],4)}, {vr(acc,4)}")
                    else:
                        L.append(f"v_mfma_f32_16x16x32_bf16 {vr(acc,4)}, {vr(W[ct],4)}, {vr(X[t],4)}, {vr(acc,4)}")
            return L
        def interleave(M, O, per=2):
            O = list(O)
            for m in M:
                a(m)
                for _ in range(per):
                    if O:
                        o = O.pop(0)
                        a("\n".join(o) if isinstance(o, list) else o)
            for o in O:
                a("\n".join(o) if isinstance(o, list) else o)

        if isq:
            a(f"""
            s_lshl_b32 s{sT0}, s{sI}, 7
            s_lshl_b32 s{sT1}, s{sJ}, 3
            s_add_u32 s{sT0}, s{sT0}, s{sT1}
            s_lshl_b32 s{sT1}, s{sW}, 1
            s_add_u32 s{sT0}, s{sT0}, s{sT1}
            s_lshl_b32 s{sT1}, s{sT0}, 10
            v_and_b32 v{vT1}, 31, v0
            v_lshlrev_b32 v{vT1}, 5, v{vT1}
            v_lshrrev_b32 v{vT2}, 5, v0
            v_lshl_add_u32 v{vT2}, v{vT2}, 10, v{vT1}
            buffer_load_dwordx4 {vr(vGX,4)}, v{vT2}, s[{sX}:{sX+3}], s{sT1} offen
            buffer_load_dwordx4 {vr(vGX+4,4)}, v{vT2}, s[{sX}:{sX+3}], s{sT1} offen offset:16
            buffer_load_dwordx4 {vr(vGW,4)}, v{vT1}, s[{sGW}:{sGW+3}], 0 offen
            buffer_load_dwordx4 {vr(vGW+4,4)}, v{vT1}, s[{sGW}:{sGW+3}], 0 offen offset:16
            """)
            for q in range(3):
                a(f"""
                s_mul_i32 s{sT0}, s{sW}, 3
                s_add_u32 s{sT0}, s{sT0}, {q}
                s_lshl_b32 s{sMX[q]}, s{sT0}, 10
                s_and_b32 s{sT1}, s{sT0}, 1
                s_lshl_b32 s{sT1}, s{sT1}, 6
                s_lshl_b32 s{sT2}, s{sT0}, 13
                v_xor_b32 v{vXd[q]}, s{sT1}, v{vT0}
                v_add_u32 v{vXd[q]}, s{sT2}, v{vXd[q]}
                """)
                a(f"""
                s_add_u32 s{sMW[q]}, s{sMX[q]}, {WQ_BASE}
                s_lshl_b32 s{sT1}, s{sT0}, 5
                v_lshrrev_b32 v{vT1}, 1, v0
                v_add_u32 v{vT1}, s{sT1}, v{vT1}
                v_mul_u32_u24 v{vT2}, 0xaaab, v{vT1}
                v_lshrrev_b32 v{vT2}, 18, v{vT2}
                v_mul_u32_u24 v{vT3}, 6, v{vT2}
                v_sub_u32 v{vT1}, v{vT1}, v{vT3}
                v_bfe_u32 v{vT3}, v{vT2}, 3, 1
                v_xor_b32 v{vT1}, v{vT1}, v{vT3}
                v_mul_u32_u24 v{vT2}, 3072, v{vT2}
                v_lshrrev_b32 v{vT3}, 1, v{vT1}
                v_lshl_add_u32 v{vT2}, v{vT3}, 10, v{vT2}
                v_and_b32 v{vT3}, 1, v{vT1}
                v_lshl_add_u32 v{vT2}, v{vT3}, 5, v{vT2}
                v_and_b32 v{vT3}, 1, v0
                v_lshl_add_u32 v{vT2}, v{vT3}, 4, v{vT2}
                s_lshl_b32 s{sT1}, s{sJ}, 6
                v_add_u32 v{vWd[q]}, s{sT1}, v{vT2}
                """)
        else:
            vB = vF + FSZ
            a(f"""
            s_mul_i32 s{sT1}, s{sJ}, 224
            v_lshlrev_b32 v{vT1}, 3, v{vG}
            """)
            for ct in range(7):
                a(f"buffer_load_dwordx2 {vr(vB+2*ct,2)}, v{vT1}, s[{sB1}:{sB1+3}], s{sT1} offen offset:{ct*32}")
            a(f"""
            s_add_u32 s{sT0}, s{sW}, 12
            s_lshl_b32 s{sMX[0]}, s{sT0}, 10
            s_and_b32 s{sT1}, s{sT0}, 1
            s_lshl_b32 s{sT1}, s{sT1}, 6
            s_lshl_b32 s{sT2}, s{sT0}, 13
            v_xor_b32 v{vXd[0]}, s{sT1}, v{vT0}
            v_add_u32 v{vXd[0]}, s{sT2}, v{vXd[0]}
            """)
            for qq in range(4):
                a(f"""
                s_lshl_b32 s{sT0}, s{sW}, 2
                s_add_u32 s{sT0}, s{sT0}, {qq}
                s_lshl_b32 s{sT1}, s{sT0}, 10
                s_add_u32 s{sMW[qq]}, s{sT1}, {W1_BASE}
                s_mul_i32 s{sT1}, s{sT0}, {4*3584}
                s_mul_i32 s{sT2}, s{sJ}, 224
                s_add_u32 s{sT1}, s{sT1}, s{sT2}
                v_lshrrev_b32 v{vT1}, 1, v0
                v_sub_u32 v{vT1}, v{vT1}, v{vG}
                v_subrev_u32 v{vT1}, {4*(qq>>1)}, v{vT1}
                v_and_b32 v{vT1}, 7, v{vT1}
                v_mul_u32_u24 v{vT2}, 3584, v{vG}
                v_lshl_add_u32 v{vT2}, v{vT1}, 5, v{vT2}
                v_and_b32 v{vT3}, 1, v0
                v_lshl_add_u32 v{vT2}, v{vT3}, 4, v{vT2}
                v_add_u32 v{vWd[qq]}, s{sT1}, v{vT2}
                """)
        for c in range(3):
            for grp in dma_list(): a("\n".join(grp))
            a("\n".join(adv_src()))
            a("\n".join(slot_next()))
        if isq:
            a(f"""
            v_lshl_add_u32 v{vT1}, v{vG}, 3, v{vR}
            v_mul_u32_u24 v{vT1}, 192, v{vT1}
            v_lshl_add_u32 v{vT1}, v{vC}, 3, v{vT1}
            v_add_u32 v{vT1}, {WQ_BASE}, v{vT1}
            v_and_b32 v{vT2}, 1, v{vG}
            v_lshlrev_b32 v{vT2}, 5, v{vT2}
            v_add_u32 v{vWr[0]}, v{vT1}, v{vT2}
            v_sub_u32 v{vWr[1]}, v{vT1}, v{vT2}
            """)
            for r in range(48): a(f"v_mov_b32 v{vACC+r}, 0")
        else:
            a(f"""
            v_lshl_add_u32 v{vT1}, v{vG}, 3, v{vR}
            v_lshlrev_b32 v{vT1}, 8, v{vT1}
            v_lshl_add_u32 v{vT1}, v{vC}, 3, v{vT1}
            v_add_u32 v{vT1}, {W1_BASE}, v{vT1}
            v_and_b32 v{vT2}, 1, v{vG}
            v_lshl_add_u32 v{vT2}, v{vT2}, 2, v{vR}
            """)
            for ct in range(7):
                a(f"""
                v_add_u32 v{vT3}, {ct}, v{vT2}
                v_and_b32 v{vT3}, 7, v{vT3}
                v_lshl_add_u32 v{vWr[ct]}, v{vT3}, 5, v{vT1}
                """)
            a(f"s_waitcnt vmcnt({3*ndma})")
            vB = vF + FSZ
            for ct in range(7):
                for t in range(2):
                    acc = vACC + (ct * 2 + t) * 4
                    a(f"""
                    v_lshlrev_b32 v{acc}, 16, v{vB+2*ct}
                    v_and_b32 v{acc+1}, 0xffff0000, v{vB+2*ct}
                    v_lshlrev_b32 v{acc+2}, 16, v{vB+2*ct+1}
                    v_and_b32 v{acc+3}, 0xffff0000, v{vB+2*ct+1}
                    """)
        a(f"s_waitcnt vmcnt({2*ndma})")
        a("s_barrier")
        a("\n".join(reads(0, 0)))
        a.raw(".p2align 6")
        a.label(f"L_k1_{name}_loop")
        start = len(a.lines)
        a("s_waitcnt lgkmcnt(0)")
        interleave(mfmas(0), reads(1, 1))
        a(f"""
        s_cmp_lt_u32 s{sC}, 6
        s_cbranch_scc1 L_k1_{name}_w
        s_waitcnt vmcnt(0)
        L_k1_{name}_w:
        s_waitcnt vmcnt({ndma}) lgkmcnt(0)
        s_barrier
        s_cmp_ge_u32 s{sC}, 5
        s_cbranch_scc1 L_k1_{name}_nodma
        """)
        for grp in dma_list(): a("\n".join(grp))
        a("\n".join(adv_src()))
        a.label(f"L_k1_{name}_nodma")
        a("\n".join(slot_next()))
        nwr = 2 if isq else 7
        for r in vXr: a(f"v_add_u32 v{r}, s{sD}, v{r}")
        for r in vWr[:nwr]: a(f"v_add_u32 v{r}, s{sDW}, v{r}")
        interleave(mfmas(1), reads(0, 0))
        a(f"""
        s_add_u32 s{sC}, s{sC}, 1
        s_cmp_lt_u32 s{sC}, 8
        s_cbranch_scc1 L_k1_{name}_loop
        """)
        seam, inner = check_loop(a.lines[start:])
        assert seam == 0 and inner == 0, (seam, inner)
        a("s_waitcnt lgkmcnt(0)")
        vP = vF
        a(f"""
        s_lshl_b32 s{sT0}, s{sI}, 2
        s_add_u32 s{sT0}, s{sT0}, s{sW}
        v_lshlrev_b32 v{vT0}, 4, v0
        """)
        if isq:
            a(f"s_mov_b32 s{sT2}, {hex(f32bits(QSCALE))}")
            for ct in range(6):
                p = vP + 4 * ct
                a0, a1 = vACC + ct * 8, vACC + ct * 8 + 4
                if ct < 2:
                    for r in range(8): a(f"v_mul_f32 v{a0+r}, s{sT2}, v{a0+r}")
                a(f"""
                v_cvt_pk_bf16_f32 v{p}, v{a0}, v{a0+1}
                v_cvt_pk_bf16_f32 v{p+1}, v{a0+2}, v{a0+3}
                v_cvt_pk_bf16_f32 v{p+2}, v{a1}, v{a1+1}
                v_cvt_pk_bf16_f32 v{p+3}, v{a1+2}, v{a1+3}
                """)
            a(f"""
            s_lshl_b32 s{sT1}, s{sJ}, 17
            s_lshl_b32 s{sT0}, s{sT0}, 10
            s_add_u32 s{sT1}, s{sT1}, s{sT0}
            """)
            for ct in range(6):
                p = vP + 4 * ct
                sw = "v_permlane32_swap_b32" if ct >= 4 else "v_permlane16_swap_b32"
                base = [WS_Q, WS_K, WS_V][ct >> 1] + (ct & 1) * 65536
                a(f"""
                {sw} v{p}, v{p+2}
                {sw} v{p+1}, v{p+3}
                s_add_u32 s{sT2}, s{sT1}, {base}
                buffer_store_dwordx4 {vr(p,4)}, v{vT0}, s[{sWS}:{sWS+3}], s{sT2} offen
                """)
            acc = vT1
            a(f"v_mov_b32 v{acc}, 0")
            for r in range(8): a(f"v_dot2_f32_bf16 v{acc}, v{vGX+r}, v{vGW+r}, v{acc}")
            a("s_nop 3")
            for mod in ["quad_perm:[1,0,3,2]", "quad_perm:[2,3,0,1]", "row_half_mirror", "row_mirror"]:
                a(f"v_add_f32_dpp v{acc}, v{acc}, v{acc} {mod} row_mask:0xf bank_mask:0xf")
            a(f"""
            v_mov_b32 v{vT2}, v{acc}
            v_mov_b32 v{vT3}, v{acc}
            v_permlane16_swap_b32 v{vT2}, v{vT3}
            v_add_f32 v{acc}, v{vT2}, v{vT3}
            v_mul_f32 v{acc}, {hex(f32bits(-LOG2E))}, v{acc}
            v_exp_f32 v{acc}, v{acc}
            v_add_f32 v{acc}, 1.0, v{acc}
            v_rcp_f32 v{acc}, v{acc}
            s_lshl_b32 s{sT0}, s{sI}, 7
            s_lshl_b32 s{sT1}, s{sJ}, 3
            s_add_u32 s{sT0}, s{sT0}, s{sT1}
            s_lshl_b32 s{sT1}, s{sW}, 1
            s_add_u32 s{sT0}, s{sT0}, s{sT1}
            s_lshl_b32 s{sT0}, s{sT0}, 2
            s_add_u32 s{sT0}, s{sT0}, {WS_G}
            v_lshrrev_b32 v{vT2}, 5, v0
            v_lshlrev_b32 v{vT2}, 2, v{vT2}
            s_mov_b32 exec_lo, 1
            s_mov_b32 exec_hi, 1
            buffer_store_dword v{acc}, v{vT2}, s[{sWS}:{sWS+3}], s{sT0} offen
            s_endpgm
            """)
        else:
            a(f"""
            s_mul_i32 s{sT0}, s{sT0}, 112
            s_mul_i32 s{sT1}, s{sJ}, 7
            s_add_u32 s{sT0}, s{sT0}, s{sT1}
            s_lshl_b32 s{sT0}, s{sT0}, 10
            s_add_u32 s{sT0}, s{sT0}, {WS_A}
            s_mov_b32 s{sT1}, {hex(f32bits(LOG2E))}
            s_mov_b32 s{sT2}, {hex(f32bits(40.0))}
            """)
            vE = vF + 32
            for ct in range(7):
                p = vP + 4 * ct
                h = vACC + ct * 8
                e, n, d = vE, vE + 8, vE + 16
                for r in range(8): a(f"v_mul_f32 v{e+r}, s{sT1}, v{h+r}")
                for r in range(8): a(f"v_min_f32 v{e+r}, s{sT2}, v{e+r}")
                for r in range(8): a(f"v_exp_f32 v{e+r}, v{e+r}")
                for r in range(0, 8, 2): a(f"v_pk_add_f32 {vr(n+r,2)}, {vr(e+r,2)}, 2.0 op_sel_hi:[1,0]")
                for r in range(0, 8, 2): a(f"v_pk_fma_f32 {vr(d+r,2)}, {vr(e+r,2)}, {vr(n+r,2)}, 2.0 op_sel_hi:[1,1,0]")
                for r in range(0, 8, 2): a(f"v_pk_mul_f32 {vr(n+r,2)}, {vr(e+r,2)}, {vr(n+r,2)}")
                for r in range(8): a(f"v_rcp_f32 v{d+r}, v{d+r}")
                for r in range(0, 8, 2): a(f"v_pk_mul_f32 {vr(n+r,2)}, {vr(n+r,2)}, {vr(h+r,2)}")
                for r in range(0, 8, 2): a(f"v_pk_mul_f32 {vr(n+r,2)}, {vr(n+r,2)}, {vr(d+r,2)}")
                a(f"""
                v_cvt_pk_bf16_f32 v{p}, v{n}, v{n+1}
                v_cvt_pk_bf16_f32 v{p+1}, v{n+2}, v{n+3}
                v_cvt_pk_bf16_f32 v{p+2}, v{n+4}, v{n+5}
                v_cvt_pk_bf16_f32 v{p+3}, v{n+6}, v{n+7}
                v_permlane16_swap_b32 v{p}, v{p+2}
                v_permlane16_swap_b32 v{p+1}, v{p+3}
                """)
                if ct < 4:
                    a(f"buffer_store_dwordx4 {vr(p,4)}, v{vT0}, s[{sWS}:{sWS+3}], s{sT0} offen offset:{ct*1024}")
                else:
                    if ct == 4: a(f"s_add_u32 s{sT0}, s{sT0}, 4096")
                    a(f"buffer_store_dwordx4 {vr(p,4)}, v{vT0}, s[{sWS}:{sWS+3}], s{sT0} offen offset:{(ct-4)*1024}")
            a("s_endpgm")

    role("qkv", 6, 3, 3, True)
    a.label("L_k1_ffn")
    a.window = []
    role("ffn", 7, 1, 4, False)
    a.label("L_k1_end")
    a("s_endpgm")
    return a.text(), kernel_desc(NAME, NV, 72), f"; @launch kernel={NAME} grid=(256,1,1) block=(512,1,1) lds={LDS_BYTES}"

if __name__ == "__main__":
    t, d, l = gen()
    print(l); print(len(t.splitlines()))
```

```python
from asmlib import *
from layout import *

NAME = "k2_attn_kernel"
LDS_BYTES = 4 * 4 * 2304

def gen_body(a, P="k2", wg_sgpr=2):
    sWS = 8
    sW, sH, sQB = 12, 13, 14
    sT0, sT1, sT2 = 15, 16, 17
    sKT = 18
    sC = 19
    sM = 20
    sQ0 = 22
    vKo, vVo = 1, 2
    vT0, vT1, vT2, vT3 = 3, 4, 5, 6
    vQ = 8
    vK = 24
    vV = 32
    vP = 48
    vS = 56
    vO = 88
    NV = vO + 64
    a(f"""
    s_load_dwordx2 s[4:5], s[0:1], 80
    v_lshrrev_b32 v1, 6, v0
    v_and_b32 v0, 63, v0
    v_readfirstlane_b32 s{sW}, v1
    s_and_b32 s{sT0}, s{wg_sgpr}, 7
    s_lshr_b32 s{sT1}, s{wg_sgpr}, 3
    s_lshl_b32 s{sH}, s{sT0}, 2
    s_and_b32 s{sT2}, s{sT1}, 3
    s_add_u32 s{sH}, s{sH}, s{sT2}
    s_lshr_b32 s{sQB}, s{sT1}, 2
    s_mov_b32 s{sWS+2}, {WS_SIZE}
    s_mov_b32 s{sWS+3}, 0x00020000
    s_mov_b32 s{sM}, 0x0000ffff
    s_mov_b32 s{sM+1}, 0x0000ffff
    s_lshl_b32 s{sT0}, s{sH}, 16
    s_lshl_b32 s{sT1}, s{sQB}, 12
    s_add_u32 s{sQ0}, s{sT0}, s{sT1}
    s_lshl_b32 s{sT1}, s{sW}, 14
    s_add_u32 s{sKT}, s{sT0}, s{sT1}
    s_add_u32 s{sKT}, s{sKT}, {WS_K}
    v_lshlrev_b32 v{vKo}, 4, v0
    v_and_b32 v{vT0}, 15, v0
    v_lshlrev_b32 v{vT0}, 4, v{vT0}
    v_lshrrev_b32 v{vT1}, 5, v0
    v_lshl_add_u32 v{vT0}, v{vT1}, 8, v{vT0}
    v_add_u32 v{vVo}, {WS_V - WS_K}, v{vT0}
    s_mov_b32 s{sT2}, 0x3f803f80
    """)
    for r in range(16): a(f"v_mov_b32 v{vV+r}, s{sT2}")
    a(f"""
    s_waitcnt lgkmcnt(0)
    s_mov_b32 s{sWS}, s4
    s_mov_b32 s{sWS+1}, s5
    """)
    srd = f"s[{sWS}:{sWS+3}]"
    def loadK(st): return f"buffer_load_dwordx4 {vr(vK+4*st,4)}, v{vKo}, {srd}, s{sKT} offen"
    def loadV(st):
        return f"""s_mov_b64 exec, s[{sM}:{sM+1}]
        buffer_load_dwordx4 {vr(vV+8*st,4)}, v{vVo}, {srd}, s{sKT} offen
        buffer_load_dwordx4 {vr(vV+8*st+4,4)}, v{vVo}, {srd}, s{sKT} offen offset:512
        s_mov_b64 exec, -1
        s_add_u32 s{sKT}, s{sKT}, 1024"""
    for q in range(4):
        a(f"buffer_load_dwordx4 {vr(vQ+4*q,4)}, v{vKo}, {srd}, s{sQ0} offen offset:{q*1024}")
    a(loadK(0)); a(loadV(0)); a(loadK(1))
    for r in range(64): a(f"v_mov_b32 v{vO+r}, 0")
    for r in range(4, 8): a(f"v_mov_b32 v{vP+r}, 0")
    a(f"s_mov_b32 s{sC}, 0")
    a("s_waitcnt vmcnt(3)")
    def mfS(sb, st, q): return f"v_mfma_f32_32x32x16_bf16 {vr(vS+16*sb,16)}, {vr(vK+4*st,4)}, {vr(vQ+4*q,4)}, 0"
    def mfPV(q, st, u): return f"v_mfma_f32_32x32x16_bf16 {vr(vO+16*q,16)}, {vr(vV+8*st+4*u,4)}, {vr(vP+4*u,4)}, {vr(vO+16*q,16)}"
    a(mfS(0, 0, 0))
    a("s_nop 7")
    a.raw(".p2align 6")
    a.label(f"L_{P}_loop")
    start = len(a.lines)
    for st in range(2):
        for q in range(4):
            sb = q & 1
            S = vS + 16 * sb
            ex = lambda i: f"v_exp_f32 v{S+i}, v{S+i}"
            cv = lambda i: f"v_cvt_pk_bf16_f32 v{vP+i}, v{S+2*i}, v{S+2*i+1}"
            pq, pst = (q - 1, st) if q > 0 else (3, st ^ 1)
            nq, nst = (q + 1, st) if q < 3 else (0, st ^ 1)
            a(ex(0)); a(ex(1))
            a(mfPV(pq, pst, 1))
            if q == 0: a(loadV(st ^ 1))
            for i in range(2, 6): a(ex(i))
            if q == 3: a("s_waitcnt vmcnt(2)")
            a(mfS(sb ^ 1, nst, nq))
            if q == 3: a(loadK(st))
            a(ex(6)); a(ex(7))
            for i in range(4): a(cv(i))
            a(ex(8)); a(ex(9))
            if q == 0: a("s_waitcnt vmcnt(3)")
            a(mfPV(q, st, 0))
            for i in range(10, 16): a(ex(i))
            for i in range(4, 8): a(cv(i))
    a(f"""
    s_add_u32 s{sC}, s{sC}, 1
    s_cmp_lt_u32 s{sC}, 8
    s_cbranch_scc1 L_{P}_loop
    """)
    seam, inner = check_loop(a.lines[start:])
    assert seam == 0 and inner == 0, (seam, inner)
    a(mfPV(3, 1, 1))
    a(f"""
    s_mul_i32 s{sT0}, s{sW}, 2304
    v_add_u32 v{vT0}, s{sT0}, v{vKo}
    v_lshlrev_b32 v{vT1}, 2, v0
    v_add_u32 v{vT1}, s{sT0}, v{vT1}
    """)
    for q in range(4):
        o = vO + 16 * q
        a(f"""
        ds_write_b128 v{vT0}, {vr(o,4)} offset:{q*9216}
        ds_write_b128 v{vT0}, {vr(o+4,4)} offset:{q*9216+1024}
        ds_write_b32 v{vT1}, v{o+8} offset:{q*9216+2048}
        """)
    a(f"""
    s_mul_i32 s{sT0}, s{sW}, 9216
    v_add_u32 v{vT0}, s{sT0}, v{vKo}
    v_lshlrev_b32 v{vT1}, 2, v0
    v_add_u32 v{vT1}, s{sT0}, v{vT1}
    s_waitcnt lgkmcnt(0)
    s_barrier
    """)
    R = vS
    R = vO
    for s in range(4):
        o = R + 12 * s
        a(f"""
        ds_read_b128 {vr(o,4)}, v{vT0} offset:{s*2304}
        ds_read_b128 {vr(o+4,4)}, v{vT0} offset:{s*2304+1024}
        ds_read_b32 v{o+8}, v{vT1} offset:{s*2304+2048}
        """)
    a("s_waitcnt lgkmcnt(0)")
    for r in range(0, 8, 2):
        a(f"v_pk_add_f32 {vr(R+r,2)}, {vr(R+r,2)}, {vr(R+12+r,2)}")
        a(f"v_pk_add_f32 {vr(R+24+r,2)}, {vr(R+24+r,2)}, {vr(R+36+r,2)}")
    a(f"v_add_f32 v{R+8}, v{R+8}, v{R+20}")
    a(f"v_add_f32 v{R+32}, v{R+32}, v{R+44}")
    for r in range(0, 8, 2):
        a(f"v_pk_add_f32 {vr(R+r,2)}, {vr(R+r,2)}, {vr(R+24+r,2)}")
    a(f"v_add_f32 v{R+8}, v{R+8}, v{R+32}")
    a(f"v_mov_b32 v{vT2}, v{R+8}")
    for r in range(8): a(f"v_fma_f32 v{vT2}, v{R+r}, 0, v{vT2}")
    a(f"""
    s_mov_b32 s{sT0}, {hex(f32bits(2.0**-30))}
    s_mov_b32 s{sT1}, {hex(f32bits(2.0**30))}
    v_cmp_le_f32 vcc, s{sT0}, v{vT2}
    v_cmp_ge_f32 s[24:25], s{sT1}, v{vT2}
    s_and_b64 vcc, vcc, s[24:25]
    s_cmp_eq_u64 vcc, -1
    s_cbranch_scc0 L_{P}_slow
    L_{P}_fin:
    v_rcp_f32 v{vT2}, v{R+8}
    s_lshl_b32 s{sT0}, s{sQB}, 2
    s_add_u32 s{sT0}, s{sT0}, s{sW}
    s_lshl_b32 s{sT0}, s{sT0}, 5
    s_add_u32 s{sT0}, s{sT0}, s{sH}
    s_lshl_b32 s{sT0}, s{sT0}, 10
    s_add_u32 s{sT0}, s{sT0}, {WS_O}
    """)
    for r in range(8): a(f"v_mul_f32 v{R+r}, v{R+r}, v{vT2}")
    a(f"""
    v_cvt_pk_bf16_f32 v{vP}, v{R}, v{R+1}
    v_cvt_pk_bf16_f32 v{vP+1}, v{R+2}, v{R+3}
    v_cvt_pk_bf16_f32 v{vP+2}, v{R+4}, v{R+5}
    v_cvt_pk_bf16_f32 v{vP+3}, v{R+6}, v{R+7}
    v_permlane32_swap_b32 v{vP}, v{vP+2}
    v_permlane32_swap_b32 v{vP+1}, v{vP+3}
    buffer_store_dwordx4 {vr(vP,4)}, v{vKo}, {srd}, s{sT0} offen
    s_endpgm
    """)
    a.label(f"L_{P}_slow")
    a.window = []
    vM = vT3
    S = vS
    a(f"""
    s_waitcnt vmcnt(0)
    s_lshl_b32 s{sT0}, s{sW}, 10
    s_add_u32 s{sT0}, s{sT0}, s{sQ0}
    buffer_load_dwordx4 {vr(vQ,4)}, v{vKo}, {srd}, s{sT0} offen
    s_lshl_b32 s{sT1}, s{sH}, 16
    s_add_u32 s{sT1}, s{sT1}, {WS_K}
    s_mov_b32 s{sKT}, s{sT1}
    s_mov_b32 s{sC}, 0
    v_mov_b32 v{vM}, 0xff800000
    L_{P}_slow1:
    buffer_load_dwordx4 {vr(vK,4)}, v{vKo}, {srd}, s{sKT} offen
    s_add_u32 s{sKT}, s{sKT}, 1024
    s_waitcnt vmcnt(0)
    {mfS(0,0,0)}
    """)
    for r in range(0, 16, 2): a(f"v_max3_f32 v{vM}, v{vM}, v{S+r}, v{S+r+1}")
    a(f"""
    s_add_u32 s{sC}, s{sC}, 1
    s_cmp_lt_u32 s{sC}, 64
    s_cbranch_scc1 L_{P}_slow1
    v_mov_b32 v{vT0}, v{vM}
    v_mov_b32 v{vT1}, v{vM}
    v_permlane32_swap_b32 v{vT0}, v{vT1}
    v_max_f32 v{vM}, v{vT0}, v{vT1}
    s_mov_b32 s{sKT}, s{sT1}
    s_mov_b32 s{sC}, 0
    """)
    for r in range(16): a(f"v_mov_b32 v{R+r}, 0")
    a(f"""
    L_{P}_slow2:
    buffer_load_dwordx4 {vr(vK,4)}, v{vKo}, {srd}, s{sKT} offen
    {loadV(0)}
    s_waitcnt vmcnt(0)
    {mfS(0,0,0)}
    """)
    for r in range(16): a(f"v_sub_f32 v{S+r}, v{S+r}, v{vM}")
    for r in range(16): a(f"v_exp_f32 v{S+r}, v{S+r}")
    for i in range(8): a(f"v_cvt_pk_bf16_f32 v{vP+i}, v{S+2*i}, v{S+2*i+1}")
    a(mfPV(0, 0, 0)); a(mfPV(0, 0, 1))
    a(f"""
    s_nop 7
    s_add_u32 s{sC}, s{sC}, 1
    s_cmp_lt_u32 s{sC}, 64
    s_cbranch_scc1 L_{P}_slow2
    s_nop 15
    s_branch L_{P}_fin
    """)
    return NV

def gen():
    a = Asm()
    a.raw(kernel_header(NAME))
    a(f"""
    s_cmp_ge_u32 s2, 512
    s_cbranch_scc1 L_k2_end
    """)
    NV = gen_body(a)
    a.label("L_k2_end")
    a("s_endpgm")
    return a.text(), kernel_desc(NAME, NV, 40), f"; @launch kernel={NAME} grid=(512,1,1) block=(256,1,1) lds={LDS_BYTES}"

if __name__ == "__main__":
    t, d, l = gen()
    print(l); print(len(t.splitlines()))
```

```python
from asmlib import *
from layout import *

def gen_body(a, P, final, wg_sgpr=2):
    KT = 32 if final else 112
    nk = KT // 4
    D = 8 if final else 7
    ABASE = WS_O if final else WS_A
    woff = 16 if final else 48
    wbytes = 512 * 512 * 2 if final else 1792 * 512 * 2
    sWS, sWT, sWS2, sWT2, sOUT = 8, 12, 16, 20, 24
    sW, sTW, sFJ = 28, 29, 30
    sT0, sT1, sT2 = 31, 32, 33
    sAO, sWO = 34, 35
    sWO2 = 36
    sLB = 37
    sC = 38
    vL16 = 1
    vWd = 2
    vWr = [3, 4]
    vT0, vT1, vT2, vT3 = 5, 6, 7, 8
    vG = 9
    vB = 12
    vWf = 20
    vA = 36
    vACC = vA + D * 8
    NV = vACC + 64
    A1 = KT * 1024
    a(f"""
    s_load_dwordx2 s[4:5], s[0:1], 80
    s_load_dwordx2 s[6:7], s[0:1], {woff}
    """)
    if final: a(f"s_load_dwordx2 s[{sOUT}:{sOUT+1}], s[0:1], 64")
    a(f"""
    v_lshrrev_b32 v1, 6, v0
    v_and_b32 v0, 63, v0
    v_readfirstlane_b32 s{sW}, v1
    s_and_b32 s{sT0}, s{wg_sgpr}, 7
    s_lshr_b32 s{sT1}, s{wg_sgpr}, 3
    s_lshl_b32 s{sTW}, s{sT0}, 2
    s_and_b32 s{sT2}, s{sT1}, 3
    s_add_u32 s{sTW}, s{sTW}, s{sT2}
    s_lshr_b32 s{sFJ}, s{sT1}, 2
    s_mov_b32 s{sWS+2}, {WS_SIZE}
    s_mov_b32 s{sWS+3}, 0x00020000
    s_mov_b32 s{sWT+2}, {wbytes}
    s_mov_b32 s{sWT+3}, 0x00020000
    s_mul_i32 s{sT0}, s{sTW}, {2*KT}
    s_mul_i32 s{sT1}, s{sW}, {nk}
    s_add_u32 s{sT0}, s{sT0}, s{sT1}
    s_lshl_b32 s{sAO}, s{sT0}, 10
    s_add_u32 s{sAO}, s{sAO}, {ABASE}
    s_lshl_b32 s{sWO}, s{sT1}, 14
    s_lshl_b32 s{sT2}, s{sFJ}, 7
    s_add_u32 s{sWO}, s{sWO}, s{sT2}
    s_mul_i32 s{sLB}, s{sW}, {D*2048}
    v_lshlrev_b32 v{vL16}, 4, v0
    v_add_u32 v{vT3}, {A1}, v{vL16}
    v_lshrrev_b32 v{vT0}, 2, v0
    v_lshrrev_b32 v{vT1}, 4, v0
    v_xor_b32 v{vT0}, v{vT0}, v{vT1}
    v_and_b32 v{vT0}, 1, v{vT0}
    v_lshlrev_b32 v{vT0}, 6, v{vT0}
    v_and_b32 v{vT1}, 3, v0
    v_lshl_add_u32 v{vT0}, v{vT1}, 4, v{vT0}
    v_lshrrev_b32 v{vT1}, 3, v0
    v_lshl_add_u32 v{vWd}, v{vT1}, 10, v{vT0}
    v_lshrrev_b32 v{vT0}, 5, v0
    v_bfe_u32 v{vT1}, v0, 2, 2
    v_lshl_add_u32 v{vT0}, v{vT0}, 3, v{vT1}
    v_lshlrev_b32 v{vT0}, 7, v{vT0}
    v_lshrrev_b32 v{vT1}, 1, v{vT1}
    v_lshl_add_u32 v{vT0}, v{vT1}, 6, v{vT0}
    v_bfe_u32 v{vT1}, v0, 4, 1
    v_lshl_add_u32 v{vT0}, v{vT1}, 5, v{vT0}
    v_and_b32 v{vT1}, 3, v0
    v_lshl_add_u32 v{vT0}, v{vT1}, 3, v{vT0}
    v_add_u32 v{vWr[0]}, s{sLB}, v{vT0}
    v_xor_b32 v{vT0}, 64, v{vT0}
    v_add_u32 v{vWr[1]}, s{sLB}, v{vT0}
    s_waitcnt lgkmcnt(0)
    s_mov_b32 s{sWS}, s4
    s_mov_b32 s{sWS+1}, s5
    s_mov_b32 s{sWT}, s6
    s_mov_b32 s{sWT+1}, s7
    """)
    if not final:
        a(f"""
        s_mov_b32 s{sWS2}, s4
        s_mov_b32 s{sWS2+1}, s5
        s_mov_b32 s{sWS2+2}, {WS_SIZE}
        s_mov_b32 s{sWS2+3}, 0x00020000
        s_mov_b32 s{sWT2}, s6
        s_mov_b32 s{sWT2+1}, s7
        s_mov_b32 s{sWT2+2}, {wbytes}
        s_mov_b32 s{sWT2+3}, 0x00020000
        """)
    def loads(d, alt=False):
        ws, wt = (sWS2, sWT2) if alt else (sWS, sWT)
        return [f"s_add_u32 m0, s{sLB}, {d*2048}",
                f"s_add_u32 s{sWO2}, s{sWO}, 8192",
                f"buffer_load_dwordx4 v{vWd}, s[{wt}:{wt+3}], s{sWO} offen lds",
                f"s_add_u32 m0, s{sLB}, {d*2048+1024}",
                f"buffer_load_dwordx4 {vr(vA+8*d,4)}, v{vL16}, s[{ws}:{ws+3}], s{sAO} offen",
                f"buffer_load_dwordx4 v{vWd}, s[{wt}:{wt+3}], s{sWO2} offen lds",
                f"buffer_load_dwordx4 {vr(vA+8*d+4,4)}, v{vT3}, s[{ws}:{ws+3}], s{sAO} offen",
                f"s_add_u32 s{sWO}, s{sWO}, 16384",
                f"s_add_u32 s{sAO}, s{sAO}, 1024"]
    def wreads(d, buf):
        L = []
        for fi in range(2):
            for t2 in range(2):
                L.append(f"ds_read_b64_tr_b16 {vr(vWf+8*buf+4*fi+2*t2,2)}, v{vWr[fi]} offset:{d*2048+t2*512}")
        return L
    def mfmas(d, buf, first=False):
        L = []
        for fi in range(2):
            for ti in range(2):
                acc = vACC + 16 * (fi * 2 + ti)
                c = "0" if first else vr(acc, 16)
                L.append(f"v_mfma_f32_32x32x16_bf16 {vr(acc,16)}, {vr(vWf+8*buf+4*fi,4)}, {vr(vA+8*d+4*ti,4)}, {c}")
        return L
    for d in range(D): a("\n".join(loads(d)))
    nextra = 0
    if final:
        a(f"""
        s_lshl_b32 s{sT0}, s{wg_sgpr}, 2
        s_add_u32 s{sT0}, s{sT0}, s{sW}
        s_lshl_b32 s{sT0}, s{sT0}, 11
        s_add_u32 s{sT0}, s{sT0}, {WS_B}
        buffer_load_dwordx4 {vr(vB,4)}, v{vL16}, s[{sWS}:{sWS+3}], s{sT0} offen
        buffer_load_dwordx4 {vr(vB+4,4)}, v{vL16}, s[{sWS}:{sWS+3}], s{sT0} offen offset:1024
        s_lshl_b32 s{sT0}, s{sTW}, 1
        s_and_b32 s{sT1}, s{sW}, 1
        s_add_u32 s{sT0}, s{sT0}, s{sT1}
        s_lshl_b32 s{sT0}, s{sT0}, 7
        s_add_u32 s{sT0}, s{sT0}, {WS_G}
        v_and_b32 v{vT0}, 31, v0
        v_lshlrev_b32 v{vT0}, 2, v{vT0}
        buffer_load_dword v{vG}, v{vT0}, s[{sWS}:{sWS+3}], s{sT0} offen
        """)
        nextra = 3
        a(f"s_waitcnt vmcnt({4*(D-1)+nextra})")
        a("\n".join(wreads(0, 0)))
        for s in range(nk):
            if s + 1 < nk:
                a(f"s_waitcnt vmcnt({4*(D-2-s)+nextra})")
                a("\n".join(wreads(s + 1, (s + 1) & 1)))
                a("s_waitcnt lgkmcnt(4)")
            else:
                a("s_waitcnt lgkmcnt(0)")
            a("\n".join(mfmas(s, s & 1, first=(s == 0))))
    else:
        for r in range(64): a(f"v_mov_b32 v{vACC+r}, 0")
        a(f"s_mov_b32 s{sC}, 0")
        a(f"s_waitcnt vmcnt({4*(D-1)})")
        a("\n".join(wreads(0, 0)))
        a.raw(".p2align 6")
        a.label(f"L_{P}_loop")
        start = len(a.lines)
        for s in range(2 * D):
            d = s % D
            a(f"s_waitcnt vmcnt({4*(D-2)})")
            a("\n".join(wreads((s + 1) % D, (s + 1) & 1)))
            a("s_waitcnt lgkmcnt(4)")
            M = mfmas(d, s & 1)
            Ld = loads(d, alt=(s >= D))
            for m in M: a(m)
            a("\n".join(Ld))
        a(f"""
        s_mov_b32 s{sWS2+2}, 0
        s_mov_b32 s{sWT2+2}, 0
        s_add_u32 s{sC}, s{sC}, 1
        s_cmp_lt_u32 s{sC}, 2
        s_cbranch_scc1 L_{P}_loop
        s_waitcnt vmcnt(0) lgkmcnt(0)
        """)
        seam, inner = check_loop(a.lines[start:])
        assert seam == 0 and inner == 0, (seam, inner)
    a(f"""
    s_barrier
    s_lshl_b32 s{sT0}, s{sW}, 12
    v_add_u32 v{vT0}, s{sT0}, v{vL16}
    s_lshl_b32 s{sT0}, s{sW}, 14
    v_add_u32 v{vT1}, s{sT0}, v{vL16}
    """)
    for t in range(4):
        for q in range(4):
            a(f"ds_write_b128 v{vT0}, {vr(vACC+16*t+4*q,4)} offset:{t*16384+q*1024}")
    a("s_waitcnt lgkmcnt(0)")
    a("s_barrier")
    for s in range(4):
        for q in range(4):
            a(f"ds_read_b128 {vr(vACC+16*s+4*q,4)}, v{vT1} offset:{s*4096+q*1024}")
    a("s_waitcnt lgkmcnt(8)")
    for r in range(0, 16, 2): a(f"v_pk_add_f32 {vr(vACC+r,2)}, {vr(vACC+r,2)}, {vr(vACC+16+r,2)}")
    a("s_waitcnt lgkmcnt(0)")
    for r in range(0, 16, 2): a(f"v_pk_add_f32 {vr(vACC+32+r,2)}, {vr(vACC+32+r,2)}, {vr(vACC+48+r,2)}")
    for r in range(0, 16, 2): a(f"v_pk_add_f32 {vr(vACC+r,2)}, {vr(vACC+r,2)}, {vr(vACC+32+r,2)}")
    p = vWf
    if not final:
        for i in range(8): a(f"v_cvt_pk_bf16_f32 v{p+i}, v{vACC+2*i}, v{vACC+2*i+1}")
        a(f"""
        s_lshl_b32 s{sT0}, s{wg_sgpr}, 2
        s_add_u32 s{sT0}, s{sT0}, s{sW}
        s_lshl_b32 s{sT0}, s{sT0}, 11
        s_add_u32 s{sT0}, s{sT0}, {WS_B}
        buffer_store_dwordx4 {vr(p,4)}, v{vL16}, s[{sWS}:{sWS+3}], s{sT0} offen
        buffer_store_dwordx4 {vr(p+4,4)}, v{vL16}, s[{sWS}:{sWS+3}], s{sT0} offen offset:1024
        s_endpgm
        """)
    else:
        bb = vACC + 16
        a("s_waitcnt vmcnt(0)")
        for i in range(8):
            a(f"v_lshlrev_b32 v{bb+2*i}, 16, v{vB+i}")
            a(f"v_and_b32 v{bb+2*i+1}, 0xffff0000, v{vB+i}")
        for r in range(16): a(f"v_sub_f32 v{vACC+r}, v{vACC+r}, v{bb+r}")
        for r in range(16): a(f"v_fma_f32 v{vACC+r}, v{vG}, v{vACC+r}, v{bb+r}")
        for i in range(8): a(f"v_cvt_pk_bf16_f32 v{p+i}, v{vACC+2*i}, v{vACC+2*i+1}")
        a(f"""
        s_mov_b32 s{sOUT+2}, {2048*512*2}
        s_mov_b32 s{sOUT+3}, 0x00020000
        s_lshl_b32 s{sT0}, s{sTW}, 1
        s_and_b32 s{sT1}, s{sW}, 1
        s_add_u32 s{sT0}, s{sT0}, s{sT1}
        s_lshl_b32 s{sT0}, s{sT0}, 15
        s_lshl_b32 s{sT1}, s{sFJ}, 7
        s_add_u32 s{sT0}, s{sT0}, s{sT1}
        s_lshr_b32 s{sT1}, s{sW}, 1
        s_lshl_b32 s{sT1}, s{sT1}, 6
        s_add_u32 s{sT0}, s{sT0}, s{sT1}
        v_and_b32 v{vT0}, 31, v0
        v_lshlrev_b32 v{vT0}, 10, v{vT0}
        v_lshrrev_b32 v{vT1}, 5, v0
        v_lshl_add_u32 v{vT0}, v{vT1}, 4, v{vT0}
        v_permlane32_swap_b32 v{p}, v{p+2}
        v_permlane32_swap_b32 v{p+1}, v{p+3}
        v_permlane32_swap_b32 v{p+4}, v{p+6}
        v_permlane32_swap_b32 v{p+5}, v{p+7}
        buffer_store_dwordx4 {vr(p,4)}, v{vT0}, s[{sOUT}:{sOUT+3}], s{sT0} offen
        buffer_store_dwordx4 {vr(p+4,4)}, v{vT0}, s[{sOUT}:{sOUT+3}], s{sT0} offen offset:32
        s_endpgm
        """)
    return NV

def gen(final):
    NAME = "k4_final_kernel" if final else "k3_ffn2_kernel"
    P = "k4" if final else "k3"
    a = Asm()
    a.raw(kernel_header(NAME))
    a(f"""
    s_cmp_ge_u32 s2, 256
    s_cbranch_scc1 L_{P}_end
    """)
    NV = gen_body(a, P, final)
    a.label(f"L_{P}_end")
    a("s_endpgm")
    return a.text(), kernel_desc(NAME, NV, 48), f"; @launch kernel={NAME} grid=(256,1,1) block=(256,1,1) lds=65536"

if __name__ == "__main__":
    for f in (False, True):
        t, d, l = gen(f)
        print(l); print(len(t.splitlines()))
```

```python
MB = 1 << 20
WS_Q = 0
WS_K = 2 * MB
WS_V = 4 * MB
WS_O = 6 * MB
WS_G = 8 * MB
WS_B = 9 * MB
WS_A = 12 * MB
WS_SIZE = 20 * MB
QSCALE = 0.25 * 1.4426950408889634
LOG2E = 1.4426950408889634
import struct
def f32bits(x): return struct.unpack("<I", struct.pack("<f", x))[0]
WS_FA = 8 * MB + 65536
WS_FQ = 8 * MB + 131072
WS_FA2 = 8 * MB + 147456
```

```python
import sys, importlib
import k1, k2, k3
HDR = open("gated_mix__softmax_full_mha__dense_activation_mish__prompt.s.ref").read().split("; Override launch")[0]
def build(parts, path):
    s = HDR
    for t, d, l in parts: s += l + "\n"
    s += '.amdgcn_target "amdgcn-amd-amdhsa--gfx950"\n.text\n'
    seen = set()
    for t, d, l in parts:
        if d in seen: continue
        s += t
    s += '.section .rodata,"a"\n'
    for t, d, l in parts:
        if d in seen: continue
        seen.add(d)
        s += d
    open(path, "w").write(s)
if __name__ == "__main__":
    out = sys.argv[1] if len(sys.argv) > 1 else "gated_mix__softmax_full_mha__dense_activation_mish__prompt.s"
    build([k1.gen(), k2.gen(), k3.gen(False), k3.gen(True)], out)
```

```python
import re

TRANS = ("v_exp_f32", "v_log_f32", "v_rcp_f32", "v_rsq_f32", "v_sqrt_f32", "v_sin_f32", "v_cos_f32",
         "v_exp_f16", "v_log_f16", "v_rcp_f16", "v_rcp_iflag_f32")

def regs_of(tok):
    tok = tok.strip()
    tok = tok.lstrip("-")
    if tok.startswith("|") and tok.endswith("|"):
        tok = tok[1:-1]
    m = re.fullmatch(r"abs\((.*)\)", tok)
    if m: tok = m.group(1)
    m = re.fullmatch(r"([vsa])\[(\d+):(\d+)\]", tok)
    if m:
        return {(m.group(1), i) for i in range(int(m.group(2)), int(m.group(3)) + 1)}
    m = re.fullmatch(r"([vsa])(\d+)", tok)
    if m:
        return {(m.group(1), int(m.group(2)))}
    if tok in ("vcc", "vcc_lo", "vcc_hi"): return {("x", "vcc")}
    if tok in ("exec", "exec_lo", "exec_hi"): return {("x", "exec")}
    if tok == "m0": return {("x", "m0")}
    return set()

def split_ops(s):
    ops, depth, cur = [], 0, ""
    for ch in s:
        if ch in "[(": depth += 1
        if ch in "])": depth -= 1
        if ch == "," and depth == 0:
            ops.append(cur.strip()); cur = ""
        else:
            cur += ch
    if cur.strip(): ops.append(cur.strip())
    return ops

class Inst:
    def __init__(self, text):
        self.text = text
        t = text.split(";")[0].strip()
        parts = t.split(None, 1)
        self.op = parts[0]
        rest = parts[1] if len(parts) > 1 else ""
        ops = split_ops(rest)
        mods = ""
        if ops:
            lp = ops[-1].split(None, 1)
            ops[-1] = lp[0]
            mods = lp[1] if len(lp) > 1 else ""
        self.ops, self.mods = ops, mods
        op = self.op
        self.kind = "other"
        self.wr, self.rd = set(), set()
        self.srcA = self.srcB = self.srcC = set()
        self.passes = 0
        self.nop = 1
        self.store_data = set()
        R = [regs_of(o) for o in ops]
        if op == "s_nop":
            self.kind = "nop"; self.nop = int(ops[0], 0) + 1
        elif op.startswith("v_mfma"):
            self.kind = "mfma"
            self.wr = R[0]; self.srcA, self.srcB, self.srcC = R[1], R[2], R[3]
            self.rd = R[1] | R[2] | R[3]
            self.passes = 8 if "32x32" in op else 4
        elif op.startswith("v_"):
            self.kind = "valu"
            if op.startswith("v_permlane") and "swap" in op:
                self.wr = R[0] | R[1]; self.rd = R[0] | R[1]
            elif op.startswith("v_cmp"):
                self.wr = R[0]; self.rd = set().union(*R[1:])
            elif op.startswith(("v_add_co", "v_sub_co", "v_subrev_co", "v_addc_co", "v_subb_co")):
                self.wr = R[0] | R[1]; self.rd = set().union(*R[2:])
            else:
                self.wr = R[0]; self.rd = set().union(*R[1:]) if len(R) > 1 else set()
                if op.startswith(("v_fmac", "v_dot2c", "v_pk_fmac", "v_writelane")): self.rd |= R[0]
                if op.startswith("v_cndmask") and len(ops) == 3: self.rd |= {("x", "vcc")}
            self.trans = op.replace("_e32", "").replace("_e64", "") in TRANS
            self.dpp = ("_dpp" in op) or ("quad_perm" in mods) or ("row_" in mods)
            if self.dpp: self.rd |= R[0]
        elif op.startswith("ds_"):
            self.kind = "ds"
            if op.startswith(("ds_read", "ds_bpermute", "ds_permute", "ds_swizzle")):
                self.wr = R[0]; self.rd = set().union(*R[1:])
            else:
                self.rd = set().union(*R)
        elif op.startswith(("buffer_", "global_", "flat_")):
            self.kind = "vmem"
            allm = text
            if "_lds" in op or re.search(r"\blds\b", mods):
                self.rd = set().union(*R) | {("x", "m0")}
                self.ldsdma = True
            elif "load" in op:
                self.wr = R[0]; self.rd = set().union(*R[1:])
            elif "store" in op:
                self.rd = set().union(*R)
                d = R[0] if op.startswith("buffer_") else R[1]
                if "x3" in op or "x4" in op: self.store_data = d
            elif "atomic" in op:
                self.rd = set().union(*R)
                if "sc0" in mods: self.wr = R[0]
            elif op in ("buffer_wbl2", "buffer_inv"):
                pass
        elif op.startswith("s_"):
            self.kind = "salu"
            if op.startswith(("s_cmp", "s_cbranch", "s_branch", "s_waitcnt", "s_barrier", "s_endpgm", "s_setprio", "s_sleep", "s_bitcmp")):
                self.rd = set().union(*R) if R else set()
            else:
                self.wr = R[0] if R else set(); self.rd = set().union(*R[1:]) if len(R) > 1 else set()
                if "saveexec" in op: self.wr |= {("x", "exec")}

def vonly(S): return {r for r in S if r[0] in "va"}
def sonly(S): return {r for r in S if r[0] == "s" or r == ("x", "vcc")}

def required_gap(p, c):
    need = 0
    if p.kind == "valu":
        pw = vonly(p.wr)
        if c.kind == "mfma" and pw & c.rd: need = max(need, 2)
        if c.kind == "valu":
            if p.trans and not c.trans and pw & c.rd: need = max(need, 1)
            if p.trans and c.trans and pw & c.rd: need = max(need, 1)
            if c.op.startswith("v_permlane") and pw & c.rd: need = max(need, 2)
            if c.dpp and pw & c.rd: need = max(need, 2)
            if c.op.startswith(("v_readfirstlane", "v_readlane")) and pw & c.rd: need = max(need, 1)
            if ("op_sel" in p.mods or "sdwa" in p.op) and not p.op.startswith("v_pk_") and pw & (c.rd | c.wr): need = max(need, 1)
        ps = sonly(p.wr)
        if ps:
            if c.kind == "vmem" and ps & c.rd: need = max(need, 5)
            if c.kind == "valu" and ps & c.rd:
                need = max(need, 4 if c.op.startswith(("v_readlane", "v_writelane")) else 2)
            if c.kind == "salu" and ps & c.rd: need = max(need, 1)
    if p.kind == "mfma":
        big = p.passes == 8
        if c.kind == "mfma":
            if p.wr & (c.srcA | c.srcB): need = max(need, 12 if big else 8)
            if p.wr & c.srcC and not (p.wr == c.srcC and p.passes == c.passes): need = max(need, 10 if big else 6)
            if p.wr & c.wr and not (p.wr == c.srcC or p.wr == c.wr): need = max(need, 10 if big else 6)
        elif c.kind in ("valu", "ds", "vmem"):
            if p.wr & (c.rd | c.wr): need = max(need, 12 if big else 8)
            if c.kind == "valu" and p.srcC & c.wr: need = max(need, 7 if big else 3)
    if p.kind == "salu" and ("x", "m0") in p.wr and getattr(c, "ldsdma", False): need = max(need, 1)
    if p.kind == "vmem" and p.store_data and (p.store_data & c.wr): need = max(need, 2)
    return need

class Asm:
    def __init__(self):
        self.lines = []
        self.window = []
        self.nops_added = 0
    def raw(self, s):
        self.lines.append(s)
    def comment(self, s):
        self.lines.append("    ; " + s)
    def label(self, l):
        self.lines.append(l + ":")
    def __call__(self, text):
        for t in text.strip().split("\n"):
            t = t.strip()
            if not t: continue
            if t.startswith(";"):
                self.lines.append("    " + t); continue
            if t.endswith(":") and " " not in t:
                self.lines.append(t); continue
            self._emit(t)
    def _emit(self, t):
        ins = Inst(t)
        dist = 0; need_total = 0
        for p in reversed(self.window):
            g = required_gap(p, ins)
            if g > dist: need_total = max(need_total, g - dist)
            dist += p.nop
            if dist > 24: break
        while need_total > 0:
            n = min(need_total, 16)
            nop = Inst(f"s_nop {n-1}")
            self.lines.append(f"    s_nop {n-1}")
            self.window.append(nop)
            self.nops_added += n
            need_total -= n
        self.lines.append("    " + t)
        self.window.append(ins)
        if len(self.window) > 40: self.window = self.window[-40:]
    def fence(self):
        self._emit("s_nop 15")
    def text(self):
        return "\n".join(self.lines) + "\n"

def check_loop(lines_body):
    a = Asm()
    insts = [l.strip() for l in lines_body if l.strip() and not l.strip().startswith(";") and not l.strip().endswith(":") and not l.strip().startswith(".")]
    for t in insts: a._emit(t)
    n0 = a.nops_added
    for t in insts: a._emit(t)
    return a.nops_added - n0, n0

def vr(base, n=1):
    return f"v{base}" if n == 1 else f"v[{base}:{base+n-1}]"
def sr(base, n=1):
    return f"s{base}" if n == 1 else f"s[{base}:{base+n-1}]"

def kernel_header(name):
    return f""".globl {name}
.p2align 8
.type {name},@function
{name}:
"""

def kernel_desc(name, nvgpr, nsgpr=96, accum=None):
    if PROF: nsgpr = 100
    if accum is None: accum = (nvgpr + 3) // 4 * 4
    return f""".p2align 6
.amdhsa_kernel {name}
  .amdhsa_next_free_vgpr {nvgpr}
  .amdhsa_next_free_sgpr {nsgpr}
  .amdhsa_accum_offset {accum}
  .amdhsa_group_segment_fixed_size 0
  .amdhsa_kernarg_size 88
  .amdhsa_user_sgpr_count 2
  .amdhsa_user_sgpr_kernarg_segment_ptr 1
  .amdhsa_system_sgpr_workgroup_id_x 1
.end_amdhsa_kernel
"""


PROF = False
PROF_BASE = 24 << 20
class Prof:
    def __init__(self, a, kidx, sbase=80):
        self.a, self.kidx, self.sbase, self.n = a, kidx, sbase, 0
    def stamp(self, i):
        if not PROF: return
        r = self.sbase + 2 * i
        self.a(f"s_memrealtime s[{r}:{r+1}]")
        if i in (2, 3):
            r2 = self.sbase + 12 + 2 * (i - 2)
            self.a(f"s_memtime s[{r2}:{r2+1}]")
        self.a("s_waitcnt lgkmcnt(0)")
        self.n = max(self.n, i + 1)
    def dump(self, nst, wg_sgpr, wave_sgpr, waves_per_wg, vtmp, vtmp2):
        if not PROF: return
        a = self.a
        a(f"""
        s_load_dwordx2 s[72:73], s[0:1], 80
        s_mul_i32 s76, s{wg_sgpr}, {waves_per_wg}
        s_add_u32 s76, s76, s{wave_sgpr}
        s_lshl_b32 s76, s76, 6
        s_add_u32 s76, s76, {PROF_BASE + self.kidx * (1 << 20)}
        s_mov_b32 s74, {PROF_BASE + (8 << 20)}
        s_mov_b32 s75, 0x00020000
        s_getreg_b32 s77, hwreg(HW_REG_HW_ID)
        s_getreg_b32 s78, hwreg(HW_REG_XCC_ID)
        s_mov_b64 exec, 1
        v_mov_b32 v{vtmp}, 0
        s_waitcnt lgkmcnt(0)
        """)
        for i in range(8):
            a(f"v_mov_b32 v{vtmp2}, s{self.sbase+2*i}")
            a(f"buffer_store_dword v{vtmp2}, v{vtmp}, s[72:75], s76 offen offset:{4*i}")
        a(f"v_mov_b32 v{vtmp2}, s77")
        a(f"buffer_store_dword v{vtmp2}, v{vtmp}, s[72:75], s76 offen offset:56")
        a(f"v_mov_b32 v{vtmp2}, s78")
        a(f"buffer_store_dword v{vtmp2}, v{vtmp}, s[72:75], s76 offen offset:60")
```

```python
import sys, importlib
import asmlib
if '--prof' in sys.argv:
    asmlib.PROF = True; sys.argv.remove('--prof')
import k1, k2, k3
HDR = open("gated_mix__softmax_full_mha__dense_activation_mish__prompt.s.ref").read().split("; Override launch")[0]
def build(parts, path):
    s = HDR
    for t, d, l in parts: s += l + "\n"
    s += '.amdgcn_target "amdgcn-amd-amdhsa--gfx950"\n.text\n'
    seen = set()
    for t, d, l in parts:
        if d in seen: continue
        seen.add(d)
        s += t
    s += "L_code_end:\n"
    seen = set()
    s += '.section .rodata,"a"\n'
    for t, d, l in parts:
        if d in seen: continue
        seen.add(d)
        s += d
    open(path, "w").write(s)
if __name__ == "__main__":
    out = sys.argv[1] if len(sys.argv) > 1 else "gated_mix__softmax_full_mha__dense_activation_mish__prompt.s"
    build([k1.gen(), k2.gen(), k3.gen(False), k3.gen(True)], out)
```

```python
from asmlib import *
import asmlib
from layout import *

NAME = "k1_proj_kernel"
XS = 16384
WQS = 12288
W1S = 16384
X_BASE = 0
WQ_BASE = 3 * XS
W1_BASE = WQ_BASE + 3 * WQS
LDS_BYTES = W1_BASE + 3 * W1S

def gen():
    a = Asm()
    a.raw(kernel_header(NAME))
    pf = Prof(a, 0)
    pf.stamp(0)
    sX, sWQ, sW1, sWS, sB1, sGW = 16, 20, 24, 28, 32, 36
    sWAVE, sW, sI, sJ = 40, 41, 42, 43
    sSOX, sSOW = 44, 45
    sOX, sOW = 46, 47
    sN, sD, sDW = 48, 49, 50
    sC = 51
    sMX = [52, 53, 54]
    sMW = [55, 56, 57, 58]
    sT0, sT1, sT2 = 60, 61, 62
    a(f"""
    s_cmp_ge_u32 s2, 256
    s_cbranch_scc1 L_k1_end
    s_load_dwordx4 s[4:7], s[0:1], 0
    s_load_dwordx4 s[8:11], s[0:1], 32
    s_load_dwordx2 s[12:13], s[0:1], 56
    s_load_dwordx2 s[14:15], s[0:1], 80
    v_lshrrev_b32 v1, 6, v0
    v_and_b32 v0, 63, v0
    v_readfirstlane_b32 s{sWAVE}, v1
    s_and_b32 s{sT0}, s2, 7
    s_lshr_b32 s{sT1}, s2, 3
    s_and_b32 s{sI}, s{sT0}, 1
    s_lshl_b32 s{sI}, s{sI}, 3
    s_and_b32 s{sT2}, s{sT1}, 7
    s_add_u32 s{sI}, s{sI}, s{sT2}
    s_lshr_b32 s{sJ}, s{sT0}, 1
    s_lshl_b32 s{sJ}, s{sJ}, 2
    s_lshr_b32 s{sT2}, s{sT1}, 3
    s_add_u32 s{sJ}, s{sJ}, s{sT2}
    s_and_b32 s{sW}, s{sWAVE}, 3
    s_mov_b32 s{sX+2}, {2048*512*2}
    s_mov_b32 s{sX+3}, 0x00020000
    s_mov_b32 s{sWQ+2}, {512*1536*2}
    s_mov_b32 s{sWQ+3}, 0x00020000
    s_mov_b32 s{sW1+2}, {512*1792*2}
    s_mov_b32 s{sW1+3}, 0x00020000
    s_mov_b32 s{sWS+2}, {WS_SIZE}
    s_mov_b32 s{sWS+3}, 0x00020000
    s_mov_b32 s{sB1+2}, {1792*2}
    s_mov_b32 s{sB1+3}, 0x00020000
    s_mov_b32 s{sGW+2}, {512*2}
    s_mov_b32 s{sGW+3}, 0x00020000
    s_lshl_b32 s{sSOX}, s{sI}, 17
    s_mov_b32 s{sSOW}, 0
    s_mov_b32 s{sOX}, 0
    s_mov_b32 s{sOW}, 0
    s_mov_b32 s{sC}, 0
    """)
    vL = 0
    vN16, vG, vR, vC = 2, 3, 4, 5
    vT0, vT1, vT2, vT3 = 6, 7, 8, 9
    vXr = [10, 11]
    vXd = [12, 13, 14]
    vWd = [15, 16, 17, 18]
    vWr = list(range(20, 27))
    vGX, vGW = 28, 36
    vF = 44
    FSZ = 36
    vACC = vF + 2 * FSZ
    NV = vACC + 56
    a(f"""
    v_and_b32 v{vN16}, 15, v0
    v_lshrrev_b32 v{vG}, 4, v0
    v_bfe_u32 v{vR}, v0, 2, 2
    v_and_b32 v{vC}, 3, v0
    s_lshl_b32 s{sT0}, s{sW}, 12
    v_lshrrev_b32 v{vT0}, 1, v{vN16}
    v_xor_b32 v{vT0}, v{vG}, v{vT0}
    v_lshlrev_b32 v{vT0}, 4, v{vT0}
    v_lshl_add_u32 v{vT0}, v{vN16}, 7, v{vT0}
    v_add_u32 v{vXr[0]}, s{sT0}, v{vT0}
    v_xor_b32 v{vXr[1]}, 64, v{vXr[0]}
    v_and_b32 v{vT0}, 7, v0
    v_xor_b32 v{vT0}, v{vT0}, v{vG}
    v_lshlrev_b32 v{vT0}, 4, v{vT0}
    v_lshrrev_b32 v{vT1}, 3, v0
    v_lshl_add_u32 v{vT0}, v{vT1}, 10, v{vT0}
    s_waitcnt lgkmcnt(0)
    s_mov_b32 s{sX}, s4
    s_mov_b32 s{sX+1}, s5
    s_mov_b32 s{sWQ}, s6
    s_mov_b32 s{sWQ+1}, s7
    s_mov_b32 s{sW1}, s8
    s_mov_b32 s{sW1+1}, s9
    s_mov_b32 s{sB1}, s10
    s_mov_b32 s{sB1+1}, s11
    s_mov_b32 s{sGW}, s12
    s_mov_b32 s{sGW+1}, s13
    s_mov_b32 s{sWS}, s14
    s_mov_b32 s{sWS+1}, s15
    s_cmp_ge_u32 s{sWAVE}, 4
    s_cbranch_scc1 L_k1_ffn
    """)

    def frag_regs(buf):
        base = vF + buf * FSZ
        X = [base, base + 4]
        W = [base + 8 + 4 * i for i in range(7)]
        return X, W

    def role(name, nt, nx, nw, isq):
        wslot = WQS if isq else W1S
        srdW = sWQ if isq else sW1
        wadv = 64 * 3072 if isq else 64 * 3584
        ndma = nx + nw
        def dma_list():
            L = []
            for q in range(nx):
                L.append([f"s_add_u32 m0, s{sMX[q]}, s{sOX}",
                          f"buffer_load_dwordx4 v{vXd[q]}, s[{sX}:{sX+3}], s{sSOX} offen lds"])
            for q in range(nw):
                L.append([f"s_add_u32 m0, s{sMW[q]}, s{sOW}",
                          f"buffer_load_dwordx4 v{vWd[q]}, s[{srdW}:{srdW+3}], s{sSOW} offen lds"])
            return L
        def adv_src():
            return [f"s_add_u32 s{sSOX}, s{sSOX}, 128", f"s_add_u32 s{sSOW}, s{sSOW}, {wadv}"]
        def slot_next():
            return [f"s_add_u32 s{sN}, s{sOX}, {XS}",
                    f"s_cmp_eq_u32 s{sN}, {3*XS}",
                    f"s_cselect_b32 s{sN}, 0, s{sN}",
                    f"s_sub_u32 s{sD}, s{sN}, s{sOX}",
                    f"s_mov_b32 s{sOX}, s{sN}",
                    f"s_add_u32 s{sN}, s{sOW}, {wslot}",
                    f"s_cmp_eq_u32 s{sN}, {3*wslot}",
                    f"s_cselect_b32 s{sN}, 0, s{sN}",
                    f"s_sub_u32 s{sDW}, s{sN}, s{sOW}",
                    f"s_mov_b32 s{sOW}, s{sN}"]
        def reads(buf, s2):
            X, W = frag_regs(buf)
            L = []
            for t in range(2):
                L.append(f"ds_read_b128 {vr(X[t],4)}, v{vXr[s2]} offset:{t*2048}")
            for ct in range(nt):
                for t2 in range(2):
                    if isq:
                        va = vWr[ct & 1]; off = (32 * s2 + 4 * t2) * 192 + ct * 32
                    else:
                        va = vWr[ct]; off = (32 * s2 + 4 * t2) * 256
                    L.append(f"ds_read_b64_tr_b16 {vr(W[ct]+2*t2,2)}, v{va} offset:{off}")
            return L
        def mfmas(buf):
            X, W = frag_regs(buf)
            L = []
            for ct in range(nt):
                for t in range(2):
                    acc = vACC + (ct * 2 + t) * 4
                    if isq and ct >= 4:
                        L.append(f"v_mfma_f32_16x16x32_bf16 {vr(acc,4)}, {vr(X[t],4)}, {vr(W[ct],4)}, {vr(acc,4)}")
                    else:
                        L.append(f"v_mfma_f32_16x16x32_bf16 {vr(acc,4)}, {vr(W[ct],4)}, {vr(X[t],4)}, {vr(acc,4)}")
            return L
        def interleave(M, O, per=2):
            O = list(O)
            for m in M:
                a(m)
                for _ in range(per):
                    if O:
                        o = O.pop(0)
                        a("\n".join(o) if isinstance(o, list) else o)
            for o in O:
                a("\n".join(o) if isinstance(o, list) else o)

        if isq:
            a(f"""
            s_lshl_b32 s{sT0}, s{sI}, 7
            s_lshl_b32 s{sT1}, s{sJ}, 3
            s_add_u32 s{sT0}, s{sT0}, s{sT1}
            s_lshl_b32 s{sT1}, s{sW}, 1
            s_add_u32 s{sT0}, s{sT0}, s{sT1}
            s_lshl_b32 s{sT1}, s{sT0}, 10
            v_and_b32 v{vT1}, 31, v0
            v_lshlrev_b32 v{vT1}, 5, v{vT1}
            v_lshrrev_b32 v{vT2}, 5, v0
            v_lshl_add_u32 v{vT2}, v{vT2}, 10, v{vT1}
            buffer_load_dwordx4 {vr(vGX,4)}, v{vT2}, s[{sX}:{sX+3}], s{sT1} offen
            buffer_load_dwordx4 {vr(vGX+4,4)}, v{vT2}, s[{sX}:{sX+3}], s{sT1} offen offset:16
            buffer_load_dwordx4 {vr(vGW,4)}, v{vT1}, s[{sGW}:{sGW+3}], 0 offen
            buffer_load_dwordx4 {vr(vGW+4,4)}, v{vT1}, s[{sGW}:{sGW+3}], 0 offen offset:16
            """)
            for q in range(3):
                a(f"""
                s_mul_i32 s{sT0}, s{sW}, 3
                s_add_u32 s{sT0}, s{sT0}, {q}
                s_lshl_b32 s{sMX[q]}, s{sT0}, 10
                s_and_b32 s{sT1}, s{sT0}, 1
                s_lshl_b32 s{sT1}, s{sT1}, 6
                s_lshl_b32 s{sT2}, s{sT0}, 13
                v_xor_b32 v{vXd[q]}, s{sT1}, v{vT0}
                v_add_u32 v{vXd[q]}, s{sT2}, v{vXd[q]}
                """)
                a(f"""
                s_add_u32 s{sMW[q]}, s{sMX[q]}, {WQ_BASE}
                s_lshl_b32 s{sT1}, s{sT0}, 5
                v_lshrrev_b32 v{vT1}, 1, v0
                v_add_u32 v{vT1}, s{sT1}, v{vT1}
                v_mul_u32_u24 v{vT2}, 0xaaab, v{vT1}
                v_lshrrev_b32 v{vT2}, 18, v{vT2}
                v_mul_u32_u24 v{vT3}, 6, v{vT2}
                v_sub_u32 v{vT1}, v{vT1}, v{vT3}
                v_bfe_u32 v{vT3}, v{vT2}, 3, 1
                v_xor_b32 v{vT1}, v{vT1}, v{vT3}
                v_mul_u32_u24 v{vT2}, 3072, v{vT2}
                v_lshrrev_b32 v{vT3}, 1, v{vT1}
                v_lshl_add_u32 v{vT2}, v{vT3}, 10, v{vT2}
                v_and_b32 v{vT3}, 1, v{vT1}
                v_lshl_add_u32 v{vT2}, v{vT3}, 5, v{vT2}
                v_and_b32 v{vT3}, 1, v0
                v_lshl_add_u32 v{vT2}, v{vT3}, 4, v{vT2}
                s_lshl_b32 s{sT1}, s{sJ}, 6
                v_add_u32 v{vWd[q]}, s{sT1}, v{vT2}
                """)
        else:
            vB = vF + FSZ
            a(f"""
            s_mul_i32 s{sT1}, s{sJ}, 224
            v_lshlrev_b32 v{vT1}, 3, v{vG}
            """)
            for ct in range(7):
                a(f"buffer_load_dwordx2 {vr(vB+2*ct,2)}, v{vT1}, s[{sB1}:{sB1+3}], s{sT1} offen offset:{ct*32}")
            a(f"""
            s_add_u32 s{sT0}, s{sW}, 12
            s_lshl_b32 s{sMX[0]}, s{sT0}, 10
            s_and_b32 s{sT1}, s{sT0}, 1
            s_lshl_b32 s{sT1}, s{sT1}, 6
            s_lshl_b32 s{sT2}, s{sT0}, 13
            v_xor_b32 v{vXd[0]}, s{sT1}, v{vT0}
            v_add_u32 v{vXd[0]}, s{sT2}, v{vXd[0]}
            """)
            for qq in range(4):
                a(f"""
                s_lshl_b32 s{sT0}, s{sW}, 2
                s_add_u32 s{sT0}, s{sT0}, {qq}
                s_lshl_b32 s{sT1}, s{sT0}, 10
                s_add_u32 s{sMW[qq]}, s{sT1}, {W1_BASE}
                s_mul_i32 s{sT1}, s{sT0}, {4*3584}
                s_mul_i32 s{sT2}, s{sJ}, 224
                s_add_u32 s{sT1}, s{sT1}, s{sT2}
                v_lshrrev_b32 v{vT1}, 1, v0
                v_sub_u32 v{vT1}, v{vT1}, v{vG}
                v_subrev_u32 v{vT1}, {4*(qq>>1)}, v{vT1}
                v_and_b32 v{vT1}, 7, v{vT1}
                v_mul_u32_u24 v{vT2}, 3584, v{vG}
                v_lshl_add_u32 v{vT2}, v{vT1}, 5, v{vT2}
                v_and_b32 v{vT3}, 1, v0
                v_lshl_add_u32 v{vT2}, v{vT3}, 4, v{vT2}
                v_add_u32 v{vWd[qq]}, s{sT1}, v{vT2}
                """)
        for c in range(3):
            for grp in dma_list(): a("\n".join(grp))
            a("\n".join(adv_src()))
            a("\n".join(slot_next()))
        if isq:
            a(f"""
            v_lshl_add_u32 v{vT1}, v{vG}, 3, v{vR}
            v_mul_u32_u24 v{vT1}, 192, v{vT1}
            v_lshl_add_u32 v{vT1}, v{vC}, 3, v{vT1}
            v_add_u32 v{vT1}, {WQ_BASE}, v{vT1}
            v_and_b32 v{vT2}, 1, v{vG}
            v_lshlrev_b32 v{vT2}, 5, v{vT2}
            v_add_u32 v{vWr[0]}, v{vT1}, v{vT2}
            v_sub_u32 v{vWr[1]}, v{vT1}, v{vT2}
            """)
            for r in range(48): a(f"v_mov_b32 v{vACC+r}, 0")
        else:
            a(f"""
            v_lshl_add_u32 v{vT1}, v{vG}, 3, v{vR}
            v_lshlrev_b32 v{vT1}, 8, v{vT1}
            v_lshl_add_u32 v{vT1}, v{vC}, 3, v{vT1}
            v_add_u32 v{vT1}, {W1_BASE}, v{vT1}
            v_and_b32 v{vT2}, 1, v{vG}
            v_lshl_add_u32 v{vT2}, v{vT2}, 2, v{vR}
            """)
            for ct in range(7):
                a(f"""
                v_add_u32 v{vT3}, {ct}, v{vT2}
                v_and_b32 v{vT3}, 7, v{vT3}
                v_lshl_add_u32 v{vWr[ct]}, v{vT3}, 5, v{vT1}
                """)
            a(f"s_waitcnt vmcnt({3*ndma})")
            vB = vF + FSZ
            for ct in range(7):
                for t in range(2):
                    acc = vACC + (ct * 2 + t) * 4
                    a(f"""
                    v_lshlrev_b32 v{acc}, 16, v{vB+2*ct}
                    v_and_b32 v{acc+1}, 0xffff0000, v{vB+2*ct}
                    v_lshlrev_b32 v{acc+2}, 16, v{vB+2*ct+1}
                    v_and_b32 v{acc+3}, 0xffff0000, v{vB+2*ct+1}
                    """)
        pf.stamp(1)
        a(f"s_waitcnt vmcnt({2*ndma})")
        a("s_barrier")
        pf.stamp(2)
        a("\n".join(reads(0, 0)))
        a.raw(".p2align 6")
        a.label(f"L_k1_{name}_loop")
        start = len(a.lines)
        a("s_waitcnt lgkmcnt(0)")
        interleave(mfmas(0), reads(1, 1))
        a(f"""
        s_cmp_lt_u32 s{sC}, 6
        s_cbranch_scc1 L_k1_{name}_w
        s_waitcnt vmcnt(0)
        L_k1_{name}_w:
        s_waitcnt vmcnt({ndma}) lgkmcnt(0)
        s_barrier
        s_cmp_ge_u32 s{sC}, 5
        s_cbranch_scc1 L_k1_{name}_nodma
        """)
        for grp in dma_list(): a("\n".join(grp))
        a("\n".join(adv_src()))
        a.label(f"L_k1_{name}_nodma")
        a("\n".join(slot_next()))
        nwr = 2 if isq else 7
        for r in vXr: a(f"v_add_u32 v{r}, s{sD}, v{r}")
        for r in vWr[:nwr]: a(f"v_add_u32 v{r}, s{sDW}, v{r}")
        interleave(mfmas(1), reads(0, 0))
        a(f"""
        s_add_u32 s{sC}, s{sC}, 1
        s_cmp_lt_u32 s{sC}, 8
        s_cbranch_scc1 L_k1_{name}_loop
        """)
        seam, inner = check_loop(a.lines[start:])
        assert seam == 0 and inner == 0, (seam, inner)
        a("s_waitcnt lgkmcnt(0)")
        pf.stamp(3)
        vP = vF
        a(f"""
        s_lshl_b32 s{sT0}, s{sI}, 2
        s_add_u32 s{sT0}, s{sT0}, s{sW}
        v_lshlrev_b32 v{vT0}, 4, v0
        """)
        if isq:
            a(f"s_mov_b32 s{sT2}, {hex(f32bits(QSCALE))}")
            for ct in range(6):
                p = vP + 4 * ct
                a0, a1 = vACC + ct * 8, vACC + ct * 8 + 4
                if ct < 2:
                    for r in range(8): a(f"v_mul_f32 v{a0+r}, s{sT2}, v{a0+r}")
                a(f"""
                v_cvt_pk_bf16_f32 v{p}, v{a0}, v{a0+1}
                v_cvt_pk_bf16_f32 v{p+1}, v{a0+2}, v{a0+3}
                v_cvt_pk_bf16_f32 v{p+2}, v{a1}, v{a1+1}
                v_cvt_pk_bf16_f32 v{p+3}, v{a1+2}, v{a1+3}
                """)
            a(f"""
            s_lshl_b32 s{sT1}, s{sJ}, 17
            s_lshl_b32 s{sT0}, s{sT0}, 10
            s_add_u32 s{sT1}, s{sT1}, s{sT0}
            """)
            for ct in range(6):
                p = vP + 4 * ct
                sw = "v_permlane32_swap_b32" if ct >= 4 else "v_permlane16_swap_b32"
                base = [WS_Q, WS_K, WS_V][ct >> 1] + (ct & 1) * 65536
                a(f"""
                {sw} v{p}, v{p+2}
                {sw} v{p+1}, v{p+3}
                s_add_u32 s{sT2}, s{sT1}, {base}
                buffer_store_dwordx4 {vr(p,4)}, v{vT0}, s[{sWS}:{sWS+3}], s{sT2} offen
                """)
            acc = vT1
            a(f"v_mov_b32 v{acc}, 0")
            for r in range(8): a(f"v_dot2_f32_bf16 v{acc}, v{vGX+r}, v{vGW+r}, v{acc}")
            a("s_nop 3")
            for mod in ["quad_perm:[1,0,3,2]", "quad_perm:[2,3,0,1]", "row_half_mirror", "row_mirror"]:
                a(f"v_add_f32_dpp v{acc}, v{acc}, v{acc} {mod} row_mask:0xf bank_mask:0xf")
            a(f"""
            v_mov_b32 v{vT2}, v{acc}
            v_mov_b32 v{vT3}, v{acc}
            v_permlane16_swap_b32 v{vT2}, v{vT3}
            v_add_f32 v{acc}, v{vT2}, v{vT3}
            v_mul_f32 v{acc}, {hex(f32bits(-LOG2E))}, v{acc}
            v_exp_f32 v{acc}, v{acc}
            v_add_f32 v{acc}, 1.0, v{acc}
            v_rcp_f32 v{acc}, v{acc}
            s_lshl_b32 s{sT0}, s{sI}, 7
            s_lshl_b32 s{sT1}, s{sJ}, 3
            s_add_u32 s{sT0}, s{sT0}, s{sT1}
            s_lshl_b32 s{sT1}, s{sW}, 1
            s_add_u32 s{sT0}, s{sT0}, s{sT1}
            s_lshl_b32 s{sT0}, s{sT0}, 2
            s_add_u32 s{sT0}, s{sT0}, {WS_G}
            v_lshrrev_b32 v{vT2}, 5, v0
            v_lshlrev_b32 v{vT2}, 2, v{vT2}
            s_mov_b32 exec_lo, 1
            s_mov_b32 exec_hi, 1
            buffer_store_dword v{acc}, v{vT2}, s[{sWS}:{sWS+3}], s{sT0} offen
            """)
            pf.stamp(4)
            if asmlib.PROF: a("s_waitcnt vmcnt(0)")
            pf.stamp(5)
            pf.dump(6, 2, sWAVE, 8, vT0, vT1)
            a("s_endpgm")
        else:
            a(f"""
            s_mul_i32 s{sT0}, s{sT0}, 112
            s_mul_i32 s{sT1}, s{sJ}, 7
            s_add_u32 s{sT0}, s{sT0}, s{sT1}
            s_lshl_b32 s{sT0}, s{sT0}, 10
            s_add_u32 s{sT0}, s{sT0}, {WS_A}
            s_mov_b32 s{sT1}, {hex(f32bits(LOG2E))}
            s_mov_b32 s{sT2}, {hex(f32bits(40.0))}
            """)
            vE = vF + 32
            for ct in range(7):
                p = vP + 4 * ct
                h = vACC + ct * 8
                e, n, d = vE, vE + 8, vE + 16
                for r in range(8): a(f"v_mul_f32 v{e+r}, s{sT1}, v{h+r}")
                for r in range(8): a(f"v_min_f32 v{e+r}, s{sT2}, v{e+r}")
                for r in range(8): a(f"v_exp_f32 v{e+r}, v{e+r}")
                for r in range(0, 8, 2): a(f"v_pk_add_f32 {vr(n+r,2)}, {vr(e+r,2)}, 2.0 op_sel_hi:[1,0]")
                for r in range(0, 8, 2): a(f"v_pk_fma_f32 {vr(d+r,2)}, {vr(e+r,2)}, {vr(n+r,2)}, 2.0 op_sel_hi:[1,1,0]")
                for r in range(0, 8, 2): a(f"v_pk_mul_f32 {vr(n+r,2)}, {vr(e+r,2)}, {vr(n+r,2)}")
                for r in range(8): a(f"v_rcp_f32 v{d+r}, v{d+r}")
                for r in range(0, 8, 2): a(f"v_pk_mul_f32 {vr(n+r,2)}, {vr(n+r,2)}, {vr(h+r,2)}")
                for r in range(0, 8, 2): a(f"v_pk_mul_f32 {vr(n+r,2)}, {vr(n+r,2)}, {vr(d+r,2)}")
                a(f"""
                v_cvt_pk_bf16_f32 v{p}, v{n}, v{n+1}
                v_cvt_pk_bf16_f32 v{p+1}, v{n+2}, v{n+3}
                v_cvt_pk_bf16_f32 v{p+2}, v{n+4}, v{n+5}
                v_cvt_pk_bf16_f32 v{p+3}, v{n+6}, v{n+7}
                v_permlane16_swap_b32 v{p}, v{p+2}
                v_permlane16_swap_b32 v{p+1}, v{p+3}
                """)
                if ct < 4:
                    a(f"buffer_store_dwordx4 {vr(p,4)}, v{vT0}, s[{sWS}:{sWS+3}], s{sT0} offen offset:{ct*1024}")
                else:
                    if ct == 4: a(f"s_add_u32 s{sT0}, s{sT0}, 4096")
                    a(f"buffer_store_dwordx4 {vr(p,4)}, v{vT0}, s[{sWS}:{sWS+3}], s{sT0} offen offset:{(ct-4)*1024}")
            pf.stamp(4)
            if asmlib.PROF: a("s_waitcnt vmcnt(0)")
            pf.stamp(5)
            pf.dump(6, 2, sWAVE, 8, vT0, vT1)
            a("s_endpgm")

    role("qkv", 6, 3, 3, True)
    a.label("L_k1_ffn")
    a.window = []
    role("ffn", 7, 1, 4, False)
    a.label("L_k1_end")
    a("s_endpgm")
    return a.text(), kernel_desc(NAME, NV, 72), f"; @launch kernel={NAME} grid=(256,1,1) block=(512,1,1) lds={LDS_BYTES}"

if __name__ == "__main__":
    t, d, l = gen()
    print(l); print(len(t.splitlines()))
```

```python
from asmlib import *
import asmlib
from layout import *

NAME = "k2_attn_kernel"
LDS_BYTES = 4 * 4 * 2304

def gen_body(a, P="k2", wg_sgpr=2):
    sWS = 8
    sW, sH, sQB = 12, 13, 14
    sT0, sT1, sT2 = 15, 16, 17
    sKT = 18
    sC = 19
    sM = 20
    sQ0 = 22
    vKo, vVo = 1, 2
    vT0, vT1, vT2, vT3 = 3, 4, 5, 6
    vQ = 8
    vK = 24
    vV = 32
    vP = 48
    vS = 56
    vO = 88
    NV = vO + 64
    pf = Prof(a, 1)
    pf.stamp(0)
    a(f"""
    s_load_dwordx2 s[4:5], s[0:1], 80
    v_lshrrev_b32 v1, 6, v0
    v_and_b32 v0, 63, v0
    v_readfirstlane_b32 s{sW}, v1
    s_and_b32 s{sT0}, s{wg_sgpr}, 7
    s_lshr_b32 s{sT1}, s{wg_sgpr}, 3
    s_lshl_b32 s{sH}, s{sT0}, 2
    s_and_b32 s{sT2}, s{sT1}, 3
    s_add_u32 s{sH}, s{sH}, s{sT2}
    s_lshr_b32 s{sQB}, s{sT1}, 2
    s_mov_b32 s{sWS+2}, {WS_SIZE}
    s_mov_b32 s{sWS+3}, 0x00020000
    s_mov_b32 s{sM}, 0x0000ffff
    s_mov_b32 s{sM+1}, 0x0000ffff
    s_lshl_b32 s{sT0}, s{sH}, 16
    s_lshl_b32 s{sT1}, s{sQB}, 12
    s_add_u32 s{sQ0}, s{sT0}, s{sT1}
    s_lshl_b32 s{sT1}, s{sW}, 14
    s_add_u32 s{sKT}, s{sT0}, s{sT1}
    s_add_u32 s{sKT}, s{sKT}, {WS_K}
    v_lshlrev_b32 v{vKo}, 4, v0
    v_and_b32 v{vT0}, 15, v0
    v_lshlrev_b32 v{vT0}, 4, v{vT0}
    v_lshrrev_b32 v{vT1}, 5, v0
    v_lshl_add_u32 v{vT0}, v{vT1}, 8, v{vT0}
    v_add_u32 v{vVo}, {WS_V - WS_K}, v{vT0}
    s_mov_b32 s{sT2}, 0x3f803f80
    """)
    for r in range(16): a(f"v_mov_b32 v{vV+r}, s{sT2}")
    a(f"""
    s_waitcnt lgkmcnt(0)
    s_mov_b32 s{sWS}, s4
    s_mov_b32 s{sWS+1}, s5
    """)
    srd = f"s[{sWS}:{sWS+3}]"
    def loadK(st): return f"buffer_load_dwordx4 {vr(vK+4*st,4)}, v{vKo}, {srd}, s{sKT} offen"
    def loadV(st):
        return f"""s_mov_b64 exec, s[{sM}:{sM+1}]
        buffer_load_dwordx4 {vr(vV+8*st,4)}, v{vVo}, {srd}, s{sKT} offen
        buffer_load_dwordx4 {vr(vV+8*st+4,4)}, v{vVo}, {srd}, s{sKT} offen offset:512
        s_mov_b64 exec, -1
        s_add_u32 s{sKT}, s{sKT}, 1024"""
    for q in range(4):
        a(f"buffer_load_dwordx4 {vr(vQ+4*q,4)}, v{vKo}, {srd}, s{sQ0} offen offset:{q*1024}")
    a(loadK(0)); a(loadV(0)); a(loadK(1))
    for r in range(64): a(f"v_mov_b32 v{vO+r}, 0")
    for r in range(4, 8): a(f"v_mov_b32 v{vP+r}, 0")
    a(f"s_mov_b32 s{sC}, 0")
    pf.stamp(1)
    a("s_waitcnt vmcnt(3)")
    pf.stamp(2)
    def mfS(sb, st, q): return f"v_mfma_f32_32x32x16_bf16 {vr(vS+16*sb,16)}, {vr(vK+4*st,4)}, {vr(vQ+4*q,4)}, 0"
    def mfPV(q, st, u): return f"v_mfma_f32_32x32x16_bf16 {vr(vO+16*q,16)}, {vr(vV+8*st+4*u,4)}, {vr(vP+4*u,4)}, {vr(vO+16*q,16)}"
    a(mfS(0, 0, 0))
    a("s_nop 7")
    a.raw(".p2align 6")
    a.label(f"L_{P}_loop")
    start = len(a.lines)
    for st in range(2):
        for q in range(4):
            sb = q & 1
            S = vS + 16 * sb
            ex = lambda i: f"v_exp_f32 v{S+i}, v{S+i}"
            cv = lambda i: f"v_cvt_pk_bf16_f32 v{vP+i}, v{S+2*i}, v{S+2*i+1}"
            pq, pst = (q - 1, st) if q > 0 else (3, st ^ 1)
            nq, nst = (q + 1, st) if q < 3 else (0, st ^ 1)
            a(ex(0)); a(ex(1))
            a(mfPV(pq, pst, 1))
            if q == 0: a(loadV(st ^ 1))
            for i in range(2, 6): a(ex(i))
            if q == 3: a("s_waitcnt vmcnt(2)")
            a(mfS(sb ^ 1, nst, nq))
            if q == 3: a(loadK(st))
            a(ex(6)); a(ex(7))
            for i in range(4): a(cv(i))
            a(ex(8)); a(ex(9))
            if q == 0: a("s_waitcnt vmcnt(3)")
            a(mfPV(q, st, 0))
            for i in range(10, 16): a(ex(i))
            for i in range(4, 8): a(cv(i))
    a(f"""
    s_add_u32 s{sC}, s{sC}, 1
    s_cmp_lt_u32 s{sC}, 8
    s_cbranch_scc1 L_{P}_loop
    """)
    seam, inner = check_loop(a.lines[start:])
    assert seam == 0 and inner == 0, (seam, inner)
    a(mfPV(3, 1, 1))
    pf.stamp(3)
    a(f"""
    s_mul_i32 s{sT0}, s{sW}, 2304
    v_add_u32 v{vT0}, s{sT0}, v{vKo}
    v_lshlrev_b32 v{vT1}, 2, v0
    v_add_u32 v{vT1}, s{sT0}, v{vT1}
    """)
    for q in range(4):
        o = vO + 16 * q
        a(f"""
        ds_write_b128 v{vT0}, {vr(o,4)} offset:{q*9216}
        ds_write_b128 v{vT0}, {vr(o+4,4)} offset:{q*9216+1024}
        ds_write_b32 v{vT1}, v{o+8} offset:{q*9216+2048}
        """)
    a(f"""
    s_mul_i32 s{sT0}, s{sW}, 9216
    v_add_u32 v{vT0}, s{sT0}, v{vKo}
    v_lshlrev_b32 v{vT1}, 2, v0
    v_add_u32 v{vT1}, s{sT0}, v{vT1}
    s_waitcnt lgkmcnt(0)
    s_barrier
    """)
    R = vS
    R = vO
    for s in range(4):
        o = R + 12 * s
        a(f"""
        ds_read_b128 {vr(o,4)}, v{vT0} offset:{s*2304}
        ds_read_b128 {vr(o+4,4)}, v{vT0} offset:{s*2304+1024}
        ds_read_b32 v{o+8}, v{vT1} offset:{s*2304+2048}
        """)
    a("s_waitcnt lgkmcnt(0)")
    for r in range(0, 8, 2):
        a(f"v_pk_add_f32 {vr(R+r,2)}, {vr(R+r,2)}, {vr(R+12+r,2)}")
        a(f"v_pk_add_f32 {vr(R+24+r,2)}, {vr(R+24+r,2)}, {vr(R+36+r,2)}")
    a(f"v_add_f32 v{R+8}, v{R+8}, v{R+20}")
    a(f"v_add_f32 v{R+32}, v{R+32}, v{R+44}")
    for r in range(0, 8, 2):
        a(f"v_pk_add_f32 {vr(R+r,2)}, {vr(R+r,2)}, {vr(R+24+r,2)}")
    a(f"v_add_f32 v{R+8}, v{R+8}, v{R+32}")
    a(f"v_mov_b32 v{vT2}, v{R+8}")
    for r in range(8): a(f"v_fma_f32 v{vT2}, v{R+r}, 0, v{vT2}")
    a(f"""
    s_mov_b32 s{sT0}, {hex(f32bits(2.0**-30))}
    s_mov_b32 s{sT1}, {hex(f32bits(2.0**30))}
    v_cmp_le_f32 vcc, s{sT0}, v{vT2}
    v_cmp_ge_f32 s[24:25], s{sT1}, v{vT2}
    s_and_b64 vcc, vcc, s[24:25]
    s_cmp_eq_u64 vcc, -1
    s_cbranch_scc0 L_{P}_slow
    L_{P}_fin:
    v_rcp_f32 v{vT2}, v{R+8}
    s_lshl_b32 s{sT0}, s{sQB}, 2
    s_add_u32 s{sT0}, s{sT0}, s{sW}
    s_lshl_b32 s{sT0}, s{sT0}, 5
    s_add_u32 s{sT0}, s{sT0}, s{sH}
    s_lshl_b32 s{sT0}, s{sT0}, 10
    s_add_u32 s{sT0}, s{sT0}, {WS_O}
    """)
    for r in range(8): a(f"v_mul_f32 v{R+r}, v{R+r}, v{vT2}")
    a(f"""
    v_cvt_pk_bf16_f32 v{vP}, v{R}, v{R+1}
    v_cvt_pk_bf16_f32 v{vP+1}, v{R+2}, v{R+3}
    v_cvt_pk_bf16_f32 v{vP+2}, v{R+4}, v{R+5}
    v_cvt_pk_bf16_f32 v{vP+3}, v{R+6}, v{R+7}
    v_permlane32_swap_b32 v{vP}, v{vP+2}
    v_permlane32_swap_b32 v{vP+1}, v{vP+3}
    buffer_store_dwordx4 {vr(vP,4)}, v{vKo}, {srd}, s{sT0} offen
    """)
    pf.stamp(4)
    if asmlib.PROF: a("s_waitcnt vmcnt(0)")
    pf.stamp(5)
    pf.dump(6, wg_sgpr, sW, 4, vT0, vT1)
    a("s_endpgm")
    a.label(f"L_{P}_slow")
    a.window = []
    vM = vT3
    S = vS
    a(f"""
    s_waitcnt vmcnt(0)
    s_lshl_b32 s{sT0}, s{sW}, 10
    s_add_u32 s{sT0}, s{sT0}, s{sQ0}
    buffer_load_dwordx4 {vr(vQ,4)}, v{vKo}, {srd}, s{sT0} offen
    s_lshl_b32 s{sT1}, s{sH}, 16
    s_add_u32 s{sT1}, s{sT1}, {WS_K}
    s_mov_b32 s{sKT}, s{sT1}
    s_mov_b32 s{sC}, 0
    v_mov_b32 v{vM}, 0xff800000
    L_{P}_slow1:
    buffer_load_dwordx4 {vr(vK,4)}, v{vKo}, {srd}, s{sKT} offen
    s_add_u32 s{sKT}, s{sKT}, 1024
    s_waitcnt vmcnt(0)
    {mfS(0,0,0)}
    """)
    for r in range(0, 16, 2): a(f"v_max3_f32 v{vM}, v{vM}, v{S+r}, v{S+r+1}")
    a(f"""
    s_add_u32 s{sC}, s{sC}, 1
    s_cmp_lt_u32 s{sC}, 64
    s_cbranch_scc1 L_{P}_slow1
    v_mov_b32 v{vT0}, v{vM}
    v_mov_b32 v{vT1}, v{vM}
    v_permlane32_swap_b32 v{vT0}, v{vT1}
    v_max_f32 v{vM}, v{vT0}, v{vT1}
    s_mov_b32 s{sKT}, s{sT1}
    s_mov_b32 s{sC}, 0
    """)
    for r in range(16): a(f"v_mov_b32 v{R+r}, 0")
    a(f"""
    L_{P}_slow2:
    buffer_load_dwordx4 {vr(vK,4)}, v{vKo}, {srd}, s{sKT} offen
    {loadV(0)}
    s_waitcnt vmcnt(0)
    {mfS(0,0,0)}
    """)
    for r in range(16): a(f"v_sub_f32 v{S+r}, v{S+r}, v{vM}")
    for r in range(16): a(f"v_exp_f32 v{S+r}, v{S+r}")
    for i in range(8): a(f"v_cvt_pk_bf16_f32 v{vP+i}, v{S+2*i}, v{S+2*i+1}")
    a(mfPV(0, 0, 0)); a(mfPV(0, 0, 1))
    a(f"""
    s_nop 7
    s_add_u32 s{sC}, s{sC}, 1
    s_cmp_lt_u32 s{sC}, 64
    s_cbranch_scc1 L_{P}_slow2
    s_nop 15
    s_branch L_{P}_fin
    """)
    return NV

def gen():
    a = Asm()
    a.raw(kernel_header(NAME))
    a(f"""
    s_cmp_ge_u32 s2, 512
    s_cbranch_scc1 L_k2_end
    """)
    NV = gen_body(a)
    a.label("L_k2_end")
    a("s_endpgm")
    return a.text(), kernel_desc(NAME, NV, 40), f"; @launch kernel={NAME} grid=(512,1,1) block=(256,1,1) lds={LDS_BYTES}"

if __name__ == "__main__":
    t, d, l = gen()
    print(l); print(len(t.splitlines()))
```

```python
from asmlib import *
import asmlib
from layout import *

def gen_body(a, P, final, wg_sgpr=2):
    KT = 32 if final else 112
    nk = KT // 4
    D = 8 if final else 7
    ABASE = WS_O if final else WS_A
    woff = 16 if final else 48
    wbytes = 512 * 512 * 2 if final else 1792 * 512 * 2
    sWS, sWT, sWS2, sWT2, sOUT = 8, 12, 16, 20, 24
    sW, sTW, sFJ = 28, 29, 30
    sT0, sT1, sT2 = 31, 32, 33
    sAO, sWO = 34, 35
    sWO2 = 36
    sLB = 37
    sC = 38
    vL16 = 1
    vWd = 2
    vWr = [3, 4]
    vT0, vT1, vT2, vT3 = 5, 6, 7, 8
    vG = 9
    vB = 12
    vWf = 20
    vA = 36
    vACC = vA + D * 8
    NV = vACC + 64
    pf = Prof(a, 3 if final else 2)
    pf.stamp(0)
    A1 = KT * 1024
    a(f"""
    s_load_dwordx2 s[4:5], s[0:1], 80
    s_load_dwordx2 s[6:7], s[0:1], {woff}
    """)
    if final: a(f"s_load_dwordx2 s[{sOUT}:{sOUT+1}], s[0:1], 64")
    a(f"""
    v_lshrrev_b32 v1, 6, v0
    v_and_b32 v0, 63, v0
    v_readfirstlane_b32 s{sW}, v1
    s_and_b32 s{sT0}, s{wg_sgpr}, 7
    s_lshr_b32 s{sT1}, s{wg_sgpr}, 3
    s_lshl_b32 s{sTW}, s{sT0}, 2
    s_and_b32 s{sT2}, s{sT1}, 3
    s_add_u32 s{sTW}, s{sTW}, s{sT2}
    s_lshr_b32 s{sFJ}, s{sT1}, 2
    s_mov_b32 s{sWS+2}, {WS_SIZE}
    s_mov_b32 s{sWS+3}, 0x00020000
    s_mov_b32 s{sWT+2}, {wbytes}
    s_mov_b32 s{sWT+3}, 0x00020000
    s_mul_i32 s{sT0}, s{sTW}, {2*KT}
    s_mul_i32 s{sT1}, s{sW}, {nk}
    s_add_u32 s{sT0}, s{sT0}, s{sT1}
    s_lshl_b32 s{sAO}, s{sT0}, 10
    s_add_u32 s{sAO}, s{sAO}, {ABASE}
    s_lshl_b32 s{sWO}, s{sT1}, 14
    s_lshl_b32 s{sT2}, s{sFJ}, 7
    s_add_u32 s{sWO}, s{sWO}, s{sT2}
    s_mul_i32 s{sLB}, s{sW}, {D*2048}
    v_lshlrev_b32 v{vL16}, 4, v0
    v_add_u32 v{vT3}, {A1}, v{vL16}
    v_lshrrev_b32 v{vT0}, 2, v0
    v_lshrrev_b32 v{vT1}, 4, v0
    v_xor_b32 v{vT0}, v{vT0}, v{vT1}
    v_and_b32 v{vT0}, 1, v{vT0}
    v_lshlrev_b32 v{vT0}, 6, v{vT0}
    v_and_b32 v{vT1}, 3, v0
    v_lshl_add_u32 v{vT0}, v{vT1}, 4, v{vT0}
    v_lshrrev_b32 v{vT1}, 3, v0
    v_lshl_add_u32 v{vWd}, v{vT1}, 10, v{vT0}
    v_lshrrev_b32 v{vT0}, 5, v0
    v_bfe_u32 v{vT1}, v0, 2, 2
    v_lshl_add_u32 v{vT0}, v{vT0}, 3, v{vT1}
    v_lshlrev_b32 v{vT0}, 7, v{vT0}
    v_lshrrev_b32 v{vT1}, 1, v{vT1}
    v_lshl_add_u32 v{vT0}, v{vT1}, 6, v{vT0}
    v_bfe_u32 v{vT1}, v0, 4, 1
    v_lshl_add_u32 v{vT0}, v{vT1}, 5, v{vT0}
    v_and_b32 v{vT1}, 3, v0
    v_lshl_add_u32 v{vT0}, v{vT1}, 3, v{vT0}
    v_add_u32 v{vWr[0]}, s{sLB}, v{vT0}
    v_xor_b32 v{vT0}, 64, v{vT0}
    v_add_u32 v{vWr[1]}, s{sLB}, v{vT0}
    s_waitcnt lgkmcnt(0)
    s_mov_b32 s{sWS}, s4
    s_mov_b32 s{sWS+1}, s5
    s_mov_b32 s{sWT}, s6
    s_mov_b32 s{sWT+1}, s7
    """)
    if not final:
        a(f"""
        s_mov_b32 s{sWS2}, s4
        s_mov_b32 s{sWS2+1}, s5
        s_mov_b32 s{sWS2+2}, {WS_SIZE}
        s_mov_b32 s{sWS2+3}, 0x00020000
        s_mov_b32 s{sWT2}, s6
        s_mov_b32 s{sWT2+1}, s7
        s_mov_b32 s{sWT2+2}, {wbytes}
        s_mov_b32 s{sWT2+3}, 0x00020000
        """)
    def loads(d, alt=False):
        ws, wt = (sWS2, sWT2) if alt else (sWS, sWT)
        return [f"s_add_u32 m0, s{sLB}, {d*2048}",
                f"s_add_u32 s{sWO2}, s{sWO}, 8192",
                f"buffer_load_dwordx4 v{vWd}, s[{wt}:{wt+3}], s{sWO} offen lds",
                f"s_add_u32 m0, s{sLB}, {d*2048+1024}",
                f"buffer_load_dwordx4 {vr(vA+8*d,4)}, v{vL16}, s[{ws}:{ws+3}], s{sAO} offen",
                f"buffer_load_dwordx4 v{vWd}, s[{wt}:{wt+3}], s{sWO2} offen lds",
                f"buffer_load_dwordx4 {vr(vA+8*d+4,4)}, v{vT3}, s[{ws}:{ws+3}], s{sAO} offen",
                f"s_add_u32 s{sWO}, s{sWO}, 16384",
                f"s_add_u32 s{sAO}, s{sAO}, 1024"]
    def wreads(d, buf):
        L = []
        for fi in range(2):
            for t2 in range(2):
                L.append(f"ds_read_b64_tr_b16 {vr(vWf+8*buf+4*fi+2*t2,2)}, v{vWr[fi]} offset:{d*2048+t2*512}")
        return L
    def mfmas(d, buf, first=False):
        L = []
        for fi in range(2):
            for ti in range(2):
                acc = vACC + 16 * (fi * 2 + ti)
                c = "0" if first else vr(acc, 16)
                L.append(f"v_mfma_f32_32x32x16_bf16 {vr(acc,16)}, {vr(vWf+8*buf+4*fi,4)}, {vr(vA+8*d+4*ti,4)}, {c}")
        return L
    for d in range(D): a("\n".join(loads(d)))
    nextra = 0
    if final:
        a(f"""
        s_lshl_b32 s{sT0}, s{wg_sgpr}, 2
        s_add_u32 s{sT0}, s{sT0}, s{sW}
        s_lshl_b32 s{sT0}, s{sT0}, 11
        s_add_u32 s{sT0}, s{sT0}, {WS_B}
        buffer_load_dwordx4 {vr(vB,4)}, v{vL16}, s[{sWS}:{sWS+3}], s{sT0} offen
        buffer_load_dwordx4 {vr(vB+4,4)}, v{vL16}, s[{sWS}:{sWS+3}], s{sT0} offen offset:1024
        s_lshl_b32 s{sT0}, s{sTW}, 1
        s_and_b32 s{sT1}, s{sW}, 1
        s_add_u32 s{sT0}, s{sT0}, s{sT1}
        s_lshl_b32 s{sT0}, s{sT0}, 7
        s_add_u32 s{sT0}, s{sT0}, {WS_G}
        v_and_b32 v{vT0}, 31, v0
        v_lshlrev_b32 v{vT0}, 2, v{vT0}
        buffer_load_dword v{vG}, v{vT0}, s[{sWS}:{sWS+3}], s{sT0} offen
        """)
        nextra = 3
        pf.stamp(1)
        a(f"s_waitcnt vmcnt({4*(D-1)+nextra})")
        pf.stamp(2)
        a("\n".join(wreads(0, 0)))
        for s in range(nk):
            if s + 1 < nk:
                a(f"s_waitcnt vmcnt({4*(D-2-s)+nextra})")
                a("\n".join(wreads(s + 1, (s + 1) & 1)))
                a("s_waitcnt lgkmcnt(4)")
            else:
                a("s_waitcnt lgkmcnt(0)")
            a("\n".join(mfmas(s, s & 1, first=(s == 0))))
    else:
        for r in range(64): a(f"v_mov_b32 v{vACC+r}, 0")
        a(f"s_mov_b32 s{sC}, 0")
        pf.stamp(1)
        a(f"s_waitcnt vmcnt({4*(D-1)})")
        pf.stamp(2)
        a("\n".join(wreads(0, 0)))
        a.raw(".p2align 6")
        a.label(f"L_{P}_loop")
        start = len(a.lines)
        for s in range(2 * D):
            d = s % D
            a(f"s_waitcnt vmcnt({4*(D-2)})")
            a("\n".join(wreads((s + 1) % D, (s + 1) & 1)))
            a("s_waitcnt lgkmcnt(4)")
            M = mfmas(d, s & 1)
            Ld = loads(d, alt=(s >= D))
            for m in M: a(m)
            a("\n".join(Ld))
        a(f"""
        s_mov_b32 s{sWS2+2}, 0
        s_mov_b32 s{sWT2+2}, 0
        s_add_u32 s{sC}, s{sC}, 1
        s_cmp_lt_u32 s{sC}, 2
        s_cbranch_scc1 L_{P}_loop
        s_waitcnt vmcnt(0) lgkmcnt(0)
        """)
        seam, inner = check_loop(a.lines[start:])
        assert seam == 0 and inner == 0, (seam, inner)
    pf.stamp(3)
    a(f"""
    s_barrier
    s_lshl_b32 s{sT0}, s{sW}, 12
    v_add_u32 v{vT0}, s{sT0}, v{vL16}
    s_lshl_b32 s{sT0}, s{sW}, 14
    v_add_u32 v{vT1}, s{sT0}, v{vL16}
    """)
    for t in range(4):
        for q in range(4):
            a(f"ds_write_b128 v{vT0}, {vr(vACC+16*t+4*q,4)} offset:{t*16384+q*1024}")
    a("s_waitcnt lgkmcnt(0)")
    a("s_barrier")
    for s in range(4):
        for q in range(4):
            a(f"ds_read_b128 {vr(vACC+16*s+4*q,4)}, v{vT1} offset:{s*4096+q*1024}")
    a("s_waitcnt lgkmcnt(8)")
    for r in range(0, 16, 2): a(f"v_pk_add_f32 {vr(vACC+r,2)}, {vr(vACC+r,2)}, {vr(vACC+16+r,2)}")
    a("s_waitcnt lgkmcnt(0)")
    for r in range(0, 16, 2): a(f"v_pk_add_f32 {vr(vACC+32+r,2)}, {vr(vACC+32+r,2)}, {vr(vACC+48+r,2)}")
    for r in range(0, 16, 2): a(f"v_pk_add_f32 {vr(vACC+r,2)}, {vr(vACC+r,2)}, {vr(vACC+32+r,2)}")
    p = vWf
    if not final:
        for i in range(8): a(f"v_cvt_pk_bf16_f32 v{p+i}, v{vACC+2*i}, v{vACC+2*i+1}")
        a(f"""
        s_lshl_b32 s{sT0}, s{wg_sgpr}, 2
        s_add_u32 s{sT0}, s{sT0}, s{sW}
        s_lshl_b32 s{sT0}, s{sT0}, 11
        s_add_u32 s{sT0}, s{sT0}, {WS_B}
        buffer_store_dwordx4 {vr(p,4)}, v{vL16}, s[{sWS}:{sWS+3}], s{sT0} offen
        buffer_store_dwordx4 {vr(p+4,4)}, v{vL16}, s[{sWS}:{sWS+3}], s{sT0} offen offset:1024
        """)
    else:
        bb = vACC + 16
        a("s_waitcnt vmcnt(0)")
        for i in range(8):
            a(f"v_lshlrev_b32 v{bb+2*i}, 16, v{vB+i}")
            a(f"v_and_b32 v{bb+2*i+1}, 0xffff0000, v{vB+i}")
        for r in range(16): a(f"v_sub_f32 v{vACC+r}, v{vACC+r}, v{bb+r}")
        for r in range(16): a(f"v_fma_f32 v{vACC+r}, v{vG}, v{vACC+r}, v{bb+r}")
        for i in range(8): a(f"v_cvt_pk_bf16_f32 v{p+i}, v{vACC+2*i}, v{vACC+2*i+1}")
        a(f"""
        s_mov_b32 s{sOUT+2}, {2048*512*2}
        s_mov_b32 s{sOUT+3}, 0x00020000
        s_lshl_b32 s{sT0}, s{sTW}, 1
        s_and_b32 s{sT1}, s{sW}, 1
        s_add_u32 s{sT0}, s{sT0}, s{sT1}
        s_lshl_b32 s{sT0}, s{sT0}, 15
        s_lshl_b32 s{sT1}, s{sFJ}, 7
        s_add_u32 s{sT0}, s{sT0}, s{sT1}
        s_lshr_b32 s{sT1}, s{sW}, 1
        s_lshl_b32 s{sT1}, s{sT1}, 6
        s_add_u32 s{sT0}, s{sT0}, s{sT1}
        v_and_b32 v{vT0}, 31, v0
        v_lshlrev_b32 v{vT0}, 10, v{vT0}
        v_lshrrev_b32 v{vT1}, 5, v0
        v_lshl_add_u32 v{vT0}, v{vT1}, 4, v{vT0}
        v_permlane32_swap_b32 v{p}, v{p+2}
        v_permlane32_swap_b32 v{p+1}, v{p+3}
        v_permlane32_swap_b32 v{p+4}, v{p+6}
        v_permlane32_swap_b32 v{p+5}, v{p+7}
        buffer_store_dwordx4 {vr(p,4)}, v{vT0}, s[{sOUT}:{sOUT+3}], s{sT0} offen
        buffer_store_dwordx4 {vr(p+4,4)}, v{vT0}, s[{sOUT}:{sOUT+3}], s{sT0} offen offset:32
        """)
    pf.stamp(4)
    if asmlib.PROF: a("s_waitcnt vmcnt(0)")
    pf.stamp(5)
    pf.dump(6, wg_sgpr, sW, 4, vT0, vT1)
    a("s_endpgm")
    return NV

def gen(final):
    NAME = "k4_final_kernel" if final else "k3_ffn2_kernel"
    P = "k4" if final else "k3"
    a = Asm()
    a.raw(kernel_header(NAME))
    a(f"""
    s_cmp_ge_u32 s2, 256
    s_cbranch_scc1 L_{P}_end
    """)
    NV = gen_body(a, P, final)
    a.label(f"L_{P}_end")
    a("s_endpgm")
    return a.text(), kernel_desc(NAME, NV, 48), f"; @launch kernel={NAME} grid=(256,1,1) block=(256,1,1) lds=65536"

if __name__ == "__main__":
    for f in (False, True):
        t, d, l = gen(f)
        print(l); print(len(t.splitlines()))
```

```python
import sys
import asmlib
from asmlib import *
import k1, k2, k3
from build import build
def empty(n):
    N = "k9_nop_kernel"
    return (kernel_header(N) + "    s_endpgm\n", kernel_desc(N, 8, 16), f"; @launch kernel={N} grid=(256,1,1) block=(256,1,1) lds=0")
base = [k1.gen(), k2.gen(), k3.gen(False), k3.gen(True)]
build(base + [empty(0)] * 4, "exp_nop4.s")
build([empty(0)] * 4 + base, "exp_nop4_front.s")
build(base + base, "exp_twice.s")
```

```python
from asmlib import *
import asmlib
from layout import *

NAME = "k1_qkv_kernel"
NS = 5
XS = 16384
WQS = 12288
WQ_BASE = NS * XS
LDS_BYTES = WQ_BASE + NS * WQS

def gen():
    a = Asm()
    a.raw(kernel_header(NAME))
    pf = Prof(a, 0)
    pf.stamp(0)
    sX, sWQ, sWS, sGW = 16, 20, 24, 28
    sWAVE, sW, sI, sJ = 32, 33, 34, 35
    sSOX, sSOW = 36, 37
    sOX, sOW = 38, 39
    sN, sD, sDW = 40, 41, 42
    sC = 43
    sMX, sMW = 44, 45
    sT0, sT1, sT2 = 46, 47, 48
    a(f"""
    s_cmp_ge_u32 s2, 256
    s_cbranch_scc1 L_k1_end
    s_load_dwordx4 s[4:7], s[0:1], 0
    s_load_dwordx2 s[12:13], s[0:1], 56
    s_load_dwordx2 s[14:15], s[0:1], 80
    v_lshrrev_b32 v1, 6, v0
    v_and_b32 v0, 63, v0
    v_readfirstlane_b32 s{sWAVE}, v1
    s_and_b32 s{sT0}, s2, 7
    s_lshr_b32 s{sT1}, s2, 3
    s_and_b32 s{sI}, s{sT0}, 1
    s_lshl_b32 s{sI}, s{sI}, 3
    s_and_b32 s{sT2}, s{sT1}, 7
    s_add_u32 s{sI}, s{sI}, s{sT2}
    s_lshr_b32 s{sJ}, s{sT0}, 1
    s_lshl_b32 s{sJ}, s{sJ}, 2
    s_lshr_b32 s{sT2}, s{sT1}, 3
    s_add_u32 s{sJ}, s{sJ}, s{sT2}
    s_and_b32 s{sW}, s{sWAVE}, 3
    s_mov_b32 s{sWS+2}, {WS_SIZE}
    s_mov_b32 s{sWS+3}, 0x00020000
    s_mov_b32 s{sC}, 0
    v_lshrrev_b32 v3, 4, v0
    s_cmp_lt_u32 s{sWAVE}, 4
    s_cbranch_scc1 L_k1_comp
    """)
    vG = 3
    vT0, vT1, vT2, vT3 = 6, 7, 8, 9
    vXd = 10
    vXd2 = 11
    vWd = [12, 13, 14]
    vGX, vGW = 16, 24
    vOnes = 32
    a(f"""
    s_mov_b32 s{sX+2}, {2048*512*2}
    s_mov_b32 s{sX+3}, 0x00020000
    s_mov_b32 s{sWQ+2}, {512*1536*2}
    s_mov_b32 s{sWQ+3}, 0x00020000
    v_and_b32 v{vT0}, 7, v0
    v_xor_b32 v{vT0}, v{vT0}, v{vG}
    v_lshlrev_b32 v{vT0}, 4, v{vT0}
    v_lshrrev_b32 v{vT1}, 3, v0
    v_lshl_add_u32 v{vXd}, v{vT1}, 10, v{vT0}
    v_xor_b32 v{vXd2}, 64, v{vXd}
    v_add_u32 v{vXd2}, 8192, v{vXd2}
    s_lshl_b32 s{sSOX}, s{sI}, 17
    s_lshl_b32 s{sT0}, s{sW}, 15
    s_add_u32 s{sSOX}, s{sSOX}, s{sT0}
    s_lshl_b32 s{sMX}, s{sW}, 12
    s_mul_i32 s{sMW}, s{sW}, 3072
    s_add_u32 s{sMW}, s{sMW}, {WQ_BASE}
    s_lshl_b32 s{sSOW}, s{sJ}, 6
    s_mul_i32 s{sT1}, s{sW}, 96
    v_lshrrev_b32 v{vT0}, 1, v0
    v_add_u32 v{vT0}, s{sT1}, v{vT0}
    """)
    for q in range(3):
        a(f"""
        v_add_u32 v{vT1}, {32*q}, v{vT0}
        v_mul_u32_u24 v{vT2}, 0xaaab, v{vT1}
        v_lshrrev_b32 v{vT2}, 18, v{vT2}
        v_mul_u32_u24 v{vT3}, 6, v{vT2}
        v_sub_u32 v{vT1}, v{vT1}, v{vT3}
        v_bfe_u32 v{vT3}, v{vT2}, 3, 1
        v_xor_b32 v{vT1}, v{vT1}, v{vT3}
        v_mul_u32_u24 v{vT2}, 3072, v{vT2}
        v_lshrrev_b32 v{vT3}, 1, v{vT1}
        v_lshl_add_u32 v{vT2}, v{vT3}, 10, v{vT2}
        v_and_b32 v{vT3}, 1, v{vT1}
        v_lshl_add_u32 v{vT2}, v{vT3}, 5, v{vT2}
        v_and_b32 v{vT3}, 1, v0
        v_lshl_add_u32 v{vWd[q]}, v{vT3}, 4, v{vT2}
        """)
    a(f"""
    s_waitcnt lgkmcnt(0)
    s_mov_b32 s{sX}, s4
    s_mov_b32 s{sX+1}, s5
    s_mov_b32 s{sWQ}, s6
    s_mov_b32 s{sWQ+1}, s7
    """)
    def chunk_dma():
        a(f"""
        s_mov_b32 m0, s{sMX}
        s_add_u32 s{sT0}, s{sSOX}, 16384
        buffer_load_dwordx4 v{vXd}, s[{sX}:{sX+3}], s{sSOX} offen lds
        s_add_u32 m0, s{sMX}, 1024
        s_nop 0
        buffer_load_dwordx4 v{vXd2}, s[{sX}:{sX+3}], s{sSOX} offen lds
        s_mov_b32 m0, s{sMW}
        s_nop 0
        buffer_load_dwordx4 v{vWd[0]}, s[{sWQ}:{sWQ+3}], s{sSOW} offen lds
        s_add_u32 m0, s{sMX}, 2048
        s_nop 0
        buffer_load_dwordx4 v{vXd}, s[{sX}:{sX+3}], s{sT0} offen lds
        s_add_u32 m0, s{sMW}, 1024
        s_nop 0
        buffer_load_dwordx4 v{vWd[1]}, s[{sWQ}:{sWQ+3}], s{sSOW} offen lds
        s_add_u32 m0, s{sMX}, 3072
        s_nop 0
        buffer_load_dwordx4 v{vXd2}, s[{sX}:{sX+3}], s{sT0} offen lds
        s_add_u32 m0, s{sMW}, 2048
        s_add_u32 s{sSOX}, s{sSOX}, 128
        buffer_load_dwordx4 v{vWd[2]}, s[{sWQ}:{sWQ+3}], s{sSOW} offen lds
        s_add_u32 s{sSOW}, s{sSOW}, {64*3072}
        s_add_u32 s{sMX}, s{sMX}, {XS}
        s_add_u32 s{sMW}, s{sMW}, {WQS}
        """)
    a.label("L_k1_ld0")
    chunk_dma()
    a(f"""
    s_add_u32 s{sC}, s{sC}, 1
    s_cmp_lt_u32 s{sC}, {NS}
    s_cbranch_scc1 L_k1_ld0
    s_sub_u32 s{sMX}, s{sMX}, {NS*XS}
    s_sub_u32 s{sMW}, s{sMW}, {NS*WQS}
    s_mov_b32 s{sWS}, s14
    s_mov_b32 s{sWS+1}, s15
    s_mov_b32 s{sGW}, s12
    s_mov_b32 s{sGW+1}, s13
    s_mov_b32 s{sGW+2}, 1024
    s_mov_b32 s{sGW+3}, 0x00020000
    s_lshl_b32 s{sT0}, s{sI}, 7
    s_lshl_b32 s{sT1}, s{sJ}, 3
    s_add_u32 s{sT0}, s{sT0}, s{sT1}
    s_lshl_b32 s{sT1}, s{sW}, 1
    s_add_u32 s{sN}, s{sT0}, s{sT1}
    s_lshl_b32 s{sT1}, s{sN}, 10
    v_and_b32 v{vT1}, 31, v0
    v_lshlrev_b32 v{vT1}, 5, v{vT1}
    v_lshrrev_b32 v{vT2}, 5, v0
    v_lshl_add_u32 v{vT2}, v{vT2}, 10, v{vT1}
    buffer_load_dwordx4 {vr(vGX,4)}, v{vT2}, s[{sX}:{sX+3}], s{sT1} offen
    buffer_load_dwordx4 {vr(vGX+4,4)}, v{vT2}, s[{sX}:{sX+3}], s{sT1} offen offset:16
    buffer_load_dwordx4 {vr(vGW,4)}, v{vT1}, s[{sGW}:{sGW+3}], 0 offen
    buffer_load_dwordx4 {vr(vGW+4,4)}, v{vT1}, s[{sGW}:{sGW+3}], 0 offen offset:16
    v_mov_b32 v{vOnes}, -1
    v_mov_b32 v{vOnes+1}, -1
    v_mov_b32 v{vOnes+2}, -1
    v_mov_b32 v{vOnes+3}, -1
    v_mov_b32 v{vOnes+4}, 0
    v_lshlrev_b32 v{vT0}, 4, v0
    s_lshl_b32 s{sT0}, s2, 2
    s_add_u32 s{sT0}, s{sT0}, s{sW}
    s_lshl_b32 s{sT1}, s{sT0}, 11
    s_add_u32 s{sT1}, s{sT1}, {WS_O}
    buffer_store_dwordx4 {vr(vOnes,4)}, v{vT0}, s[{sWS}:{sWS+3}], s{sT1} offen
    buffer_store_dwordx4 {vr(vOnes,4)}, v{vT0}, s[{sWS}:{sWS+3}], s{sT1} offen offset:1024
    s_lshl_b32 s{sT1}, s{sT0}, 2
    s_add_u32 s{sT1}, s{sT1}, {WS_FA}
    s_mov_b64 exec, 1
    buffer_store_dword v{vOnes+4}, v{vOnes+4}, s[{sWS}:{sWS+3}], s{sT1} offen
    s_mov_b64 exec, -1
    """)
    pf.stamp(1)
    a(f"""
    s_waitcnt vmcnt(35)
    s_barrier
    """)
    pf.stamp(2)
    a(f"s_mov_b32 s{sC}, 0")
    a.label("L_k1_ld1")
    a(f"""
    s_waitcnt vmcnt(28)
    s_barrier
    """)
    chunk_dma()
    a(f"""
    s_add_u32 s{sC}, s{sC}, 1
    s_cmp_lt_u32 s{sC}, 3
    s_cbranch_scc1 L_k1_ld1
    s_waitcnt vmcnt(28)
    s_barrier
    s_waitcnt vmcnt(14)
    s_barrier
    """)
    acc = vT1
    a(f"v_mov_b32 v{acc}, 0")
    for r in range(8): a(f"v_dot2_f32_bf16 v{acc}, v{vGX+r}, v{vGW+r}, v{acc}")
    a("s_nop 3")
    for mod in ["quad_perm:[1,0,3,2]", "quad_perm:[2,3,0,1]", "row_half_mirror", "row_mirror"]:
        a(f"v_add_f32_dpp v{acc}, v{acc}, v{acc} {mod} row_mask:0xf bank_mask:0xf")
    a(f"""
    v_mov_b32 v{vT2}, v{acc}
    v_mov_b32 v{vT3}, v{acc}
    v_permlane16_swap_b32 v{vT2}, v{vT3}
    v_add_f32 v{acc}, v{vT2}, v{vT3}
    v_mul_f32 v{acc}, {hex(f32bits(-LOG2E))}, v{acc}
    v_exp_f32 v{acc}, v{acc}
    v_add_f32 v{acc}, 1.0, v{acc}
    v_rcp_f32 v{acc}, v{acc}
    s_lshl_b32 s{sT0}, s{sN}, 2
    s_add_u32 s{sT0}, s{sT0}, {WS_G}
    v_lshrrev_b32 v{vT2}, 5, v0
    v_lshlrev_b32 v{vT2}, 2, v{vT2}
    s_waitcnt vmcnt(7)
    s_barrier
    s_waitcnt vmcnt(0)
    s_barrier
    s_mov_b32 exec_lo, 1
    s_mov_b32 exec_hi, 1
    buffer_store_dword v{acc}, v{vT2}, s[{sWS}:{sWS+3}], s{sT0} offen
    """)
    pf.stamp(3); pf.stamp(4); pf.stamp(5)
    pf.dump(6, 2, sWAVE, 8, vT0, vT1)
    a("s_endpgm")
    a.label("L_k1_comp")
    a.window = []
    vN16, vR, vC = 2, 4, 5
    vXr = [10, 11]
    vWr = 12
    vF = 16
    FSZ = 28
    vACC = vF + 2 * FSZ
    NV = vACC + 48
    sWM, sWN = sMX, sMW
    a(f"""
    s_and_b32 s{sWM}, s{sW}, 1
    s_lshr_b32 s{sWN}, s{sW}, 1
    v_and_b32 v{vN16}, 15, v0
    v_bfe_u32 v{vR}, v0, 2, 2
    v_and_b32 v{vC}, 3, v0
    s_lshl_b32 s{sT0}, s{sWM}, 13
    v_lshrrev_b32 v{vT0}, 1, v{vN16}
    v_xor_b32 v{vT0}, v{vG}, v{vT0}
    v_lshlrev_b32 v{vT0}, 4, v{vT0}
    v_lshl_add_u32 v{vT0}, v{vN16}, 7, v{vT0}
    v_add_u32 v{vXr[0]}, s{sT0}, v{vT0}
    v_xor_b32 v{vXr[1]}, 64, v{vXr[0]}
    v_lshl_add_u32 v{vT1}, v{vG}, 3, v{vR}
    v_mul_u32_u24 v{vT1}, 192, v{vT1}
    v_lshl_add_u32 v{vT1}, v{vC}, 3, v{vT1}
    v_add_u32 v{vT1}, {WQ_BASE}, v{vT1}
    v_and_b32 v{vT2}, 1, v{vG}
    v_xor_b32 v{vT2}, s{sWN}, v{vT2}
    v_lshl_add_u32 v{vWr}, v{vT2}, 5, v{vT1}
    s_mov_b32 s{sOX}, 0
    s_mov_b32 s{sOW}, 0
    """)
    for r in range(48): a(f"v_mov_b32 v{vACC+r}, 0")
    def frag(buf):
        b = vF + buf * FSZ
        return [b + 4 * t for t in range(4)], [b + 16 + 4 * c for c in range(3)]
    def reads(buf, s2):
        X, W = frag(buf); L = []
        L.append(f"ds_read_b128 {vr(X[0],4)}, v{vXr[s2]}")
        for c3 in range(3):
            for t2 in range(2):
                L.append(f"ds_read_b64_tr_b16 {vr(W[c3]+2*t2,2)}, v{vWr} offset:{(32*s2+4*t2)*192 + c3*64}")
            L.append(f"ds_read_b128 {vr(X[c3+1],4)}, v{vXr[s2]} offset:{(c3+1)*2048}")
        return L
    def mfmas(buf):
        X, W = frag(buf); L = []
        for t in range(4):
            for c3 in range(3):
                acc = vACC + (c3 * 4 + t) * 4
                if c3 == 2: L.append(f"v_mfma_f32_16x16x32_bf16 {vr(acc,4)}, {vr(X[t],4)}, {vr(W[c3],4)}, {vr(acc,4)}")
                else:       L.append(f"v_mfma_f32_16x16x32_bf16 {vr(acc,4)}, {vr(W[c3],4)}, {vr(X[t],4)}, {vr(acc,4)}")
        return L
    def interleave(M, O, per=1):
        O = list(O)
        for m in M:
            a(m)
            for _ in range(per):
                if O: a(O.pop(0))
        for o in O: a(o)
    a(f"""
    s_waitcnt lgkmcnt(0)
    s_mov_b32 s{sWS}, s14
    s_mov_b32 s{sWS+1}, s15
    """)
    pf.stamp(1)
    a("s_barrier")
    pf.stamp(2)
    a("\n".join(reads(0, 0)))
    a.raw(".p2align 6")
    a.label("L_k1_loop")
    start = len(a.lines)
    a("s_waitcnt lgkmcnt(0)")
    interleave(mfmas(0), reads(1, 1))
    a(f"""
    s_add_u32 s{sN}, s{sOX}, {XS}
    s_cmp_eq_u32 s{sN}, {NS*XS}
    s_cselect_b32 s{sN}, 0, s{sN}
    s_sub_u32 s{sD}, s{sN}, s{sOX}
    s_mov_b32 s{sOX}, s{sN}
    s_add_u32 s{sN}, s{sOW}, {WQS}
    s_cmp_eq_u32 s{sN}, {NS*WQS}
    s_cselect_b32 s{sN}, 0, s{sN}
    s_sub_u32 s{sDW}, s{sN}, s{sOW}
    s_mov_b32 s{sOW}, s{sN}
    v_add_u32 v{vXr[0]}, s{sD}, v{vXr[0]}
    v_add_u32 v{vXr[1]}, s{sD}, v{vXr[1]}
    v_add_u32 v{vWr}, s{sDW}, v{vWr}
    s_add_u32 s{sC}, s{sC}, 1
    s_cmp_eq_u32 s{sC}, 8
    s_waitcnt lgkmcnt(0)
    s_cbranch_scc1 L_k1_last
    s_barrier
    """)
    interleave(mfmas(1), reads(0, 0))
    a("s_branch L_k1_loop")
    seam, inner = check_loop(a.lines[start:])
    assert seam == 0 and inner == 0, (seam, inner)
    a.label("L_k1_last")
    a.window = []
    for m in mfmas(1): a(m)
    pf.stamp(3)
    vP = vF
    a(f"""
    s_lshl_b32 s{sT0}, s{sI}, 2
    s_lshl_b32 s{sT1}, s{sWM}, 1
    s_add_u32 s{sT0}, s{sT0}, s{sT1}
    s_lshl_b32 s{sT0}, s{sT0}, 10
    s_lshl_b32 s{sT1}, s{sJ}, 1
    s_add_u32 s{sT1}, s{sT1}, s{sWN}
    s_lshl_b32 s{sT1}, s{sT1}, 16
    s_add_u32 s{sT1}, s{sT1}, s{sT0}
    v_lshlrev_b32 v{vT0}, 4, v0
    s_mov_b32 s{sT2}, {hex(f32bits(QSCALE))}
    """)
    k = 0
    for c3 in (1, 2, 0):
        for tp in range(2):
            p = vP + 4 * k; k += 1
            a0 = vACC + (c3 * 4 + 2 * tp) * 4; a1 = a0 + 4
            if c3 == 0:
                for r in range(8): a(f"v_mul_f32 v{a0+r}, s{sT2}, v{a0+r}")
            sw = "v_permlane32_swap_b32" if c3 == 2 else "v_permlane16_swap_b32"
            a(f"""
            v_cvt_pk_bf16_f32 v{p}, v{a0}, v{a0+1}
            v_cvt_pk_bf16_f32 v{p+1}, v{a0+2}, v{a0+3}
            v_cvt_pk_bf16_f32 v{p+2}, v{a1}, v{a1+1}
            v_cvt_pk_bf16_f32 v{p+3}, v{a1+2}, v{a1+3}
            s_add_u32 s{sT0}, s{sT1}, {[WS_Q, WS_K, WS_V][c3]}
            {sw} v{p}, v{p+2}
            {sw} v{p+1}, v{p+3}
            buffer_store_dwordx4 {vr(p,4)}, v{vT0}, s[{sWS}:{sWS+3}], s{sT0} offen offset:{tp*1024}
            """)
    pf.stamp(4)
    if asmlib.PROF: a("s_waitcnt vmcnt(0)")
    pf.stamp(5)
    pf.dump(6, 2, sWAVE, 8, vT0, vT1)
    a("s_endpgm")
    a.label("L_k1_end")
    a("s_endpgm")
    return a.text(), kernel_desc(NAME, NV, 56), f"; @launch kernel={NAME} grid=(256,1,1) block=(512,1,1) lds={LDS_BYTES}"

if __name__ == "__main__":
    t, d, l = gen()
    print(l); print(len(t.splitlines()))
```

```python
from asmlib import *
import asmlib
from layout import *

NAME = "k2_main_kernel"
LDS_BYTES = 49152
SENT = -1
import os
EXP = os.environ.get('EXP', '')
SPIN_MAX = 1 << 18

def attn_role(a):
    P = "at"
    sWS, sKV = 8, 28
    sW, sH, sQB = 12, 13, 14
    sT0, sT1, sT2 = 15, 16, 17
    sKT, sC, sM, sQ0, sA = 18, 19, 20, 22, 23
    sRB, sPO, sD, sVT = 26, 27, 32, 33
    vKo, vVo = 1, 2
    vT0, vT1, vT2, vT3, vG = 3, 4, 5, 6, 7
    vQ, vK, vV, vP, vS, vO = 8, 24, 32, 48, 56, 88
    vKr, vVr = 152, 153
    NV = 154
    RING = 12288
    pf = Prof(a, 1)
    pf.stamp(0)
    a(f"""
    s_setprio 3
    s_load_dwordx2 s[4:5], s[0:1], 80
    s_sub_u32 s{sA}, s2, 256
    v_lshrrev_b32 v1, 6, v0
    v_and_b32 v0, 63, v0
    v_readfirstlane_b32 s{sW}, v1
    s_lshr_b32 s{sH}, s{sA}, 8
    s_lshl_b32 s{sH}, s{sH}, 4
    s_and_b32 s{sT0}, s{sA}, 7
    s_lshl_b32 s{sT0}, s{sT0}, 1
    s_add_u32 s{sH}, s{sH}, s{sT0}
    s_bfe_u32 s{sT0}, s{sA}, 0x10003
    s_add_u32 s{sH}, s{sH}, s{sT0}
    s_bfe_u32 s{sQB}, s{sA}, 0x40004
    s_mov_b32 s{sWS+2}, {WS_SIZE}
    s_mov_b32 s{sWS+3}, 0x00020000
    s_mov_b32 s{sKV+2}, {WS_SIZE}
    s_mov_b32 s{sKV+3}, 0x00020000
    s_mov_b32 s{sM}, 0x0000ffff
    s_mov_b32 s{sM+1}, 0x0000ffff
    s_lshl_b32 s{sT0}, s{sH}, 16
    s_lshl_b32 s{sT1}, s{sQB}, 12
    s_add_u32 s{sQ0}, s{sT0}, s{sT1}
    s_lshl_b32 s{sT1}, s{sW}, 14
    s_add_u32 s{sKT}, s{sT0}, s{sT1}
    s_add_u32 s{sKT}, s{sKT}, {WS_K}
    s_mul_i32 s{sRB}, s{sW}, {RING}
    v_lshlrev_b32 v{vKo}, 4, v0
    v_add_u32 v{vVo}, {WS_V - WS_K}, v{vKo}
    s_lshl_b32 s{sT1}, s{sW}, 10
    v_xor_b32 v{vT2}, s{sT1}, v{vKo}
    s_mov_b32 m0, s{sRB}
    s_mov_b32 s{sC}, 0
    s_waitcnt lgkmcnt(0)
    s_mov_b32 s{sWS}, s4
    s_mov_b32 s{sWS+1}, s5
    s_mov_b32 s{sKV}, s4
    s_mov_b32 s{sKV+1}, s5
    """)
    srd = f"s[{sWS}:{sWS+3}]"
    kv = f"s[{sKV}:{sKV+3}]"
    for q in range(4):
        if q: a(f"v_xor_b32 v{vT3}, {q*1024}, v{vT2}")
        a(f"buffer_load_dwordx4 {vr(vQ+4*q,4)}, v{vT3 if q else vT2}, {srd}, s{sQ0} offen")
    a(f"""
    L_{P}_pre:
    buffer_load_dwordx4 v{vKo}, {kv}, s{sKT} offen lds
    s_add_u32 m0, m0, 1024
    s_add_u32 s{sC}, s{sC}, 1
    buffer_load_dwordx4 v{vVo}, {kv}, s{sKT} offen lds
    s_add_u32 m0, m0, 1024
    s_add_u32 s{sKT}, s{sKT}, 1024
    s_cmp_lt_u32 s{sC}, 6
    s_cbranch_scc1 L_{P}_pre
    s_lshl_b32 s{sT0}, s{sQB}, 2
    s_add_u32 s{sT0}, s{sT0}, s{sW}
    s_lshl_b32 s{sT0}, s{sT0}, 7
    s_add_u32 s{sT0}, s{sT0}, {WS_G}
    v_and_b32 v{vT0}, 31, v0
    v_lshlrev_b32 v{vT0}, 2, v{vT0}
    buffer_load_dword v{vG}, v{vT0}, {srd}, s{sT0} offen
    v_add_u32 v{vKr}, s{sRB}, v{vKo}
    v_and_b32 v{vT0}, 15, v0
    v_lshlrev_b32 v{vT0}, 4, v{vT0}
    v_lshrrev_b32 v{vT1}, 5, v0
    v_lshl_add_u32 v{vT0}, v{vT1}, 8, v{vT0}
    v_add_u32 v{vVr}, s{sRB}, v{vT0}
    v_and_b32 v{vT1}, 27, v0
    v_cmp_eq_u32 vcc, 16, v{vT1}
    v_mov_b32 v{vT1}, 0x3f803f80
    v_cndmask_b32 v{vT1}, 0, v{vT1}, vcc
    """)
    for r in range(16): a(f"v_mov_b32 v{vV+r}, v{vT1}")
    def reads(st, off):
        return f"""ds_read_b128 {vr(vK+4*st,4)}, v{vKr} offset:{off}
        s_mov_b64 exec, s[{sM}:{sM+1}]
        ds_read_b128 {vr(vV+8*st,4)}, v{vVr} offset:{off+1024}
        ds_read_b128 {vr(vV+8*st+4,4)}, v{vVr} offset:{off+1536}
        s_mov_b64 exec, -1"""
    def dma(off):
        return f"""s_add_u32 m0, s{sPO}, {off}
        s_setprio 3
        buffer_load_dwordx4 v{vKo}, {kv}, s{sKT} offen lds
        s_add_u32 m0, s{sPO}, {off+1024}
        s_nop 0
        buffer_load_dwordx4 v{vVo}, {kv}, s{sKT} offen lds
        s_setprio 0
        s_add_u32 s{sKT}, s{sKT}, 1024"""
    for r in range(64): a(f"v_mov_b32 v{vO+r}, 0")
    for r in range(4, 8): a(f"v_mov_b32 v{vP+r}, 0")
    a(f"s_mov_b32 s{sC}, 0")
    a(f"s_mov_b32 s{sPO}, s{sRB}")
    pf.stamp(1)
    a("s_waitcnt vmcnt(11)")
    pf.stamp(2)
    a(reads(0, 0))
    a("s_waitcnt lgkmcnt(0)")
    def mfS(sb, st, q): return f"v_mfma_f32_32x32x16_bf16 {vr(vS+16*sb,16)}, {vr(vK+4*st,4)}, {vr(vQ+4*q,4)}, 0"
    def mfPV(q, st, u): return f"v_mfma_f32_32x32x16_bf16 {vr(vO+16*q,16)}, {vr(vV+8*st+4*u,4)}, {vr(vP+4*u,4)}, {vr(vO+16*q,16)}"
    a(mfS(0, 0, 0))
    a(dma(0))
    if 'diag' in EXP: a("s_mov_b32 s40, 0\ns_mov_b32 s41, 0")
    a("s_nop 7")
    a.raw(".p2align 6")
    a.label(f"L_{P}_loop")
    start = len(a.lines)
    for st in range(2):
        off = 2048 if st == 0 else 0
        for q in range(4):
            sb = q & 1
            S = vS + 16 * sb
            ex = lambda i: f"v_exp_f32 v{S+i}, v{S+i}"
            cv = lambda i: f"v_cvt_pk_bf16_f32 v{vP+i}, v{S+2*i}, v{S+2*i+1}"
            pq, pst = (q - 1, st) if q > 0 else (3, st ^ 1)
            nq, nst = (q + 1, st) if q < 3 else (0, st ^ 1)
            a(ex(0)); a(ex(1))
            a(mfPV(pq, pst, 1))
            if q == 0 and st == 1:
                a(f"""
                s_add_u32 s{sT0}, s{sPO}, 4096
                s_add_u32 s{sT1}, s{sRB}, {RING}
                s_cmp_eq_u32 s{sT0}, s{sT1}
                s_cselect_b32 s{sT0}, s{sRB}, s{sT0}
                s_sub_u32 s{sD}, s{sT0}, s{sPO}
                s_mov_b32 s{sPO}, s{sT0}
                v_add_u32 v{vKr}, s{sD}, v{vKr}
                v_add_u32 v{vVr}, s{sD}, v{vVr}
                """)
            if q == 1:
                if 'diag' in EXP: a("s_memtime s[44:45]")
                a("s_waitcnt vmcnt(10)")
                if 'diag' in EXP:
                    a("s_memtime s[46:47]\ns_waitcnt lgkmcnt(0)\ns_sub_u32 s44, s46, s44\ns_add_u32 s41, s41, s44")
                a(reads(st ^ 1, off))
            for i in range(2, 6): a(ex(i))
            if q == 3: a("s_waitcnt lgkmcnt(0)")
            a(mfS(sb ^ 1, nst, nq))
            if q == 3:
                if st == 1:
                    a(f"""
                    s_cmp_ge_u32 s{sC}, 4
                    s_cselect_b32 s{sKV+2}, 0, s{sKV+2}
                    """)
                if 'diag' in EXP: a("s_memtime s[44:45]")
                a(dma(off))
                if 'diag' in EXP:
                    a("s_memtime s[46:47]\ns_waitcnt lgkmcnt(0)\ns_sub_u32 s44, s46, s44\ns_add_u32 s40, s40, s44")
            a(ex(6)); a(ex(7))
            for i in range(4): a(cv(i))
            a(ex(8)); a(ex(9))
            a(mfPV(q, st, 0))
            for i in range(10, 16): a(ex(i))
            for i in range(4, 8): a(cv(i))
    a(f"""
    s_add_u32 s{sC}, s{sC}, 1
    s_cmp_lt_u32 s{sC}, 8
    s_cbranch_scc1 L_{P}_loop
    """)
    seam, inner = check_loop(a.lines[start:])
    assert seam == 0 and inner == 0, (seam, inner)
    a(mfPV(3, 1, 1))
    a("s_setprio 3")
    pf.stamp(3)
    a(f"""
    v_add_u32 v{vT0}, s{sRB}, v{vKo}
    v_lshlrev_b32 v{vT1}, 2, v0
    v_add_u32 v{vT2}, s{sRB}, v{vT1}
    s_waitcnt vmcnt(0)
    """)
    for j in range(1, 4):
        o = vO + 16 * j
        a(f"""
        ds_write_b128 v{vT0}, {vr(o,4)} offset:{(j-1)*2304}
        ds_write_b128 v{vT0}, {vr(o+4,4)} offset:{(j-1)*2304+1024}
        ds_write_b32 v{vT2}, v{o+8} offset:{(j-1)*2304+2048}
        """)
    a(f"""
    s_waitcnt lgkmcnt(0)
    s_barrier
    """)
    R = vO
    for j in range(1, 4):
        o = vO + 16 * j
        a(f"""
        s_xor_b32 s{sT0}, s{sW}, {j}
        s_mul_i32 s{sT0}, s{sT0}, {RING}
        v_add_u32 v{vT0}, s{sT0}, v{vKo}
        v_add_u32 v{vT2}, s{sT0}, v{vT1}
        ds_read_b128 {vr(o,4)}, v{vT0} offset:{(j-1)*2304}
        ds_read_b128 {vr(o+4,4)}, v{vT0} offset:{(j-1)*2304+1024}
        ds_read_b32 v{o+8}, v{vT2} offset:{(j-1)*2304+2048}
        """)
    a("s_waitcnt lgkmcnt(0)")
    for r in range(0, 8, 2):
        a(f"v_pk_add_f32 {vr(R+r,2)}, {vr(R+r,2)}, {vr(R+16+r,2)}")
        a(f"v_pk_add_f32 {vr(R+32+r,2)}, {vr(R+32+r,2)}, {vr(R+48+r,2)}")
    a(f"v_add_f32 v{R+8}, v{R+8}, v{R+24}")
    a(f"v_add_f32 v{R+40}, v{R+40}, v{R+56}")
    for r in range(0, 8, 2):
        a(f"v_pk_add_f32 {vr(R+r,2)}, {vr(R+r,2)}, {vr(R+32+r,2)}")
    a(f"v_add_f32 v{R+8}, v{R+8}, v{R+40}")
    a(f"v_mov_b32 v{vT2}, v{R+8}")
    for r in range(8): a(f"v_fma_f32 v{vT2}, v{R+r}, 0, v{vT2}")
    a(f"""
    s_mov_b32 s{sT0}, {hex(f32bits(2.0**-30))}
    s_mov_b32 s{sT1}, {hex(f32bits(2.0**30))}
    v_cmp_le_f32 vcc, s{sT0}, v{vT2}
    v_cmp_ge_f32 s[24:25], s{sT1}, v{vT2}
    s_and_b64 vcc, vcc, s[24:25]
    s_cmp_eq_u64 vcc, -1
    s_cbranch_scc0 L_{P}_slow
    L_{P}_fin:
    v_rcp_f32 v{vT2}, v{R+8}
    s_lshl_b32 s{sT0}, s{sQB}, 2
    s_add_u32 s{sT0}, s{sT0}, s{sW}
    s_lshl_b32 s{sT0}, s{sT0}, 5
    s_add_u32 s{sT0}, s{sT0}, s{sH}
    s_lshl_b32 s{sT0}, s{sT0}, 10
    s_add_u32 s{sT0}, s{sT0}, {WS_O}
    v_mul_f32 v{vT2}, v{vT2}, v{vG}
    """)
    for r in range(8): a(f"v_mul_f32 v{R+r}, v{R+r}, v{vT2}")
    a(f"""
    v_cvt_pk_bf16_f32 v{vP}, v{R}, v{R+1}
    v_cvt_pk_bf16_f32 v{vP+1}, v{R+2}, v{R+3}
    v_cvt_pk_bf16_f32 v{vP+2}, v{R+4}, v{R+5}
    v_cvt_pk_bf16_f32 v{vP+3}, v{R+6}, v{R+7}
    v_min_u32 v{vP}, -2, v{vP}
    v_min_u32 v{vP+1}, -2, v{vP+1}
    v_min_u32 v{vP+2}, -2, v{vP+2}
    v_min_u32 v{vP+3}, -2, v{vP+3}
    v_permlane32_swap_b32 v{vP}, v{vP+2}
    v_permlane32_swap_b32 v{vP+1}, v{vP+3}
    buffer_store_dwordx4 {vr(vP,4)}, v{vKo}, {srd}, s{sT0} offen sc1
    """)
    pf.stamp(4)
    if asmlib.PROF: a("s_waitcnt vmcnt(0)")
    pf.stamp(5)
    if 'diag' in EXP: a("s_mov_b32 s92, s40\ns_mov_b32 s94, s41")
    pf.dump(6, sA, sW, 4, vT0, vT1)
    a("s_endpgm")
    a.label(f"L_{P}_slow")
    a.window = []
    vM = vT3
    S = vS
    a(f"""
    s_lshl_b32 s{sT1}, s{sH}, 16
    s_add_u32 s{sT1}, s{sT1}, {WS_K}
    s_mov_b32 s{sKT}, s{sT1}
    s_mov_b32 s{sC}, 0
    v_mov_b32 v{vM}, 0xff800000
    v_and_b32 v{vT0}, 15, v0
    v_lshlrev_b32 v{vT0}, 4, v{vT0}
    v_lshrrev_b32 v{vT1}, 5, v0
    v_lshl_add_u32 v{vT0}, v{vT1}, 8, v{vT0}
    v_add_u32 v{vVo}, {WS_V - WS_K}, v{vT0}
    L_{P}_slow1:
    buffer_load_dwordx4 {vr(vK,4)}, v{vKo}, {srd}, s{sKT} offen
    s_add_u32 s{sKT}, s{sKT}, 1024
    s_waitcnt vmcnt(0)
    {mfS(0,0,0)}
    """)
    for r in range(0, 16, 2): a(f"v_max3_f32 v{vM}, v{vM}, v{S+r}, v{S+r+1}")
    a(f"""
    s_add_u32 s{sC}, s{sC}, 1
    s_cmp_lt_u32 s{sC}, 64
    s_cbranch_scc1 L_{P}_slow1
    v_mov_b32 v{vT0}, v{vM}
    v_mov_b32 v{vT1}, v{vM}
    v_permlane32_swap_b32 v{vT0}, v{vT1}
    v_max_f32 v{vM}, v{vT0}, v{vT1}
    s_mov_b32 s{sKT}, s{sT1}
    s_mov_b32 s{sC}, 0
    """)
    for r in range(16): a(f"v_mov_b32 v{R+r}, 0")
    a(f"""
    L_{P}_slow2:
    buffer_load_dwordx4 {vr(vK,4)}, v{vKo}, {srd}, s{sKT} offen
    s_mov_b64 exec, s[{sM}:{sM+1}]
    buffer_load_dwordx4 {vr(vV,4)}, v{vVo}, {srd}, s{sKT} offen
    buffer_load_dwordx4 {vr(vV+4,4)}, v{vVo}, {srd}, s{sKT} offen offset:512
    s_mov_b64 exec, -1
    s_add_u32 s{sKT}, s{sKT}, 1024
    s_waitcnt vmcnt(0)
    {mfS(0,0,0)}
    """)
    for r in range(16): a(f"v_sub_f32 v{S+r}, v{S+r}, v{vM}")
    for r in range(16): a(f"v_exp_f32 v{S+r}, v{S+r}")
    for i in range(8): a(f"v_cvt_pk_bf16_f32 v{vP+i}, v{S+2*i}, v{S+2*i+1}")
    a(mfPV(0, 0, 0)); a(mfPV(0, 0, 1))
    a(f"""
    s_nop 7
    s_add_u32 s{sC}, s{sC}, 1
    s_cmp_lt_u32 s{sC}, 64
    s_cbranch_scc1 L_{P}_slow2
    s_nop 15
    s_branch L_{P}_fin
    """)
    return NV

def gemm_role(a):
    P = "gm"
    sWS, sX, sW1, sB1, sWT, sOUT = 16, 20, 24, 28, 32, 36
    sW, sXCD, sIDX = 40, 41, 42
    sT0, sT1, sT2 = 43, 44, 45
    sC = 46
    sSOX, sSOW, sOS, sD, sN = 47, 48, 49, 50, 51
    sMD = 52
    sWM, sWN, sI, sJJ = 53, 54, 55, 56
    sTW, sFJ, sAO, sWO, sWO2, sLB = 57, 58, 59, 60, 61, 62
    sK2 = 64
    vL16 = 1
    vT0, vT1, vT2, vT3 = 2, 3, 4, 5
    vXd, vWd = 6, 7
    vXr, vWr = [8, 9], [10, 11]
    vAo = [12, 13]
    vG1 = [14, 15]
    vF = 16
    vA = 48
    vACC = 80
    NV = vACC + 64
    ST = 16384
    pf = Prof(a, 2)
    pf.stamp(0)
    a(f"""
    s_setprio {0 if 'prio0' in EXP else 2}
    s_load_dwordx2 s[4:5], s[0:1], 0
    s_load_dwordx2 s[6:7], s[0:1], 16
    s_load_dwordx4 s[8:11], s[0:1], 32
    s_load_dwordx2 s[12:13], s[0:1], 48
    s_load_dwordx2 s[{sOUT}:{sOUT+1}], s[0:1], 64
    s_load_dwordx2 s[14:15], s[0:1], 80
    v_lshrrev_b32 v1, 6, v0
    v_and_b32 v0, 63, v0
    v_readfirstlane_b32 s{sW}, v1
    s_and_b32 s{sXCD}, s2, 7
    s_lshr_b32 s{sIDX}, s2, 3
    s_mov_b32 s{sWS+2}, {WS_SIZE}
    s_mov_b32 s{sWS+3}, 0x00020000
    s_mov_b32 s{sX+2}, {2048*512*2}
    s_mov_b32 s{sX+3}, 0x00020000
    s_mov_b32 s{sW1+2}, {512*1792*2}
    s_mov_b32 s{sW1+3}, 0x00020000
    s_mov_b32 s{sB1+2}, {1792*2}
    s_mov_b32 s{sB1+3}, 0x00020000
    s_mov_b32 s{sWT+2}, {1792*512*2}
    s_mov_b32 s{sWT+3}, 0x00020000
    s_mov_b32 s{sOUT+2}, {2048*512*2}
    s_mov_b32 s{sOUT+3}, 0x00020000
    s_and_b32 s{sWM}, s{sW}, 1
    s_lshr_b32 s{sWN}, s{sW}, 1
    v_lshlrev_b32 v{vL16}, 4, v0
    {f's_mov_b32 s{sX+2}, 0' if 'noload' in EXP else ''}
    {f's_mov_b32 s{sW1+2}, 0' if 'noload' in EXP else ''}
    {f's_mov_b32 s{sWT+2}, 0' if 'noload' in EXP else ''}
    s_waitcnt lgkmcnt(0)
    s_mov_b32 s{sX}, s4
    s_mov_b32 s{sX+1}, s5
    s_mov_b32 s{sW1}, s8
    s_mov_b32 s{sW1+1}, s9
    s_mov_b32 s{sB1}, s10
    s_mov_b32 s{sB1+1}, s11
    s_mov_b32 s{sWT}, s12
    s_mov_b32 s{sWT+1}, s13
    s_mov_b32 s{sWS}, s14
    s_mov_b32 s{sWS+1}, s15
    s_cmp_ge_u32 s{sIDX}, {0 if 'nof1' in EXP else 28}
    s_cbranch_scc1 L_{P}_f2
    {'s_endpgm' if 'gexit' in EXP else ''}
    """)
    wsrd = f"s[{sWS}:{sWS+3}]"
    a(f"""
    s_lshl_b32 s{sI}, s{sXCD}, 1
    s_and_b32 s{sT0}, s{sIDX}, 1
    s_add_u32 s{sI}, s{sI}, s{sT0}
    s_lshr_b32 s{sJJ}, s{sIDX}, 1
    s_lshl_b32 s{sT0}, s{sJJ}, 8
    s_lshl_b32 s{sT1}, s{sWN}, 7
    s_add_u32 s{sT0}, s{sT0}, s{sT1}
    v_lshrrev_b32 v{vT0}, 5, v0
    v_lshlrev_b32 v{vT0}, 3, v{vT0}
    """)
    for i in range(8):
        a(f"buffer_load_dwordx2 {vr(vA+2*i,2)}, v{vT0}, s[{sB1}:{sB1+3}], s{sT0} offen offset:{16*i}")
    a(f"""
    v_lshrrev_b32 v{vT0}, 4, v0
    v_xor_b32 v{vT1}, v{vT0}, v0
    v_and_b32 v{vT1}, 3, v{vT1}
    v_lshlrev_b32 v{vT1}, 4, v{vT1}
    v_lshrrev_b32 v{vT2}, 2, v0
    v_lshl_add_u32 v{vXd}, v{vT2}, 10, v{vT1}
    s_lshl_b32 s{sSOX}, s{sI}, 17
    s_lshl_b32 s{sT0}, s{sW}, 15
    s_add_u32 s{sSOX}, s{sSOX}, s{sT0}
    v_xor_b32 v{vT1}, v{vT2}, v{vT0}
    v_and_b32 v{vT1}, 3, v{vT1}
    v_lshlrev_b32 v{vT1}, 6, v{vT1}
    v_and_b32 v{vT2}, 3, v0
    v_lshl_add_u32 v{vT1}, v{vT2}, 4, v{vT1}
    v_mul_u32_u24 v{vT0}, 3584, v{vT0}
    v_add_u32 v{vWd}, v{vT0}, v{vT1}
    s_mul_i32 s{sSOW}, s{sW}, {8*3584}
    s_lshl_b32 s{sT0}, s{sJJ}, 8
    s_add_u32 s{sSOW}, s{sSOW}, s{sT0}
    s_lshl_b32 s{sMD}, s{sW}, 11
    s_mov_b32 s{sOS}, 0
    s_mov_b32 s{sC}, 0
    """)
    def f1_dma():
        return [f"""s_add_u32 m0, s{sMD}, s{sOS}
        s_add_u32 s{sT0}, s{sSOX}, 16384
        buffer_load_dwordx4 v{vXd}, s[{sX}:{sX+3}], s{sSOX} offen lds""",
        f"""s_add_u32 m0, m0, 1024
        s_add_u32 s{sT1}, s{sSOW}, {4*3584}
        buffer_load_dwordx4 v{vXd}, s[{sX}:{sX+3}], s{sT0} offen lds""",
        f"""s_add_u32 m0, m0, {8192-1024}
        s_add_u32 s{sSOX}, s{sSOX}, 64
        buffer_load_dwordx4 v{vWd}, s[{sW1}:{sW1+3}], s{sSOW} offen lds""",
        f"""s_add_u32 m0, m0, 1024
        s_add_u32 s{sSOW}, s{sSOW}, {32*3584}
        buffer_load_dwordx4 v{vWd}, s[{sW1}:{sW1+3}], s{sT1} offen lds"""]
    a.label(f"L_{P}_f1pre")
    for g in f1_dma(): a(g)
    a(f"""
    s_add_u32 s{sOS}, s{sOS}, {ST}
    s_cmp_lt_u32 s{sOS}, {3*ST}
    s_cbranch_scc1 L_{P}_f1pre
    s_mov_b32 s{sOS}, 0
    v_and_b32 v{vT0}, 31, v0
    v_lshrrev_b32 v{vT1}, 5, v0
    v_bfe_u32 v{vT2}, v0, 2, 2
    v_xor_b32 v{vT1}, v{vT1}, v{vT2}
    v_lshlrev_b32 v{vT1}, 4, v{vT1}
    v_lshl_add_u32 v{vT0}, v{vT0}, 6, v{vT1}
    s_lshl_b32 s{sT0}, s{sWM}, 12
    v_add_u32 v{vXr[0]}, s{sT0}, v{vT0}
    v_xor_b32 v{vXr[1]}, 32, v{vXr[0]}
    v_lshrrev_b32 v{vT0}, 5, v0
    v_lshl_add_u32 v{vT0}, v{vT0}, 3, v{vT2}
    v_lshlrev_b32 v{vT0}, 8, v{vT0}
    s_lshl_b32 s{sT0}, s{sWN}, 1
    v_xor_b32 v{vT1}, s{sT0}, v{vT2}
    v_lshl_add_u32 v{vT0}, v{vT1}, 6, v{vT0}
    v_bfe_u32 v{vT1}, v0, 4, 1
    v_lshl_add_u32 v{vT0}, v{vT1}, 5, v{vT0}
    v_and_b32 v{vT1}, 3, v0
    v_lshl_add_u32 v{vT0}, v{vT1}, 3, v{vT0}
    v_add_u32 v{vWr[0]}, 8192, v{vT0}
    v_xor_b32 v{vWr[1]}, 64, v{vWr[0]}
    s_waitcnt vmcnt(12)
    """)
    for fi in range(2):
        for ti in range(2):
            acc = vACC + 16 * (fi * 2 + ti)
            for q in range(4):
                b = vA + 2 * (4 * fi + q)
                a(f"""
                v_lshlrev_b32 v{acc+4*q}, 16, v{b}
                v_and_b32 v{acc+4*q+1}, 0xffff0000, v{b}
                v_lshlrev_b32 v{acc+4*q+2}, 16, v{b+1}
                v_and_b32 v{acc+4*q+3}, 0xffff0000, v{b+1}
                """)
    def f1_reads(buf, s2):
        b = vF + 16 * buf; L = []
        for ti in range(2):
            L.append(f"ds_read_b128 {vr(b+4*ti,4)}, v{vXr[s2]} offset:{ti*2048}")
            for t2 in range(2):
                L.append(f"ds_read_b64_tr_b16 {vr(b+8+4*ti+2*t2,2)}, v{vWr[ti]} offset:{(16*s2+4*t2)*256}")
        return L
    def f1_mfmas(buf):
        b = vF + 16 * buf; L = []
        for fi in range(2):
            for ti in range(2):
                acc = vACC + 16 * (fi * 2 + ti)
                L.append(f"v_mfma_f32_32x32x16_bf16 {vr(acc,16)}, {vr(b+8+4*fi,4)}, {vr(b+4*ti,4)}, {vr(acc,16)}")
        if 'nomfma' in EXP: L = ["s_nop 0"] * 4
        return L
    def interleave(M, O, per=2):
        O = list(O)
        for m in M:
            a(m)
            for _ in range(per):
                if O: a(O.pop(0))
        for o in O: a(o)
    a("s_waitcnt vmcnt(8)")
    a("s_barrier")
    a("\n".join(f1_reads(0, 0)))
    a.raw(".p2align 6")
    a.label(f"L_{P}_f1loop")
    start = len(a.lines)
    a("s_waitcnt lgkmcnt(0)")
    interleave(f1_mfmas(0), f1_reads(1, 1))
    a(f"""
    s_cmp_lt_u32 s{sC}, 14
    s_cbranch_scc1 L_{P}_f1w
    s_waitcnt vmcnt(0)
    L_{P}_f1w:
    s_waitcnt vmcnt(4) lgkmcnt(0)
    s_barrier
    s_cmp_ge_u32 s{sC}, 13
    s_cbranch_scc1 L_{P}_f1nodma
    """)
    for g in f1_dma(): a(g)
    a(f"""
    L_{P}_f1nodma:
    s_add_u32 s{sN}, s{sOS}, {ST}
    s_cmp_eq_u32 s{sN}, {3*ST}
    s_cselect_b32 s{sN}, 0, s{sN}
    s_sub_u32 s{sD}, s{sN}, s{sOS}
    s_mov_b32 s{sOS}, s{sN}
    v_add_u32 v{vXr[0]}, s{sD}, v{vXr[0]}
    v_add_u32 v{vXr[1]}, s{sD}, v{vXr[1]}
    v_add_u32 v{vWr[0]}, s{sD}, v{vWr[0]}
    v_add_u32 v{vWr[1]}, s{sD}, v{vWr[1]}
    """)
    interleave(f1_mfmas(1), f1_reads(0, 0))
    a(f"""
    s_add_u32 s{sC}, s{sC}, 1
    s_cmp_lt_u32 s{sC}, 16
    s_cbranch_scc1 L_{P}_f1loop
    s_waitcnt lgkmcnt(0)
    """)
    seam, inner = check_loop(a.lines[start:])
    assert seam == 0 and inner == 0, (seam, inner)
    pf.stamp(1)
    a(f"""
    s_lshl_b32 s{sT0}, s{sI}, 1
    s_add_u32 s{sT0}, s{sT0}, s{sWM}
    s_mul_i32 s{sT1}, s{sT0}, 224
    s_lshl_b32 s{sT2}, s{sJJ}, 1
    s_add_u32 s{sT2}, s{sT2}, s{sWN}
    s_lshl_b32 s{sN}, s{sT0}, 5
    s_add_u32 s{sN}, s{sN}, s{sT2}
    s_lshl_b32 s{sN}, s{sN}, 2
    s_add_u32 s{sN}, s{sN}, {WS_FA}
    s_lshl_b32 s{sT2}, s{sT2}, 2
    s_add_u32 s{sT1}, s{sT1}, s{sT2}
    s_lshl_b32 s{sT1}, s{sT1}, 10
    s_add_u32 s{sT1}, s{sT1}, {WS_A}
    s_add_u32 s{sT2}, s{sT1}, {112*1024}
    s_mov_b32 s{sK2}, {hex(f32bits(LOG2E))}
    s_mov_b32 s{sK2+1}, {hex(f32bits(LOG2E))}
    s_mov_b32 s{sC}, 0
    """)
    e, d = vF, vF + 8
    k = 0
    for fi in range(2):
        for ti in range(2):
            for hf in range(2):
                h = vACC + 16 * (fi * 2 + ti) + 8 * hf
                p = vA + 4 * k; k += 1
                for r in range(0, 8, 2): a(f"v_pk_mul_f32 {vr(e+r,2)}, {vr(h+r,2)}, s[{sK2}:{sK2+1}]")
                for r in range(8): a(f"v_exp_f32 v{e+r}, v{e+r}")
                for r in range(0, 8, 2): a(f"v_pk_add_f32 {vr(e+r,2)}, {vr(e+r,2)}, 1.0 op_sel_hi:[1,0]")
                for r in range(0, 8, 2): a(f"v_pk_fma_f32 {vr(d+r,2)}, {vr(e+r,2)}, {vr(e+r,2)}, 1.0 op_sel_hi:[1,1,0]")
                for r in range(8): a(f"v_rcp_f32 v{d+r}, v{d+r}")
                for r in range(0, 8, 2): a(f"v_pk_mul_f32 {vr(d+r,2)}, {vr(d+r,2)}, {vr(h+r,2)}")
                for r in range(0, 8, 2): a(f"v_pk_fma_f32 {vr(d+r,2)}, {vr(d+r,2)}, -2.0, {vr(h+r,2)} op_sel_hi:[1,0,1]")
                a(f"""
                v_cvt_pk_bf16_f32 v{p}, v{d}, v{d+1}
                v_cvt_pk_bf16_f32 v{p+1}, v{d+2}, v{d+3}
                v_cvt_pk_bf16_f32 v{p+2}, v{d+4}, v{d+5}
                v_cvt_pk_bf16_f32 v{p+3}, v{d+6}, v{d+7}
                v_permlane32_swap_b32 v{p}, v{p+2}
                v_permlane32_swap_b32 v{p+1}, v{p+3}
                buffer_store_dwordx4 {vr(p,4)}, v{vL16}, {wsrd}, s{sT2 if ti else sT1} offen offset:{(2*fi+hf)*1024} sc1
                """)
    a(f"""
    v_mov_b32 v{vT0}, 0
    v_mov_b32 v{vT1}, 1
    s_waitcnt vmcnt(0)
    s_mov_b64 exec, 1
    buffer_store_dword v{vT1}, v{vT0}, {wsrd}, s{sN} offen sc1
    s_mov_b64 exec, -1
    s_barrier
    """)
    a.label(f"L_{P}_f2")
    a.window = []
    if 'gexit' in EXP or 'f1only' in EXP: a("s_endpgm")
    pf.stamp(2)
    D = 4
    a(f"""
    s_lshl_b32 s{sTW}, s{sXCD}, 2
    s_and_b32 s{sT0}, s{sIDX}, 3
    s_add_u32 s{sTW}, s{sTW}, s{sT0}
    s_lshr_b32 s{sFJ}, s{sIDX}, 2
    s_mul_i32 s{sT0}, s{sTW}, 224
    s_mul_i32 s{sT1}, s{sW}, 28
    s_add_u32 s{sT0}, s{sT0}, s{sT1}
    s_lshl_b32 s{sAO}, s{sT0}, 10
    s_add_u32 s{sAO}, s{sAO}, {WS_A}
    s_lshl_b32 s{sWO}, s{sT1}, 14
    s_lshl_b32 s{sT2}, s{sFJ}, 7
    s_add_u32 s{sWO}, s{sWO}, s{sT2}
    s_lshl_b32 s{sLB}, s{sW}, 13
    s_mul_i32 s{sT0}, s{sWM}, {112*1024}
    s_sub_u32 s{sT1}, {112*1024}, s{sT0}
    v_add_u32 v{vAo[0]}, s{sT0}, v{vL16}
    v_add_u32 v{vAo[1]}, s{sT1}, v{vL16}
    v_lshrrev_b32 v{vT0}, 2, v0
    v_lshrrev_b32 v{vT1}, 4, v0
    v_xor_b32 v{vT0}, v{vT0}, v{vT1}
    v_and_b32 v{vT0}, 1, v{vT0}
    v_lshlrev_b32 v{vT0}, 6, v{vT0}
    v_and_b32 v{vT1}, 3, v0
    v_lshl_add_u32 v{vT0}, v{vT1}, 4, v{vT0}
    v_lshrrev_b32 v{vT1}, 3, v0
    v_lshl_add_u32 v{vWd}, v{vT1}, 10, v{vT0}
    v_lshrrev_b32 v{vT0}, 5, v0
    v_bfe_u32 v{vT1}, v0, 2, 2
    v_lshl_add_u32 v{vT0}, v{vT0}, 3, v{vT1}
    v_lshlrev_b32 v{vT0}, 7, v{vT0}
    v_lshrrev_b32 v{vT1}, 1, v{vT1}
    v_xor_b32 v{vT1}, s{sWN}, v{vT1}
    v_lshl_add_u32 v{vT0}, v{vT1}, 6, v{vT0}
    v_bfe_u32 v{vT1}, v0, 4, 1
    v_lshl_add_u32 v{vT0}, v{vT1}, 5, v{vT0}
    v_and_b32 v{vT1}, 3, v0
    v_lshl_add_u32 v{vT0}, v{vT1}, 3, v{vT0}
    v_add_u32 v{vWr[0]}, s{sLB}, v{vT0}
    v_xor_b32 v{vWr[1]}, 64, v{vWr[0]}
    s_lshl_b32 s{sT0}, s{sTW}, 8
    s_add_u32 s{sT0}, s{sT0}, {WS_G}
    v_and_b32 v{vT0}, 31, v0
    v_lshlrev_b32 v{vT0}, 2, v{vT0}
    s_lshl_b32 s{sT1}, s{sWM}, 7
    v_xor_b32 v{vT0}, s{sT1}, v{vT0}
    v_xor_b32 v{vT1}, 128, v{vT0}
    buffer_load_dword v{vG1[0]}, v{vT0}, {wsrd}, s{sT0} offen
    buffer_load_dword v{vG1[1]}, v{vT1}, {wsrd}, s{sT0} offen
    s_lshl_b32 s{sT0}, s{sTW}, 7
    s_mul_i32 s{sT1}, s{sW}, 28
    s_add_u32 s{sT0}, s{sT0}, s{sT1}
    s_add_u32 s{sT0}, s{sT0}, {WS_FA}
    v_min_u32 v{vT0}, 6, v0
    v_lshlrev_b32 v{vT0}, 2, v{vT0}
    s_mov_b32 s{sD}, {0 if 'nof1' in EXP else SPIN_MAX}
    L_{P}_pollA:
    buffer_load_dword v{vT1}, v{vT0}, {wsrd}, s{sT0} offen sc1
    s_waitcnt vmcnt(0)
    v_cmp_ne_u32 vcc, 1, v{vT1}
    s_cbranch_vccz L_{P}_okA
    s_sleep 8
    s_sub_u32 s{sD}, s{sD}, 1
    s_cbranch_scc0 L_{P}_pollA
    L_{P}_okA:
    s_mov_b32 s{sD}, {SPIN_MAX}
    """)
    def wloads(d):
        return [f"s_add_u32 m0, s{sLB}, {d*2048}",
                f"s_add_u32 s{sWO2}, s{sWO}, 8192",
                f"buffer_load_dwordx4 v{vWd}, s[{sWT}:{sWT+3}], s{sWO} offen lds",
                f"s_add_u32 m0, s{sLB}, {d*2048+1024}",
                f"s_add_u32 s{sWO}, s{sWO}, 16384",
                f"buffer_load_dwordx4 v{vWd}, s[{sWT}:{sWT+3}], s{sWO2} offen lds"]
    def aloads(d):
        asrd = f"s[{sX}:{sX+3}]" if 'noload' in EXP else wsrd
        return [f"buffer_load_dwordx4 {vr(vA+8*d,4)}, v{vAo[0]}, {asrd}, s{sAO} offen sc1",
                f"buffer_load_dwordx4 {vr(vA+8*d+4,4)}, v{vAo[1]}, {asrd}, s{sAO} offen sc1",
                f"s_add_u32 s{sAO}, s{sAO}, 1024"]
    def wreads(d, buf):
        return [f"ds_read_b64_tr_b16 {vr(vF+8*buf+4*fi+2*t2,2)}, v{vWr[fi]} offset:{d*2048+t2*512}"
                for fi in range(2) for t2 in range(2)]
    def mfmas(d, buf):
        L = []
        for fi in range(2):
            for ti in range(2):
                acc = vACC + 16 * (fi * 2 + ti)
                L.append(f"v_mfma_f32_32x32x16_bf16 {vr(acc,16)}, {vr(vF+8*buf+4*fi,4)}, {vr(vA+8*d+4*ti,4)}, {vr(acc,16)}")
        if 'nomfma' in EXP: L = ["s_nop 0"] * 4
        return L
    for d in range(D): a("\n".join(wloads(d) + aloads(d)))
    for r in range(64): a(f"v_mov_b32 v{vACC+r}, 0")
    a(f"s_mov_b32 s{sC}, 0")
    a(f"s_waitcnt vmcnt({4*(D-1)})")
    a("\n".join(wreads(0, 0)))
    a.raw(".p2align 6")
    a.label(f"L_{P}_f2loop")
    start = len(a.lines)
    for s in range(D):
        a(f"s_waitcnt vmcnt({4*(D-2)})")
        a("\n".join(wreads((s + 1) % D, (s + 1) & 1)))
        a("s_waitcnt lgkmcnt(4)")
        a("\n".join(mfmas(s, s & 1)))
        a("\n".join(wloads(s) + aloads(s)))
    a(f"""
    s_add_u32 s{sC}, s{sC}, 1
    s_cmp_lt_u32 s{sC}, {1 if 'nof2' in EXP else 6}
    s_cbranch_scc1 L_{P}_f2loop
    """)
    seam, inner = check_loop(a.lines[start:])
    assert seam == 0 and inner == 0, (seam, inner)
    a(f"""
    s_mov_b32 s{sWT}, s6
    s_mov_b32 s{sWT+1}, s7
    s_mov_b32 s{sWT+2}, {512*512*2}
    s_lshl_b32 s{sWO}, s{sW}, 16
    s_lshl_b32 s{sT2}, s{sFJ}, 7
    s_add_u32 s{sWO}, s{sWO}, s{sT2}
    """)
    for s in range(D):
        if s < D - 1:
            a(f"s_waitcnt vmcnt({4*(D-2-s) + 2*s})")
            a("\n".join(wreads(s + 1, (s + 1) & 1)))
            a("s_waitcnt lgkmcnt(4)")
        else:
            a("s_waitcnt lgkmcnt(0)")
        a("\n".join(mfmas(s, s & 1)))
        a("\n".join(wloads(s)))
    pf.stamp(3)
    if 'nopoll' in EXP: a("s_endpgm")
    a(f"""
    v_sub_f32 v{vG1[0]}, 1.0, v{vG1[0]}
    v_sub_f32 v{vG1[1]}, 1.0, v{vG1[1]}
    s_lshl_b32 s{sAO}, s{sTW}, 16
    s_lshl_b32 s{sT0}, s{sW}, 12
    s_add_u32 s{sAO}, s{sAO}, s{sT0}
    s_add_u32 s{sAO}, s{sAO}, {WS_O}
    s_lshl_b32 s{sT0}, s{sWM}, 15
    v_add_u32 v{vAo[0]}, s{sT0}, v{vL16}
    v_xor_b32 v{vAo[1]}, 0x8000, v{vAo[0]}
    v_and_b32 v{vT0}, 3, v0
    v_bfe_u32 v{vT1}, v0, 2, 1
    v_lshlrev_b32 v{vT0}, 10, v{vT0}
    v_lshl_add_u32 v{vT3}, v{vT1}, 15, v{vT0}
    s_add_u32 s{sWO}, s{sWO}, {(16-4)*16384}
    s_mov_b32 s{sC}, 0
    """)
    for fi in range(2):
        for ti in range(2):
            acc = vACC + 16 * (fi * 2 + ti)
            for r in range(16): a(f"v_mul_f32 v{acc+r}, v{vG1[ti]}, v{acc+r}")
    a.label(f"L_{P}_ph")
    a(f"""
    L_{P}_pollO:
    buffer_load_dword v{vT1}, v{vT3}, {wsrd}, s{sAO} offen offset:1020 sc1
    s_waitcnt vmcnt(0)
    v_cmp_eq_u32 vcc, -1, v{vT1}
    s_cbranch_vccz L_{P}_loadO
    s_sleep 4
    s_sub_u32 s{sD}, s{sD}, 1
    s_cbranch_scc0 L_{P}_pollO
    s_mov_b32 s{sD}, 0
    L_{P}_loadO:
    """)
    for d in range(D):
        a(f"buffer_load_dwordx4 {vr(vA+8*d,4)}, v{vAo[0]}, {wsrd}, s{sAO} offen offset:{d*1024} sc1")
        a(f"buffer_load_dwordx4 {vr(vA+8*d+4,4)}, v{vAo[1]}, {wsrd}, s{sAO} offen offset:{d*1024} sc1")
    a("\n".join(wreads(0, 0)))
    a("s_waitcnt vmcnt(0)")
    a(f"v_max3_u32 v{vT1}, v{vA}, v{vA+1}, v{vA+2}")
    for r in range(3, 31, 2): a(f"v_max3_u32 v{vT1}, v{vT1}, v{vA+r}, v{vA+r+1}")
    a(f"""
    v_max_u32 v{vT1}, v{vT1}, v{vA+31}
    v_cmp_eq_u32 vcc, -1, v{vT1}
    s_cbranch_vccz L_{P}_okO
    s_sub_u32 s{sD}, s{sD}, 1
    s_cbranch_scc0 L_{P}_loadO
    s_mov_b32 s{sD}, 0
    L_{P}_okO:
    """)
    for s in range(D):
        if s < D - 1:
            a("\n".join(wreads(s + 1, (s + 1) & 1)))
            a("s_waitcnt lgkmcnt(4)")
        else:
            a("s_waitcnt lgkmcnt(0)")
        a("\n".join(mfmas(s, s & 1)))
    a(f"""
    s_cmp_eq_u32 s{sC}, 1
    s_cbranch_scc1 L_{P}_red
    """)
    for s in range(D): a("\n".join(wloads(s)))
    a(f"""
    s_add_u32 s{sAO}, s{sAO}, 16384
    s_mov_b32 s{sC}, 1
    s_branch L_{P}_ph
    L_{P}_red:
    s_nop 7
    """)
    pf.stamp(4)
    a("s_barrier")
    for j in range(1, 4):
        a(f"""
        s_xor_b32 s{sT0}, s{sW}, {j}
        s_mul_i32 s{sT0}, s{sT0}, 12288
        v_add_u32 v{vT0}, s{sT0}, v{vL16}
        """)
        for q in range(4):
            a(f"ds_write_b128 v{vT0}, {vr(vACC+16*j+4*q,4)} offset:{(j-1)*4096+q*1024}")
    a(f"""
    s_mul_i32 s{sT0}, s{sW}, 12288
    v_add_u32 v{vT1}, s{sT0}, v{vL16}
    s_lshl_b32 s{sT0}, s{sTW}, 1
    s_add_u32 s{sT0}, s{sT0}, s{sWM}
    s_lshl_b32 s{sT0}, s{sT0}, 15
    s_lshl_b32 s{sT1}, s{sFJ}, 7
    s_add_u32 s{sT0}, s{sT0}, s{sT1}
    s_lshl_b32 s{sT1}, s{sWN}, 6
    s_add_u32 s{sT0}, s{sT0}, s{sT1}
    v_and_b32 v{vT0}, 31, v0
    v_lshlrev_b32 v{vT0}, 10, v{vT0}
    v_lshrrev_b32 v{vT2}, 5, v0
    v_lshl_add_u32 v{vT0}, v{vT2}, 4, v{vT0}
    s_waitcnt lgkmcnt(0)
    s_barrier
    """)
    for s in range(3):
        for q in range(4):
            a(f"ds_read_b128 {vr(vACC+16*(s+1)+4*q,4)}, v{vT1} offset:{s*4096+q*1024}")
    a("s_waitcnt lgkmcnt(8)")
    for r in range(0, 16, 2): a(f"v_pk_add_f32 {vr(vACC+r,2)}, {vr(vACC+r,2)}, {vr(vACC+16+r,2)}")
    a("s_waitcnt lgkmcnt(0)")
    for r in range(0, 16, 2): a(f"v_pk_add_f32 {vr(vACC+32+r,2)}, {vr(vACC+32+r,2)}, {vr(vACC+48+r,2)}")
    for r in range(0, 16, 2): a(f"v_pk_add_f32 {vr(vACC+r,2)}, {vr(vACC+r,2)}, {vr(vACC+32+r,2)}")
    p = vF
    for i in range(8): a(f"v_cvt_pk_bf16_f32 v{p+i}, v{vACC+2*i}, v{vACC+2*i+1}")
    a(f"""
    v_permlane32_swap_b32 v{p}, v{p+2}
    v_permlane32_swap_b32 v{p+1}, v{p+3}
    v_permlane32_swap_b32 v{p+4}, v{p+6}
    v_permlane32_swap_b32 v{p+5}, v{p+7}
    buffer_store_dwordx4 {vr(p,4)}, v{vT0}, s[{sOUT}:{sOUT+3}], s{sT0} offen
    buffer_store_dwordx4 {vr(p+4,4)}, v{vT0}, s[{sOUT}:{sOUT+3}], s{sT0} offen offset:32
    """)
    if asmlib.PROF: a("s_waitcnt vmcnt(0)")
    pf.stamp(5)
    pf.dump(6, 2, sW, 4, vT0, vT1)
    a("s_endpgm")
    return NV

def gen():
    a = Asm()
    a.raw(kernel_header(NAME))
    a(f"""
    s_cmp_ge_u32 s2, 768
    s_cbranch_scc1 L_k2_end
    s_cmp_lt_u32 s2, 256
    s_cbranch_scc1 L_k2_gemm
    """)
    nv1 = attn_role(a)
    a.label("L_k2_end")
    a("s_endpgm")
    a.raw(".p2align 6")
    a.label("L_k2_gemm")
    a.window = []
    nv2 = gemm_role(a)
    NV = max(nv1, nv2)
    assert NV <= 168
    return a.text(), kernel_desc(NAME, NV, 72), f"; @launch kernel={NAME} grid=(768,1,1) block=(256,1,1) lds={LDS_BYTES}"

if __name__ == "__main__":
    t, d, l = gen()
    print(l); print(len(t.splitlines()))
```

```python
import sys
import asmlib
if '--prof' in sys.argv:
    asmlib.PROF = True; sys.argv.remove('--prof')
import k1b, k2c
from build import build
out = sys.argv[1] if len(sys.argv) > 1 else "v2.s"
build([k1b.gen(), k2c.gen()], out)
```

```python
from asmlib import *
import asmlib
from layout import *
import os
SC = os.environ.get('K1SC', 'sc1')

NAME = "k1_qkv_kernel"
NS = 5
XS = 16384
WQS = 12288
WQ_BASE = NS * XS
LDS_BYTES = WQ_BASE + NS * WQS

def gen():
    a = Asm()
    a.raw(kernel_header(NAME))
    pf = Prof(a, 0)
    pf.stamp(0)
    sX, sWQ, sWS, sGW = 16, 20, 24, 28
    sWAVE, sW, sI, sJ = 32, 33, 34, 35
    sSOX, sSOW = 36, 37
    sOX, sOW = 38, 39
    sN, sD, sDW = 40, 41, 42
    sC = 43
    sMX, sMW = 44, 45
    sT0, sT1, sT2 = 46, 47, 48
    a(f"""
    s_cmp_ge_u32 s2, 256
    s_cbranch_scc1 L_k1_end
    s_load_dwordx4 s[4:7], s[0:1], 0
    s_load_dwordx2 s[12:13], s[0:1], 56
    s_load_dwordx2 s[14:15], s[0:1], 80
    v_lshrrev_b32 v1, 6, v0
    v_and_b32 v0, 63, v0
    v_readfirstlane_b32 s{sWAVE}, v1
    s_and_b32 s{sT0}, s2, 7
    s_lshr_b32 s{sT1}, s2, 3
    s_and_b32 s{sI}, s{sT0}, 1
    s_lshl_b32 s{sI}, s{sI}, 3
    s_and_b32 s{sT2}, s{sT1}, 7
    s_add_u32 s{sI}, s{sI}, s{sT2}
    s_lshr_b32 s{sJ}, s{sT0}, 1
    s_lshl_b32 s{sJ}, s{sJ}, 2
    s_lshr_b32 s{sT2}, s{sT1}, 3
    s_add_u32 s{sJ}, s{sJ}, s{sT2}
    s_and_b32 s{sW}, s{sWAVE}, 3
    s_mov_b32 s{sWS+2}, {WS_SIZE}
    s_mov_b32 s{sWS+3}, 0x00020000
    s_mov_b32 s{sC}, 0
    v_lshrrev_b32 v3, 4, v0
    s_cmp_lt_u32 s{sWAVE}, 4
    s_cbranch_scc1 L_k1_comp
    """)
    vG = 3
    vT0, vT1, vT2, vT3 = 6, 7, 8, 9
    vXd = 10
    vXd2 = 11
    vWd = [12, 13, 14]
    vGX, vGW = 16, 24
    vOnes = 32
    a(f"""
    s_mov_b32 s{sX+2}, {2048*512*2}
    s_mov_b32 s{sX+3}, 0x00020000
    s_mov_b32 s{sWQ+2}, {512*1536*2}
    s_mov_b32 s{sWQ+3}, 0x00020000
    v_and_b32 v{vT0}, 7, v0
    v_xor_b32 v{vT0}, v{vT0}, v{vG}
    v_lshlrev_b32 v{vT0}, 4, v{vT0}
    v_lshrrev_b32 v{vT1}, 3, v0
    v_lshl_add_u32 v{vXd}, v{vT1}, 10, v{vT0}
    v_xor_b32 v{vXd2}, 64, v{vXd}
    v_add_u32 v{vXd2}, 8192, v{vXd2}
    s_lshl_b32 s{sSOX}, s{sI}, 17
    s_lshl_b32 s{sT0}, s{sW}, 15
    s_add_u32 s{sSOX}, s{sSOX}, s{sT0}
    s_lshl_b32 s{sMX}, s{sW}, 12
    s_mul_i32 s{sMW}, s{sW}, 3072
    s_add_u32 s{sMW}, s{sMW}, {WQ_BASE}
    s_lshl_b32 s{sSOW}, s{sJ}, 6
    s_mul_i32 s{sT1}, s{sW}, 96
    v_lshrrev_b32 v{vT0}, 1, v0
    v_add_u32 v{vT0}, s{sT1}, v{vT0}
    """)
    for q in range(3):
        a(f"""
        v_add_u32 v{vT1}, {32*q}, v{vT0}
        v_mul_u32_u24 v{vT2}, 0xaaab, v{vT1}
        v_lshrrev_b32 v{vT2}, 18, v{vT2}
        v_mul_u32_u24 v{vT3}, 6, v{vT2}
        v_sub_u32 v{vT1}, v{vT1}, v{vT3}
        v_bfe_u32 v{vT3}, v{vT2}, 3, 1
        v_xor_b32 v{vT1}, v{vT1}, v{vT3}
        v_mul_u32_u24 v{vT2}, 3072, v{vT2}
        v_lshrrev_b32 v{vT3}, 1, v{vT1}
        v_lshl_add_u32 v{vT2}, v{vT3}, 10, v{vT2}
        v_and_b32 v{vT3}, 1, v{vT1}
        v_lshl_add_u32 v{vT2}, v{vT3}, 5, v{vT2}
        v_and_b32 v{vT3}, 1, v0
        v_lshl_add_u32 v{vWd[q]}, v{vT3}, 4, v{vT2}
        """)
    a(f"""
    s_waitcnt lgkmcnt(0)
    s_mov_b32 s{sX}, s4
    s_mov_b32 s{sX+1}, s5
    s_mov_b32 s{sWQ}, s6
    s_mov_b32 s{sWQ+1}, s7
    """)
    def chunk_dma():
        a(f"""
        s_mov_b32 m0, s{sMX}
        s_add_u32 s{sT0}, s{sSOX}, 16384
        buffer_load_dwordx4 v{vXd}, s[{sX}:{sX+3}], s{sSOX} offen lds
        s_add_u32 m0, s{sMX}, 1024
        s_nop 0
        buffer_load_dwordx4 v{vXd2}, s[{sX}:{sX+3}], s{sSOX} offen lds
        s_mov_b32 m0, s{sMW}
        s_nop 0
        buffer_load_dwordx4 v{vWd[0]}, s[{sWQ}:{sWQ+3}], s{sSOW} offen lds
        s_add_u32 m0, s{sMX}, 2048
        s_nop 0
        buffer_load_dwordx4 v{vXd}, s[{sX}:{sX+3}], s{sT0} offen lds
        s_add_u32 m0, s{sMW}, 1024
        s_nop 0
        buffer_load_dwordx4 v{vWd[1]}, s[{sWQ}:{sWQ+3}], s{sSOW} offen lds
        s_add_u32 m0, s{sMX}, 3072
        s_nop 0
        buffer_load_dwordx4 v{vXd2}, s[{sX}:{sX+3}], s{sT0} offen lds
        s_add_u32 m0, s{sMW}, 2048
        s_add_u32 s{sSOX}, s{sSOX}, 128
        buffer_load_dwordx4 v{vWd[2]}, s[{sWQ}:{sWQ+3}], s{sSOW} offen lds
        s_add_u32 s{sSOW}, s{sSOW}, {64*3072}
        s_add_u32 s{sMX}, s{sMX}, {XS}
        s_add_u32 s{sMW}, s{sMW}, {WQS}
        """)
    a.label("L_k1_ld0")
    chunk_dma()
    a(f"""
    s_add_u32 s{sC}, s{sC}, 1
    s_cmp_lt_u32 s{sC}, 3
    s_cbranch_scc1 L_k1_ld0
    """)
    pf.stamp(1)
    a(f"s_mov_b32 s{sC}, 0")
    a.label("L_k1_ld1")
    a(f"""
    s_waitcnt vmcnt(14)
    s_barrier
    s_cmp_lg_u32 s{sC}, 2
    s_cbranch_scc1 L_k1_ld2
    s_sub_u32 s{sMX}, s{sMX}, {NS*XS}
    s_sub_u32 s{sMW}, s{sMW}, {NS*WQS}
    L_k1_ld2:
    """)
    chunk_dma()
    a(f"""
    s_add_u32 s{sC}, s{sC}, 1
    s_cmp_lt_u32 s{sC}, 5
    s_cbranch_scc1 L_k1_ld1
    """)
    pf.stamp(2)
    a(f"""
    s_mov_b32 s{sWS}, s14
    s_mov_b32 s{sWS+1}, s15
    s_mov_b32 s{sGW}, s12
    s_mov_b32 s{sGW+1}, s13
    s_mov_b32 s{sGW+2}, 1024
    s_mov_b32 s{sGW+3}, 0x00020000
    s_lshl_b32 s{sT0}, s{sI}, 7
    s_lshl_b32 s{sT1}, s{sJ}, 3
    s_add_u32 s{sT0}, s{sT0}, s{sT1}
    s_lshl_b32 s{sT1}, s{sW}, 1
    s_add_u32 s{sN}, s{sT0}, s{sT1}
    s_lshl_b32 s{sT1}, s{sN}, 10
    v_and_b32 v{vT1}, 31, v0
    v_lshlrev_b32 v{vT1}, 5, v{vT1}
    v_lshrrev_b32 v{vT2}, 5, v0
    v_lshl_add_u32 v{vT2}, v{vT2}, 10, v{vT1}
    s_waitcnt vmcnt(14)
    s_barrier
    buffer_load_dwordx4 {vr(vGX,4)}, v{vT2}, s[{sX}:{sX+3}], s{sT1} offen
    buffer_load_dwordx4 {vr(vGX+4,4)}, v{vT2}, s[{sX}:{sX+3}], s{sT1} offen offset:16
    buffer_load_dwordx4 {vr(vGW,4)}, v{vT1}, s[{sGW}:{sGW+3}], 0 offen
    buffer_load_dwordx4 {vr(vGW+4,4)}, v{vT1}, s[{sGW}:{sGW+3}], 0 offen offset:16
    v_mov_b32 v{vOnes}, -1
    v_mov_b32 v{vOnes+1}, -1
    v_mov_b32 v{vOnes+2}, -1
    v_mov_b32 v{vOnes+3}, -1
    v_mov_b32 v{vOnes+4}, 0
    v_lshlrev_b32 v{vT0}, 4, v0
    s_lshl_b32 s{sT0}, s2, 2
    s_add_u32 s{sT0}, s{sT0}, s{sW}
    s_lshl_b32 s{sT1}, s{sT0}, 11
    s_add_u32 s{sT1}, s{sT1}, {WS_O}
    buffer_store_dwordx4 {vr(vOnes,4)}, v{vT0}, s[{sWS}:{sWS+3}], s{sT1} offen {SC}
    buffer_store_dwordx4 {vr(vOnes,4)}, v{vT0}, s[{sWS}:{sWS+3}], s{sT1} offen offset:1024 {SC}
    s_lshl_b32 s{sT1}, s{sT0}, 2
    s_add_u32 s{sT1}, s{sT1}, {WS_FA}
    s_mov_b64 exec, 1
    buffer_store_dword v{vOnes+4}, v{vOnes+4}, s[{sWS}:{sWS+3}], s{sT1} offen
    s_mov_b64 exec, -1
    s_waitcnt vmcnt(14)
    s_barrier
    s_waitcnt vmcnt(7)
    s_barrier
    s_waitcnt vmcnt(3)
    """)
    acc = vT1
    a(f"v_mov_b32 v{acc}, 0")
    for r in range(8): a(f"v_dot2_f32_bf16 v{acc}, v{vGX+r}, v{vGW+r}, v{acc}")
    a("s_nop 3")
    for mod in ["quad_perm:[1,0,3,2]", "quad_perm:[2,3,0,1]", "row_half_mirror", "row_mirror"]:
        a(f"v_add_f32_dpp v{acc}, v{acc}, v{acc} {mod} row_mask:0xf bank_mask:0xf")
    a(f"""
    v_mov_b32 v{vT2}, v{acc}
    v_mov_b32 v{vT3}, v{acc}
    v_permlane16_swap_b32 v{vT2}, v{vT3}
    v_add_f32 v{acc}, v{vT2}, v{vT3}
    v_mul_f32 v{acc}, {hex(f32bits(-LOG2E))}, v{acc}
    v_exp_f32 v{acc}, v{acc}
    v_add_f32 v{acc}, 1.0, v{acc}
    v_rcp_f32 v{acc}, v{acc}
    s_lshl_b32 s{sT0}, s{sN}, 2
    s_add_u32 s{sT0}, s{sT0}, {WS_G}
    v_lshrrev_b32 v{vT2}, 5, v0
    v_lshlrev_b32 v{vT2}, 2, v{vT2}
    s_mov_b32 exec_lo, 1
    s_mov_b32 exec_hi, 1
    buffer_store_dword v{acc}, v{vT2}, s[{sWS}:{sWS+3}], s{sT0} offen
    """)
    pf.stamp(3); pf.stamp(4); pf.stamp(5)
    pf.dump(6, 2, sWAVE, 8, vT0, vT1)
    a("s_endpgm")
    a.label("L_k1_comp")
    a.window = []
    vN16, vR, vC = 2, 4, 5
    vXr = [10, 11]
    vWr = 12
    vF = 16
    FSZ = 28
    vACC = vF + 2 * FSZ
    NV = vACC + 48
    sWM, sWN = sMX, sMW
    a(f"""
    s_and_b32 s{sWM}, s{sW}, 1
    s_lshr_b32 s{sWN}, s{sW}, 1
    v_and_b32 v{vN16}, 15, v0
    v_bfe_u32 v{vR}, v0, 2, 2
    v_and_b32 v{vC}, 3, v0
    s_lshl_b32 s{sT0}, s{sWM}, 13
    v_lshrrev_b32 v{vT0}, 1, v{vN16}
    v_xor_b32 v{vT0}, v{vG}, v{vT0}
    v_lshlrev_b32 v{vT0}, 4, v{vT0}
    v_lshl_add_u32 v{vT0}, v{vN16}, 7, v{vT0}
    v_add_u32 v{vXr[0]}, s{sT0}, v{vT0}
    v_xor_b32 v{vXr[1]}, 64, v{vXr[0]}
    v_lshl_add_u32 v{vT1}, v{vG}, 3, v{vR}
    v_mul_u32_u24 v{vT1}, 192, v{vT1}
    v_lshl_add_u32 v{vT1}, v{vC}, 3, v{vT1}
    v_add_u32 v{vT1}, {WQ_BASE}, v{vT1}
    v_and_b32 v{vT2}, 1, v{vG}
    v_xor_b32 v{vT2}, s{sWN}, v{vT2}
    v_lshl_add_u32 v{vWr}, v{vT2}, 5, v{vT1}
    s_mov_b32 s{sOX}, 0
    s_mov_b32 s{sOW}, 0
    """)
    for r in range(48): a(f"v_mov_b32 v{vACC+r}, 0")
    def frag(buf):
        b = vF + buf * FSZ
        return [b + 4 * t for t in range(4)], [b + 16 + 4 * c for c in range(3)]
    def reads(buf, s2):
        X, W = frag(buf); L = []
        L.append(f"ds_read_b128 {vr(X[0],4)}, v{vXr[s2]}")
        for c3 in range(3):
            for t2 in range(2):
                L.append(f"ds_read_b64_tr_b16 {vr(W[c3]+2*t2,2)}, v{vWr} offset:{(32*s2+4*t2)*192 + c3*64}")
            L.append(f"ds_read_b128 {vr(X[c3+1],4)}, v{vXr[s2]} offset:{(c3+1)*2048}")
        return L
    def mfmas(buf):
        X, W = frag(buf); L = []
        for t in range(4):
            for c3 in range(3):
                acc = vACC + (c3 * 4 + t) * 4
                if c3 == 2: L.append(f"v_mfma_f32_16x16x32_bf16 {vr(acc,4)}, {vr(X[t],4)}, {vr(W[c3],4)}, {vr(acc,4)}")
                else:       L.append(f"v_mfma_f32_16x16x32_bf16 {vr(acc,4)}, {vr(W[c3],4)}, {vr(X[t],4)}, {vr(acc,4)}")
        return L
    def interleave(M, O, per=1):
        O = list(O)
        for m in M:
            a(m)
            for _ in range(per):
                if O: a(O.pop(0))
        for o in O: a(o)
    a(f"""
    s_waitcnt lgkmcnt(0)
    s_mov_b32 s{sWS}, s14
    s_mov_b32 s{sWS+1}, s15
    """)
    pf.stamp(1)
    a("s_barrier")
    pf.stamp(2)
    a("\n".join(reads(0, 0)))
    a.raw(".p2align 6")
    a.label("L_k1_loop")
    start = len(a.lines)
    a("s_waitcnt lgkmcnt(0)")
    interleave(mfmas(0), reads(1, 1))
    a(f"""
    s_add_u32 s{sN}, s{sOX}, {XS}
    s_cmp_eq_u32 s{sN}, {NS*XS}
    s_cselect_b32 s{sN}, 0, s{sN}
    s_sub_u32 s{sD}, s{sN}, s{sOX}
    s_mov_b32 s{sOX}, s{sN}
    s_add_u32 s{sN}, s{sOW}, {WQS}
    s_cmp_eq_u32 s{sN}, {NS*WQS}
    s_cselect_b32 s{sN}, 0, s{sN}
    s_sub_u32 s{sDW}, s{sN}, s{sOW}
    s_mov_b32 s{sOW}, s{sN}
    v_add_u32 v{vXr[0]}, s{sD}, v{vXr[0]}
    v_add_u32 v{vXr[1]}, s{sD}, v{vXr[1]}
    v_add_u32 v{vWr}, s{sDW}, v{vWr}
    s_add_u32 s{sC}, s{sC}, 1
    s_cmp_eq_u32 s{sC}, 8
    s_waitcnt lgkmcnt(0)
    s_cbranch_scc1 L_k1_last
    s_barrier
    """)
    interleave(mfmas(1), reads(0, 0))
    a("s_branch L_k1_loop")
    seam, inner = check_loop(a.lines[start:])
    assert seam == 0 and inner == 0, (seam, inner)
    a.label("L_k1_last")
    a.window = []
    for m in mfmas(1): a(m)
    pf.stamp(3)
    vP = vF
    a(f"""
    s_lshl_b32 s{sT0}, s{sI}, 2
    s_lshl_b32 s{sT1}, s{sWM}, 1
    s_add_u32 s{sT0}, s{sT0}, s{sT1}
    s_lshl_b32 s{sT0}, s{sT0}, 10
    s_lshl_b32 s{sT1}, s{sJ}, 1
    s_add_u32 s{sT1}, s{sT1}, s{sWN}
    s_lshl_b32 s{sT1}, s{sT1}, 16
    s_add_u32 s{sT1}, s{sT1}, s{sT0}
    v_lshlrev_b32 v{vT0}, 4, v0
    s_mov_b32 s{sT2}, {hex(f32bits(QSCALE))}
    """)
    k = 0
    for c3 in (1, 2, 0):
        for tp in range(2):
            p = vP + 4 * k; k += 1
            a0 = vACC + (c3 * 4 + 2 * tp) * 4; a1 = a0 + 4
            if c3 == 0:
                for r in range(8): a(f"v_mul_f32 v{a0+r}, s{sT2}, v{a0+r}")
            sw = "v_permlane32_swap_b32" if c3 == 2 else "v_permlane16_swap_b32"
            a(f"""
            v_cvt_pk_bf16_f32 v{p}, v{a0}, v{a0+1}
            v_cvt_pk_bf16_f32 v{p+1}, v{a0+2}, v{a0+3}
            v_cvt_pk_bf16_f32 v{p+2}, v{a1}, v{a1+1}
            v_cvt_pk_bf16_f32 v{p+3}, v{a1+2}, v{a1+3}
            s_add_u32 s{sT0}, s{sT1}, {[WS_Q, WS_K, WS_V][c3]}
            {sw} v{p}, v{p+2}
            {sw} v{p+1}, v{p+3}
            buffer_store_dwordx4 {vr(p,4)}, v{vT0}, s[{sWS}:{sWS+3}], s{sT0} offen offset:{tp*1024} {SC}
            """)
    pf.stamp(4)
    if asmlib.PROF: a("s_waitcnt vmcnt(0)")
    pf.stamp(5)
    pf.dump(6, 2, sWAVE, 8, vT0, vT1)
    a("s_endpgm")
    a.label("L_k1_end")
    a("s_endpgm")
    return a.text(), kernel_desc(NAME, NV, 56), f"; @launch kernel={NAME} grid=(256,1,1) block=(512,1,1) lds={LDS_BYTES}"

if __name__ == "__main__":
    t, d, l = gen()
    print(l); print(len(t.splitlines()))
```

```python
from asmlib import *
import asmlib
from layout import *

NAME = "k2_main_kernel"
LDS_BYTES = 49152
SENT = -1
PSLEEP = 12
import os
EXP = os.environ.get('EXP', '')
SPIN_MAX = 1 << 18

def attn_role(a):
    P = "at"
    sWS, sKV = 8, 28
    sW, sH, sQB = 12, 13, 14
    sT0, sT1, sT2 = 15, 16, 17
    sKT, sC, sM, sQ0, sA = 18, 19, 20, 22, 23
    sRB, sPO, sD, sVT = 26, 27, 32, 33
    vKo, vVo = 1, 2
    vT0, vT1, vT2, vT3, vG = 3, 4, 5, 6, 7
    vQ, vK, vV, vP, vS, vO = 8, 24, 32, 48, 56, 88
    vKr, vVr = 152, 153
    NV = 154
    RING = 12288
    pf = Prof(a, 1)
    pf.stamp(0)
    a(f"""
    s_setprio 3
    s_load_dwordx2 s[4:5], s[0:1], 80
    s_sub_u32 s{sA}, s2, 256
    v_lshrrev_b32 v1, 6, v0
    v_and_b32 v0, 63, v0
    v_readfirstlane_b32 s{sW}, v1
    s_lshr_b32 s{sH}, s{sA}, 8
    s_lshl_b32 s{sH}, s{sH}, 4
    s_and_b32 s{sT0}, s{sA}, 7
    s_lshl_b32 s{sT0}, s{sT0}, 1
    s_add_u32 s{sH}, s{sH}, s{sT0}
    s_bfe_u32 s{sT0}, s{sA}, 0x10003
    s_add_u32 s{sH}, s{sH}, s{sT0}
    s_bfe_u32 s{sQB}, s{sA}, 0x40004
    s_mov_b32 s{sWS+2}, {WS_SIZE}
    s_mov_b32 s{sWS+3}, 0x00020000
    s_mov_b32 s{sKV+2}, {WS_SIZE}
    s_mov_b32 s{sKV+3}, 0x00020000
    s_mov_b32 s{sM}, 0x0000ffff
    s_mov_b32 s{sM+1}, 0x0000ffff
    s_lshl_b32 s{sT0}, s{sH}, 16
    s_lshl_b32 s{sT1}, s{sQB}, 12
    s_add_u32 s{sQ0}, s{sT0}, s{sT1}
    s_lshl_b32 s{sT1}, s{sW}, 14
    s_add_u32 s{sKT}, s{sT0}, s{sT1}
    s_add_u32 s{sKT}, s{sKT}, {WS_K}
    s_mul_i32 s{sRB}, s{sW}, {RING}
    v_lshlrev_b32 v{vKo}, 4, v0
    v_add_u32 v{vVo}, {WS_V - WS_K}, v{vKo}
    s_lshl_b32 s{sT1}, s{sW}, 10
    v_xor_b32 v{vT2}, s{sT1}, v{vKo}
    s_mov_b32 m0, s{sRB}
    s_mov_b32 s{sC}, 0
    s_waitcnt lgkmcnt(0)
    s_mov_b32 s{sWS}, s4
    s_mov_b32 s{sWS+1}, s5
    s_mov_b32 s{sKV}, s4
    s_mov_b32 s{sKV+1}, s5
    """)
    srd = f"s[{sWS}:{sWS+3}]"
    kv = f"s[{sKV}:{sKV+3}]"
    for q in range(4):
        if q: a(f"v_xor_b32 v{vT3}, {q*1024}, v{vT2}")
        a(f"buffer_load_dwordx4 {vr(vQ+4*q,4)}, v{vT3 if q else vT2}, {srd}, s{sQ0} offen")
    a(f"""
    L_{P}_pre:
    buffer_load_dwordx4 v{vKo}, {kv}, s{sKT} offen lds
    s_add_u32 m0, m0, 1024
    s_add_u32 s{sC}, s{sC}, 1
    buffer_load_dwordx4 v{vVo}, {kv}, s{sKT} offen lds
    s_add_u32 m0, m0, 1024
    s_add_u32 s{sKT}, s{sKT}, 1024
    s_cmp_lt_u32 s{sC}, 6
    s_cbranch_scc1 L_{P}_pre
    s_lshl_b32 s{sT0}, s{sQB}, 2
    s_add_u32 s{sT0}, s{sT0}, s{sW}
    s_lshl_b32 s{sT0}, s{sT0}, 7
    s_add_u32 s{sT0}, s{sT0}, {WS_G}
    v_and_b32 v{vT0}, 31, v0
    v_lshlrev_b32 v{vT0}, 2, v{vT0}
    buffer_load_dword v{vG}, v{vT0}, {srd}, s{sT0} offen
    v_add_u32 v{vKr}, s{sRB}, v{vKo}
    v_and_b32 v{vT0}, 15, v0
    v_lshlrev_b32 v{vT0}, 4, v{vT0}
    v_lshrrev_b32 v{vT1}, 5, v0
    v_lshl_add_u32 v{vT0}, v{vT1}, 8, v{vT0}
    v_add_u32 v{vVr}, s{sRB}, v{vT0}
    v_and_b32 v{vT1}, 27, v0
    v_cmp_eq_u32 vcc, 16, v{vT1}
    v_mov_b32 v{vT1}, 0x3f803f80
    v_cndmask_b32 v{vT1}, 0, v{vT1}, vcc
    """)
    for r in range(16): a(f"v_mov_b32 v{vV+r}, v{vT1}")
    def reads(st, off):
        return f"""ds_read_b128 {vr(vK+4*st,4)}, v{vKr} offset:{off}
        s_mov_b64 exec, s[{sM}:{sM+1}]
        ds_read_b128 {vr(vV+8*st,4)}, v{vVr} offset:{off+1024}
        ds_read_b128 {vr(vV+8*st+4,4)}, v{vVr} offset:{off+1536}
        s_mov_b64 exec, -1"""
    def dma(off):
        return f"""s_add_u32 m0, s{sPO}, {off}
        s_setprio 3
        buffer_load_dwordx4 v{vKo}, {kv}, s{sKT} offen lds
        s_add_u32 m0, s{sPO}, {off+1024}
        s_nop 0
        buffer_load_dwordx4 v{vVo}, {kv}, s{sKT} offen lds
        s_setprio 0
        s_add_u32 s{sKT}, s{sKT}, 1024"""
    for r in range(64): a(f"v_mov_b32 v{vO+r}, 0")
    for r in range(4, 8): a(f"v_mov_b32 v{vP+r}, 0")
    a(f"s_mov_b32 s{sC}, 0")
    a(f"s_mov_b32 s{sPO}, s{sRB}")
    pf.stamp(1)
    a("s_waitcnt vmcnt(11)")
    pf.stamp(2)
    a(reads(0, 0))
    a("s_waitcnt lgkmcnt(0)")
    def mfS(sb, st, q): return f"v_mfma_f32_32x32x16_bf16 {vr(vS+16*sb,16)}, {vr(vK+4*st,4)}, {vr(vQ+4*q,4)}, 0"
    def mfPV(q, st, u): return f"v_mfma_f32_32x32x16_bf16 {vr(vO+16*q,16)}, {vr(vV+8*st+4*u,4)}, {vr(vP+4*u,4)}, {vr(vO+16*q,16)}"
    a(mfS(0, 0, 0))
    a(dma(0))
    if 'diag' in EXP: a("s_mov_b32 s40, 0\ns_mov_b32 s41, 0")
    a("s_nop 7")
    a.raw(".p2align 6")
    a.label(f"L_{P}_loop")
    start = len(a.lines)
    for st in range(2):
        off = 2048 if st == 0 else 0
        for q in range(4):
            sb = q & 1
            S = vS + 16 * sb
            ex = lambda i: f"v_exp_f32 v{S+i}, v{S+i}"
            cv = lambda i: f"v_cvt_pk_bf16_f32 v{vP+i}, v{S+2*i}, v{S+2*i+1}"
            pq, pst = (q - 1, st) if q > 0 else (3, st ^ 1)
            nq, nst = (q + 1, st) if q < 3 else (0, st ^ 1)
            a(ex(0)); a(ex(1))
            a(mfPV(pq, pst, 1))
            if q == 0 and st == 1:
                a(f"""
                s_add_u32 s{sT0}, s{sPO}, 4096
                s_add_u32 s{sT1}, s{sRB}, {RING}
                s_cmp_eq_u32 s{sT0}, s{sT1}
                s_cselect_b32 s{sT0}, s{sRB}, s{sT0}
                s_sub_u32 s{sD}, s{sT0}, s{sPO}
                s_mov_b32 s{sPO}, s{sT0}
                v_add_u32 v{vKr}, s{sD}, v{vKr}
                v_add_u32 v{vVr}, s{sD}, v{vVr}
                """)
            if q == 1:
                if 'diag' in EXP: a("s_memtime s[44:45]")
                a("s_waitcnt vmcnt(10)")
                if 'diag' in EXP:
                    a("s_memtime s[46:47]\ns_waitcnt lgkmcnt(0)\ns_sub_u32 s44, s46, s44\ns_add_u32 s41, s41, s44")
                a(reads(st ^ 1, off))
            for i in range(2, 6): a(ex(i))
            if q == 3: a("s_waitcnt lgkmcnt(0)")
            a(mfS(sb ^ 1, nst, nq))
            if q == 3:
                if st == 1:
                    a(f"""
                    s_cmp_ge_u32 s{sC}, 4
                    s_cselect_b32 s{sKV+2}, 0, s{sKV+2}
                    """)
                if 'diag' in EXP: a("s_memtime s[44:45]")
                a(dma(off))
                if 'diag' in EXP:
                    a("s_memtime s[46:47]\ns_waitcnt lgkmcnt(0)\ns_sub_u32 s44, s46, s44\ns_add_u32 s40, s40, s44")
            a(ex(6)); a(ex(7))
            for i in range(4): a(cv(i))
            a(ex(8)); a(ex(9))
            a(mfPV(q, st, 0))
            for i in range(10, 16): a(ex(i))
            for i in range(4, 8): a(cv(i))
    a(f"""
    s_add_u32 s{sC}, s{sC}, 1
    s_cmp_lt_u32 s{sC}, 8
    s_cbranch_scc1 L_{P}_loop
    """)
    seam, inner = check_loop(a.lines[start:])
    assert seam == 0 and inner == 0, (seam, inner)
    a(mfPV(3, 1, 1))
    a("s_setprio 3")
    pf.stamp(3)
    a(f"""
    v_add_u32 v{vT0}, s{sRB}, v{vKo}
    v_lshlrev_b32 v{vT1}, 2, v0
    v_add_u32 v{vT2}, s{sRB}, v{vT1}
    s_waitcnt vmcnt(0)
    """)
    for j in range(1, 4):
        o = vO + 16 * j
        a(f"""
        ds_write_b128 v{vT0}, {vr(o,4)} offset:{(j-1)*2304}
        ds_write_b128 v{vT0}, {vr(o+4,4)} offset:{(j-1)*2304+1024}
        ds_write_b32 v{vT2}, v{o+8} offset:{(j-1)*2304+2048}
        """)
    a(f"""
    s_waitcnt lgkmcnt(0)
    s_barrier
    """)
    R = vO
    for j in range(1, 4):
        o = vO + 16 * j
        a(f"""
        s_xor_b32 s{sT0}, s{sW}, {j}
        s_mul_i32 s{sT0}, s{sT0}, {RING}
        v_add_u32 v{vT0}, s{sT0}, v{vKo}
        v_add_u32 v{vT2}, s{sT0}, v{vT1}
        ds_read_b128 {vr(o,4)}, v{vT0} offset:{(j-1)*2304}
        ds_read_b128 {vr(o+4,4)}, v{vT0} offset:{(j-1)*2304+1024}
        ds_read_b32 v{o+8}, v{vT2} offset:{(j-1)*2304+2048}
        """)
    a("s_waitcnt lgkmcnt(0)")
    for r in range(0, 8, 2):
        a(f"v_pk_add_f32 {vr(R+r,2)}, {vr(R+r,2)}, {vr(R+16+r,2)}")
        a(f"v_pk_add_f32 {vr(R+32+r,2)}, {vr(R+32+r,2)}, {vr(R+48+r,2)}")
    a(f"v_add_f32 v{R+8}, v{R+8}, v{R+24}")
    a(f"v_add_f32 v{R+40}, v{R+40}, v{R+56}")
    for r in range(0, 8, 2):
        a(f"v_pk_add_f32 {vr(R+r,2)}, {vr(R+r,2)}, {vr(R+32+r,2)}")
    a(f"v_add_f32 v{R+8}, v{R+8}, v{R+40}")
    a(f"v_mov_b32 v{vT2}, v{R+8}")
    for r in range(8): a(f"v_fma_f32 v{vT2}, v{R+r}, 0, v{vT2}")
    a(f"""
    s_mov_b32 s{sT0}, {hex(f32bits(2.0**-30))}
    s_mov_b32 s{sT1}, {hex(f32bits(2.0**30))}
    v_cmp_le_f32 vcc, s{sT0}, v{vT2}
    v_cmp_ge_f32 s[24:25], s{sT1}, v{vT2}
    s_and_b64 vcc, vcc, s[24:25]
    s_cmp_eq_u64 vcc, -1
    s_cbranch_scc0 L_{P}_slow
    L_{P}_fin:
    v_rcp_f32 v{vT2}, v{R+8}
    s_lshl_b32 s{sT0}, s{sQB}, 2
    s_add_u32 s{sT0}, s{sT0}, s{sW}
    s_lshl_b32 s{sT0}, s{sT0}, 5
    s_add_u32 s{sT0}, s{sT0}, s{sH}
    s_lshl_b32 s{sT0}, s{sT0}, 10
    s_add_u32 s{sT0}, s{sT0}, {WS_O}
    v_mul_f32 v{vT2}, v{vT2}, v{vG}
    """)
    for r in range(8): a(f"v_mul_f32 v{R+r}, v{R+r}, v{vT2}")
    a(f"""
    v_cvt_pk_bf16_f32 v{vP}, v{R}, v{R+1}
    v_cvt_pk_bf16_f32 v{vP+1}, v{R+2}, v{R+3}
    v_cvt_pk_bf16_f32 v{vP+2}, v{R+4}, v{R+5}
    v_cvt_pk_bf16_f32 v{vP+3}, v{R+6}, v{R+7}
    v_min_u32 v{vP}, -2, v{vP}
    v_min_u32 v{vP+1}, -2, v{vP+1}
    v_min_u32 v{vP+2}, -2, v{vP+2}
    v_min_u32 v{vP+3}, -2, v{vP+3}
    v_permlane32_swap_b32 v{vP}, v{vP+2}
    v_permlane32_swap_b32 v{vP+1}, v{vP+3}
    buffer_store_dwordx4 {vr(vP,4)}, v{vKo}, {srd}, s{sT0} offen sc1
    """)
    pf.stamp(4)
    if asmlib.PROF: a("s_waitcnt vmcnt(0)")
    pf.stamp(5)
    if 'diag' in EXP: a("s_mov_b32 s92, s40\ns_mov_b32 s94, s41")
    pf.dump(6, sA, sW, 4, vT0, vT1)
    a("s_endpgm")
    a.label(f"L_{P}_slow")
    a.window = []
    vM = vT3
    S = vS
    a(f"""
    s_lshl_b32 s{sT1}, s{sH}, 16
    s_add_u32 s{sT1}, s{sT1}, {WS_K}
    s_mov_b32 s{sKT}, s{sT1}
    s_mov_b32 s{sC}, 0
    v_mov_b32 v{vM}, 0xff800000
    v_and_b32 v{vT0}, 15, v0
    v_lshlrev_b32 v{vT0}, 4, v{vT0}
    v_lshrrev_b32 v{vT1}, 5, v0
    v_lshl_add_u32 v{vT0}, v{vT1}, 8, v{vT0}
    v_add_u32 v{vVo}, {WS_V - WS_K}, v{vT0}
    L_{P}_slow1:
    buffer_load_dwordx4 {vr(vK,4)}, v{vKo}, {srd}, s{sKT} offen
    s_add_u32 s{sKT}, s{sKT}, 1024
    s_waitcnt vmcnt(0)
    {mfS(0,0,0)}
    """)
    for r in range(0, 16, 2): a(f"v_max3_f32 v{vM}, v{vM}, v{S+r}, v{S+r+1}")
    a(f"""
    s_add_u32 s{sC}, s{sC}, 1
    s_cmp_lt_u32 s{sC}, 64
    s_cbranch_scc1 L_{P}_slow1
    v_mov_b32 v{vT0}, v{vM}
    v_mov_b32 v{vT1}, v{vM}
    v_permlane32_swap_b32 v{vT0}, v{vT1}
    v_max_f32 v{vM}, v{vT0}, v{vT1}
    s_mov_b32 s{sKT}, s{sT1}
    s_mov_b32 s{sC}, 0
    """)
    for r in range(16): a(f"v_mov_b32 v{R+r}, 0")
    a(f"""
    L_{P}_slow2:
    buffer_load_dwordx4 {vr(vK,4)}, v{vKo}, {srd}, s{sKT} offen
    s_mov_b64 exec, s[{sM}:{sM+1}]
    buffer_load_dwordx4 {vr(vV,4)}, v{vVo}, {srd}, s{sKT} offen
    buffer_load_dwordx4 {vr(vV+4,4)}, v{vVo}, {srd}, s{sKT} offen offset:512
    s_mov_b64 exec, -1
    s_add_u32 s{sKT}, s{sKT}, 1024
    s_waitcnt vmcnt(0)
    {mfS(0,0,0)}
    """)
    for r in range(16): a(f"v_sub_f32 v{S+r}, v{S+r}, v{vM}")
    for r in range(16): a(f"v_exp_f32 v{S+r}, v{S+r}")
    for i in range(8): a(f"v_cvt_pk_bf16_f32 v{vP+i}, v{S+2*i}, v{S+2*i+1}")
    a(mfPV(0, 0, 0)); a(mfPV(0, 0, 1))
    a(f"""
    s_nop 7
    s_add_u32 s{sC}, s{sC}, 1
    s_cmp_lt_u32 s{sC}, 64
    s_cbranch_scc1 L_{P}_slow2
    s_nop 15
    s_branch L_{P}_fin
    """)
    return NV

def gemm_role(a):
    P = "gm"
    sWS, sX, sW1, sB1, sWT, sOUT = 16, 20, 24, 28, 32, 36
    sW, sXCD, sIDX = 40, 41, 42
    sT0, sT1, sT2 = 43, 44, 45
    sC = 46
    sSOX, sSOW, sOS, sD, sN = 47, 48, 49, 50, 51
    sMD = 52
    sWM, sWN, sI, sJJ = 53, 54, 55, 56
    sTW, sFJ, sAO, sWO, sWO2, sLB = 57, 58, 59, 60, 61, 62
    sK2 = 64
    vL16 = 1
    vT0, vT1, vT2, vT3 = 2, 3, 4, 5
    vXd, vWd = 6, 7
    vXr, vWr = [8, 9], [10, 11]
    vAo = [12, 13]
    vG1 = [14, 15]
    vF = 16
    vA = 48
    vACC = 80
    NV = vACC + 64
    ST = 16384
    pf = Prof(a, 2)
    pf.stamp(0)
    a(f"""
    s_setprio {0 if 'prio0' in EXP else 2}
    s_load_dwordx2 s[4:5], s[0:1], 0
    s_load_dwordx2 s[6:7], s[0:1], 16
    s_load_dwordx4 s[8:11], s[0:1], 32
    s_load_dwordx2 s[12:13], s[0:1], 48
    s_load_dwordx2 s[{sOUT}:{sOUT+1}], s[0:1], 64
    s_load_dwordx2 s[14:15], s[0:1], 80
    v_lshrrev_b32 v1, 6, v0
    v_and_b32 v0, 63, v0
    v_readfirstlane_b32 s{sW}, v1
    s_and_b32 s{sXCD}, s2, 7
    s_lshr_b32 s{sIDX}, s2, 3
    s_mov_b32 s{sWS+2}, {WS_SIZE}
    s_mov_b32 s{sWS+3}, 0x00020000
    s_mov_b32 s{sX+2}, {2048*512*2}
    s_mov_b32 s{sX+3}, 0x00020000
    s_mov_b32 s{sW1+2}, {512*1792*2}
    s_mov_b32 s{sW1+3}, 0x00020000
    s_mov_b32 s{sB1+2}, {1792*2}
    s_mov_b32 s{sB1+3}, 0x00020000
    s_mov_b32 s{sWT+2}, {1792*512*2}
    s_mov_b32 s{sWT+3}, 0x00020000
    s_mov_b32 s{sOUT+2}, {2048*512*2}
    s_mov_b32 s{sOUT+3}, 0x00020000
    s_and_b32 s{sWM}, s{sW}, 1
    s_lshr_b32 s{sWN}, s{sW}, 1
    v_lshlrev_b32 v{vL16}, 4, v0
    {f's_mov_b32 s{sX+2}, 0' if 'noload' in EXP else ''}
    {f's_mov_b32 s{sW1+2}, 0' if 'noload' in EXP else ''}
    {f's_mov_b32 s{sWT+2}, 0' if 'noload' in EXP else ''}
    s_waitcnt lgkmcnt(0)
    s_mov_b32 s{sX}, s4
    s_mov_b32 s{sX+1}, s5
    s_mov_b32 s{sW1}, s8
    s_mov_b32 s{sW1+1}, s9
    s_mov_b32 s{sB1}, s10
    s_mov_b32 s{sB1+1}, s11
    s_mov_b32 s{sWT}, s12
    s_mov_b32 s{sWT+1}, s13
    s_mov_b32 s{sWS}, s14
    s_mov_b32 s{sWS+1}, s15
    s_cmp_ge_u32 s{sIDX}, {0 if 'nof1' in EXP else 28}
    s_cbranch_scc1 L_{P}_f2
    {'s_endpgm' if 'gexit' in EXP else ''}
    """)
    wsrd = f"s[{sWS}:{sWS+3}]"
    a(f"""
    s_lshl_b32 s{sI}, s{sXCD}, 1
    s_and_b32 s{sT0}, s{sIDX}, 1
    s_add_u32 s{sI}, s{sI}, s{sT0}
    s_lshr_b32 s{sJJ}, s{sIDX}, 1
    s_lshl_b32 s{sT0}, s{sJJ}, 8
    s_lshl_b32 s{sT1}, s{sWN}, 7
    s_add_u32 s{sT0}, s{sT0}, s{sT1}
    v_lshrrev_b32 v{vT0}, 5, v0
    v_lshlrev_b32 v{vT0}, 3, v{vT0}
    """)
    for i in range(8):
        a(f"buffer_load_dwordx2 {vr(vA+2*i,2)}, v{vT0}, s[{sB1}:{sB1+3}], s{sT0} offen offset:{16*i}")
    a(f"""
    v_lshrrev_b32 v{vT0}, 4, v0
    v_xor_b32 v{vT1}, v{vT0}, v0
    v_and_b32 v{vT1}, 3, v{vT1}
    v_lshlrev_b32 v{vT1}, 4, v{vT1}
    v_lshrrev_b32 v{vT2}, 2, v0
    v_lshl_add_u32 v{vXd}, v{vT2}, 10, v{vT1}
    s_lshl_b32 s{sSOX}, s{sI}, 17
    s_lshl_b32 s{sT0}, s{sW}, 15
    s_add_u32 s{sSOX}, s{sSOX}, s{sT0}
    v_xor_b32 v{vT1}, v{vT2}, v{vT0}
    v_and_b32 v{vT1}, 3, v{vT1}
    v_lshlrev_b32 v{vT1}, 6, v{vT1}
    v_and_b32 v{vT2}, 3, v0
    v_lshl_add_u32 v{vT1}, v{vT2}, 4, v{vT1}
    v_mul_u32_u24 v{vT0}, 3584, v{vT0}
    v_add_u32 v{vWd}, v{vT0}, v{vT1}
    s_mul_i32 s{sSOW}, s{sW}, {8*3584}
    s_lshl_b32 s{sT0}, s{sJJ}, 8
    s_add_u32 s{sSOW}, s{sSOW}, s{sT0}
    s_lshl_b32 s{sMD}, s{sW}, 11
    s_mov_b32 s{sOS}, 0
    s_mov_b32 s{sC}, 0
    """)
    def f1_dma():
        return [f"""s_add_u32 m0, s{sMD}, s{sOS}
        s_add_u32 s{sT0}, s{sSOX}, 16384
        buffer_load_dwordx4 v{vXd}, s[{sX}:{sX+3}], s{sSOX} offen lds""",
        f"""s_add_u32 m0, m0, 1024
        s_add_u32 s{sT1}, s{sSOW}, {4*3584}
        buffer_load_dwordx4 v{vXd}, s[{sX}:{sX+3}], s{sT0} offen lds""",
        f"""s_add_u32 m0, m0, {8192-1024}
        s_add_u32 s{sSOX}, s{sSOX}, 64
        buffer_load_dwordx4 v{vWd}, s[{sW1}:{sW1+3}], s{sSOW} offen lds""",
        f"""s_add_u32 m0, m0, 1024
        s_add_u32 s{sSOW}, s{sSOW}, {32*3584}
        buffer_load_dwordx4 v{vWd}, s[{sW1}:{sW1+3}], s{sT1} offen lds"""]
    a.label(f"L_{P}_f1pre")
    for g in f1_dma(): a(g)
    a(f"""
    s_add_u32 s{sOS}, s{sOS}, {ST}
    s_cmp_lt_u32 s{sOS}, {3*ST}
    s_cbranch_scc1 L_{P}_f1pre
    s_mov_b32 s{sOS}, 0
    v_and_b32 v{vT0}, 31, v0
    v_lshrrev_b32 v{vT1}, 5, v0
    v_bfe_u32 v{vT2}, v0, 2, 2
    v_xor_b32 v{vT1}, v{vT1}, v{vT2}
    v_lshlrev_b32 v{vT1}, 4, v{vT1}
    v_lshl_add_u32 v{vT0}, v{vT0}, 6, v{vT1}
    s_lshl_b32 s{sT0}, s{sWM}, 12
    v_add_u32 v{vXr[0]}, s{sT0}, v{vT0}
    v_xor_b32 v{vXr[1]}, 32, v{vXr[0]}
    v_lshrrev_b32 v{vT0}, 5, v0
    v_lshl_add_u32 v{vT0}, v{vT0}, 3, v{vT2}
    v_lshlrev_b32 v{vT0}, 8, v{vT0}
    s_lshl_b32 s{sT0}, s{sWN}, 1
    v_xor_b32 v{vT1}, s{sT0}, v{vT2}
    v_lshl_add_u32 v{vT0}, v{vT1}, 6, v{vT0}
    v_bfe_u32 v{vT1}, v0, 4, 1
    v_lshl_add_u32 v{vT0}, v{vT1}, 5, v{vT0}
    v_and_b32 v{vT1}, 3, v0
    v_lshl_add_u32 v{vT0}, v{vT1}, 3, v{vT0}
    v_add_u32 v{vWr[0]}, 8192, v{vT0}
    v_xor_b32 v{vWr[1]}, 64, v{vWr[0]}
    s_waitcnt vmcnt(12)
    """)
    for fi in range(2):
        for ti in range(2):
            acc = vACC + 16 * (fi * 2 + ti)
            for q in range(4):
                b = vA + 2 * (4 * fi + q)
                a(f"""
                v_lshlrev_b32 v{acc+4*q}, 16, v{b}
                v_and_b32 v{acc+4*q+1}, 0xffff0000, v{b}
                v_lshlrev_b32 v{acc+4*q+2}, 16, v{b+1}
                v_and_b32 v{acc+4*q+3}, 0xffff0000, v{b+1}
                """)
    def f1_reads(buf, s2):
        b = vF + 16 * buf; L = []
        for ti in range(2):
            L.append(f"ds_read_b128 {vr(b+4*ti,4)}, v{vXr[s2]} offset:{ti*2048}")
            for t2 in range(2):
                L.append(f"ds_read_b64_tr_b16 {vr(b+8+4*ti+2*t2,2)}, v{vWr[ti]} offset:{(16*s2+4*t2)*256}")
        return L
    def f1_mfmas(buf):
        b = vF + 16 * buf; L = []
        for fi in range(2):
            for ti in range(2):
                acc = vACC + 16 * (fi * 2 + ti)
                L.append(f"v_mfma_f32_32x32x16_bf16 {vr(acc,16)}, {vr(b+8+4*fi,4)}, {vr(b+4*ti,4)}, {vr(acc,16)}")
        if 'nomfma' in EXP: L = ["s_nop 0"] * 4
        if 'space' in EXP: L = [m + "\ns_sleep 1" for m in L]
        return L
    def interleave(M, O, per=2):
        O = list(O)
        for m in M:
            a(m)
            for _ in range(per):
                if O: a(O.pop(0))
        for o in O: a(o)
    a("s_waitcnt vmcnt(8)")
    a("s_barrier")
    a("\n".join(f1_reads(0, 0)))
    a.raw(".p2align 6")
    a.label(f"L_{P}_f1loop")
    start = len(a.lines)
    a("s_waitcnt lgkmcnt(0)")
    interleave(f1_mfmas(0), f1_reads(1, 1))
    a(f"""
    s_cmp_lt_u32 s{sC}, 14
    s_cbranch_scc1 L_{P}_f1w
    s_waitcnt vmcnt(0)
    L_{P}_f1w:
    s_waitcnt vmcnt(4) lgkmcnt(0)
    s_barrier
    s_cmp_ge_u32 s{sC}, 13
    s_cbranch_scc1 L_{P}_f1nodma
    """)
    for g in f1_dma(): a(g)
    a(f"""
    L_{P}_f1nodma:
    s_add_u32 s{sN}, s{sOS}, {ST}
    s_cmp_eq_u32 s{sN}, {3*ST}
    s_cselect_b32 s{sN}, 0, s{sN}
    s_sub_u32 s{sD}, s{sN}, s{sOS}
    s_mov_b32 s{sOS}, s{sN}
    v_add_u32 v{vXr[0]}, s{sD}, v{vXr[0]}
    v_add_u32 v{vXr[1]}, s{sD}, v{vXr[1]}
    v_add_u32 v{vWr[0]}, s{sD}, v{vWr[0]}
    v_add_u32 v{vWr[1]}, s{sD}, v{vWr[1]}
    """)
    interleave(f1_mfmas(1), f1_reads(0, 0))
    a(f"""
    s_add_u32 s{sC}, s{sC}, 1
    s_cmp_lt_u32 s{sC}, 16
    s_cbranch_scc1 L_{P}_f1loop
    s_waitcnt lgkmcnt(0)
    """)
    seam, inner = check_loop(a.lines[start:])
    assert seam == 0 and inner == 0, (seam, inner)
    pf.stamp(1)
    a(f"""
    s_lshl_b32 s{sT0}, s{sI}, 1
    s_add_u32 s{sT0}, s{sT0}, s{sWM}
    s_mul_i32 s{sT1}, s{sT0}, 224
    s_lshl_b32 s{sT2}, s{sJJ}, 1
    s_add_u32 s{sT2}, s{sT2}, s{sWN}
    s_lshl_b32 s{sN}, s{sT0}, 5
    s_add_u32 s{sN}, s{sN}, s{sT2}
    s_lshl_b32 s{sN}, s{sN}, 2
    s_add_u32 s{sN}, s{sN}, {WS_FA}
    s_lshl_b32 s{sT2}, s{sT2}, 2
    s_add_u32 s{sT1}, s{sT1}, s{sT2}
    s_lshl_b32 s{sT1}, s{sT1}, 10
    s_add_u32 s{sT1}, s{sT1}, {WS_A}
    s_add_u32 s{sT2}, s{sT1}, {112*1024}
    s_mov_b32 s{sK2}, {hex(f32bits(LOG2E))}
    s_mov_b32 s{sK2+1}, {hex(f32bits(LOG2E))}
    s_mov_b32 s{sC}, 0
    """)
    e, d = vF, vF + 8
    k = 0
    for fi in range(2):
        for ti in range(2):
            for hf in range(2):
                h = vACC + 16 * (fi * 2 + ti) + 8 * hf
                p = vA + 4 * k; k += 1
                for r in range(0, 8, 2): a(f"v_pk_mul_f32 {vr(e+r,2)}, {vr(h+r,2)}, s[{sK2}:{sK2+1}]")
                for r in range(8): a(f"v_exp_f32 v{e+r}, v{e+r}")
                for r in range(0, 8, 2): a(f"v_pk_add_f32 {vr(e+r,2)}, {vr(e+r,2)}, 1.0 op_sel_hi:[1,0]")
                for r in range(0, 8, 2): a(f"v_pk_fma_f32 {vr(d+r,2)}, {vr(e+r,2)}, {vr(e+r,2)}, 1.0 op_sel_hi:[1,1,0]")
                for r in range(8): a(f"v_rcp_f32 v{d+r}, v{d+r}")
                for r in range(0, 8, 2): a(f"v_pk_mul_f32 {vr(d+r,2)}, {vr(d+r,2)}, {vr(h+r,2)}")
                for r in range(0, 8, 2): a(f"v_pk_fma_f32 {vr(d+r,2)}, {vr(d+r,2)}, -2.0, {vr(h+r,2)} op_sel_hi:[1,0,1]")
                a(f"""
                v_cvt_pk_bf16_f32 v{p}, v{d}, v{d+1}
                v_cvt_pk_bf16_f32 v{p+1}, v{d+2}, v{d+3}
                v_cvt_pk_bf16_f32 v{p+2}, v{d+4}, v{d+5}
                v_cvt_pk_bf16_f32 v{p+3}, v{d+6}, v{d+7}
                v_permlane32_swap_b32 v{p}, v{p+2}
                v_permlane32_swap_b32 v{p+1}, v{p+3}
                buffer_store_dwordx4 {vr(p,4)}, v{vL16}, {wsrd}, s{sT2 if ti else sT1} offen offset:{(2*fi+hf)*1024} sc1
                """)
    a(f"""
    v_mov_b32 v{vT0}, 0
    v_mov_b32 v{vT1}, 1
    s_waitcnt vmcnt(0)
    s_mov_b64 exec, 1
    buffer_store_dword v{vT1}, v{vT0}, {wsrd}, s{sN} offen sc1
    s_mov_b64 exec, -1
    s_barrier
    """)
    a.label(f"L_{P}_f2")
    a.window = []
    if 'gexit' in EXP or 'f1only' in EXP: a("s_endpgm")
    pf.stamp(2)
    D = 4
    a(f"""
    s_lshl_b32 s{sTW}, s{sXCD}, 2
    s_and_b32 s{sT0}, s{sIDX}, 3
    s_add_u32 s{sTW}, s{sTW}, s{sT0}
    s_lshr_b32 s{sFJ}, s{sIDX}, 2
    s_mul_i32 s{sT0}, s{sTW}, 224
    s_mul_i32 s{sT1}, s{sW}, 28
    s_add_u32 s{sT0}, s{sT0}, s{sT1}
    s_lshl_b32 s{sAO}, s{sT0}, 10
    s_add_u32 s{sAO}, s{sAO}, {WS_A}
    s_lshl_b32 s{sWO}, s{sT1}, 14
    s_lshl_b32 s{sT2}, s{sFJ}, 7
    s_add_u32 s{sWO}, s{sWO}, s{sT2}
    s_lshl_b32 s{sLB}, s{sW}, 13
    s_mul_i32 s{sT0}, s{sWM}, {112*1024}
    s_sub_u32 s{sT1}, {112*1024}, s{sT0}
    v_add_u32 v{vAo[0]}, s{sT0}, v{vL16}
    v_add_u32 v{vAo[1]}, s{sT1}, v{vL16}
    v_lshrrev_b32 v{vT0}, 2, v0
    v_lshrrev_b32 v{vT1}, 4, v0
    v_xor_b32 v{vT0}, v{vT0}, v{vT1}
    v_and_b32 v{vT0}, 1, v{vT0}
    v_lshlrev_b32 v{vT0}, 6, v{vT0}
    v_and_b32 v{vT1}, 3, v0
    v_lshl_add_u32 v{vT0}, v{vT1}, 4, v{vT0}
    v_lshrrev_b32 v{vT1}, 3, v0
    v_lshl_add_u32 v{vWd}, v{vT1}, 10, v{vT0}
    v_lshrrev_b32 v{vT0}, 5, v0
    v_bfe_u32 v{vT1}, v0, 2, 2
    v_lshl_add_u32 v{vT0}, v{vT0}, 3, v{vT1}
    v_lshlrev_b32 v{vT0}, 7, v{vT0}
    v_lshrrev_b32 v{vT1}, 1, v{vT1}
    v_xor_b32 v{vT1}, s{sWN}, v{vT1}
    v_lshl_add_u32 v{vT0}, v{vT1}, 6, v{vT0}
    v_bfe_u32 v{vT1}, v0, 4, 1
    v_lshl_add_u32 v{vT0}, v{vT1}, 5, v{vT0}
    v_and_b32 v{vT1}, 3, v0
    v_lshl_add_u32 v{vT0}, v{vT1}, 3, v{vT0}
    v_add_u32 v{vWr[0]}, s{sLB}, v{vT0}
    v_xor_b32 v{vWr[1]}, 64, v{vWr[0]}
    s_lshl_b32 s{sT0}, s{sTW}, 8
    s_add_u32 s{sT0}, s{sT0}, {WS_G}
    v_and_b32 v{vT0}, 31, v0
    v_lshlrev_b32 v{vT0}, 2, v{vT0}
    s_lshl_b32 s{sT1}, s{sWM}, 7
    v_xor_b32 v{vT0}, s{sT1}, v{vT0}
    v_xor_b32 v{vT1}, 128, v{vT0}
    buffer_load_dword v{vG1[0]}, v{vT0}, {wsrd}, s{sT0} offen
    buffer_load_dword v{vG1[1]}, v{vT1}, {wsrd}, s{sT0} offen
    s_lshl_b32 s{sT0}, s{sTW}, 7
    s_mul_i32 s{sT1}, s{sW}, 28
    s_add_u32 s{sT0}, s{sT0}, s{sT1}
    s_add_u32 s{sT0}, s{sT0}, {WS_FA}
    v_min_u32 v{vT0}, 6, v0
    v_lshlrev_b32 v{vT0}, 2, v{vT0}
    s_mov_b32 s{sD}, {0 if 'nof1' in EXP else SPIN_MAX}
    L_{P}_pollA:
    buffer_load_dword v{vT1}, v{vT0}, {wsrd}, s{sT0} offen sc1
    s_waitcnt vmcnt(0)
    v_cmp_ne_u32 vcc, 1, v{vT1}
    s_cbranch_vccz L_{P}_okA
    s_sleep 8
    s_sub_u32 s{sD}, s{sD}, 1
    s_cbranch_scc0 L_{P}_pollA
    L_{P}_okA:
    s_mov_b32 s{sD}, {SPIN_MAX}
    """)
    def wloads(d):
        return [f"s_add_u32 m0, s{sLB}, {d*2048}",
                f"s_add_u32 s{sWO2}, s{sWO}, 8192",
                f"buffer_load_dwordx4 v{vWd}, s[{sWT}:{sWT+3}], s{sWO} offen lds",
                f"s_add_u32 m0, s{sLB}, {d*2048+1024}",
                f"s_add_u32 s{sWO}, s{sWO}, 16384",
                f"buffer_load_dwordx4 v{vWd}, s[{sWT}:{sWT+3}], s{sWO2} offen lds"]
    def aloads(d):
        asrd = f"s[{sX}:{sX+3}]" if 'noload' in EXP else wsrd
        return [f"buffer_load_dwordx4 {vr(vA+8*d,4)}, v{vAo[0]}, {asrd}, s{sAO} offen sc1",
                f"buffer_load_dwordx4 {vr(vA+8*d+4,4)}, v{vAo[1]}, {asrd}, s{sAO} offen sc1",
                f"s_add_u32 s{sAO}, s{sAO}, 1024"]
    def wreads(d, buf):
        return [f"ds_read_b64_tr_b16 {vr(vF+8*buf+4*fi+2*t2,2)}, v{vWr[fi]} offset:{d*2048+t2*512}"
                for fi in range(2) for t2 in range(2)]
    def mfmas(d, buf):
        L = []
        for fi in range(2):
            for ti in range(2):
                acc = vACC + 16 * (fi * 2 + ti)
                L.append(f"v_mfma_f32_32x32x16_bf16 {vr(acc,16)}, {vr(vF+8*buf+4*fi,4)}, {vr(vA+8*d+4*ti,4)}, {vr(acc,16)}")
        if 'nomfma' in EXP: L = ["s_nop 0"] * 4
        if 'space' in EXP: L = [m + "\ns_sleep 1" for m in L]
        return L
    for d in range(D): a("\n".join(wloads(d) + aloads(d)))
    for r in range(64): a(f"v_mov_b32 v{vACC+r}, 0")
    a(f"s_mov_b32 s{sC}, 0")
    a(f"s_waitcnt vmcnt({4*(D-1)})")
    a("\n".join(wreads(0, 0)))
    a.raw(".p2align 6")
    a.label(f"L_{P}_f2loop")
    start = len(a.lines)
    for s in range(D):
        a(f"s_waitcnt vmcnt({4*(D-2)})")
        a("\n".join(wreads((s + 1) % D, (s + 1) & 1)))
        a("s_waitcnt lgkmcnt(4)")
        a("\n".join(mfmas(s, s & 1)))
        a("\n".join(wloads(s) + aloads(s)))
    a(f"""
    s_add_u32 s{sC}, s{sC}, 1
    s_cmp_lt_u32 s{sC}, {1 if 'nof2' in EXP else 6}
    s_cbranch_scc1 L_{P}_f2loop
    """)
    seam, inner = check_loop(a.lines[start:])
    assert seam == 0 and inner == 0, (seam, inner)
    a(f"""
    s_mov_b32 s{sWT}, s6
    s_mov_b32 s{sWT+1}, s7
    s_mov_b32 s{sWT+2}, {512*512*2}
    s_lshl_b32 s{sWO}, s{sW}, 16
    s_lshl_b32 s{sT2}, s{sFJ}, 7
    s_add_u32 s{sWO}, s{sWO}, s{sT2}
    """)
    for s in range(D):
        if s < D - 1:
            a(f"s_waitcnt vmcnt({4*(D-2-s) + 2*s})")
            a("\n".join(wreads(s + 1, (s + 1) & 1)))
            a("s_waitcnt lgkmcnt(4)")
        else:
            a("s_waitcnt lgkmcnt(0)")
        a("\n".join(mfmas(s, s & 1)))
        a("\n".join(wloads(s)))
    pf.stamp(3)
    if 'nopoll' in EXP: a("s_endpgm")
    a(f"""
    v_sub_f32 v{vG1[0]}, 1.0, v{vG1[0]}
    v_sub_f32 v{vG1[1]}, 1.0, v{vG1[1]}
    s_lshl_b32 s{sAO}, s{sTW}, 16
    s_lshl_b32 s{sT0}, s{sW}, 12
    s_add_u32 s{sAO}, s{sAO}, s{sT0}
    s_add_u32 s{sAO}, s{sAO}, {WS_O}
    s_lshl_b32 s{sT0}, s{sWM}, 15
    v_add_u32 v{vAo[0]}, s{sT0}, v{vL16}
    v_xor_b32 v{vAo[1]}, 0x8000, v{vAo[0]}
    v_and_b32 v{vT0}, 3, v0
    v_bfe_u32 v{vT1}, v0, 2, 1
    v_lshlrev_b32 v{vT0}, 10, v{vT0}
    v_lshl_add_u32 v{vT3}, v{vT1}, 15, v{vT0}
    s_add_u32 s{sWO}, s{sWO}, {(16-4)*16384}
    s_mov_b32 s{sC}, 0
    """)
    for fi in range(2):
        for ti in range(2):
            acc = vACC + 16 * (fi * 2 + ti)
            for r in range(16): a(f"v_mul_f32 v{acc+r}, v{vG1[ti]}, v{acc+r}")
    a.label(f"L_{P}_ph")
    a(f"""
    s_mov_b64 exec, 0xff
    L_{P}_pollO:
    buffer_load_dword v{vT1}, v{vT3}, {wsrd}, s{sAO} offen offset:1020 sc1
    s_waitcnt vmcnt(0)
    v_cmp_eq_u32 vcc, -1, v{vT1}
    s_cbranch_vccz L_{P}_loadO
    s_sleep {PSLEEP}
    s_sub_u32 s{sD}, s{sD}, 1
    s_cbranch_scc0 L_{P}_pollO
    s_mov_b32 s{sD}, 0
    L_{P}_loadO:
    s_mov_b64 exec, -1
    """)
    for d in range(D):
        a(f"buffer_load_dwordx4 {vr(vA+8*d,4)}, v{vAo[0]}, {wsrd}, s{sAO} offen offset:{d*1024} sc1")
        a(f"buffer_load_dwordx4 {vr(vA+8*d+4,4)}, v{vAo[1]}, {wsrd}, s{sAO} offen offset:{d*1024} sc1")
    a("\n".join(wreads(0, 0)))
    a("s_waitcnt vmcnt(0)")
    a(f"v_max3_u32 v{vT1}, v{vA}, v{vA+1}, v{vA+2}")
    for r in range(3, 31, 2): a(f"v_max3_u32 v{vT1}, v{vT1}, v{vA+r}, v{vA+r+1}")
    a(f"""
    v_max_u32 v{vT1}, v{vT1}, v{vA+31}
    v_cmp_eq_u32 vcc, -1, v{vT1}
    s_cbranch_vccz L_{P}_okO
    s_sub_u32 s{sD}, s{sD}, 1
    s_cbranch_scc0 L_{P}_loadO
    s_mov_b32 s{sD}, 0
    L_{P}_okO:
    """)
    for s in range(D):
        if s < D - 1:
            a("\n".join(wreads(s + 1, (s + 1) & 1)))
            a("s_waitcnt lgkmcnt(4)")
        else:
            a("s_waitcnt lgkmcnt(0)")
        a("\n".join(mfmas(s, s & 1)))
    a(f"""
    s_cmp_eq_u32 s{sC}, 1
    s_cbranch_scc1 L_{P}_red
    """)
    for s in range(D): a("\n".join(wloads(s)))
    a(f"""
    s_add_u32 s{sAO}, s{sAO}, 16384
    s_mov_b32 s{sC}, 1
    s_branch L_{P}_ph
    L_{P}_red:
    s_nop 7
    """)
    pf.stamp(4)
    a("s_barrier")
    for j in range(1, 4):
        a(f"""
        s_xor_b32 s{sT0}, s{sW}, {j}
        s_mul_i32 s{sT0}, s{sT0}, 12288
        v_add_u32 v{vT0}, s{sT0}, v{vL16}
        """)
        for q in range(4):
            a(f"ds_write_b128 v{vT0}, {vr(vACC+16*j+4*q,4)} offset:{(j-1)*4096+q*1024}")
    a(f"""
    s_mul_i32 s{sT0}, s{sW}, 12288
    v_add_u32 v{vT1}, s{sT0}, v{vL16}
    s_lshl_b32 s{sT0}, s{sTW}, 1
    s_add_u32 s{sT0}, s{sT0}, s{sWM}
    s_lshl_b32 s{sT0}, s{sT0}, 15
    s_lshl_b32 s{sT1}, s{sFJ}, 7
    s_add_u32 s{sT0}, s{sT0}, s{sT1}
    s_lshl_b32 s{sT1}, s{sWN}, 6
    s_add_u32 s{sT0}, s{sT0}, s{sT1}
    v_and_b32 v{vT0}, 31, v0
    v_lshlrev_b32 v{vT0}, 10, v{vT0}
    v_lshrrev_b32 v{vT2}, 5, v0
    v_lshl_add_u32 v{vT0}, v{vT2}, 4, v{vT0}
    s_waitcnt lgkmcnt(0)
    s_barrier
    """)
    for s in range(3):
        for q in range(4):
            a(f"ds_read_b128 {vr(vACC+16*(s+1)+4*q,4)}, v{vT1} offset:{s*4096+q*1024}")
    a("s_waitcnt lgkmcnt(8)")
    for r in range(0, 16, 2): a(f"v_pk_add_f32 {vr(vACC+r,2)}, {vr(vACC+r,2)}, {vr(vACC+16+r,2)}")
    a("s_waitcnt lgkmcnt(0)")
    for r in range(0, 16, 2): a(f"v_pk_add_f32 {vr(vACC+32+r,2)}, {vr(vACC+32+r,2)}, {vr(vACC+48+r,2)}")
    for r in range(0, 16, 2): a(f"v_pk_add_f32 {vr(vACC+r,2)}, {vr(vACC+r,2)}, {vr(vACC+32+r,2)}")
    p = vF
    for i in range(8): a(f"v_cvt_pk_bf16_f32 v{p+i}, v{vACC+2*i}, v{vACC+2*i+1}")
    a(f"""
    v_permlane32_swap_b32 v{p}, v{p+2}
    v_permlane32_swap_b32 v{p+1}, v{p+3}
    v_permlane32_swap_b32 v{p+4}, v{p+6}
    v_permlane32_swap_b32 v{p+5}, v{p+7}
    buffer_store_dwordx4 {vr(p,4)}, v{vT0}, s[{sOUT}:{sOUT+3}], s{sT0} offen
    buffer_store_dwordx4 {vr(p+4,4)}, v{vT0}, s[{sOUT}:{sOUT+3}], s{sT0} offen offset:32
    """)
    if asmlib.PROF: a("s_waitcnt vmcnt(0)")
    pf.stamp(5)
    pf.dump(6, 2, sW, 4, vT0, vT1)
    a("s_endpgm")
    return NV

def gen():
    a = Asm()
    a.raw(kernel_header(NAME))
    a(f"""
    s_cmp_ge_u32 s2, 768
    s_cbranch_scc1 L_k2_end
    s_cmp_lt_u32 s2, 256
    s_cbranch_scc1 L_k2_gemm
    """)
    nv1 = attn_role(a)
    a.label("L_k2_end")
    a("s_endpgm")
    a.raw(".p2align 6")
    a.label("L_k2_gemm")
    a.window = []
    nv2 = gemm_role(a)
    NV = max(nv1, nv2)
    assert NV <= 168
    return a.text(), kernel_desc(NAME, NV, 72), f"; @launch kernel={NAME} grid=(768,1,1) block=(256,1,1) lds={LDS_BYTES}"

if __name__ == "__main__":
    t, d, l = gen()
    print(l); print(len(t.splitlines()))
```

```python
from asmlib import *
import asmlib
from layout import *
import os
SC = os.environ.get('K1SC', 'sc1')
EXP1 = os.environ.get('EXP1', '')

NAME = "k1_proj_kernel"
NW, NX = 6, 4
XS, WQS, W1S = 16384, 6144, 8192
WQ_BASE = NX * XS
W1_BASE = WQ_BASE + NW * WQS
FL_BASE = W1_BASE + NW * W1S
LDS_BYTES = FL_BASE + 128
SPIN_MAX = 1 << 20

def gen():
    a = Asm()
    a.raw(kernel_header(NAME))
    pf = Prof(a, 0)
    pf.stamp(0)
    sX, sWQ, sW1, sWS, sB1, sGW = 16, 20, 24, 28, 32, 36
    sWAVE, sW, sI, sJ = 40, 41, 42, 43
    sSOX, sSOQ, sSO1 = 44, 45, 46
    sSL, sSLX = 47, 69
    sN, sD, sDW = 48, 49, 50
    sC = 51
    sMX, sMQ, sM1 = 52, 53, 54
    sT0, sT1, sT2 = 55, 56, 57
    sSP, sFV = 58, 59
    sK2 = 60
    sKC, sBX, sBQ, sB1o, sKX = 64, 65, 66, 67, 68
    vG = 3
    vT0, vT1, vT2, vT3 = 6, 7, 8, 9
    a(f"""
    s_cmp_ge_u32 s2, 256
    s_cbranch_scc1 L_k1_end
    s_load_dwordx4 s[4:7], s[0:1], 0
    s_load_dwordx4 s[8:11], s[0:1], 32
    s_load_dwordx2 s[12:13], s[0:1], 56
    s_load_dwordx2 s[14:15], s[0:1], 80
    v_lshrrev_b32 v1, 6, v0
    v_lshlrev_b32 v2, 2, v0
    v_readfirstlane_b32 s{sWAVE}, v1
    v_mov_b32 v3, 0
    v_cmp_gt_u32 vcc, 32, v0
    v_add_u32 v2, {FL_BASE}, v2
    s_and_saveexec_b64 s[62:63], vcc
    s_cbranch_execz L_k1_noinit
    ds_write_b32 v2, v3
    L_k1_noinit:
    s_mov_b64 exec, -1
    v_and_b32 v0, 63, v0
    s_and_b32 s{sT0}, s2, 7
    s_lshr_b32 s{sT1}, s2, 3
    s_and_b32 s{sI}, s{sT0}, 1
    s_lshl_b32 s{sI}, s{sI}, 3
    s_and_b32 s{sT2}, s{sT1}, 7
    s_add_u32 s{sI}, s{sI}, s{sT2}
    s_lshr_b32 s{sJ}, s{sT0}, 1
    s_lshl_b32 s{sJ}, s{sJ}, 2
    s_lshr_b32 s{sT2}, s{sT1}, 3
    s_add_u32 s{sJ}, s{sJ}, s{sT2}
    s_and_b32 s{sW}, s{sWAVE}, 3
    s_mov_b32 s{sWS+2}, {WS_SIZE}
    s_mov_b32 s{sWS+3}, 0x00020000
    s_mov_b32 s{sSP}, {SPIN_MAX}
    v_lshrrev_b32 v{vG}, 4, v0
    s_cmp_lt_u32 s{sWAVE}, 4
    s_cbranch_scc1 L_k1_comp
    """)
    vXd, vXd2, vQd, vQd2, v1d, v1d2 = 10, 18, 11, 12, 13, 14
    vFA, vOne, vFV = 15, 16, 17
    vGX, vGW, vOnes = 20, 28, 36
    a(f"""
    s_mov_b32 s{sX+2}, {2048*512*2}
    s_mov_b32 s{sX+3}, 0x00020000
    s_mov_b32 s{sWQ+2}, {512*1536*2}
    s_mov_b32 s{sWQ+3}, 0x00020000
    s_mov_b32 s{sW1+2}, {512*1792*2}
    s_mov_b32 s{sW1+3}, 0x00020000
    v_and_b32 v{vT0}, 7, v0
    v_xor_b32 v{vT0}, v{vT0}, v{vG}
    v_lshlrev_b32 v{vT0}, 4, v{vT0}
    v_lshrrev_b32 v{vT1}, 3, v0
    v_lshl_add_u32 v{vXd}, v{vT1}, 10, v{vT0}
    v_xor_b32 v{vXd2}, 64, v{vXd}
    v_add_u32 v{vXd2}, 8192, v{vXd2}
    s_lshl_b32 s{sBX}, s{sI}, 17
    s_lshl_b32 s{sT0}, s{sW}, 14
    s_add_u32 s{sBX}, s{sBX}, s{sT0}
    s_lshl_b32 s{sMX}, s{sW}, 11
    ; Wq: rows 8w..8w+7, pieces p = l (+64): pos = p>>1, k = pos/6, ct = (pos%6) ^ (w&1)
    s_mul_i32 s{sMQ}, s{sW}, 1536
    s_add_u32 s{sMQ}, s{sMQ}, {WQ_BASE}
    s_mul_i32 s{sBQ}, s{sW}, {8*3072}
    s_lshl_b32 s{sT0}, s{sJ}, 7
    s_add_u32 s{sBQ}, s{sBQ}, s{sT0}
    s_and_b32 s{sT1}, s{sW}, 1
    s_lshl_b32 s{sT2}, s{sJ}, 6
    s_sub_u32 s{sT2}, {2048-128}, s{sT2}
    """)
    for q, dst in ((0, vQd), (1, vQd2)):
        a(f"""
        v_lshrrev_b32 v{vT1}, 1, v0
        v_add_u32 v{vT1}, {32*q}, v{vT1}
        v_mul_u32_u24 v{vT2}, 0xaaab, v{vT1}
        v_lshrrev_b32 v{vT2}, 18, v{vT2}
        v_mul_u32_u24 v{vT3}, 6, v{vT2}
        v_sub_u32 v{vT1}, v{vT1}, v{vT3}
        v_xor_b32 v{vT1}, s{sT1}, v{vT1}
        v_mul_u32_u24 v{vT2}, 3072, v{vT2}
        v_lshl_add_u32 v{vT2}, v{vT1}, 5, v{vT2}
        v_lshrrev_b32 v{vT3}, 2, v{vT1}
        v_mul_u32_u24 v{vT3}, s{sT2}, v{vT3}
        v_add_u32 v{vT2}, v{vT2}, v{vT3}
        v_and_b32 v{vT3}, 1, v0
        v_lshl_add_u32 v{dst}, v{vT3}, 4, v{vT2}
        """)
    a(f"""
    s_lshl_b32 s{sM1}, s{sW}, 11
    s_add_u32 s{sM1}, s{sM1}, {W1_BASE}
    s_mul_i32 s{sB1o}, s{sW}, {8*3584}
    s_mul_i32 s{sT0}, s{sJ}, 224
    s_add_u32 s{sB1o}, s{sB1o}, s{sT0}
    s_lshl_b32 s{sT1}, s{sT1}, 2
    v_lshrrev_b32 v{vT1}, 1, v0
    v_sub_u32 v{vT1}, v{vT1}, v{vG}
    v_subrev_u32 v{vT1}, s{sT1}, v{vT1}
    v_and_b32 v{vT1}, 7, v{vT1}
    v_min_u32 v{vT1}, 6, v{vT1}
    v_mul_u32_u24 v{vT2}, 3584, v{vG}
    v_lshl_add_u32 v{vT2}, v{vT1}, 5, v{vT2}
    v_and_b32 v{vT3}, 1, v0
    v_lshl_add_u32 v{v1d}, v{vT3}, 4, v{vT2}
    v_add_u32 v{v1d2}, {4*3584}, v{v1d}
    v_mov_b32 v{vFA}, {FL_BASE}
    v_mov_b32 v{vOne}, 1
    s_lshr_b32 s{sKX}, s2, 3
    s_and_b32 s{sKX}, s{sKX}, 7
    s_lshl_b32 s{sKC}, s{sKX}, 1
    s_waitcnt lgkmcnt(0)
    s_barrier
    s_mov_b32 s{sX}, s4
    s_mov_b32 s{sX+1}, s5
    s_mov_b32 s{sWQ}, s6
    s_mov_b32 s{sWQ+1}, s7
    s_mov_b32 s{sW1}, s8
    s_mov_b32 s{sW1+1}, s9
    """)
    def woffs():
        return f"""s_mul_i32 s{sT0}, s{sKC}, {32*3584}
        s_add_u32 s{sSO1}, s{sB1o}, s{sT0}
        s_mul_i32 s{sT0}, s{sKC}, {32*3072}
        s_add_u32 s{sSOQ}, s{sBQ}, s{sT0}
        s_add_u32 s{sKC}, s{sKC}, 1
        s_and_b32 s{sKC}, s{sKC}, 15"""
    def xoffs(half):
        t = f"""s_lshl_b32 s{sT0}, s{sKX}, 7
        s_add_u32 s{sSOX}, s{sBX}, s{sT0}"""
        if half:
            t += f"""
            s_add_u32 s{sSOX}, s{sSOX}, 65536
            s_add_u32 s{sKX}, s{sKX}, 1
            s_and_b32 s{sKX}, s{sKX}, 7"""
        return t
    def xdma(m, half, e):
        return (f"s_add_u32 m0, s{sMX}, {(m % NX)*XS + half*8192 + e*1024}",
                f"buffer_load_dwordx4 v{vXd2 if e else vXd}, s[{sX}:{sX+3}], s{sSOX} offen lds")
    def ready_txt(c, younger):
        return f"""s_waitcnt vmcnt({younger})
        s_mov_b64 exec, 1
        ds_add_u32 v{vFA}, v{vOne} offset:{4*c}
        s_mov_b64 exec, -1"""
    cnt = []
    def issue(c, sig, nxt):
        sl = c % NW
        m, half = (c + 1) >> 1, (c + 1) & 1
        hasx = m < 8
        n = 0
        if hasx:
            x = xdma(m, half, 0)
            a(x[0]); a(f"ds_read_b32 v{vFV}, v{vFA} offset:{64+4*nxt}" if nxt is not None else "s_nop 0"); a(x[1]); n += 1
        a(f"""
        s_add_u32 m0, s{sM1}, {sl*W1S}
        s_nop 0
        buffer_load_dwordx4 v{v1d}, s[{sW1}:{sW1+3}], s{sSO1} offen lds
        s_add_u32 m0, s{sMQ}, {sl*WQS}
        s_nop 0
        buffer_load_dwordx4 v{vQd}, s[{sWQ}:{sWQ+3}], s{sSOQ} offen lds
        """); n += 2
        if sig is not None: a(ready_txt(sig, sum(cnt[sig + 1:]) + n))
        if hasx:
            x = xdma(m, half, 1)
            a(x[0]); a("s_nop 0"); a(x[1]); n += 1
        a(f"""
        s_add_u32 m0, s{sM1}, {sl*W1S+1024}
        s_nop 0
        buffer_load_dwordx4 v{v1d2}, s[{sW1}:{sW1+3}], s{sSO1} offen lds
        s_add_u32 m0, s{sMQ}, {sl*WQS+1024}
        s_mov_b32 s{sT1}, s{sSOQ}
        """); n += 1
        a(woffs())
        a(xoffs((c + 2) & 1))
        if nxt is not None:
            a(f"""
            s_waitcnt lgkmcnt(0)
            v_readfirstlane_b32 s{sFV}, v{vFV}
            """)
        a(f"""
        s_mov_b32 exec_hi, 0
        buffer_load_dwordx4 v{vQd2}, s[{sWQ}:{sWQ+3}], s{sT1} offen lds
        s_mov_b32 exec_hi, -1
        """); n += 1
        if nxt is not None:
            a(f"""
            L_k1_wc{nxt}:
            s_cmp_ge_u32 s{sFV}, 4
            s_cbranch_scc1 L_k1_wdok{nxt}
            ds_read_b32 v{vFV}, v{vFA} offset:{64+4*nxt}
            s_sub_u32 s{sSP}, s{sSP}, 1
            s_waitcnt lgkmcnt(0)
            v_readfirstlane_b32 s{sFV}, v{vFV}
            s_cbranch_scc0 L_k1_wc{nxt}
            s_mov_b32 s{sSP}, 0
            L_k1_wdok{nxt}:
            """)
        cnt.append(n)
    LAG = int(os.environ.get('K1LAG', '3'))
    a(woffs()); a(xoffs(0))
    for e in range(2):
        x = xdma(0, 0, e); a(x[0]); a("s_nop 0"); a(x[1])
    a(xoffs(1))
    for c in range(16):
        if c == LAG: pf.stamp(1); pf.stamp(2)
        issue(c, sig=(c - LAG if c >= LAG else None), nxt=(c + 1 - NW if NW <= c + 1 < 16 else None))
    pf.stamp(3)
    a(f"""
    s_mov_b32 s{sWS}, s14
    s_mov_b32 s{sWS+1}, s15
    s_mov_b32 s{sGW}, s12
    s_mov_b32 s{sGW+1}, s13
    s_mov_b32 s{sGW+2}, 1024
    s_mov_b32 s{sGW+3}, 0x00020000
    s_lshl_b32 s{sT0}, s{sI}, 7
    s_lshl_b32 s{sT1}, s{sJ}, 3
    s_add_u32 s{sT0}, s{sT0}, s{sT1}
    s_lshl_b32 s{sT1}, s{sW}, 1
    s_add_u32 s{sN}, s{sT0}, s{sT1}
    s_lshl_b32 s{sT1}, s{sN}, 10
    v_and_b32 v{vT1}, 31, v0
    v_lshlrev_b32 v{vT1}, 5, v{vT1}
    v_lshrrev_b32 v{vT2}, 5, v0
    v_lshl_add_u32 v{vT2}, v{vT2}, 10, v{vT1}
    buffer_load_dwordx4 {vr(vGX,4)}, v{vT2}, s[{sX}:{sX+3}], s{sT1} offen
    buffer_load_dwordx4 {vr(vGX+4,4)}, v{vT2}, s[{sX}:{sX+3}], s{sT1} offen offset:16
    buffer_load_dwordx4 {vr(vGW,4)}, v{vT1}, s[{sGW}:{sGW+3}], 0 offen
    buffer_load_dwordx4 {vr(vGW+4,4)}, v{vT1}, s[{sGW}:{sGW+3}], 0 offen offset:16
    v_mov_b32 v{vOnes}, -1
    v_mov_b32 v{vOnes+1}, -1
    v_mov_b32 v{vOnes+2}, -1
    v_mov_b32 v{vOnes+3}, -1
    v_lshlrev_b32 v{vT0}, 4, v0
    s_lshl_b32 s{sT0}, s2, 2
    s_add_u32 s{sT0}, s{sT0}, s{sW}
    s_lshl_b32 s{sT1}, s{sT0}, 11
    s_add_u32 s{sT1}, s{sT1}, {WS_O}
    buffer_store_dwordx4 {vr(vOnes,4)}, v{vT0}, s[{sWS}:{sWS+3}], s{sT1} offen {SC}
    buffer_store_dwordx4 {vr(vOnes,4)}, v{vT0}, s[{sWS}:{sWS+3}], s{sT1} offen offset:1024 {SC}
    """)
    for c in range(16 - LAG, 16): a(ready_txt(c, sum(cnt[c + 1:]) + 6))
    a("s_waitcnt vmcnt(2)")
    acc = vT1
    a(f"v_mov_b32 v{acc}, 0")
    for r in range(8): a(f"v_dot2_f32_bf16 v{acc}, v{vGX+r}, v{vGW+r}, v{acc}")
    a("s_nop 3")
    for mod in ["quad_perm:[1,0,3,2]", "quad_perm:[2,3,0,1]", "row_half_mirror", "row_mirror"]:
        a(f"v_add_f32_dpp v{acc}, v{acc}, v{acc} {mod} row_mask:0xf bank_mask:0xf")
    a(f"""
    v_mov_b32 v{vT2}, v{acc}
    v_mov_b32 v{vT3}, v{acc}
    v_permlane16_swap_b32 v{vT2}, v{vT3}
    v_add_f32 v{acc}, v{vT2}, v{vT3}
    v_mul_f32 v{acc}, {hex(f32bits(-LOG2E))}, v{acc}
    v_exp_f32 v{acc}, v{acc}
    v_add_f32 v{acc}, 1.0, v{acc}
    v_rcp_f32 v{acc}, v{acc}
    s_lshl_b32 s{sT0}, s{sN}, 2
    s_add_u32 s{sT0}, s{sT0}, {WS_G}
    v_lshrrev_b32 v{vT2}, 5, v0
    v_lshlrev_b32 v{vT2}, 2, v{vT2}
    s_mov_b32 exec_lo, 1
    s_mov_b32 exec_hi, 1
    buffer_store_dword v{acc}, v{vT2}, s[{sWS}:{sWS+3}], s{sT0} offen
    """)
    pf.stamp(4); pf.stamp(5)
    pf.dump(6, 2, sWAVE, 8, vT0, vT1)
    a("s_endpgm")
    a.label("L_k1_comp")
    a.window = []
    vN16, vR, vC = 2, 4, 5
    vXr, vQr = [10, 19], 14
    vFA, vOne, vFV = 11, 12, 13
    vWr = list(range(15, 19))
    vF = 20
    FSZ = 44
    vACC = vF + 2 * FSZ
    NV = vACC + 112
    sWM, sWN = sSOX, sSOQ
    sWX, sWQw, sW1w = sMX, sMQ, sM1
    sDQ = sN
    a(f"""
    s_and_b32 s{sWM}, s{sW}, 1
    s_lshr_b32 s{sWN}, s{sW}, 1
    v_and_b32 v{vN16}, 15, v0
    v_bfe_u32 v{vR}, v0, 2, 2
    v_and_b32 v{vC}, 3, v0
    v_lshrrev_b32 v{vT0}, 1, v{vN16}
    v_xor_b32 v{vT0}, v{vG}, v{vT0}
    v_lshlrev_b32 v{vT0}, 4, v{vT0}
    v_lshl_add_u32 v{vT0}, v{vN16}, 7, v{vT0}
    s_lshl_b32 s{sT0}, s{sWM}, 13
    v_add_u32 v{vXr[0]}, s{sT0}, v{vT0}
    v_xor_b32 v{vXr[1]}, 64, v{vXr[0]}
    v_mov_b32 v{vFA}, {FL_BASE}
    v_mov_b32 v{vOne}, 1
    v_mov_b32 v{vFV}, 0
    s_mov_b32 s{sSL}, 0
    s_mov_b32 s{sSLX}, 0
    s_mov_b32 s{sC}, 0
    s_mov_b32 s{sWX}, {-(NX-1)*XS}
    s_mov_b32 s{sWQw}, {-(NW-1)*WQS}
    s_mov_b32 s{sW1w}, {-(NW-1)*W1S}
    v_lshl_add_u32 v{vT1}, v{vG}, 3, v{vR}
    v_and_b32 v{vT2}, 1, v{vG}
    v_mul_u32_u24 v{vT0}, 192, v{vT1}
    v_lshl_add_u32 v{vT0}, v{vC}, 3, v{vT0}
    v_add_u32 v{vT0}, {WQ_BASE}, v{vT0}
    v_xor_b32 v{vT3}, s{sWN}, v{vT2}
    v_lshl_add_u32 v{vQr}, v{vT3}, 5, v{vT0}
    v_lshlrev_b32 v{vT1}, 8, v{vT1}
    v_lshl_add_u32 v{vT1}, v{vC}, 3, v{vT1}
    v_add_u32 v{vT1}, {W1_BASE}, v{vT1}
    v_lshl_add_u32 v{vT2}, v{vT2}, 2, v{vR}
    v_lshlrev_b32 v{vT3}, 3, v{vG}
    s_mul_i32 s{sT1}, s{sJ}, 224
    s_mov_b32 s{sB1+2}, {1792*2}
    s_mov_b32 s{sB1+3}, 0x00020000
    s_waitcnt lgkmcnt(0)
    s_barrier
    s_mov_b32 s{sWS}, s14
    s_mov_b32 s{sWS+1}, s15
    s_mov_b32 s{sB1}, s10
    s_mov_b32 s{sB1+1}, s11
    s_cmp_eq_u32 s{sWN}, 1
    s_cbranch_scc1 L_k1_gb
    """)
    def frag(buf):
        b = vF + buf * FSZ
        return [b + 4 * t for t in range(4)], [b + 16 + 4 * i for i in range(7)]
    def role(name, F):
        nf = len(F); nt = 3 + nf
        def reads(buf):
            X, W = frag(buf); L = []
            def wr(i):
                for t2 in range(2):
                    if i < nf: va, off = vWr[i], 4 * t2 * 256
                    else:      va, off = vQr, 4 * t2 * 192 + (i - nf) * 64
                    L.append(f"ds_read_b64_tr_b16 {vr(W[i]+2*t2,2)}, v{va} offset:{off}")
            for t in range(4):
                L.append(f"ds_read_b128 {vr(X[t],4)}, v{vXr[buf]} offset:{t*2048}")
                wr(t)
            for i in range(4, nt): wr(i)
            return L
        def mfmas(buf):
            X, W = frag(buf); L = []
            for i in range(nt):
                for t in range(4):
                    acc = vACC + (i * 4 + t) * 4
                    if i == nt - 1: L.append(f"v_mfma_f32_16x16x32_bf16 {vr(acc,4)}, {vr(X[t],4)}, {vr(W[i],4)}, {vr(acc,4)}")
                    else:           L.append(f"v_mfma_f32_16x16x32_bf16 {vr(acc,4)}, {vr(W[i],4)}, {vr(X[t],4)}, {vr(acc,4)}")
            return L
        def check(tag):
            return f"""
            L_k1_{name}_ck{tag}:
            v_readfirstlane_b32 s{sFV}, v{vFV}
            s_cmp_ge_u32 s{sFV}, 4
            s_cbranch_scc1 L_k1_{name}_ok{tag}
            ds_read_b32 v{vFV}, v{vFA}
            s_sub_u32 s{sSP}, s{sSP}, 1
            s_waitcnt lgkmcnt(0)
            s_cbranch_scc0 L_k1_{name}_ck{tag}
            s_mov_b32 s{sSP}, 0
            L_k1_{name}_ok{tag}:
            """
        vB = vF + FSZ
        for i, ct in enumerate(F):
            a(f"buffer_load_dwordx2 {vr(vB+2*i,2)}, v{vT3}, s[{sB1}:{sB1+3}], s{sT1} offen offset:{ct*32}")
        for i, ct in enumerate(F):
            a(f"""
            v_add_u32 v{vT0}, {ct}, v{vT2}
            v_and_b32 v{vT0}, 7, v{vT0}
            v_lshl_add_u32 v{vWr[i]}, v{vT0}, 5, v{vT1}
            """)
        for r in range(48): a(f"v_mov_b32 v{vACC+16*nf+r}, 0")
        a("s_waitcnt vmcnt(0)")
        for i in range(nf):
            for t in range(4):
                acc = vACC + (i * 4 + t) * 4
                a(f"""
                v_lshlrev_b32 v{acc}, 16, v{vB+2*i}
                v_and_b32 v{acc+1}, 0xffff0000, v{vB+2*i}
                v_lshlrev_b32 v{acc+2}, 16, v{vB+2*i+1}
                v_and_b32 v{acc+3}, 0xffff0000, v{vB+2*i+1}
                """)
        pf.stamp(1)
        a(check("p"))
        pf.stamp(2)
        a("\n".join(reads(0)))
        a(f"ds_read_b32 v{vFV}, v{vFA} offset:4")
        a.raw(".p2align 6")
        a.label(f"L_k1_{name}_loop")
        start = len(a.lines)
        for buf in range(2):
            M = mfmas(buf)
            R = reads(buf ^ 1) + [f"ds_read_b32 v{vFV}, v{vFA} offset:4"]
            G = [f"""s_mov_b64 exec, 1
                 ds_add_u32 v{vFA}, v{vOne} offset:64
                 s_mov_b64 exec, -1""",
                 f"""s_add_u32 s{sSL}, s{sSL}, 1
                 s_cmp_eq_u32 s{sSL}, {NW}
                 s_cselect_b32 s{sDW}, s{sW1w}, {W1S}""",
                 f"""s_cselect_b32 s{sDQ}, s{sWQw}, {WQS}
                 s_cselect_b32 s{sSL}, 0, s{sSL}
                 v_add_u32 v{vFA}, 4, v{vFA}""",
                 f"""v_add_u32 v{vQr}, s{sDQ}, v{vQr}
                 v_add_u32 v{vWr[0]}, s{sDW}, v{vWr[0]}""",
                 "\n".join(f"v_add_u32 v{r}, s{sDW}, v{r}" for r in vWr[1:nf])]
            if buf == 1:
                G += [f"""s_add_u32 s{sSLX}, s{sSLX}, 1
                      s_cmp_eq_u32 s{sSLX}, {NX}
                      s_cselect_b32 s{sD}, s{sWX}, {XS}""",
                      f"""s_cselect_b32 s{sSLX}, 0, s{sSLX}
                      v_add_u32 v{vXr[0]}, s{sD}, v{vXr[0]}
                      v_add_u32 v{vXr[1]}, s{sD}, v{vXr[1]}"""]
            G.append(check(buf))
            while R:
                n = 1 if (len(G) + len(R) <= len(M) - 2) else 2
                G.append("\n".join(R[:n])); R = R[n:]
            assert len(G) <= len(M), (len(G), len(M))
            if buf == 1:
                a(f"""
                s_add_u32 s{sC}, s{sC}, 1
                s_cmp_eq_u32 s{sC}, 8
                s_waitcnt lgkmcnt(0)
                s_cbranch_scc1 L_k1_{name}_last
                """)
            else:
                a("s_waitcnt lgkmcnt(0)")
            for i, m in enumerate(M):
                a(m)
                if i < len(G): a(G[i])
        a(f"s_branch L_k1_{name}_loop")
        seam, inner = check_loop(a.lines[start:])
        assert seam == 0 and inner == 0, (seam, inner)
        a.label(f"L_k1_{name}_last")
        a.window = []
        M = mfmas(1)
        for m in M[4*nf:] + M[:4*nf]: a(m)
        pf.stamp(3)
        vP = vF
        a(f"""
        s_lshl_b32 s{sT0}, s{sI}, 2
        s_lshl_b32 s{sT1}, s{sWM}, 1
        s_add_u32 s{sD}, s{sT0}, s{sT1}
        v_lshlrev_b32 v{vT0}, 4, v0
        s_lshl_b32 s{sT0}, s{sD}, 10
        s_lshl_b32 s{sT1}, s{sJ}, 2
        s_add_u32 s{sT1}, s{sT1}, s{sWN}
        s_lshl_b32 s{sT1}, s{sT1}, 16
        s_add_u32 s{sT1}, s{sT1}, s{sT0}
        s_add_u32 s{sDW}, s{sT1}, {2*65536}
        s_lshl_b32 s{sN}, s{sJ}, 1
        s_add_u32 s{sN}, s{sN}, s{sWN}
        s_lshl_b32 s{sN}, s{sN}, 16
        s_add_u32 s{sN}, s{sN}, s{sT0}
        s_add_u32 s{sN}, s{sN}, {WS_V}
        s_mov_b32 s{sT2}, {hex(f32bits(QSCALE))}
        s_cmp_lt_u32 s{sJ}, 8
        s_cselect_b32 s{sK2}, s{sT2}, 1.0
        s_mov_b32 s{sK2+1}, s{sK2}
        """)
        assert WS_Q == 0 and WS_K == 32 * 65536
        k = 0
        for c3 in (2, 0, 1):
            for tp in range(2):
                p = vP + 4 * k; k += 1
                a0 = vACC + ((nf + c3) * 4 + 2 * tp) * 4; a1 = a0 + 4
                if c3 < 2:
                    for r in range(0, 8, 2): a(f"v_pk_mul_f32 {vr(a0+r,2)}, {vr(a0+r,2)}, s[{sK2}:{sK2+1}]")
                sw = "v_permlane32_swap_b32" if c3 == 2 else "v_permlane16_swap_b32"
                a(f"""
                v_cvt_pk_bf16_f32 v{p}, v{a0}, v{a0+1}
                v_cvt_pk_bf16_f32 v{p+1}, v{a0+2}, v{a0+3}
                v_cvt_pk_bf16_f32 v{p+2}, v{a1}, v{a1+1}
                v_cvt_pk_bf16_f32 v{p+3}, v{a1+2}, v{a1+3}
                {sw} v{p}, v{p+2}
                {sw} v{p+1}, v{p+3}
                buffer_store_dwordx4 {vr(p,4)}, v{vT0}, s[{sWS}:{sWS+3}], s{[sT1, sDW, sN][c3]} offen offset:{tp*1024} {SC}
                """)
        a(f"""
        s_mul_i32 s{sT0}, s{sD}, 112
        s_mul_i32 s{sT1}, s{sJ}, 7
        s_add_u32 s{sT0}, s{sT0}, s{sT1}
        s_add_u32 s{sT0}, s{sT0}, {F[0]}
        s_lshl_b32 s{sT0}, s{sT0}, 10
        s_add_u32 s{sT0}, s{sT0}, {WS_A}
        s_add_u32 s{sT1}, s{sT0}, {112*1024}
        s_mov_b32 s{sK2}, {hex(f32bits(LOG2E))}
        s_mov_b32 s{sK2+1}, {hex(f32bits(LOG2E))}
        """)
        E0 = vF + FSZ
        PK = vACC + 16 * nf
        k = 0
        for i in range(nf):
            hs = [vACC + (i * 4 + 2 * tp) * 4 for tp in range(2)]
            es = [E0, E0 + 16]; ds = [E0 + 8, E0 + 24]
            def both(f):
                for tp in range(2): f(hs[tp], es[tp], ds[tp])
            both(lambda h, e, d: [a(f"v_pk_mul_f32 {vr(e+r,2)}, {vr(h+r,2)}, s[{sK2}:{sK2+1}]") for r in range(0, 8, 2)])
            both(lambda h, e, d: [a(f"v_exp_f32 v{e+r}, v{e+r}") for r in range(8)])
            both(lambda h, e, d: [a(f"v_pk_add_f32 {vr(e+r,2)}, {vr(e+r,2)}, 1.0 op_sel_hi:[1,0]") for r in range(0, 8, 2)])
            both(lambda h, e, d: [a(f"v_pk_fma_f32 {vr(d+r,2)}, {vr(e+r,2)}, {vr(e+r,2)}, 1.0 op_sel_hi:[1,1,0]") for r in range(0, 8, 2)])
            both(lambda h, e, d: [a(f"v_rcp_f32 v{d+r}, v{d+r}") for r in range(8)])
            both(lambda h, e, d: [a(f"v_pk_mul_f32 {vr(d+r,2)}, {vr(d+r,2)}, {vr(h+r,2)}") for r in range(0, 8, 2)])
            both(lambda h, e, d: [a(f"v_pk_fma_f32 {vr(d+r,2)}, {vr(d+r,2)}, -2.0, {vr(h+r,2)} op_sel_hi:[1,0,1]") for r in range(0, 8, 2)])
            ps = [PK + 4 * (k + tp) for tp in range(2)]; k += 2
            for tp in range(2):
                p, d = ps[tp], ds[tp]
                a(f"""
                v_cvt_pk_bf16_f32 v{p}, v{d}, v{d+1}
                v_cvt_pk_bf16_f32 v{p+1}, v{d+2}, v{d+3}
                v_cvt_pk_bf16_f32 v{p+2}, v{d+4}, v{d+5}
                v_cvt_pk_bf16_f32 v{p+3}, v{d+6}, v{d+7}
                """)
            for tp in range(2):
                p = ps[tp]
                a(f"""
                v_permlane16_swap_b32 v{p}, v{p+2}
                v_permlane16_swap_b32 v{p+1}, v{p+3}
                buffer_store_dwordx4 {vr(p,4)}, v{vT0}, s[{sWS}:{sWS+3}], s{sT1 if tp else sT0} offen offset:{i*1024} {SC}
                """)
        pf.stamp(4)
        if asmlib.PROF: a("s_waitcnt vmcnt(0)")
        pf.stamp(5)
        pf.dump(6, 2, sWAVE, 8, vT0, vT1)
        a("s_endpgm")
    role("ga", [0, 1, 2])
    a.label("L_k1_gb")
    a.window = []
    role("gb", [3, 4, 5, 6])
    a.label("L_k1_end")
    a("s_endpgm")
    assert NV <= 256
    return a.text(), kernel_desc(NAME, NV, 72), f"; @launch kernel={NAME} grid=(256,1,1) block=(512,1,1) lds={LDS_BYTES}"

if __name__ == "__main__":
    t, d, l = gen()
    print(l); print(len(t.splitlines()))
```

```python
from asmlib import *
import asmlib
from layout import *

NAME = "k2_main_kernel"
LDS_BYTES = 49152
SENT = -1
PSLEEP = 12
import os
EXP = os.environ.get('EXP', '')
SPIN_MAX = 1 << 18

def attn_role(a):
    P = "at"
    sWS, sKV = 8, 28
    sW, sH, sQB = 12, 13, 14
    sT0, sT1, sT2 = 15, 16, 17
    sKT, sC, sM, sQ0, sA = 18, 19, 20, 22, 23
    sRB, sPO, sD, sVT = 26, 27, 32, 33
    vKo, vVo = 1, 2
    vT0, vT1, vT2, vT3, vG = 3, 4, 5, 6, 7
    vQ, vK, vV, vP, vS, vO = 8, 24, 32, 48, 56, 88
    vKr, vVr = 152, 153
    NV = 154
    RING = 12288
    pf = Prof(a, 1)
    pf.stamp(0)
    a(f"""
    s_setprio 3
    s_load_dwordx2 s[4:5], s[0:1], 80
    s_sub_u32 s{sA}, s2, 256
    v_lshrrev_b32 v1, 6, v0
    v_and_b32 v0, 63, v0
    v_readfirstlane_b32 s{sW}, v1
    s_lshr_b32 s{sH}, s{sA}, 8
    s_lshl_b32 s{sH}, s{sH}, 4
    s_and_b32 s{sT0}, s{sA}, 7
    s_lshl_b32 s{sT0}, s{sT0}, 1
    s_add_u32 s{sH}, s{sH}, s{sT0}
    s_bfe_u32 s{sT0}, s{sA}, 0x10003
    s_add_u32 s{sH}, s{sH}, s{sT0}
    s_bfe_u32 s{sQB}, s{sA}, 0x40004
    s_mov_b32 s{sWS+2}, {WS_SIZE}
    s_mov_b32 s{sWS+3}, 0x00020000
    s_mov_b32 s{sKV+2}, {WS_SIZE}
    s_mov_b32 s{sKV+3}, 0x00020000
    s_mov_b32 s{sM}, 0x0000ffff
    s_mov_b32 s{sM+1}, 0x0000ffff
    s_lshl_b32 s{sT0}, s{sH}, 16
    s_lshl_b32 s{sT1}, s{sQB}, 12
    s_add_u32 s{sQ0}, s{sT0}, s{sT1}
    s_lshl_b32 s{sT1}, s{sW}, 14
    s_add_u32 s{sKT}, s{sT0}, s{sT1}
    s_add_u32 s{sKT}, s{sKT}, {WS_K}
    s_mul_i32 s{sRB}, s{sW}, {RING}
    v_lshlrev_b32 v{vKo}, 4, v0
    v_add_u32 v{vVo}, {WS_V - WS_K}, v{vKo}
    s_lshl_b32 s{sT1}, s{sW}, 10
    v_xor_b32 v{vT2}, s{sT1}, v{vKo}
    s_mov_b32 m0, s{sRB}
    s_mov_b32 s{sC}, 0
    s_waitcnt lgkmcnt(0)
    s_mov_b32 s{sWS}, s4
    s_mov_b32 s{sWS+1}, s5
    s_mov_b32 s{sKV}, s4
    s_mov_b32 s{sKV+1}, s5
    """)
    srd = f"s[{sWS}:{sWS+3}]"
    kv = f"s[{sKV}:{sKV+3}]"
    for q in range(4):
        if q: a(f"v_xor_b32 v{vT3}, {q*1024}, v{vT2}")
        a(f"buffer_load_dwordx4 {vr(vQ+4*q,4)}, v{vT3 if q else vT2}, {srd}, s{sQ0} offen")
    a(f"""
    L_{P}_pre:
    buffer_load_dwordx4 v{vKo}, {kv}, s{sKT} offen lds
    s_add_u32 m0, m0, 1024
    s_add_u32 s{sC}, s{sC}, 1
    buffer_load_dwordx4 v{vVo}, {kv}, s{sKT} offen lds
    s_add_u32 m0, m0, 1024
    s_add_u32 s{sKT}, s{sKT}, 1024
    s_cmp_lt_u32 s{sC}, 6
    s_cbranch_scc1 L_{P}_pre
    s_lshl_b32 s{sT0}, s{sQB}, 2
    s_add_u32 s{sT0}, s{sT0}, s{sW}
    s_lshl_b32 s{sT0}, s{sT0}, 7
    s_add_u32 s{sT0}, s{sT0}, {WS_G}
    v_and_b32 v{vT0}, 31, v0
    v_lshlrev_b32 v{vT0}, 2, v{vT0}
    buffer_load_dword v{vG}, v{vT0}, {srd}, s{sT0} offen
    v_add_u32 v{vKr}, s{sRB}, v{vKo}
    v_and_b32 v{vT0}, 15, v0
    v_lshlrev_b32 v{vT0}, 4, v{vT0}
    v_lshrrev_b32 v{vT1}, 5, v0
    v_lshl_add_u32 v{vT0}, v{vT1}, 8, v{vT0}
    v_add_u32 v{vVr}, s{sRB}, v{vT0}
    v_and_b32 v{vT1}, 27, v0
    v_cmp_eq_u32 vcc, 16, v{vT1}
    v_mov_b32 v{vT1}, 0x3f803f80
    v_cndmask_b32 v{vT1}, 0, v{vT1}, vcc
    """)
    for r in range(16): a(f"v_mov_b32 v{vV+r}, v{vT1}")
    def reads(st, off):
        return f"""ds_read_b128 {vr(vK+4*st,4)}, v{vKr} offset:{off}
        s_mov_b64 exec, s[{sM}:{sM+1}]
        ds_read_b128 {vr(vV+8*st,4)}, v{vVr} offset:{off+1024}
        ds_read_b128 {vr(vV+8*st+4,4)}, v{vVr} offset:{off+1536}
        s_mov_b64 exec, -1"""
    def dma(off):
        return f"""s_add_u32 m0, s{sPO}, {off}
        s_setprio 3
        buffer_load_dwordx4 v{vKo}, {kv}, s{sKT} offen lds
        s_add_u32 m0, s{sPO}, {off+1024}
        s_nop 0
        buffer_load_dwordx4 v{vVo}, {kv}, s{sKT} offen lds
        s_setprio 0
        s_add_u32 s{sKT}, s{sKT}, 1024"""
    for r in range(64): a(f"v_mov_b32 v{vO+r}, 0")
    for r in range(4, 8): a(f"v_mov_b32 v{vP+r}, 0")
    a(f"s_mov_b32 s{sC}, 0")
    a(f"s_mov_b32 s{sPO}, s{sRB}")
    pf.stamp(1)
    a("s_waitcnt vmcnt(11)")
    pf.stamp(2)
    a(reads(0, 0))
    a("s_waitcnt lgkmcnt(0)")
    def mfS(sb, st, q): return f"v_mfma_f32_32x32x16_bf16 {vr(vS+16*sb,16)}, {vr(vK+4*st,4)}, {vr(vQ+4*q,4)}, 0"
    def mfPV(q, st, u): return f"v_mfma_f32_32x32x16_bf16 {vr(vO+16*q,16)}, {vr(vV+8*st+4*u,4)}, {vr(vP+4*u,4)}, {vr(vO+16*q,16)}"
    a(mfS(0, 0, 0))
    a(dma(0))
    if 'diag' in EXP: a("s_mov_b32 s40, 0\ns_mov_b32 s41, 0")
    a("s_nop 7")
    a.raw(".p2align 6")
    a.label(f"L_{P}_loop")
    start = len(a.lines)
    for st in range(2):
        off = 2048 if st == 0 else 0
        for q in range(4):
            sb = q & 1
            S = vS + 16 * sb
            ex = lambda i: f"v_exp_f32 v{S+i}, v{S+i}"
            cv = lambda i: f"v_cvt_pk_bf16_f32 v{vP+i}, v{S+2*i}, v{S+2*i+1}"
            pq, pst = (q - 1, st) if q > 0 else (3, st ^ 1)
            nq, nst = (q + 1, st) if q < 3 else (0, st ^ 1)
            a(ex(0)); a(ex(1))
            a(mfPV(pq, pst, 1))
            if q == 0 and st == 1:
                a(f"""
                s_add_u32 s{sT0}, s{sPO}, 4096
                s_add_u32 s{sT1}, s{sRB}, {RING}
                s_cmp_eq_u32 s{sT0}, s{sT1}
                s_cselect_b32 s{sT0}, s{sRB}, s{sT0}
                s_sub_u32 s{sD}, s{sT0}, s{sPO}
                s_mov_b32 s{sPO}, s{sT0}
                v_add_u32 v{vKr}, s{sD}, v{vKr}
                v_add_u32 v{vVr}, s{sD}, v{vVr}
                """)
            if q == 1:
                if 'diag' in EXP: a("s_memtime s[44:45]")
                a("s_waitcnt vmcnt(10)")
                if 'diag' in EXP:
                    a("s_memtime s[46:47]\ns_waitcnt lgkmcnt(0)\ns_sub_u32 s44, s46, s44\ns_add_u32 s41, s41, s44")
                a(reads(st ^ 1, off))
            for i in range(2, 6): a(ex(i))
            if q == 3: a("s_waitcnt lgkmcnt(0)")
            a(mfS(sb ^ 1, nst, nq))
            if q == 3:
                if st == 1:
                    a(f"""
                    s_cmp_ge_u32 s{sC}, 4
                    s_cselect_b32 s{sKV+2}, 0, s{sKV+2}
                    """)
                if 'diag' in EXP: a("s_memtime s[44:45]")
                a(dma(off))
                if 'diag' in EXP:
                    a("s_memtime s[46:47]\ns_waitcnt lgkmcnt(0)\ns_sub_u32 s44, s46, s44\ns_add_u32 s40, s40, s44")
            a(ex(6)); a(ex(7))
            for i in range(4): a(cv(i))
            a(ex(8)); a(ex(9))
            a(mfPV(q, st, 0))
            for i in range(10, 16): a(ex(i))
            for i in range(4, 8): a(cv(i))
    a(f"""
    s_add_u32 s{sC}, s{sC}, 1
    s_cmp_lt_u32 s{sC}, 8
    s_cbranch_scc1 L_{P}_loop
    """)
    seam, inner = check_loop(a.lines[start:])
    assert seam == 0 and inner == 0, (seam, inner)
    a(mfPV(3, 1, 1))
    a("s_setprio 3")
    pf.stamp(3)
    a(f"""
    v_add_u32 v{vT0}, s{sRB}, v{vKo}
    v_lshlrev_b32 v{vT1}, 2, v0
    v_add_u32 v{vT2}, s{sRB}, v{vT1}
    s_waitcnt vmcnt(0)
    """)
    for j in range(1, 4):
        o = vO + 16 * j
        a(f"""
        ds_write_b128 v{vT0}, {vr(o,4)} offset:{(j-1)*2304}
        ds_write_b128 v{vT0}, {vr(o+4,4)} offset:{(j-1)*2304+1024}
        ds_write_b32 v{vT2}, v{o+8} offset:{(j-1)*2304+2048}
        """)
    a(f"""
    s_waitcnt lgkmcnt(0)
    s_barrier
    """)
    R = vO
    for j in range(1, 4):
        o = vO + 16 * j
        a(f"""
        s_xor_b32 s{sT0}, s{sW}, {j}
        s_mul_i32 s{sT0}, s{sT0}, {RING}
        v_add_u32 v{vT0}, s{sT0}, v{vKo}
        v_add_u32 v{vT2}, s{sT0}, v{vT1}
        ds_read_b128 {vr(o,4)}, v{vT0} offset:{(j-1)*2304}
        ds_read_b128 {vr(o+4,4)}, v{vT0} offset:{(j-1)*2304+1024}
        ds_read_b32 v{o+8}, v{vT2} offset:{(j-1)*2304+2048}
        """)
    a("s_waitcnt lgkmcnt(0)")
    for r in range(0, 8, 2):
        a(f"v_pk_add_f32 {vr(R+r,2)}, {vr(R+r,2)}, {vr(R+16+r,2)}")
        a(f"v_pk_add_f32 {vr(R+32+r,2)}, {vr(R+32+r,2)}, {vr(R+48+r,2)}")
    a(f"v_add_f32 v{R+8}, v{R+8}, v{R+24}")
    a(f"v_add_f32 v{R+40}, v{R+40}, v{R+56}")
    for r in range(0, 8, 2):
        a(f"v_pk_add_f32 {vr(R+r,2)}, {vr(R+r,2)}, {vr(R+32+r,2)}")
    a(f"v_add_f32 v{R+8}, v{R+8}, v{R+40}")
    a(f"v_mov_b32 v{vT2}, v{R+8}")
    for r in range(8): a(f"v_fma_f32 v{vT2}, v{R+r}, 0, v{vT2}")
    a(f"""
    s_mov_b32 s{sT0}, {hex(f32bits(2.0**-30))}
    s_mov_b32 s{sT1}, {hex(f32bits(2.0**30))}
    v_cmp_le_f32 vcc, s{sT0}, v{vT2}
    v_cmp_ge_f32 s[24:25], s{sT1}, v{vT2}
    s_and_b64 vcc, vcc, s[24:25]
    s_cmp_eq_u64 vcc, -1
    s_cbranch_scc0 L_{P}_slow
    L_{P}_fin:
    v_rcp_f32 v{vT2}, v{R+8}
    s_lshl_b32 s{sT0}, s{sQB}, 2
    s_add_u32 s{sT0}, s{sT0}, s{sW}
    s_lshl_b32 s{sT0}, s{sT0}, 5
    s_add_u32 s{sT0}, s{sT0}, s{sH}
    s_lshl_b32 s{sT0}, s{sT0}, 10
    s_add_u32 s{sT0}, s{sT0}, {WS_O}
    v_mul_f32 v{vT2}, v{vT2}, v{vG}
    """)
    for r in range(8): a(f"v_mul_f32 v{R+r}, v{R+r}, v{vT2}")
    a(f"""
    v_cvt_pk_bf16_f32 v{vP}, v{R}, v{R+1}
    v_cvt_pk_bf16_f32 v{vP+1}, v{R+2}, v{R+3}
    v_cvt_pk_bf16_f32 v{vP+2}, v{R+4}, v{R+5}
    v_cvt_pk_bf16_f32 v{vP+3}, v{R+6}, v{R+7}
    v_min_u32 v{vP}, -2, v{vP}
    v_min_u32 v{vP+1}, -2, v{vP+1}
    v_min_u32 v{vP+2}, -2, v{vP+2}
    v_min_u32 v{vP+3}, -2, v{vP+3}
    v_permlane32_swap_b32 v{vP}, v{vP+2}
    v_permlane32_swap_b32 v{vP+1}, v{vP+3}
    buffer_store_dwordx4 {vr(vP,4)}, v{vKo}, {srd}, s{sT0} offen sc1
    """)
    pf.stamp(4)
    if asmlib.PROF: a("s_waitcnt vmcnt(0)")
    pf.stamp(5)
    if 'diag' in EXP: a("s_mov_b32 s92, s40\ns_mov_b32 s94, s41")
    pf.dump(6, sA, sW, 4, vT0, vT1)
    a("s_endpgm")
    a.label(f"L_{P}_slow")
    a.window = []
    vM = vT3
    S = vS
    a(f"""
    s_lshl_b32 s{sT1}, s{sH}, 16
    s_add_u32 s{sT1}, s{sT1}, {WS_K}
    s_mov_b32 s{sKT}, s{sT1}
    s_mov_b32 s{sC}, 0
    v_mov_b32 v{vM}, 0xff800000
    v_and_b32 v{vT0}, 15, v0
    v_lshlrev_b32 v{vT0}, 4, v{vT0}
    v_lshrrev_b32 v{vT1}, 5, v0
    v_lshl_add_u32 v{vT0}, v{vT1}, 8, v{vT0}
    v_add_u32 v{vVo}, {WS_V - WS_K}, v{vT0}
    L_{P}_slow1:
    buffer_load_dwordx4 {vr(vK,4)}, v{vKo}, {srd}, s{sKT} offen
    s_add_u32 s{sKT}, s{sKT}, 1024
    s_waitcnt vmcnt(0)
    {mfS(0,0,0)}
    """)
    for r in range(0, 16, 2): a(f"v_max3_f32 v{vM}, v{vM}, v{S+r}, v{S+r+1}")
    a(f"""
    s_add_u32 s{sC}, s{sC}, 1
    s_cmp_lt_u32 s{sC}, 64
    s_cbranch_scc1 L_{P}_slow1
    v_mov_b32 v{vT0}, v{vM}
    v_mov_b32 v{vT1}, v{vM}
    v_permlane32_swap_b32 v{vT0}, v{vT1}
    v_max_f32 v{vM}, v{vT0}, v{vT1}
    s_mov_b32 s{sKT}, s{sT1}
    s_mov_b32 s{sC}, 0
    """)
    for r in range(16): a(f"v_mov_b32 v{R+r}, 0")
    a(f"""
    L_{P}_slow2:
    buffer_load_dwordx4 {vr(vK,4)}, v{vKo}, {srd}, s{sKT} offen
    s_mov_b64 exec, s[{sM}:{sM+1}]
    buffer_load_dwordx4 {vr(vV,4)}, v{vVo}, {srd}, s{sKT} offen
    buffer_load_dwordx4 {vr(vV+4,4)}, v{vVo}, {srd}, s{sKT} offen offset:512
    s_mov_b64 exec, -1
    s_add_u32 s{sKT}, s{sKT}, 1024
    s_waitcnt vmcnt(0)
    {mfS(0,0,0)}
    """)
    for r in range(16): a(f"v_sub_f32 v{S+r}, v{S+r}, v{vM}")
    for r in range(16): a(f"v_exp_f32 v{S+r}, v{S+r}")
    for i in range(8): a(f"v_cvt_pk_bf16_f32 v{vP+i}, v{S+2*i}, v{S+2*i+1}")
    a(mfPV(0, 0, 0)); a(mfPV(0, 0, 1))
    a(f"""
    s_nop 7
    s_add_u32 s{sC}, s{sC}, 1
    s_cmp_lt_u32 s{sC}, 64
    s_cbranch_scc1 L_{P}_slow2
    s_nop 15
    s_branch L_{P}_fin
    """)
    return NV

def gemm_role(a):
    P = "gm"
    sWS, sX, sW1, sB1, sWT, sOUT = 16, 20, 24, 28, 32, 36
    sW, sXCD, sIDX = 40, 41, 42
    sT0, sT1, sT2 = 43, 44, 45
    sC = 46
    sSOX, sSOW, sOS, sD, sN = 47, 48, 49, 50, 51
    sMD = 52
    sWM, sWN, sI, sJJ = 53, 54, 55, 56
    sTW, sFJ, sAO, sWO, sWO2, sLB = 57, 58, 59, 60, 61, 62
    sK2 = 64
    vL16 = 1
    vT0, vT1, vT2, vT3 = 2, 3, 4, 5
    vXd, vWd = 6, 7
    vXr, vWr = [8, 9], [10, 11]
    vAo = [12, 13]
    vG1 = [14, 15]
    vF = 16
    vA = 48
    vACC = 80
    NV = vACC + 64
    ST = 16384
    pf = Prof(a, 2)
    pf.stamp(0)
    a(f"""
    s_setprio {0 if 'prio0' in EXP else 2}
    s_load_dwordx2 s[4:5], s[0:1], 0
    s_load_dwordx2 s[6:7], s[0:1], 16
    s_load_dwordx4 s[8:11], s[0:1], 32
    s_load_dwordx2 s[12:13], s[0:1], 48
    s_load_dwordx2 s[{sOUT}:{sOUT+1}], s[0:1], 64
    s_load_dwordx2 s[14:15], s[0:1], 80
    v_lshrrev_b32 v1, 6, v0
    v_and_b32 v0, 63, v0
    v_readfirstlane_b32 s{sW}, v1
    s_and_b32 s{sXCD}, s2, 7
    s_lshr_b32 s{sIDX}, s2, 3
    s_mov_b32 s{sWS+2}, {WS_SIZE}
    s_mov_b32 s{sWS+3}, 0x00020000
    s_mov_b32 s{sX+2}, {2048*512*2}
    s_mov_b32 s{sX+3}, 0x00020000
    s_mov_b32 s{sW1+2}, {512*1792*2}
    s_mov_b32 s{sW1+3}, 0x00020000
    s_mov_b32 s{sB1+2}, {1792*2}
    s_mov_b32 s{sB1+3}, 0x00020000
    s_mov_b32 s{sWT+2}, {1792*512*2}
    s_mov_b32 s{sWT+3}, 0x00020000
    s_mov_b32 s{sOUT+2}, {2048*512*2}
    s_mov_b32 s{sOUT+3}, 0x00020000
    s_and_b32 s{sWM}, s{sW}, 1
    s_lshr_b32 s{sWN}, s{sW}, 1
    v_lshlrev_b32 v{vL16}, 4, v0
    {f's_mov_b32 s{sX+2}, 0' if 'noload' in EXP else ''}
    {f's_mov_b32 s{sW1+2}, 0' if 'noload' in EXP else ''}
    {f's_mov_b32 s{sWT+2}, 0' if 'noload' in EXP else ''}
    s_waitcnt lgkmcnt(0)
    s_mov_b32 s{sX}, s4
    s_mov_b32 s{sX+1}, s5
    s_mov_b32 s{sW1}, s8
    s_mov_b32 s{sW1+1}, s9
    s_mov_b32 s{sB1}, s10
    s_mov_b32 s{sB1+1}, s11
    s_mov_b32 s{sWT}, s12
    s_mov_b32 s{sWT+1}, s13
    s_mov_b32 s{sWS}, s14
    s_mov_b32 s{sWS+1}, s15
    """)
    wsrd = f"s[{sWS}:{sWS+3}]"
    pf.stamp(1)
    if 'gexit' in EXP or 'f1only' in EXP: a("s_endpgm")
    pf.stamp(2)
    D = 4
    a(f"""
    s_lshl_b32 s{sTW}, s{sXCD}, 2
    s_and_b32 s{sT0}, s{sIDX}, 3
    s_add_u32 s{sTW}, s{sTW}, s{sT0}
    s_lshr_b32 s{sFJ}, s{sIDX}, 2
    s_mul_i32 s{sT0}, s{sTW}, 224
    s_mul_i32 s{sT1}, s{sW}, 28
    s_add_u32 s{sT0}, s{sT0}, s{sT1}
    s_lshl_b32 s{sAO}, s{sT0}, 10
    s_add_u32 s{sAO}, s{sAO}, {WS_A}
    s_lshl_b32 s{sWO}, s{sT1}, 14
    s_lshl_b32 s{sT2}, s{sFJ}, 7
    s_add_u32 s{sWO}, s{sWO}, s{sT2}
    s_lshl_b32 s{sLB}, s{sW}, 13
    s_mul_i32 s{sT0}, s{sWM}, {112*1024}
    s_sub_u32 s{sT1}, {112*1024}, s{sT0}
    v_add_u32 v{vAo[0]}, s{sT0}, v{vL16}
    v_add_u32 v{vAo[1]}, s{sT1}, v{vL16}
    v_lshrrev_b32 v{vT0}, 2, v0
    v_lshrrev_b32 v{vT1}, 4, v0
    v_xor_b32 v{vT0}, v{vT0}, v{vT1}
    v_and_b32 v{vT0}, 1, v{vT0}
    v_lshlrev_b32 v{vT0}, 6, v{vT0}
    v_and_b32 v{vT1}, 3, v0
    v_lshl_add_u32 v{vT0}, v{vT1}, 4, v{vT0}
    v_lshrrev_b32 v{vT1}, 3, v0
    v_lshl_add_u32 v{vWd}, v{vT1}, 10, v{vT0}
    v_lshrrev_b32 v{vT0}, 5, v0
    v_bfe_u32 v{vT1}, v0, 2, 2
    v_lshl_add_u32 v{vT0}, v{vT0}, 3, v{vT1}
    v_lshlrev_b32 v{vT0}, 7, v{vT0}
    v_lshrrev_b32 v{vT1}, 1, v{vT1}
    v_xor_b32 v{vT1}, s{sWN}, v{vT1}
    v_lshl_add_u32 v{vT0}, v{vT1}, 6, v{vT0}
    v_bfe_u32 v{vT1}, v0, 4, 1
    v_lshl_add_u32 v{vT0}, v{vT1}, 5, v{vT0}
    v_and_b32 v{vT1}, 3, v0
    v_lshl_add_u32 v{vT0}, v{vT1}, 3, v{vT0}
    v_add_u32 v{vWr[0]}, s{sLB}, v{vT0}
    v_xor_b32 v{vWr[1]}, 64, v{vWr[0]}
    s_lshl_b32 s{sT0}, s{sTW}, 8
    s_add_u32 s{sT0}, s{sT0}, {WS_G}
    v_and_b32 v{vT0}, 31, v0
    v_lshlrev_b32 v{vT0}, 2, v{vT0}
    s_lshl_b32 s{sT1}, s{sWM}, 7
    v_xor_b32 v{vT0}, s{sT1}, v{vT0}
    v_xor_b32 v{vT1}, 128, v{vT0}
    buffer_load_dword v{vG1[0]}, v{vT0}, {wsrd}, s{sT0} offen
    buffer_load_dword v{vG1[1]}, v{vT1}, {wsrd}, s{sT0} offen
    s_mov_b32 s{sD}, {SPIN_MAX}
    """)
    def wloads(d):
        return [f"s_add_u32 m0, s{sLB}, {d*2048}",
                f"s_add_u32 s{sWO2}, s{sWO}, 8192",
                f"buffer_load_dwordx4 v{vWd}, s[{sWT}:{sWT+3}], s{sWO} offen lds",
                f"s_add_u32 m0, s{sLB}, {d*2048+1024}",
                f"s_add_u32 s{sWO}, s{sWO}, 16384",
                f"buffer_load_dwordx4 v{vWd}, s[{sWT}:{sWT+3}], s{sWO2} offen lds"]
    def aloads(d):
        asrd = f"s[{sX}:{sX+3}]" if 'noload' in EXP else wsrd
        return [f"buffer_load_dwordx4 {vr(vA+8*d,4)}, v{vAo[0]}, {asrd}, s{sAO} offen",
                f"buffer_load_dwordx4 {vr(vA+8*d+4,4)}, v{vAo[1]}, {asrd}, s{sAO} offen",
                f"s_add_u32 s{sAO}, s{sAO}, 1024"]
    def wreads(d, buf):
        return [f"ds_read_b64_tr_b16 {vr(vF+8*buf+4*fi+2*t2,2)}, v{vWr[fi]} offset:{d*2048+t2*512}"
                for fi in range(2) for t2 in range(2)]
    def mfmas(d, buf):
        L = []
        for fi in range(2):
            for ti in range(2):
                acc = vACC + 16 * (fi * 2 + ti)
                L.append(f"v_mfma_f32_32x32x16_bf16 {vr(acc,16)}, {vr(vF+8*buf+4*fi,4)}, {vr(vA+8*d+4*ti,4)}, {vr(acc,16)}")
        if 'nomfma' in EXP: L = ["s_nop 0"] * 4
        if 'space' in EXP: L = [m + "\ns_sleep 1" for m in L]
        return L
    for d in range(D): a("\n".join(wloads(d) + aloads(d)))
    for r in range(64): a(f"v_mov_b32 v{vACC+r}, 0")
    a(f"s_mov_b32 s{sC}, 0")
    a(f"s_waitcnt vmcnt({4*(D-1)})")
    a("\n".join(wreads(0, 0)))
    a.raw(".p2align 6")
    a.label(f"L_{P}_f2loop")
    start = len(a.lines)
    for s in range(D):
        a(f"s_waitcnt vmcnt({4*(D-2)})")
        a("\n".join(wreads((s + 1) % D, (s + 1) & 1)))
        a("s_waitcnt lgkmcnt(4)")
        a("\n".join(mfmas(s, s & 1)))
        a("\n".join(wloads(s) + aloads(s)))
    a(f"""
    s_add_u32 s{sC}, s{sC}, 1
    s_cmp_lt_u32 s{sC}, {1 if 'nof2' in EXP else 6}
    s_cbranch_scc1 L_{P}_f2loop
    """)
    seam, inner = check_loop(a.lines[start:])
    assert seam == 0 and inner == 0, (seam, inner)
    a(f"""
    s_mov_b32 s{sWT}, s6
    s_mov_b32 s{sWT+1}, s7
    s_mov_b32 s{sWT+2}, {512*512*2}
    s_lshl_b32 s{sWO}, s{sW}, 16
    s_lshl_b32 s{sT2}, s{sFJ}, 7
    s_add_u32 s{sWO}, s{sWO}, s{sT2}
    """)
    for s in range(D):
        if s < D - 1:
            a(f"s_waitcnt vmcnt({4*(D-2-s) + 2*s})")
            a("\n".join(wreads(s + 1, (s + 1) & 1)))
            a("s_waitcnt lgkmcnt(4)")
        else:
            a("s_waitcnt lgkmcnt(0)")
        a("\n".join(mfmas(s, s & 1)))
        a("\n".join(wloads(s)))
    pf.stamp(3)
    if 'nopoll' in EXP: a("s_endpgm")
    a(f"""
    v_sub_f32 v{vG1[0]}, 1.0, v{vG1[0]}
    v_sub_f32 v{vG1[1]}, 1.0, v{vG1[1]}
    s_lshl_b32 s{sAO}, s{sTW}, 16
    s_lshl_b32 s{sT0}, s{sW}, 12
    s_add_u32 s{sAO}, s{sAO}, s{sT0}
    s_add_u32 s{sAO}, s{sAO}, {WS_O}
    s_lshl_b32 s{sT0}, s{sWM}, 15
    v_add_u32 v{vAo[0]}, s{sT0}, v{vL16}
    v_xor_b32 v{vAo[1]}, 0x8000, v{vAo[0]}
    v_and_b32 v{vT0}, 3, v0
    v_bfe_u32 v{vT1}, v0, 2, 1
    v_lshlrev_b32 v{vT0}, 10, v{vT0}
    v_lshl_add_u32 v{vT3}, v{vT1}, 15, v{vT0}
    s_add_u32 s{sWO}, s{sWO}, {(16-4)*16384}
    s_mov_b32 s{sC}, 0
    """)
    for fi in range(2):
        for ti in range(2):
            acc = vACC + 16 * (fi * 2 + ti)
            for r in range(16): a(f"v_mul_f32 v{acc+r}, v{vG1[ti]}, v{acc+r}")
    a.label(f"L_{P}_ph")
    a(f"""
    s_mov_b64 exec, 0xff
    L_{P}_pollO:
    buffer_load_dword v{vT1}, v{vT3}, {wsrd}, s{sAO} offen offset:1020 sc1
    s_waitcnt vmcnt(0)
    v_cmp_eq_u32 vcc, -1, v{vT1}
    s_cbranch_vccz L_{P}_loadO
    s_sleep {PSLEEP}
    s_sub_u32 s{sD}, s{sD}, 1
    s_cbranch_scc0 L_{P}_pollO
    s_mov_b32 s{sD}, 0
    L_{P}_loadO:
    s_mov_b64 exec, -1
    """)
    for d in range(D):
        a(f"buffer_load_dwordx4 {vr(vA+8*d,4)}, v{vAo[0]}, {wsrd}, s{sAO} offen offset:{d*1024} sc1")
        a(f"buffer_load_dwordx4 {vr(vA+8*d+4,4)}, v{vAo[1]}, {wsrd}, s{sAO} offen offset:{d*1024} sc1")
    a("\n".join(wreads(0, 0)))
    a("s_waitcnt vmcnt(0)")
    a(f"v_max3_u32 v{vT1}, v{vA}, v{vA+1}, v{vA+2}")
    for r in range(3, 31, 2): a(f"v_max3_u32 v{vT1}, v{vT1}, v{vA+r}, v{vA+r+1}")
    a(f"""
    v_max_u32 v{vT1}, v{vT1}, v{vA+31}
    v_cmp_eq_u32 vcc, -1, v{vT1}
    s_cbranch_vccz L_{P}_okO
    s_sub_u32 s{sD}, s{sD}, 1
    s_cbranch_scc0 L_{P}_loadO
    s_mov_b32 s{sD}, 0
    L_{P}_okO:
    """)
    for s in range(D):
        if s < D - 1:
            a("\n".join(wreads(s + 1, (s + 1) & 1)))
            a("s_waitcnt lgkmcnt(4)")
        else:
            a("s_waitcnt lgkmcnt(0)")
        a("\n".join(mfmas(s, s & 1)))
    a(f"""
    s_cmp_eq_u32 s{sC}, 1
    s_cbranch_scc1 L_{P}_red
    """)
    for s in range(D): a("\n".join(wloads(s)))
    a(f"""
    s_add_u32 s{sAO}, s{sAO}, 16384
    s_mov_b32 s{sC}, 1
    s_branch L_{P}_ph
    L_{P}_red:
    s_nop 7
    """)
    pf.stamp(4)
    a("s_barrier")
    for j in range(1, 4):
        a(f"""
        s_xor_b32 s{sT0}, s{sW}, {j}
        s_mul_i32 s{sT0}, s{sT0}, 12288
        v_add_u32 v{vT0}, s{sT0}, v{vL16}
        """)
        for q in range(4):
            a(f"ds_write_b128 v{vT0}, {vr(vACC+16*j+4*q,4)} offset:{(j-1)*4096+q*1024}")
    a(f"""
    s_mul_i32 s{sT0}, s{sW}, 12288
    v_add_u32 v{vT1}, s{sT0}, v{vL16}
    s_lshl_b32 s{sT0}, s{sTW}, 1
    s_add_u32 s{sT0}, s{sT0}, s{sWM}
    s_lshl_b32 s{sT0}, s{sT0}, 15
    s_lshl_b32 s{sT1}, s{sFJ}, 7
    s_add_u32 s{sT0}, s{sT0}, s{sT1}
    s_lshl_b32 s{sT1}, s{sWN}, 6
    s_add_u32 s{sT0}, s{sT0}, s{sT1}
    v_and_b32 v{vT0}, 31, v0
    v_lshlrev_b32 v{vT0}, 10, v{vT0}
    v_lshrrev_b32 v{vT2}, 5, v0
    v_lshl_add_u32 v{vT0}, v{vT2}, 4, v{vT0}
    s_waitcnt lgkmcnt(0)
    s_barrier
    """)
    for s in range(3):
        for q in range(4):
            a(f"ds_read_b128 {vr(vACC+16*(s+1)+4*q,4)}, v{vT1} offset:{s*4096+q*1024}")
    a("s_waitcnt lgkmcnt(8)")
    for r in range(0, 16, 2): a(f"v_pk_add_f32 {vr(vACC+r,2)}, {vr(vACC+r,2)}, {vr(vACC+16+r,2)}")
    a("s_waitcnt lgkmcnt(0)")
    for r in range(0, 16, 2): a(f"v_pk_add_f32 {vr(vACC+32+r,2)}, {vr(vACC+32+r,2)}, {vr(vACC+48+r,2)}")
    for r in range(0, 16, 2): a(f"v_pk_add_f32 {vr(vACC+r,2)}, {vr(vACC+r,2)}, {vr(vACC+32+r,2)}")
    p = vF
    for i in range(8): a(f"v_cvt_pk_bf16_f32 v{p+i}, v{vACC+2*i}, v{vACC+2*i+1}")
    a(f"""
    v_permlane32_swap_b32 v{p}, v{p+2}
    v_permlane32_swap_b32 v{p+1}, v{p+3}
    v_permlane32_swap_b32 v{p+4}, v{p+6}
    v_permlane32_swap_b32 v{p+5}, v{p+7}
    buffer_store_dwordx4 {vr(p,4)}, v{vT0}, s[{sOUT}:{sOUT+3}], s{sT0} offen
    buffer_store_dwordx4 {vr(p+4,4)}, v{vT0}, s[{sOUT}:{sOUT+3}], s{sT0} offen offset:32
    """)
    if asmlib.PROF: a("s_waitcnt vmcnt(0)")
    pf.stamp(5)
    pf.dump(6, 2, sW, 4, vT0, vT1)
    a("s_endpgm")
    return NV

def gen():
    a = Asm()
    a.raw(kernel_header(NAME))
    a(f"""
    s_cmp_ge_u32 s2, 768
    s_cbranch_scc1 L_k2_end
    s_cmp_lt_u32 s2, 256
    s_cbranch_scc1 L_k2_gemm
    """)
    nv1 = attn_role(a)
    a.label("L_k2_end")
    a("s_endpgm")
    a.raw(".p2align 6")
    a.label("L_k2_gemm")
    a.window = []
    nv2 = gemm_role(a)
    NV = max(nv1, nv2)
    assert NV <= 168
    return a.text(), kernel_desc(NAME, NV, 72), f"; @launch kernel={NAME} grid=(768,1,1) block=(256,1,1) lds={LDS_BYTES}"

if __name__ == "__main__":
    t, d, l = gen()
    print(l); print(len(t.splitlines()))
```

```python
import sys
import asmlib
if '--prof' in sys.argv:
    asmlib.PROF = True; sys.argv.remove('--prof')
if '--dbg' in sys.argv:
    asmlib.PROF = True; asmlib.DBGPROF = True; sys.argv.remove('--dbg')
import k1i, k2d
from build import build
out = sys.argv[1] if len(sys.argv) > 1 else "v3.s"
build([k1i.gen(), k2d.gen()], out)
```

```python
import re

TRANS = ("v_exp_f32", "v_log_f32", "v_rcp_f32", "v_rsq_f32", "v_sqrt_f32", "v_sin_f32", "v_cos_f32",
         "v_exp_f16", "v_log_f16", "v_rcp_f16", "v_rcp_iflag_f32")

def regs_of(tok):
    tok = tok.strip()
    tok = tok.lstrip("-")
    if tok.startswith("|") and tok.endswith("|"):
        tok = tok[1:-1]
    m = re.fullmatch(r"abs\((.*)\)", tok)
    if m: tok = m.group(1)
    m = re.fullmatch(r"([vsa])\[(\d+):(\d+)\]", tok)
    if m:
        return {(m.group(1), i) for i in range(int(m.group(2)), int(m.group(3)) + 1)}
    m = re.fullmatch(r"([vsa])(\d+)", tok)
    if m:
        return {(m.group(1), int(m.group(2)))}
    if tok in ("vcc", "vcc_lo", "vcc_hi"): return {("x", "vcc")}
    if tok in ("exec", "exec_lo", "exec_hi"): return {("x", "exec")}
    if tok == "m0": return {("x", "m0")}
    return set()

def split_ops(s):
    ops, depth, cur = [], 0, ""
    for ch in s:
        if ch in "[(": depth += 1
        if ch in "])": depth -= 1
        if ch == "," and depth == 0:
            ops.append(cur.strip()); cur = ""
        else:
            cur += ch
    if cur.strip(): ops.append(cur.strip())
    return ops

class Inst:
    def __init__(self, text):
        self.text = text
        t = text.split(";")[0].strip()
        parts = t.split(None, 1)
        self.op = parts[0]
        rest = parts[1] if len(parts) > 1 else ""
        ops = split_ops(rest)
        mods = ""
        if ops:
            lp = ops[-1].split(None, 1)
            ops[-1] = lp[0]
            mods = lp[1] if len(lp) > 1 else ""
        self.ops, self.mods = ops, mods
        op = self.op
        self.kind = "other"
        self.wr, self.rd = set(), set()
        self.srcA = self.srcB = self.srcC = set()
        self.passes = 0
        self.nop = 1
        self.store_data = set()
        R = [regs_of(o) for o in ops]
        if op == "s_nop":
            self.kind = "nop"; self.nop = int(ops[0], 0) + 1
        elif op.startswith("v_mfma"):
            self.kind = "mfma"
            self.wr = R[0]; self.srcA, self.srcB, self.srcC = R[1], R[2], R[3]
            self.rd = R[1] | R[2] | R[3]
            self.passes = 8 if "32x32" in op else 4
        elif op.startswith("v_"):
            self.kind = "valu"
            if op.startswith("v_permlane") and "swap" in op:
                self.wr = R[0] | R[1]; self.rd = R[0] | R[1]
            elif op.startswith("v_cmp"):
                self.wr = R[0]; self.rd = set().union(*R[1:])
            elif op.startswith(("v_add_co", "v_sub_co", "v_subrev_co", "v_addc_co", "v_subb_co")):
                self.wr = R[0] | R[1]; self.rd = set().union(*R[2:])
            else:
                self.wr = R[0]; self.rd = set().union(*R[1:]) if len(R) > 1 else set()
                if op.startswith(("v_fmac", "v_dot2c", "v_pk_fmac", "v_writelane")): self.rd |= R[0]
                if op.startswith("v_cndmask") and len(ops) == 3: self.rd |= {("x", "vcc")}
            self.trans = op.replace("_e32", "").replace("_e64", "") in TRANS
            self.dpp = ("_dpp" in op) or ("quad_perm" in mods) or ("row_" in mods)
            if self.dpp: self.rd |= R[0]
        elif op.startswith("ds_"):
            self.kind = "ds"
            if op.startswith(("ds_read", "ds_bpermute", "ds_permute", "ds_swizzle")):
                self.wr = R[0]; self.rd = set().union(*R[1:])
            else:
                self.rd = set().union(*R)
        elif op.startswith(("buffer_", "global_", "flat_")):
            self.kind = "vmem"
            allm = text
            if "_lds" in op or re.search(r"\blds\b", mods):
                self.rd = set().union(*R) | {("x", "m0")}
                self.ldsdma = True
            elif "load" in op:
                self.wr = R[0]; self.rd = set().union(*R[1:])
            elif "store" in op:
                self.rd = set().union(*R)
                d = R[0] if op.startswith("buffer_") else R[1]
                if "x3" in op or "x4" in op: self.store_data = d
            elif "atomic" in op:
                self.rd = set().union(*R)
                if "sc0" in mods: self.wr = R[0]
            elif op in ("buffer_wbl2", "buffer_inv"):
                pass
        elif op.startswith("s_"):
            self.kind = "salu"
            if op.startswith(("s_cmp", "s_cbranch", "s_branch", "s_waitcnt", "s_barrier", "s_endpgm", "s_setprio", "s_sleep", "s_bitcmp")):
                self.rd = set().union(*R) if R else set()
            else:
                self.wr = R[0] if R else set(); self.rd = set().union(*R[1:]) if len(R) > 1 else set()
                if "saveexec" in op: self.wr |= {("x", "exec")}

def vonly(S): return {r for r in S if r[0] in "va"}
def sonly(S): return {r for r in S if r[0] == "s" or r == ("x", "vcc")}

def required_gap(p, c):
    need = 0
    if p.kind == "valu":
        pw = vonly(p.wr)
        if c.kind == "mfma" and pw & c.rd: need = max(need, 2)
        if c.kind == "valu":
            if p.trans and not c.trans and pw & c.rd: need = max(need, 1)
            if p.trans and c.trans and pw & c.rd: need = max(need, 1)
            if c.op.startswith("v_permlane") and pw & c.rd: need = max(need, 2)
            if c.dpp and pw & c.rd: need = max(need, 2)
            if c.op.startswith(("v_readfirstlane", "v_readlane")) and pw & c.rd: need = max(need, 1)
            if ("op_sel" in p.mods or "sdwa" in p.op) and not p.op.startswith("v_pk_") and pw & (c.rd | c.wr): need = max(need, 1)
        ps = sonly(p.wr)
        if ps:
            if c.kind == "vmem" and ps & c.rd: need = max(need, 5)
            if c.kind == "valu" and ps & c.rd:
                need = max(need, 4 if c.op.startswith(("v_readlane", "v_writelane")) else 2)
            if c.kind == "salu" and ps & c.rd: need = max(need, 1)
    if p.kind == "mfma":
        big = p.passes == 8
        if c.kind == "mfma":
            if p.wr & (c.srcA | c.srcB): need = max(need, 12 if big else 8)
            if p.wr & c.srcC and not (p.wr == c.srcC and p.passes == c.passes): need = max(need, 10 if big else 6)
            if p.wr & c.wr and not (p.wr == c.srcC or p.wr == c.wr): need = max(need, 10 if big else 6)
        elif c.kind in ("valu", "ds", "vmem"):
            if p.wr & (c.rd | c.wr): need = max(need, 12 if big else 8)
            if c.kind == "valu" and p.srcC & c.wr: need = max(need, 7 if big else 3)
    if p.kind == "salu" and ("x", "m0") in p.wr and getattr(c, "ldsdma", False): need = max(need, 1)
    if p.kind == "vmem" and p.store_data and (p.store_data & c.wr): need = max(need, 2)
    return need

class Asm:
    def __init__(self):
        self.lines = []
        self.window = []
        self.nops_added = 0
    def raw(self, s):
        self.lines.append(s)
    def comment(self, s):
        self.lines.append("    ; " + s)
    def label(self, l):
        self.lines.append(l + ":")
    def __call__(self, text):
        for t in text.strip().split("\n"):
            t = t.strip()
            if not t: continue
            if t.startswith(";"):
                self.lines.append("    " + t); continue
            if t.endswith(":") and " " not in t:
                self.lines.append(t); continue
            self._emit(t)
    def _emit(self, t):
        ins = Inst(t)
        dist = 0; need_total = 0
        for p in reversed(self.window):
            g = required_gap(p, ins)
            if g > dist: need_total = max(need_total, g - dist)
            dist += p.nop
            if dist > 24: break
        while need_total > 0:
            n = min(need_total, 16)
            nop = Inst(f"s_nop {n-1}")
            self.lines.append(f"    s_nop {n-1}")
            self.window.append(nop)
            self.nops_added += n
            need_total -= n
        self.lines.append("    " + t)
        self.window.append(ins)
        if len(self.window) > 40: self.window = self.window[-40:]
    def fence(self):
        self._emit("s_nop 15")
    def text(self):
        return "\n".join(self.lines) + "\n"

def check_loop(lines_body):
    a = Asm()
    insts = [l.strip() for l in lines_body if l.strip() and not l.strip().startswith(";") and not l.strip().endswith(":") and not l.strip().startswith(".")]
    for t in insts: a._emit(t)
    n0 = a.nops_added
    for t in insts: a._emit(t)
    return a.nops_added - n0, n0

def vr(base, n=1):
    return f"v{base}" if n == 1 else f"v[{base}:{base+n-1}]"
def sr(base, n=1):
    return f"s{base}" if n == 1 else f"s[{base}:{base+n-1}]"

def kernel_header(name):
    return f""".globl {name}
.p2align 8
.type {name},@function
{name}:
"""

def kernel_desc(name, nvgpr, nsgpr=96, accum=None):
    if PROF: nsgpr = 100
    if accum is None: accum = (nvgpr + 3) // 4 * 4
    return f""".p2align 6
.amdhsa_kernel {name}
  .amdhsa_next_free_vgpr {nvgpr}
  .amdhsa_next_free_sgpr {nsgpr}
  .amdhsa_accum_offset {accum}
  .amdhsa_group_segment_fixed_size 0
  .amdhsa_kernarg_size 88
  .amdhsa_user_sgpr_count 2
  .amdhsa_user_sgpr_kernarg_segment_ptr 1
  .amdhsa_system_sgpr_workgroup_id_x 1
.end_amdhsa_kernel
"""


PROF = False
PROF_BASE = 24 << 20
class Prof:
    def __init__(self, a, kidx, sbase=80):
        self.a, self.kidx, self.sbase, self.n = a, kidx, sbase, 0
    def stamp(self, i):
        if not PROF: return
        r = self.sbase + 2 * i
        self.a(f"s_memrealtime s[{r}:{r+1}]")
        if i in (2, 3):
            r2 = self.sbase + 12 + 2 * (i - 2)
            self.a(f"s_memtime s[{r2}:{r2+1}]")
        self.a("s_waitcnt lgkmcnt(0)")
        self.n = max(self.n, i + 1)
    def dump(self, nst, wg_sgpr, wave_sgpr, waves_per_wg, vtmp, vtmp2):
        if not PROF: return
        a = self.a
        if DBGPROF:
            li, slot0, which = {0: (0, 0, [(0,'min'),(0,'max'),(2,'max'),(3,'max'),(5,'max')]),
                                1: (1, 5, [(0,'min'),(2,'max'),(3,'min'),(3,'max'),(5,'max')]),
                                2: (1, 10, [(0,'min'),(3,'max'),(4,'max'),(5,'max')])}[self.kidx]
            dbg_dump(a, self, li, slot0, vtmp, vtmp2, which)
            return
        a(f"""
        s_load_dwordx2 s[72:73], s[0:1], 80
        s_mul_i32 s76, s{wg_sgpr}, {waves_per_wg}
        s_add_u32 s76, s76, s{wave_sgpr}
        s_lshl_b32 s76, s76, 6
        s_add_u32 s76, s76, {PROF_BASE + self.kidx * (1 << 20)}
        s_mov_b32 s74, {PROF_BASE + (8 << 20)}
        s_mov_b32 s75, 0x00020000
        s_getreg_b32 s77, hwreg(HW_REG_HW_ID)
        s_getreg_b32 s78, hwreg(HW_REG_XCC_ID)
        s_mov_b64 exec, 1
        v_mov_b32 v{vtmp}, 0
        s_waitcnt lgkmcnt(0)
        """)
        for i in range(8):
            a(f"v_mov_b32 v{vtmp2}, s{self.sbase+2*i}")
            a(f"buffer_store_dword v{vtmp2}, v{vtmp}, s[72:75], s76 offen offset:{4*i}")
        a(f"v_mov_b32 v{vtmp2}, s77")
        a(f"buffer_store_dword v{vtmp2}, v{vtmp}, s[72:75], s76 offen offset:56")
        a(f"v_mov_b32 v{vtmp2}, s78")
        a(f"buffer_store_dword v{vtmp2}, v{vtmp}, s[72:75], s76 offen offset:60")


DBGPROF = False
def dbg_dump(a, pf, launch_idx, slot0, vtmp, vtmp2, which):
    if not DBGPROF: return
    a(f"""
    s_load_dwordx2 s[72:73], s[0:1], 72
    s_mov_b32 s74, 256
    s_mov_b32 s75, 0x00020000
    s_mov_b64 exec, 1
    v_mov_b32 v{vtmp}, 0
    s_waitcnt lgkmcnt(0)
    s_sub_u32 s72, s72, {512*launch_idx}
    s_subb_u32 s73, s73, 0
    """)
    for i, (st, kind) in enumerate(which):
        a(f"v_mov_b32 v{vtmp2}, s{pf.sbase+2*st}")
        if kind == 'min': a(f"v_not_b32 v{vtmp2}, v{vtmp2}")
        a(f"buffer_atomic_umax v{vtmp2}, v{vtmp}, s[72:75], 0 offen offset:{4*(slot0+i)}")
        a("s_nop 1")
```

```python
import re

TRANS = ("v_exp_f32", "v_log_f32", "v_rcp_f32", "v_rsq_f32", "v_sqrt_f32", "v_sin_f32", "v_cos_f32",
         "v_exp_f16", "v_log_f16", "v_rcp_f16", "v_rcp_iflag_f32")

def regs_of(tok):
    tok = tok.strip()
    tok = tok.lstrip("-")
    if tok.startswith("|") and tok.endswith("|"):
        tok = tok[1:-1]
    m = re.fullmatch(r"abs\((.*)\)", tok)
    if m: tok = m.group(1)
    m = re.fullmatch(r"([vsa])\[(\d+):(\d+)\]", tok)
    if m:
        return {(m.group(1), i) for i in range(int(m.group(2)), int(m.group(3)) + 1)}
    m = re.fullmatch(r"([vsa])(\d+)", tok)
    if m:
        return {(m.group(1), int(m.group(2)))}
    if tok in ("vcc", "vcc_lo", "vcc_hi"): return {("x", "vcc")}
    if tok in ("exec", "exec_lo", "exec_hi"): return {("x", "exec")}
    if tok == "m0": return {("x", "m0")}
    return set()

def split_ops(s):
    ops, depth, cur = [], 0, ""
    for ch in s:
        if ch in "[(": depth += 1
        if ch in "])": depth -= 1
        if ch == "," and depth == 0:
            ops.append(cur.strip()); cur = ""
        else:
            cur += ch
    if cur.strip(): ops.append(cur.strip())
    return ops

class Inst:
    def __init__(self, text):
        self.text = text
        t = text.split(";")[0].strip()
        parts = t.split(None, 1)
        self.op = parts[0]
        rest = parts[1] if len(parts) > 1 else ""
        ops = split_ops(rest)
        mods = ""
        if ops:
            lp = ops[-1].split(None, 1)
            ops[-1] = lp[0]
            mods = lp[1] if len(lp) > 1 else ""
        self.ops, self.mods = ops, mods
        op = self.op
        self.kind = "other"
        self.wr, self.rd = set(), set()
        self.srcA = self.srcB = self.srcC = set()
        self.passes = 0
        self.nop = 1
        self.store_data = set()
        R = [regs_of(o) for o in ops]
        if op == "s_nop":
            self.kind = "nop"; self.nop = int(ops[0], 0) + 1
        elif op.startswith("v_mfma"):
            self.kind = "mfma"
            self.wr = R[0]; self.srcA, self.srcB, self.srcC = R[1], R[2], R[3]
            self.rd = R[1] | R[2] | R[3]
            self.passes = 8 if "32x32" in op else 4
        elif op.startswith("v_"):
            self.kind = "valu"
            if op.startswith("v_permlane") and "swap" in op:
                self.wr = R[0] | R[1]; self.rd = R[0] | R[1]
            elif op.startswith("v_cmp"):
                self.wr = R[0]; self.rd = set().union(*R[1:])
            elif op.startswith(("v_add_co", "v_sub_co", "v_subrev_co", "v_addc_co", "v_subb_co")):
                self.wr = R[0] | R[1]; self.rd = set().union(*R[2:])
            else:
                self.wr = R[0]; self.rd = set().union(*R[1:]) if len(R) > 1 else set()
                if op.startswith(("v_fmac", "v_dot2c", "v_pk_fmac", "v_writelane")): self.rd |= R[0]
                if op.startswith("v_cndmask") and len(ops) == 3: self.rd |= {("x", "vcc")}
            self.trans = op.replace("_e32", "").replace("_e64", "") in TRANS
            self.dpp = ("_dpp" in op) or ("quad_perm" in mods) or ("row_" in mods)
            if self.dpp: self.rd |= R[0]
        elif op.startswith("ds_"):
            self.kind = "ds"
            if op.startswith(("ds_read", "ds_bpermute", "ds_permute", "ds_swizzle")):
                self.wr = R[0]; self.rd = set().union(*R[1:])
            else:
                self.rd = set().union(*R)
        elif op.startswith(("buffer_", "global_", "flat_")):
            self.kind = "vmem"
            allm = text
            if "_lds" in op or re.search(r"\blds\b", mods):
                self.rd = set().union(*R) | {("x", "m0")}
                self.ldsdma = True
            elif "load" in op:
                self.wr = R[0]; self.rd = set().union(*R[1:])
            elif "store" in op:
                self.rd = set().union(*R)
                d = R[0] if op.startswith("buffer_") else R[1]
                if "x3" in op or "x4" in op: self.store_data = d
            elif "atomic" in op:
                self.rd = set().union(*R)
                if "sc0" in mods: self.wr = R[0]
            elif op in ("buffer_wbl2", "buffer_inv"):
                pass
        elif op.startswith("s_"):
            self.kind = "salu"
            if op.startswith(("s_cmp", "s_cbranch", "s_branch", "s_waitcnt", "s_barrier", "s_endpgm", "s_setprio", "s_sleep", "s_bitcmp")):
                self.rd = set().union(*R) if R else set()
            else:
                self.wr = R[0] if R else set(); self.rd = set().union(*R[1:]) if len(R) > 1 else set()
                if "saveexec" in op: self.wr |= {("x", "exec")}

def vonly(S): return {r for r in S if r[0] in "va"}
def sonly(S): return {r for r in S if r[0] == "s" or r == ("x", "vcc")}

def required_gap(p, c):
    need = 0
    if p.kind == "valu":
        pw = vonly(p.wr)
        if c.kind == "mfma" and pw & c.rd: need = max(need, 2)
        if c.kind == "valu":
            if p.trans and not c.trans and pw & c.rd: need = max(need, 1)
            if p.trans and c.trans and pw & c.rd: need = max(need, 1)
            if c.op.startswith("v_permlane") and pw & c.rd: need = max(need, 2)
            if c.dpp and pw & c.rd: need = max(need, 2)
            if c.op.startswith(("v_readfirstlane", "v_readlane")) and pw & c.rd: need = max(need, 1)
            if ("op_sel" in p.mods or "sdwa" in p.op) and not p.op.startswith("v_pk_") and pw & (c.rd | c.wr): need = max(need, 1)
        ps = sonly(p.wr)
        if ps:
            if c.kind == "vmem" and ps & c.rd: need = max(need, 5)
            if c.kind == "valu" and ps & c.rd:
                need = max(need, 4 if c.op.startswith(("v_readlane", "v_writelane")) else 2)
            if c.kind == "salu" and ps & c.rd: need = max(need, 1)
    if p.kind == "mfma":
        big = p.passes == 8
        if c.kind == "mfma":
            if p.wr & (c.srcA | c.srcB): need = max(need, 12 if big else 8)
            if p.wr & c.srcC and not (p.wr == c.srcC and p.passes == c.passes): need = max(need, 10 if big else 6)
            if p.wr & c.wr and not (p.wr == c.srcC or p.wr == c.wr): need = max(need, 10 if big else 6)
        elif c.kind in ("valu", "ds", "vmem"):
            if p.wr & (c.rd | c.wr): need = max(need, 12 if big else 8)
            if c.kind == "valu" and p.srcC & c.wr: need = max(need, 7 if big else 3)
    if p.kind == "salu" and ("x", "m0") in p.wr and getattr(c, "ldsdma", False): need = max(need, 1)
    if p.kind == "vmem" and p.store_data and (p.store_data & c.wr): need = max(need, 2)
    return need

class Asm:
    def __init__(self):
        self.lines = []
        self.window = []
        self.nops_added = 0
    def raw(self, s):
        self.lines.append(s)
    def comment(self, s):
        self.lines.append("    ; " + s)
    def label(self, l):
        self.lines.append(l + ":")
    def __call__(self, text):
        for t in text.strip().split("\n"):
            t = t.strip()
            if not t: continue
            if t.startswith(";"):
                self.lines.append("    " + t); continue
            if t.endswith(":") and " " not in t:
                self.lines.append(t); continue
            self._emit(t)
    def _emit(self, t):
        ins = Inst(t)
        dist = 0; need_total = 0
        for p in reversed(self.window):
            g = required_gap(p, ins)
            if g > dist: need_total = max(need_total, g - dist)
            dist += p.nop
            if dist > 24: break
        while need_total > 0:
            n = min(need_total, 16)
            nop = Inst(f"s_nop {n-1}")
            self.lines.append(f"    s_nop {n-1}")
            self.window.append(nop)
            self.nops_added += n
            need_total -= n
        self.lines.append("    " + t)
        self.window.append(ins)
        if len(self.window) > 40: self.window = self.window[-40:]
    def fence(self):
        self._emit("s_nop 15")
    def text(self):
        return "\n".join(self.lines) + "\n"

def check_loop(lines_body):
    a = Asm()
    insts = [l.strip() for l in lines_body if l.strip() and not l.strip().startswith(";") and not l.strip().endswith(":") and not l.strip().startswith(".")]
    for t in insts: a._emit(t)
    n0 = a.nops_added
    for t in insts: a._emit(t)
    return a.nops_added - n0, n0

def vr(base, n=1):
    return f"v{base}" if n == 1 else f"v[{base}:{base+n-1}]"
def sr(base, n=1):
    return f"s{base}" if n == 1 else f"s[{base}:{base+n-1}]"

def kernel_header(name):
    return f""".globl {name}
.p2align 8
.type {name},@function
{name}:
"""

def kernel_desc(name, nvgpr, nsgpr=96, accum=None):
    if PROF: nsgpr = 100
    if accum is None: accum = (nvgpr + 3) // 4 * 4
    return f""".p2align 6
.amdhsa_kernel {name}
  .amdhsa_next_free_vgpr {nvgpr}
  .amdhsa_next_free_sgpr {nsgpr}
  .amdhsa_accum_offset {accum}
  .amdhsa_group_segment_fixed_size 0
  .amdhsa_kernarg_size 88
  .amdhsa_user_sgpr_count 2
  .amdhsa_user_sgpr_kernarg_segment_ptr 1
  .amdhsa_system_sgpr_workgroup_id_x 1
.end_amdhsa_kernel
"""


PROF = False
PROF_BASE = 24 << 20
class Prof:
    def __init__(self, a, kidx, sbase=80):
        self.a, self.kidx, self.sbase, self.n = a, kidx, sbase, 0
    def stamp(self, i):
        if not PROF: return
        r = self.sbase + 2 * i
        self.a(f"s_memrealtime s[{r}:{r+1}]")
        if i in (2, 3):
            r2 = self.sbase + 12 + 2 * (i - 2)
            self.a(f"s_memtime s[{r2}:{r2+1}]")
        self.a("s_waitcnt lgkmcnt(0)")
        self.n = max(self.n, i + 1)
    def dump(self, nst, wg_sgpr, wave_sgpr, waves_per_wg, vtmp, vtmp2):
        if not PROF: return
        a = self.a
        if DBGPROF:
            li, slot0, which = {0: (0, 0, [(0,'min'),(0,'max'),(2,'max'),(3,'max'),(5,'max')]),
                                1: (1, 5, [(0,'min'),(2,'max'),(3,'min'),(3,'max'),(5,'max')]),
                                2: (1, 10, [(0,'min'),(3,'max'),(4,'max'),(5,'max')])}[self.kidx]
            dbg_dump(a, self, li, slot0, vtmp, vtmp2, which)
            return
        a(f"""
        s_load_dwordx2 s[72:73], s[0:1], 80
        s_mul_i32 s76, s{wg_sgpr}, {waves_per_wg}
        s_add_u32 s76, s76, s{wave_sgpr}
        s_lshl_b32 s76, s76, 6
        s_add_u32 s76, s76, {PROF_BASE + self.kidx * (1 << 20)}
        s_mov_b32 s74, {PROF_BASE + (8 << 20)}
        s_mov_b32 s75, 0x00020000
        s_getreg_b32 s77, hwreg(HW_REG_HW_ID)
        s_getreg_b32 s78, hwreg(HW_REG_XCC_ID)
        s_mov_b64 exec, 1
        v_mov_b32 v{vtmp}, 0
        s_waitcnt lgkmcnt(0)
        """)
        for i in range(8):
            a(f"v_mov_b32 v{vtmp2}, s{self.sbase+2*i}")
            a(f"buffer_store_dword v{vtmp2}, v{vtmp}, s[72:75], s76 offen offset:{4*i}")
        a(f"v_mov_b32 v{vtmp2}, s77")
        a(f"buffer_store_dword v{vtmp2}, v{vtmp}, s[72:75], s76 offen offset:56")
        a(f"v_mov_b32 v{vtmp2}, s78")
        a(f"buffer_store_dword v{vtmp2}, v{vtmp}, s[72:75], s76 offen offset:60")


DBGPROF = False
_dbgn = [0]
def dbg_dump(a, pf, launch_idx, slot0, vtmp, vtmp2, which):
    if not DBGPROF: return
    _dbgn[0] += 1
    lab = f"L_dbgskip{_dbgn[0]}"
    a(f"""
    s_load_dwordx2 s[72:73], s[0:1], 72
    s_mov_b32 s74, 256
    s_mov_b32 s75, 0x00020000
    s_mov_b64 exec, 1
    v_mov_b32 v{vtmp}, 0
    s_waitcnt lgkmcnt(0)
    s_add_u32 s72, s72, {512*(1-launch_idx)}
    s_addc_u32 s73, s73, 0
    s_lshr_b32 s76, s2, 3
    s_and_b32 s76, s76, 7
    s_cmp_lg_u32 s76, 0
    s_cbranch_scc1 {lab}
    """)
    for i, (st, kind) in enumerate(which):
        a(f"v_mov_b32 v{vtmp2}, s{pf.sbase+2*st}")
        if kind == 'min': a(f"v_not_b32 v{vtmp2}, v{vtmp2}")
        a(f"buffer_atomic_umax v{vtmp2}, v{vtmp}, s[72:75], 0 offen offset:{4*(slot0+i)}")
        a("s_nop 1")
    a.label(lab)
```

```python
from asmlib import *
import asmlib
from layout import *
import os
SC = os.environ.get('K1SC', 'sc1')
EXP1 = os.environ.get('EXP1', '')

NAME = "k1_proj_kernel"
NW, NX = 6, 4
XS, WQS, W1S = 16384, 6144, 8192
WQ_BASE = NX * XS
W1_BASE = WQ_BASE + NW * WQS
FL_BASE = W1_BASE + NW * W1S
LDS_BYTES = FL_BASE + 128
SPIN_MAX = 1 << 20

def gen():
    a = Asm()
    a.raw(kernel_header(NAME))
    pf = Prof(a, 0)
    pf.stamp(0)
    sX, sWQ, sW1, sWS, sB1, sGW = 16, 20, 24, 28, 32, 36
    sWAVE, sW, sI, sJ = 40, 41, 42, 43
    sSOX, sSOQ, sSO1 = 44, 45, 46
    sSL, sSLX = 47, 69
    sN, sD, sDW = 48, 49, 50
    sC = 51
    sMX, sMQ, sM1 = 52, 53, 54
    sT0, sT1, sT2 = 55, 56, 57
    sSP, sFV = 58, 59
    sK2 = 60
    sKC, sBX, sBQ, sB1o, sKX = 64, 65, 66, 67, 68
    vG = 3
    vT0, vT1, vT2, vT3 = 6, 7, 8, 9
    a(f"""
    s_cmp_ge_u32 s2, 256
    s_cbranch_scc1 L_k1_end
    s_load_dwordx4 s[4:7], s[0:1], 0
    s_load_dwordx4 s[8:11], s[0:1], 32
    s_load_dwordx2 s[12:13], s[0:1], 56
    s_load_dwordx2 s[14:15], s[0:1], 80
    v_lshrrev_b32 v1, 6, v0
    v_lshlrev_b32 v2, 2, v0
    v_readfirstlane_b32 s{sWAVE}, v1
    v_mov_b32 v3, 0
    v_cmp_gt_u32 vcc, 32, v0
    v_add_u32 v2, {FL_BASE}, v2
    s_and_saveexec_b64 s[62:63], vcc
    s_cbranch_execz L_k1_noinit
    ds_write_b32 v2, v3
    L_k1_noinit:
    s_mov_b64 exec, -1
    v_and_b32 v0, 63, v0
    s_and_b32 s{sT0}, s2, 7
    s_lshr_b32 s{sT1}, s2, 3
    s_and_b32 s{sI}, s{sT0}, 1
    s_lshl_b32 s{sI}, s{sI}, 3
    s_and_b32 s{sT2}, s{sT1}, 7
    s_add_u32 s{sI}, s{sI}, s{sT2}
    s_lshr_b32 s{sJ}, s{sT0}, 1
    s_lshl_b32 s{sJ}, s{sJ}, 2
    s_lshr_b32 s{sT2}, s{sT1}, 3
    s_add_u32 s{sJ}, s{sJ}, s{sT2}
    s_and_b32 s{sW}, s{sWAVE}, 3
    s_mov_b32 s{sWS+2}, {WS_SIZE}
    s_mov_b32 s{sWS+3}, 0x00020000
    s_mov_b32 s{sSP}, {SPIN_MAX}
    v_lshrrev_b32 v{vG}, 4, v0
    s_cmp_lt_u32 s{sWAVE}, 4
    s_cbranch_scc1 L_k1_comp
    """)
    vXd, vXd2, vQd, vQd2, v1d, v1d2 = 10, 18, 11, 12, 13, 14
    vFA, vOne, vFV = 15, 16, 17
    vGX, vGW, vOnes = 20, 28, 36
    a(f"""
    s_mov_b32 s{sX+2}, {2048*512*2}
    s_mov_b32 s{sX+3}, 0x00020000
    s_mov_b32 s{sWQ+2}, {512*1536*2}
    s_mov_b32 s{sWQ+3}, 0x00020000
    s_mov_b32 s{sW1+2}, {512*1792*2}
    s_mov_b32 s{sW1+3}, 0x00020000
    v_and_b32 v{vT0}, 7, v0
    v_xor_b32 v{vT0}, v{vT0}, v{vG}
    v_lshlrev_b32 v{vT0}, 4, v{vT0}
    v_lshrrev_b32 v{vT1}, 3, v0
    v_lshl_add_u32 v{vXd}, v{vT1}, 10, v{vT0}
    v_xor_b32 v{vXd2}, 64, v{vXd}
    v_add_u32 v{vXd2}, 8192, v{vXd2}
    s_lshl_b32 s{sBX}, s{sI}, 17
    s_lshl_b32 s{sT0}, s{sW}, 14
    s_add_u32 s{sBX}, s{sBX}, s{sT0}
    s_lshl_b32 s{sMX}, s{sW}, 11
    ; Wq: rows 8w..8w+7, pieces p = l (+64): pos = p>>1, k = pos/6, ct = (pos%6) ^ (w&1)
    s_mul_i32 s{sMQ}, s{sW}, 1536
    s_add_u32 s{sMQ}, s{sMQ}, {WQ_BASE}
    s_mul_i32 s{sBQ}, s{sW}, {8*3072}
    s_lshl_b32 s{sT0}, s{sJ}, 7
    s_add_u32 s{sBQ}, s{sBQ}, s{sT0}
    s_and_b32 s{sT1}, s{sW}, 1
    s_lshl_b32 s{sT2}, s{sJ}, 6
    s_sub_u32 s{sT2}, {2048-128}, s{sT2}
    """)
    for q, dst in ((0, vQd), (1, vQd2)):
        a(f"""
        v_lshrrev_b32 v{vT1}, 1, v0
        v_add_u32 v{vT1}, {32*q}, v{vT1}
        v_mul_u32_u24 v{vT2}, 0xaaab, v{vT1}
        v_lshrrev_b32 v{vT2}, 18, v{vT2}
        v_mul_u32_u24 v{vT3}, 6, v{vT2}
        v_sub_u32 v{vT1}, v{vT1}, v{vT3}
        v_xor_b32 v{vT1}, s{sT1}, v{vT1}
        v_mul_u32_u24 v{vT2}, 3072, v{vT2}
        v_lshl_add_u32 v{vT2}, v{vT1}, 5, v{vT2}
        v_lshrrev_b32 v{vT3}, 2, v{vT1}
        v_mul_u32_u24 v{vT3}, s{sT2}, v{vT3}
        v_add_u32 v{vT2}, v{vT2}, v{vT3}
        v_and_b32 v{vT3}, 1, v0
        v_lshl_add_u32 v{dst}, v{vT3}, 4, v{vT2}
        """)
    a(f"""
    s_lshl_b32 s{sM1}, s{sW}, 11
    s_add_u32 s{sM1}, s{sM1}, {W1_BASE}
    s_mul_i32 s{sB1o}, s{sW}, {8*3584}
    s_mul_i32 s{sT0}, s{sJ}, 224
    s_add_u32 s{sB1o}, s{sB1o}, s{sT0}
    s_lshl_b32 s{sT1}, s{sT1}, 2
    v_lshrrev_b32 v{vT1}, 1, v0
    v_sub_u32 v{vT1}, v{vT1}, v{vG}
    v_subrev_u32 v{vT1}, s{sT1}, v{vT1}
    v_and_b32 v{vT1}, 7, v{vT1}
    v_min_u32 v{vT1}, 6, v{vT1}
    v_mul_u32_u24 v{vT2}, 3584, v{vG}
    v_lshl_add_u32 v{vT2}, v{vT1}, 5, v{vT2}
    v_and_b32 v{vT3}, 1, v0
    v_lshl_add_u32 v{v1d}, v{vT3}, 4, v{vT2}
    v_add_u32 v{v1d2}, {4*3584}, v{v1d}
    v_mov_b32 v{vFA}, {FL_BASE}
    v_mov_b32 v{vOne}, 1
    s_lshr_b32 s{sKX}, s2, 3
    s_and_b32 s{sKX}, s{sKX}, 7
    s_lshl_b32 s{sKC}, s{sKX}, 1
    s_waitcnt lgkmcnt(0)
    s_mov_b32 s{sX}, s4
    s_mov_b32 s{sX+1}, s5
    s_mov_b32 s{sWQ}, s6
    s_mov_b32 s{sWQ+1}, s7
    s_mov_b32 s{sW1}, s8
    s_mov_b32 s{sW1+1}, s9
    """)
    def woffs():
        return f"""s_mul_i32 s{sT0}, s{sKC}, {32*3584}
        s_add_u32 s{sSO1}, s{sB1o}, s{sT0}
        s_mul_i32 s{sT0}, s{sKC}, {32*3072}
        s_add_u32 s{sSOQ}, s{sBQ}, s{sT0}
        s_add_u32 s{sKC}, s{sKC}, 1
        s_and_b32 s{sKC}, s{sKC}, 15"""
    def xoffs(half):
        t = f"""s_lshl_b32 s{sT0}, s{sKX}, 7
        s_add_u32 s{sSOX}, s{sBX}, s{sT0}"""
        if half:
            t += f"""
            s_add_u32 s{sSOX}, s{sSOX}, 65536
            s_add_u32 s{sKX}, s{sKX}, 1
            s_and_b32 s{sKX}, s{sKX}, 7"""
        return t
    def xdma(m, half, e):
        return (f"s_add_u32 m0, s{sMX}, {(m % NX)*XS + half*8192 + e*1024}",
                f"buffer_load_dwordx4 v{vXd2 if e else vXd}, s[{sX}:{sX+3}], s{sSOX} offen lds")
    def ready_txt(c, younger):
        return f"""s_waitcnt vmcnt({younger})
        s_mov_b64 exec, 1
        ds_add_u32 v{vFA}, v{vOne} offset:{4*c}
        s_mov_b64 exec, -1"""
    cnt = []
    def issue(c, sig, nxt):
        sl = c % NW
        m, half = (c + 1) >> 1, (c + 1) & 1
        hasx = m < 8
        n = 0
        if hasx:
            x = xdma(m, half, 0)
            a(x[0]); a(f"ds_read_b32 v{vFV}, v{vFA} offset:{64+4*nxt}" if nxt is not None else "s_nop 0"); a(x[1]); n += 1
        a(f"""
        s_add_u32 m0, s{sM1}, {sl*W1S}
        s_nop 0
        buffer_load_dwordx4 v{v1d}, s[{sW1}:{sW1+3}], s{sSO1} offen lds
        s_add_u32 m0, s{sMQ}, {sl*WQS}
        s_nop 0
        buffer_load_dwordx4 v{vQd}, s[{sWQ}:{sWQ+3}], s{sSOQ} offen lds
        """); n += 2
        if sig == 0: a("s_barrier")
        if sig is not None: a(ready_txt(sig, sum(cnt[sig + 1:]) + n))
        if hasx:
            x = xdma(m, half, 1)
            a(x[0]); a("s_nop 0"); a(x[1]); n += 1
        a(f"""
        s_add_u32 m0, s{sM1}, {sl*W1S+1024}
        s_nop 0
        buffer_load_dwordx4 v{v1d2}, s[{sW1}:{sW1+3}], s{sSO1} offen lds
        s_add_u32 m0, s{sMQ}, {sl*WQS+1024}
        s_mov_b32 s{sT1}, s{sSOQ}
        """); n += 1
        a(woffs())
        a(xoffs((c + 2) & 1))
        if nxt is not None:
            a(f"""
            s_waitcnt lgkmcnt(0)
            v_readfirstlane_b32 s{sFV}, v{vFV}
            """)
        a(f"""
        s_mov_b32 exec_hi, 0
        buffer_load_dwordx4 v{vQd2}, s[{sWQ}:{sWQ+3}], s{sT1} offen lds
        s_mov_b32 exec_hi, -1
        """); n += 1
        if nxt is not None:
            a(f"""
            L_k1_wc{nxt}:
            s_cmp_ge_u32 s{sFV}, 4
            s_cbranch_scc1 L_k1_wdok{nxt}
            ds_read_b32 v{vFV}, v{vFA} offset:{64+4*nxt}
            s_sub_u32 s{sSP}, s{sSP}, 1
            s_waitcnt lgkmcnt(0)
            v_readfirstlane_b32 s{sFV}, v{vFV}
            s_cbranch_scc0 L_k1_wc{nxt}
            s_mov_b32 s{sSP}, 0
            L_k1_wdok{nxt}:
            """)
        cnt.append(n)
    LAG = int(os.environ.get('K1LAG', '3'))
    a(woffs()); a(xoffs(0))
    for e in range(2):
        x = xdma(0, 0, e); a(x[0]); a("s_nop 0"); a(x[1])
    a(xoffs(1))
    for c in range(16):
        if c == LAG: pf.stamp(1); pf.stamp(2)
        issue(c, sig=(c - LAG if c >= LAG else None), nxt=(c + 1 - NW if NW <= c + 1 < 16 else None))
    pf.stamp(3)
    a(f"""
    s_mov_b32 s{sWS}, s14
    s_mov_b32 s{sWS+1}, s15
    s_mov_b32 s{sGW}, s12
    s_mov_b32 s{sGW+1}, s13
    s_mov_b32 s{sGW+2}, 1024
    s_mov_b32 s{sGW+3}, 0x00020000
    s_lshl_b32 s{sT0}, s{sI}, 7
    s_lshl_b32 s{sT1}, s{sJ}, 3
    s_add_u32 s{sT0}, s{sT0}, s{sT1}
    s_lshl_b32 s{sT1}, s{sW}, 1
    s_add_u32 s{sN}, s{sT0}, s{sT1}
    s_lshl_b32 s{sT1}, s{sN}, 10
    v_and_b32 v{vT1}, 31, v0
    v_lshlrev_b32 v{vT1}, 5, v{vT1}
    v_lshrrev_b32 v{vT2}, 5, v0
    v_lshl_add_u32 v{vT2}, v{vT2}, 10, v{vT1}
    buffer_load_dwordx4 {vr(vGX,4)}, v{vT2}, s[{sX}:{sX+3}], s{sT1} offen
    buffer_load_dwordx4 {vr(vGX+4,4)}, v{vT2}, s[{sX}:{sX+3}], s{sT1} offen offset:16
    buffer_load_dwordx4 {vr(vGW,4)}, v{vT1}, s[{sGW}:{sGW+3}], 0 offen
    buffer_load_dwordx4 {vr(vGW+4,4)}, v{vT1}, s[{sGW}:{sGW+3}], 0 offen offset:16
    v_mov_b32 v{vOnes}, -1
    v_mov_b32 v{vOnes+1}, -1
    v_mov_b32 v{vOnes+2}, -1
    v_mov_b32 v{vOnes+3}, -1
    v_lshlrev_b32 v{vT0}, 4, v0
    s_lshl_b32 s{sT0}, s2, 2
    s_add_u32 s{sT0}, s{sT0}, s{sW}
    s_lshl_b32 s{sT1}, s{sT0}, 11
    s_add_u32 s{sT1}, s{sT1}, {WS_O}
    buffer_store_dwordx4 {vr(vOnes,4)}, v{vT0}, s[{sWS}:{sWS+3}], s{sT1} offen {SC}
    buffer_store_dwordx4 {vr(vOnes,4)}, v{vT0}, s[{sWS}:{sWS+3}], s{sT1} offen offset:1024 {SC}
    """)
    for c in range(16 - LAG, 16): a(ready_txt(c, sum(cnt[c + 1:]) + 6))
    a("s_waitcnt vmcnt(2)")
    acc = vT1
    a(f"v_mov_b32 v{acc}, 0")
    for r in range(8): a(f"v_dot2_f32_bf16 v{acc}, v{vGX+r}, v{vGW+r}, v{acc}")
    a("s_nop 3")
    for mod in ["quad_perm:[1,0,3,2]", "quad_perm:[2,3,0,1]", "row_half_mirror", "row_mirror"]:
        a(f"v_add_f32_dpp v{acc}, v{acc}, v{acc} {mod} row_mask:0xf bank_mask:0xf")
    a(f"""
    v_mov_b32 v{vT2}, v{acc}
    v_mov_b32 v{vT3}, v{acc}
    v_permlane16_swap_b32 v{vT2}, v{vT3}
    v_add_f32 v{acc}, v{vT2}, v{vT3}
    v_mul_f32 v{acc}, {hex(f32bits(-LOG2E))}, v{acc}
    v_exp_f32 v{acc}, v{acc}
    v_add_f32 v{acc}, 1.0, v{acc}
    v_rcp_f32 v{acc}, v{acc}
    s_lshl_b32 s{sT0}, s{sN}, 2
    s_add_u32 s{sT0}, s{sT0}, {WS_G}
    v_lshrrev_b32 v{vT2}, 5, v0
    v_lshlrev_b32 v{vT2}, 2, v{vT2}
    s_mov_b32 exec_lo, 1
    s_mov_b32 exec_hi, 1
    buffer_store_dword v{acc}, v{vT2}, s[{sWS}:{sWS+3}], s{sT0} offen
    """)
    pf.stamp(4); pf.stamp(5)
    pf.dump(6, 2, sWAVE, 8, vT0, vT1)
    a("s_endpgm")
    a.label("L_k1_comp")
    a.window = []
    vN16, vR, vC = 2, 4, 5
    vXr, vQr = [10, 19], 14
    vFA, vOne, vFV = 11, 12, 13
    vWr = list(range(15, 19))
    vF = 20
    FSZ = 44
    vACC = vF + 2 * FSZ
    NV = vACC + 112
    sWM, sWN = sSOX, sSOQ
    sWX, sWQw, sW1w = sMX, sMQ, sM1
    sDQ = sN
    if 'nocp' not in EXP1:
        a(f"""
        s_getpc_b64 s[62:63]
        L_k1_pc:
        s_sub_u32 s62, s62, L_k1_pc-{NAME}
        s_subb_u32 s63, s63, 0
        s_lshl_b32 s{sT0}, s{sW}, 13
        v_lshlrev_b32 v{vT0}, 7, v0
        v_add_u32 v{vT0}, s{sT0}, v{vT0}
        v_min_u32 v{vT0}, L_code_end-{NAME}-4, v{vT0}
        global_load_dword v{vACC}, v{vT0}, s[62:63]
        """)
    a(f"""
    s_and_b32 s{sWM}, s{sW}, 1
    s_lshr_b32 s{sWN}, s{sW}, 1
    v_and_b32 v{vN16}, 15, v0
    v_bfe_u32 v{vR}, v0, 2, 2
    v_and_b32 v{vC}, 3, v0
    v_lshrrev_b32 v{vT0}, 1, v{vN16}
    v_xor_b32 v{vT0}, v{vG}, v{vT0}
    v_lshlrev_b32 v{vT0}, 4, v{vT0}
    v_lshl_add_u32 v{vT0}, v{vN16}, 7, v{vT0}
    s_lshl_b32 s{sT0}, s{sWM}, 13
    v_add_u32 v{vXr[0]}, s{sT0}, v{vT0}
    v_xor_b32 v{vXr[1]}, 64, v{vXr[0]}
    v_mov_b32 v{vFA}, {FL_BASE}
    v_mov_b32 v{vOne}, 1
    v_mov_b32 v{vFV}, 0
    s_mov_b32 s{sSL}, 0
    s_mov_b32 s{sSLX}, 0
    s_mov_b32 s{sC}, 0
    s_mov_b32 s{sWX}, {-(NX-1)*XS}
    s_mov_b32 s{sWQw}, {-(NW-1)*WQS}
    s_mov_b32 s{sW1w}, {-(NW-1)*W1S}
    v_lshl_add_u32 v{vT1}, v{vG}, 3, v{vR}
    v_and_b32 v{vT2}, 1, v{vG}
    v_mul_u32_u24 v{vT0}, 192, v{vT1}
    v_lshl_add_u32 v{vT0}, v{vC}, 3, v{vT0}
    v_add_u32 v{vT0}, {WQ_BASE}, v{vT0}
    v_xor_b32 v{vT3}, s{sWN}, v{vT2}
    v_lshl_add_u32 v{vQr}, v{vT3}, 5, v{vT0}
    v_lshlrev_b32 v{vT1}, 8, v{vT1}
    v_lshl_add_u32 v{vT1}, v{vC}, 3, v{vT1}
    v_add_u32 v{vT1}, {W1_BASE}, v{vT1}
    v_lshl_add_u32 v{vT2}, v{vT2}, 2, v{vR}
    v_lshlrev_b32 v{vT3}, 3, v{vG}
    s_mul_i32 s{sT1}, s{sJ}, 224
    s_mov_b32 s{sB1+2}, {1792*2}
    s_mov_b32 s{sB1+3}, 0x00020000
    s_waitcnt lgkmcnt(0)
    s_mov_b32 s{sWS}, s14
    s_mov_b32 s{sWS+1}, s15
    s_mov_b32 s{sB1}, s10
    s_mov_b32 s{sB1+1}, s11
    s_cmp_eq_u32 s{sWN}, 1
    s_cbranch_scc1 L_k1_gb
    """)
    def frag(buf):
        b = vF + buf * FSZ
        return [b + 4 * t for t in range(4)], [b + 16 + 4 * i for i in range(7)]
    def role(name, F):
        nf = len(F); nt = 3 + nf
        def reads(buf):
            X, W = frag(buf); L = []
            def wr(i):
                for t2 in range(2):
                    if i < nf: va, off = vWr[i], 4 * t2 * 256
                    else:      va, off = vQr, 4 * t2 * 192 + (i - nf) * 64
                    L.append(f"ds_read_b64_tr_b16 {vr(W[i]+2*t2,2)}, v{va} offset:{off}")
            for t in range(4):
                L.append(f"ds_read_b128 {vr(X[t],4)}, v{vXr[buf]} offset:{t*2048}")
                wr(t)
            for i in range(4, nt): wr(i)
            return L
        def mfmas(buf):
            X, W = frag(buf); L = []
            for i in range(nt):
                for t in range(4):
                    acc = vACC + (i * 4 + t) * 4
                    if i == nt - 1: L.append(f"v_mfma_f32_16x16x32_bf16 {vr(acc,4)}, {vr(X[t],4)}, {vr(W[i],4)}, {vr(acc,4)}")
                    else:           L.append(f"v_mfma_f32_16x16x32_bf16 {vr(acc,4)}, {vr(W[i],4)}, {vr(X[t],4)}, {vr(acc,4)}")
            return L
        def check(tag):
            return f"""
            L_k1_{name}_ck{tag}:
            v_readfirstlane_b32 s{sFV}, v{vFV}
            s_cmp_ge_u32 s{sFV}, 4
            s_cbranch_scc1 L_k1_{name}_ok{tag}
            ds_read_b32 v{vFV}, v{vFA}
            s_sub_u32 s{sSP}, s{sSP}, 1
            s_waitcnt lgkmcnt(0)
            s_cbranch_scc0 L_k1_{name}_ck{tag}
            s_mov_b32 s{sSP}, 0
            L_k1_{name}_ok{tag}:
            """
        vB = vF + FSZ
        for i, ct in enumerate(F):
            a(f"buffer_load_dwordx2 {vr(vB+2*i,2)}, v{vT3}, s[{sB1}:{sB1+3}], s{sT1} offen offset:{ct*32}")
        for i, ct in enumerate(F):
            a(f"""
            v_add_u32 v{vT0}, {ct}, v{vT2}
            v_and_b32 v{vT0}, 7, v{vT0}
            v_lshl_add_u32 v{vWr[i]}, v{vT0}, 5, v{vT1}
            """)
        for r in range(48): a(f"v_mov_b32 v{vACC+16*nf+r}, 0")
        a("s_waitcnt vmcnt(0)")
        for i in range(nf):
            for t in range(4):
                acc = vACC + (i * 4 + t) * 4
                a(f"""
                v_lshlrev_b32 v{acc}, 16, v{vB+2*i}
                v_and_b32 v{acc+1}, 0xffff0000, v{vB+2*i}
                v_lshlrev_b32 v{acc+2}, 16, v{vB+2*i+1}
                v_and_b32 v{acc+3}, 0xffff0000, v{vB+2*i+1}
                """)
        pf.stamp(1)
        a("s_barrier")
        a(check("p"))
        pf.stamp(2)
        a("\n".join(reads(0)))
        a(f"ds_read_b32 v{vFV}, v{vFA} offset:4")
        a.raw(".p2align 6")
        a.label(f"L_k1_{name}_loop")
        start = len(a.lines)
        for buf in range(2):
            M = mfmas(buf)
            R = reads(buf ^ 1) + [f"ds_read_b32 v{vFV}, v{vFA} offset:4"]
            G = [f"""s_mov_b64 exec, 1
                 ds_add_u32 v{vFA}, v{vOne} offset:64
                 s_mov_b64 exec, -1""",
                 f"""s_add_u32 s{sSL}, s{sSL}, 1
                 s_cmp_eq_u32 s{sSL}, {NW}
                 s_cselect_b32 s{sDW}, s{sW1w}, {W1S}""",
                 f"""s_cselect_b32 s{sDQ}, s{sWQw}, {WQS}
                 s_cselect_b32 s{sSL}, 0, s{sSL}
                 v_add_u32 v{vFA}, 4, v{vFA}""",
                 f"""v_add_u32 v{vQr}, s{sDQ}, v{vQr}
                 v_add_u32 v{vWr[0]}, s{sDW}, v{vWr[0]}""",
                 "\n".join(f"v_add_u32 v{r}, s{sDW}, v{r}" for r in vWr[1:nf])]
            if buf == 1:
                G += [f"""s_add_u32 s{sSLX}, s{sSLX}, 1
                      s_cmp_eq_u32 s{sSLX}, {NX}
                      s_cselect_b32 s{sD}, s{sWX}, {XS}""",
                      f"""s_cselect_b32 s{sSLX}, 0, s{sSLX}
                      v_add_u32 v{vXr[0]}, s{sD}, v{vXr[0]}
                      v_add_u32 v{vXr[1]}, s{sD}, v{vXr[1]}"""]
            G.append(check(buf))
            while R:
                n = 1 if (len(G) + len(R) <= len(M) - 2) else 2
                G.append("\n".join(R[:n])); R = R[n:]
            assert len(G) <= len(M), (len(G), len(M))
            if buf == 1:
                a(f"""
                s_add_u32 s{sC}, s{sC}, 1
                s_cmp_eq_u32 s{sC}, 8
                s_waitcnt lgkmcnt(0)
                s_cbranch_scc1 L_k1_{name}_last
                """)
            else:
                a("s_waitcnt lgkmcnt(0)")
            for i, m in enumerate(M):
                a(m)
                if i < len(G): a(G[i])
        a(f"s_branch L_k1_{name}_loop")
        seam, inner = check_loop(a.lines[start:])
        assert seam == 0 and inner == 0, (seam, inner)
        a.label(f"L_k1_{name}_last")
        a.window = []
        M = mfmas(1)
        for m in M[4*nf:] + M[:4*nf]: a(m)
        pf.stamp(3)
        vP = vF
        a(f"""
        s_lshl_b32 s{sT0}, s{sI}, 2
        s_lshl_b32 s{sT1}, s{sWM}, 1
        s_add_u32 s{sD}, s{sT0}, s{sT1}
        v_lshlrev_b32 v{vT0}, 4, v0
        s_lshl_b32 s{sT0}, s{sD}, 10
        s_lshl_b32 s{sT1}, s{sJ}, 2
        s_add_u32 s{sT1}, s{sT1}, s{sWN}
        s_lshl_b32 s{sT1}, s{sT1}, 16
        s_add_u32 s{sT1}, s{sT1}, s{sT0}
        s_add_u32 s{sDW}, s{sT1}, {2*65536}
        s_lshl_b32 s{sN}, s{sJ}, 1
        s_add_u32 s{sN}, s{sN}, s{sWN}
        s_lshl_b32 s{sN}, s{sN}, 16
        s_add_u32 s{sN}, s{sN}, s{sT0}
        s_add_u32 s{sN}, s{sN}, {WS_V}
        s_mov_b32 s{sT2}, {hex(f32bits(QSCALE))}
        s_cmp_lt_u32 s{sJ}, 8
        s_cselect_b32 s{sK2}, s{sT2}, 1.0
        s_mov_b32 s{sK2+1}, s{sK2}
        """)
        assert WS_Q == 0 and WS_K == 32 * 65536
        k = 0
        for c3 in (2, 0, 1):
            for tp in range(2):
                p = vP + 4 * k; k += 1
                a0 = vACC + ((nf + c3) * 4 + 2 * tp) * 4; a1 = a0 + 4
                if c3 < 2:
                    for r in range(0, 8, 2): a(f"v_pk_mul_f32 {vr(a0+r,2)}, {vr(a0+r,2)}, s[{sK2}:{sK2+1}]")
                sw = "v_permlane32_swap_b32" if c3 == 2 else "v_permlane16_swap_b32"
                a(f"""
                v_cvt_pk_bf16_f32 v{p}, v{a0}, v{a0+1}
                v_cvt_pk_bf16_f32 v{p+1}, v{a0+2}, v{a0+3}
                v_cvt_pk_bf16_f32 v{p+2}, v{a1}, v{a1+1}
                v_cvt_pk_bf16_f32 v{p+3}, v{a1+2}, v{a1+3}
                {sw} v{p}, v{p+2}
                {sw} v{p+1}, v{p+3}
                buffer_store_dwordx4 {vr(p,4)}, v{vT0}, s[{sWS}:{sWS+3}], s{[sT1, sDW, sN][c3]} offen offset:{tp*1024} {SC}
                """)
        a(f"""
        s_mul_i32 s{sT0}, s{sD}, 112
        s_mul_i32 s{sT1}, s{sJ}, 7
        s_add_u32 s{sT0}, s{sT0}, s{sT1}
        s_add_u32 s{sT0}, s{sT0}, {F[0]}
        s_lshl_b32 s{sT0}, s{sT0}, 10
        s_add_u32 s{sT0}, s{sT0}, {WS_A}
        s_add_u32 s{sT1}, s{sT0}, {112*1024}
        s_mov_b32 s{sK2}, {hex(f32bits(LOG2E))}
        s_mov_b32 s{sK2+1}, {hex(f32bits(LOG2E))}
        """)
        E0 = vF + FSZ
        PK = vACC + 16 * nf
        k = 0
        for i in range(nf):
            hs = [vACC + (i * 4 + 2 * tp) * 4 for tp in range(2)]
            es = [E0, E0 + 16]; ds = [E0 + 8, E0 + 24]
            def both(f):
                for tp in range(2): f(hs[tp], es[tp], ds[tp])
            both(lambda h, e, d: [a(f"v_pk_mul_f32 {vr(e+r,2)}, {vr(h+r,2)}, s[{sK2}:{sK2+1}]") for r in range(0, 8, 2)])
            both(lambda h, e, d: [a(f"v_exp_f32 v{e+r}, v{e+r}") for r in range(8)])
            both(lambda h, e, d: [a(f"v_pk_add_f32 {vr(e+r,2)}, {vr(e+r,2)}, 1.0 op_sel_hi:[1,0]") for r in range(0, 8, 2)])
            both(lambda h, e, d: [a(f"v_pk_fma_f32 {vr(d+r,2)}, {vr(e+r,2)}, {vr(e+r,2)}, 1.0 op_sel_hi:[1,1,0]") for r in range(0, 8, 2)])
            both(lambda h, e, d: [a(f"v_rcp_f32 v{d+r}, v{d+r}") for r in range(8)])
            both(lambda h, e, d: [a(f"v_pk_mul_f32 {vr(d+r,2)}, {vr(d+r,2)}, {vr(h+r,2)}") for r in range(0, 8, 2)])
            both(lambda h, e, d: [a(f"v_pk_fma_f32 {vr(d+r,2)}, {vr(d+r,2)}, -2.0, {vr(h+r,2)} op_sel_hi:[1,0,1]") for r in range(0, 8, 2)])
            ps = [PK + 4 * (k + tp) for tp in range(2)]; k += 2
            for tp in range(2):
                p, d = ps[tp], ds[tp]
                a(f"""
                v_cvt_pk_bf16_f32 v{p}, v{d}, v{d+1}
                v_cvt_pk_bf16_f32 v{p+1}, v{d+2}, v{d+3}
                v_cvt_pk_bf16_f32 v{p+2}, v{d+4}, v{d+5}
                v_cvt_pk_bf16_f32 v{p+3}, v{d+6}, v{d+7}
                """)
            for tp in range(2):
                p = ps[tp]
                a(f"""
                v_permlane16_swap_b32 v{p}, v{p+2}
                v_permlane16_swap_b32 v{p+1}, v{p+3}
                buffer_store_dwordx4 {vr(p,4)}, v{vT0}, s[{sWS}:{sWS+3}], s{sT1 if tp else sT0} offen offset:{i*1024} {SC}
                """)
        pf.stamp(4)
        if asmlib.PROF: a("s_waitcnt vmcnt(0)")
        pf.stamp(5)
        pf.dump(6, 2, sWAVE, 8, vT0, vT1)
        a("s_endpgm")
    role("ga", [0, 1, 2])
    a.label("L_k1_gb")
    a.window = []
    role("gb", [3, 4, 5, 6])
    a.label("L_k1_end")
    a("s_endpgm")
    assert NV <= 256
    return a.text(), kernel_desc(NAME, NV, 72), f"; @launch kernel={NAME} grid=(256,1,1) block=(512,1,1) lds={LDS_BYTES}"

if __name__ == "__main__":
    t, d, l = gen()
    print(l); print(len(t.splitlines()))
```

```python
from asmlib import *
import asmlib
from layout import *
import os
SC = os.environ.get('K1SC', 'sc1')
EXP1 = os.environ.get('EXP1', '')

NAME = "k1_proj_kernel"
NW, NX = 6, 4
XS, WQS, W1S = 16384, 6144, 8192
WQ_BASE = NX * XS
W1_BASE = WQ_BASE + NW * WQS
FL_BASE = W1_BASE + NW * W1S
LDS_BYTES = FL_BASE + 128
SPIN_MAX = 1 << 20

def gen():
    a = Asm()
    a.raw(kernel_header(NAME))
    pf = Prof(a, 0)
    pf.stamp(0)
    sX, sWQ, sW1, sWS, sB1, sGW = 16, 20, 24, 28, 32, 36
    sWAVE, sW, sI, sJ = 40, 41, 42, 43
    sSOX, sSOQ, sSO1 = 44, 45, 46
    sSL, sSLX = 47, 69
    sN, sD, sDW = 48, 49, 50
    sC = 51
    sMX, sMQ, sM1 = 52, 53, 54
    sT0, sT1, sT2 = 55, 56, 57
    sSP, sFV = 58, 59
    sK2 = 60
    sKC, sBX, sBQ, sB1o, sKX = 64, 65, 66, 67, 68
    vG = 3
    vT0, vT1, vT2, vT3 = 6, 7, 8, 9
    a(f"""
    s_cmp_ge_u32 s2, 256
    s_cbranch_scc1 L_k1_end
    s_load_dwordx4 s[4:7], s[0:1], 0
    s_load_dwordx4 s[8:11], s[0:1], 32
    s_load_dwordx2 s[12:13], s[0:1], 56
    s_load_dwordx2 s[14:15], s[0:1], 80
    v_lshrrev_b32 v1, 6, v0
    v_lshlrev_b32 v2, 2, v0
    v_readfirstlane_b32 s{sWAVE}, v1
    v_mov_b32 v3, 0
    v_cmp_gt_u32 vcc, 32, v0
    v_add_u32 v2, {FL_BASE}, v2
    s_and_saveexec_b64 s[62:63], vcc
    s_cbranch_execz L_k1_noinit
    ds_write_b32 v2, v3
    L_k1_noinit:
    s_mov_b64 exec, -1
    v_and_b32 v0, 63, v0
    s_and_b32 s{sT0}, s2, 7
    s_lshr_b32 s{sT1}, s2, 3
    s_and_b32 s{sI}, s{sT0}, 1
    s_lshl_b32 s{sI}, s{sI}, 3
    s_and_b32 s{sT2}, s{sT1}, 7
    s_add_u32 s{sI}, s{sI}, s{sT2}
    s_lshr_b32 s{sJ}, s{sT0}, 1
    s_lshl_b32 s{sJ}, s{sJ}, 2
    s_lshr_b32 s{sT2}, s{sT1}, 3
    s_add_u32 s{sJ}, s{sJ}, s{sT2}
    s_and_b32 s{sW}, s{sWAVE}, 3
    s_mov_b32 s{sWS+2}, {WS_SIZE}
    s_mov_b32 s{sWS+3}, 0x00020000
    s_mov_b32 s{sSP}, {SPIN_MAX}
    v_lshrrev_b32 v{vG}, 4, v0
    s_cmp_lt_u32 s{sWAVE}, 4
    s_cbranch_scc1 L_k1_comp
    """)
    vXd, vXd2, vQd, vQd2, v1d, v1d2 = 10, 18, 11, 12, 13, 14
    vFA, vOne, vFV = 15, 16, 17
    vGX, vGW, vOnes = 20, 28, 36
    a(f"""
    s_mov_b32 s{sX+2}, {2048*512*2}
    s_mov_b32 s{sX+3}, 0x00020000
    s_mov_b32 s{sWQ+2}, {512*1536*2}
    s_mov_b32 s{sWQ+3}, 0x00020000
    s_mov_b32 s{sW1+2}, {512*1792*2}
    s_mov_b32 s{sW1+3}, 0x00020000
    v_and_b32 v{vT0}, 7, v0
    v_xor_b32 v{vT0}, v{vT0}, v{vG}
    v_lshlrev_b32 v{vT0}, 4, v{vT0}
    v_lshrrev_b32 v{vT1}, 3, v0
    v_lshl_add_u32 v{vXd}, v{vT1}, 10, v{vT0}
    v_xor_b32 v{vXd2}, 64, v{vXd}
    v_add_u32 v{vXd2}, 8192, v{vXd2}
    s_lshl_b32 s{sBX}, s{sI}, 17
    s_lshl_b32 s{sT0}, s{sW}, 14
    s_add_u32 s{sBX}, s{sBX}, s{sT0}
    s_lshl_b32 s{sMX}, s{sW}, 11
    ; Wq: rows 8w..8w+7, pieces p = l (+64): pos = p>>1, k = pos/6, ct = (pos%6) ^ (w&1)
    s_mul_i32 s{sMQ}, s{sW}, 1536
    s_add_u32 s{sMQ}, s{sMQ}, {WQ_BASE}
    s_mul_i32 s{sBQ}, s{sW}, {8*3072}
    s_lshl_b32 s{sT0}, s{sJ}, 7
    s_add_u32 s{sBQ}, s{sBQ}, s{sT0}
    s_and_b32 s{sT1}, s{sW}, 1
    s_lshl_b32 s{sT2}, s{sJ}, 6
    s_sub_u32 s{sT2}, {2048-128}, s{sT2}
    """)
    for q, dst in ((0, vQd), (1, vQd2)):
        a(f"""
        v_lshrrev_b32 v{vT1}, 1, v0
        v_add_u32 v{vT1}, {32*q}, v{vT1}
        v_mul_u32_u24 v{vT2}, 0xaaab, v{vT1}
        v_lshrrev_b32 v{vT2}, 18, v{vT2}
        v_mul_u32_u24 v{vT3}, 6, v{vT2}
        v_sub_u32 v{vT1}, v{vT1}, v{vT3}
        v_xor_b32 v{vT1}, s{sT1}, v{vT1}
        v_mul_u32_u24 v{vT2}, 3072, v{vT2}
        v_lshl_add_u32 v{vT2}, v{vT1}, 5, v{vT2}
        v_lshrrev_b32 v{vT3}, 2, v{vT1}
        v_mul_u32_u24 v{vT3}, s{sT2}, v{vT3}
        v_add_u32 v{vT2}, v{vT2}, v{vT3}
        v_and_b32 v{vT3}, 1, v0
        v_lshl_add_u32 v{dst}, v{vT3}, 4, v{vT2}
        """)
    a(f"""
    s_lshl_b32 s{sM1}, s{sW}, 11
    s_add_u32 s{sM1}, s{sM1}, {W1_BASE}
    s_mul_i32 s{sB1o}, s{sW}, {8*3584}
    s_mul_i32 s{sT0}, s{sJ}, 224
    s_add_u32 s{sB1o}, s{sB1o}, s{sT0}
    s_lshl_b32 s{sT1}, s{sT1}, 2
    v_lshrrev_b32 v{vT1}, 1, v0
    v_sub_u32 v{vT1}, v{vT1}, v{vG}
    v_subrev_u32 v{vT1}, s{sT1}, v{vT1}
    v_and_b32 v{vT1}, 7, v{vT1}
    v_min_u32 v{vT1}, 6, v{vT1}
    v_mul_u32_u24 v{vT2}, 3584, v{vG}
    v_lshl_add_u32 v{vT2}, v{vT1}, 5, v{vT2}
    v_and_b32 v{vT3}, 1, v0
    v_lshl_add_u32 v{v1d}, v{vT3}, 4, v{vT2}
    v_add_u32 v{v1d2}, {4*3584}, v{v1d}
    v_mov_b32 v{vFA}, {FL_BASE}
    v_mov_b32 v{vOne}, 1
    s_lshr_b32 s{sKX}, s2, 3
    s_and_b32 s{sKX}, s{sKX}, 7
    s_lshl_b32 s{sKC}, s{sKX}, 1
    s_waitcnt lgkmcnt(0)
    s_mov_b32 s{sX}, s4
    s_mov_b32 s{sX+1}, s5
    s_mov_b32 s{sWQ}, s6
    s_mov_b32 s{sWQ+1}, s7
    s_mov_b32 s{sW1}, s8
    s_mov_b32 s{sW1+1}, s9
    """)
    def woffs():
        return f"""s_mul_i32 s{sT0}, s{sKC}, {32*3584}
        s_add_u32 s{sSO1}, s{sB1o}, s{sT0}
        s_mul_i32 s{sT0}, s{sKC}, {32*3072}
        s_add_u32 s{sSOQ}, s{sBQ}, s{sT0}
        s_add_u32 s{sKC}, s{sKC}, 1
        s_and_b32 s{sKC}, s{sKC}, 15"""
    def xoffs(half):
        t = f"""s_lshl_b32 s{sT0}, s{sKX}, 7
        s_add_u32 s{sSOX}, s{sBX}, s{sT0}"""
        if half:
            t += f"""
            s_add_u32 s{sSOX}, s{sSOX}, 65536
            s_add_u32 s{sKX}, s{sKX}, 1
            s_and_b32 s{sKX}, s{sKX}, 7"""
        return t
    def xdma(m, half, e):
        return (f"s_add_u32 m0, s{sMX}, {(m % NX)*XS + half*8192 + e*1024}",
                f"buffer_load_dwordx4 v{vXd2 if e else vXd}, s[{sX}:{sX+3}], s{sSOX} offen lds")
    def ready_txt(c, younger):
        return f"""s_waitcnt vmcnt({younger})
        s_mov_b64 exec, 1
        ds_add_u32 v{vFA}, v{vOne} offset:{4*c}
        s_mov_b64 exec, -1"""
    cnt = []
    def issue(c, sig, nxt):
        sl = c % NW
        m, half = (c + 1) >> 1, (c + 1) & 1
        hasx = m < 8
        n = 0
        if hasx:
            x = xdma(m, half, 0)
            a(x[0]); a(f"ds_read_b32 v{vFV}, v{vFA} offset:{64+4*nxt}" if nxt is not None else "s_nop 0"); a(x[1]); n += 1
        a(f"""
        s_add_u32 m0, s{sM1}, {sl*W1S}
        s_nop 0
        buffer_load_dwordx4 v{v1d}, s[{sW1}:{sW1+3}], s{sSO1} offen lds
        s_add_u32 m0, s{sMQ}, {sl*WQS}
        s_nop 0
        buffer_load_dwordx4 v{vQd}, s[{sWQ}:{sWQ+3}], s{sSOQ} offen lds
        """); n += 2
        if sig == 0: a("s_barrier")
        if sig is not None: a(ready_txt(sig, sum(cnt[sig + 1:]) + n))
        if hasx:
            x = xdma(m, half, 1)
            a(x[0]); a("s_nop 0"); a(x[1]); n += 1
        a(f"""
        s_add_u32 m0, s{sM1}, {sl*W1S+1024}
        s_nop 0
        buffer_load_dwordx4 v{v1d2}, s[{sW1}:{sW1+3}], s{sSO1} offen lds
        s_add_u32 m0, s{sMQ}, {sl*WQS+1024}
        s_mov_b32 s{sT1}, s{sSOQ}
        """); n += 1
        a(woffs())
        a(xoffs((c + 2) & 1))
        if nxt is not None:
            a(f"""
            s_waitcnt lgkmcnt(0)
            v_readfirstlane_b32 s{sFV}, v{vFV}
            """)
        a(f"""
        s_mov_b32 exec_hi, 0
        buffer_load_dwordx4 v{vQd2}, s[{sWQ}:{sWQ+3}], s{sT1} offen lds
        s_mov_b32 exec_hi, -1
        """); n += 1
        if nxt is not None:
            a(f"""
            L_k1_wc{nxt}:
            s_cmp_ge_u32 s{sFV}, 4
            s_cbranch_scc1 L_k1_wdok{nxt}
            ds_read_b32 v{vFV}, v{vFA} offset:{64+4*nxt}
            s_sub_u32 s{sSP}, s{sSP}, 1
            s_waitcnt lgkmcnt(0)
            v_readfirstlane_b32 s{sFV}, v{vFV}
            s_cbranch_scc0 L_k1_wc{nxt}
            s_mov_b32 s{sSP}, 0
            L_k1_wdok{nxt}:
            """)
        cnt.append(n)
    LAG = int(os.environ.get('K1LAG', '3'))
    a(woffs()); a(xoffs(0))
    for e in range(2):
        x = xdma(0, 0, e); a(x[0]); a("s_nop 0"); a(x[1])
    a(xoffs(1))
    for c in range(16):
        if c == LAG: pf.stamp(1); pf.stamp(2)
        issue(c, sig=(c - LAG if c >= LAG else None), nxt=(c + 1 - NW if NW <= c + 1 < 16 else None))
    pf.stamp(3)
    a(f"""
    s_mov_b32 s{sWS}, s14
    s_mov_b32 s{sWS+1}, s15
    s_mov_b32 s{sGW}, s12
    s_mov_b32 s{sGW+1}, s13
    s_mov_b32 s{sGW+2}, 1024
    s_mov_b32 s{sGW+3}, 0x00020000
    s_lshl_b32 s{sT0}, s{sI}, 7
    s_lshl_b32 s{sT1}, s{sJ}, 3
    s_add_u32 s{sT0}, s{sT0}, s{sT1}
    s_lshl_b32 s{sT1}, s{sW}, 1
    s_add_u32 s{sN}, s{sT0}, s{sT1}
    s_lshl_b32 s{sT1}, s{sN}, 10
    v_and_b32 v{vT1}, 31, v0
    v_lshlrev_b32 v{vT1}, 5, v{vT1}
    v_lshrrev_b32 v{vT2}, 5, v0
    v_lshl_add_u32 v{vT2}, v{vT2}, 10, v{vT1}
    buffer_load_dwordx4 {vr(vGX,4)}, v{vT2}, s[{sX}:{sX+3}], s{sT1} offen
    buffer_load_dwordx4 {vr(vGX+4,4)}, v{vT2}, s[{sX}:{sX+3}], s{sT1} offen offset:16
    buffer_load_dwordx4 {vr(vGW,4)}, v{vT1}, s[{sGW}:{sGW+3}], 0 offen
    buffer_load_dwordx4 {vr(vGW+4,4)}, v{vT1}, s[{sGW}:{sGW+3}], 0 offen offset:16
    v_mov_b32 v{vOnes}, -1
    v_mov_b32 v{vOnes+1}, -1
    v_mov_b32 v{vOnes+2}, -1
    v_mov_b32 v{vOnes+3}, -1
    v_lshlrev_b32 v{vT0}, 4, v0
    s_lshl_b32 s{sT0}, s2, 2
    s_add_u32 s{sT0}, s{sT0}, s{sW}
    s_lshl_b32 s{sT1}, s{sT0}, 11
    s_add_u32 s{sT1}, s{sT1}, {WS_O}
    buffer_store_dwordx4 {vr(vOnes,4)}, v{vT0}, s[{sWS}:{sWS+3}], s{sT1} offen {SC}
    buffer_store_dwordx4 {vr(vOnes,4)}, v{vT0}, s[{sWS}:{sWS+3}], s{sT1} offen offset:1024 {SC}
    """)
    for c in range(16 - LAG, 16): a(ready_txt(c, sum(cnt[c + 1:]) + 6))
    a("s_waitcnt vmcnt(2)")
    acc = vT1
    a(f"v_mov_b32 v{acc}, 0")
    for r in range(8): a(f"v_dot2_f32_bf16 v{acc}, v{vGX+r}, v{vGW+r}, v{acc}")
    a("s_nop 3")
    for mod in ["quad_perm:[1,0,3,2]", "quad_perm:[2,3,0,1]", "row_half_mirror", "row_mirror"]:
        a(f"v_add_f32_dpp v{acc}, v{acc}, v{acc} {mod} row_mask:0xf bank_mask:0xf")
    a(f"""
    v_mov_b32 v{vT2}, v{acc}
    v_mov_b32 v{vT3}, v{acc}
    v_permlane16_swap_b32 v{vT2}, v{vT3}
    v_add_f32 v{acc}, v{vT2}, v{vT3}
    v_mul_f32 v{acc}, {hex(f32bits(-LOG2E))}, v{acc}
    v_exp_f32 v{acc}, v{acc}
    v_add_f32 v{acc}, 1.0, v{acc}
    v_rcp_f32 v{acc}, v{acc}
    s_lshl_b32 s{sT0}, s{sN}, 2
    s_add_u32 s{sT0}, s{sT0}, {WS_G}
    v_lshrrev_b32 v{vT2}, 5, v0
    v_lshlrev_b32 v{vT2}, 2, v{vT2}
    s_mov_b32 exec_lo, 1
    s_mov_b32 exec_hi, 1
    buffer_store_dword v{acc}, v{vT2}, s[{sWS}:{sWS+3}], s{sT0} offen
    """)
    pf.stamp(4); pf.stamp(5)
    pf.dump(6, 2, sWAVE, 8, vT0, vT1)
    a("s_endpgm")
    a.label("L_k1_comp")
    a.window = []
    vN16, vR, vC = 2, 4, 5
    vXr, vQr = [10, 19], 14
    vFA, vOne, vFV = 11, 12, 13
    vWr = list(range(15, 19))
    vF = 20
    FSZ = 44
    vACC = vF + 2 * FSZ
    NV = vACC + 112
    sWM, sWN = sSOX, sSOQ
    sWX, sWQw, sW1w = sMX, sMQ, sM1
    sDQ = sN
    wu = f"""s_load_dwordx2 s[{sX}:{sX+1}], s[0:1], 48
    s_load_dwordx2 s[{sWQ}:{sWQ+1}], s[0:1], 16
    s_mov_b32 s{sX+2}, {1792*512*2}
    s_mov_b32 s{sX+3}, 0x00020000
    s_mov_b32 s{sWQ+2}, {512*512*2}
    s_mov_b32 s{sWQ+3}, 0x00020000
    s_lshl_b32 s{sT0}, s2, 2
    s_add_u32 s{sT0}, s{sT0}, s{sW}
    s_lshl_b32 s{sT0}, s{sT0}, 7
    v_lshlrev_b32 v{vT0}, 17, v0
    s_waitcnt lgkmcnt(0)
    s_mov_b64 exec, 0x3fff
    buffer_load_dword v{vACC+1}, v{vT0}, s[{sX}:{sX+3}], s{sT0} offen
    s_mov_b64 exec, 0xf
    buffer_load_dword v{vACC+1}, v{vT0}, s[{sWQ}:{sWQ+3}], s{sT0} offen
    s_mov_b64 exec, -1""" if 'wu' in EXP1 else ""
    if 'nocp' not in EXP1:
        a(f"""
        s_getpc_b64 s[62:63]
        L_k1_pc:
        s_sub_u32 s62, s62, L_k1_pc-{NAME}
        s_subb_u32 s63, s63, 0
        s_lshl_b32 s{sT0}, s{sW}, 13
        v_lshlrev_b32 v{vT0}, 7, v0
        v_add_u32 v{vT0}, s{sT0}, v{vT0}
        v_min_u32 v{vT0}, L_code_end-{NAME}-4, v{vT0}
        global_load_dword v{vACC}, v{vT0}, s[62:63]
        """)
    a(f"""
    s_and_b32 s{sWM}, s{sW}, 1
    s_lshr_b32 s{sWN}, s{sW}, 1
    v_and_b32 v{vN16}, 15, v0
    v_bfe_u32 v{vR}, v0, 2, 2
    v_and_b32 v{vC}, 3, v0
    v_lshrrev_b32 v{vT0}, 1, v{vN16}
    v_xor_b32 v{vT0}, v{vG}, v{vT0}
    v_lshlrev_b32 v{vT0}, 4, v{vT0}
    v_lshl_add_u32 v{vT0}, v{vN16}, 7, v{vT0}
    s_lshl_b32 s{sT0}, s{sWM}, 13
    v_add_u32 v{vXr[0]}, s{sT0}, v{vT0}
    v_xor_b32 v{vXr[1]}, 64, v{vXr[0]}
    v_mov_b32 v{vFA}, {FL_BASE}
    v_mov_b32 v{vOne}, 1
    v_mov_b32 v{vFV}, 0
    s_mov_b32 s{sSL}, 0
    s_mov_b32 s{sSLX}, 0
    s_mov_b32 s{sC}, 0
    s_mov_b32 s{sWX}, {-(NX-1)*XS}
    s_mov_b32 s{sWQw}, {-(NW-1)*WQS}
    s_mov_b32 s{sW1w}, {-(NW-1)*W1S}
    v_lshl_add_u32 v{vT1}, v{vG}, 3, v{vR}
    v_and_b32 v{vT2}, 1, v{vG}
    v_mul_u32_u24 v{vT0}, 192, v{vT1}
    v_lshl_add_u32 v{vT0}, v{vC}, 3, v{vT0}
    v_add_u32 v{vT0}, {WQ_BASE}, v{vT0}
    v_xor_b32 v{vT3}, s{sWN}, v{vT2}
    v_lshl_add_u32 v{vQr}, v{vT3}, 5, v{vT0}
    v_lshlrev_b32 v{vT1}, 8, v{vT1}
    v_lshl_add_u32 v{vT1}, v{vC}, 3, v{vT1}
    v_add_u32 v{vT1}, {W1_BASE}, v{vT1}
    v_lshl_add_u32 v{vT2}, v{vT2}, 2, v{vR}
    v_lshlrev_b32 v{vT3}, 3, v{vG}
    s_mul_i32 s{sT1}, s{sJ}, 224
    s_mov_b32 s{sB1+2}, {1792*2}
    s_mov_b32 s{sB1+3}, 0x00020000
    s_waitcnt lgkmcnt(0)
    s_mov_b32 s{sWS}, s14
    s_mov_b32 s{sWS+1}, s15
    s_mov_b32 s{sB1}, s10
    s_mov_b32 s{sB1+1}, s11
    {wu}
    s_cmp_eq_u32 s{sWN}, 1
    s_cbranch_scc1 L_k1_gb
    """)
    def frag(buf):
        b = vF + buf * FSZ
        return [b + 4 * t for t in range(4)], [b + 16 + 4 * i for i in range(7)]
    def role(name, F):
        nf = len(F); nt = 3 + nf
        def reads(buf):
            X, W = frag(buf); L = []
            def wr(i):
                for t2 in range(2):
                    if i < nf: va, off = vWr[i], 4 * t2 * 256
                    else:      va, off = vQr, 4 * t2 * 192 + (i - nf) * 64
                    L.append(f"ds_read_b64_tr_b16 {vr(W[i]+2*t2,2)}, v{va} offset:{off}")
            for t in range(4):
                L.append(f"ds_read_b128 {vr(X[t],4)}, v{vXr[buf]} offset:{t*2048}")
                wr(t)
            for i in range(4, nt): wr(i)
            return L
        def mfmas(buf):
            X, W = frag(buf); L = []
            for i in range(nt):
                for t in range(4):
                    acc = vACC + (i * 4 + t) * 4
                    if i == nt - 1: L.append(f"v_mfma_f32_16x16x32_bf16 {vr(acc,4)}, {vr(X[t],4)}, {vr(W[i],4)}, {vr(acc,4)}")
                    else:           L.append(f"v_mfma_f32_16x16x32_bf16 {vr(acc,4)}, {vr(W[i],4)}, {vr(X[t],4)}, {vr(acc,4)}")
            return L
        def check(tag):
            return f"""
            L_k1_{name}_ck{tag}:
            v_readfirstlane_b32 s{sFV}, v{vFV}
            s_cmp_ge_u32 s{sFV}, 4
            s_cbranch_scc1 L_k1_{name}_ok{tag}
            ds_read_b32 v{vFV}, v{vFA}
            s_sub_u32 s{sSP}, s{sSP}, 1
            s_waitcnt lgkmcnt(0)
            s_cbranch_scc0 L_k1_{name}_ck{tag}
            s_mov_b32 s{sSP}, 0
            L_k1_{name}_ok{tag}:
            """
        vB = vF + FSZ
        for i, ct in enumerate(F):
            a(f"buffer_load_dwordx2 {vr(vB+2*i,2)}, v{vT3}, s[{sB1}:{sB1+3}], s{sT1} offen offset:{ct*32}")
        for i, ct in enumerate(F):
            a(f"""
            v_add_u32 v{vT0}, {ct}, v{vT2}
            v_and_b32 v{vT0}, 7, v{vT0}
            v_lshl_add_u32 v{vWr[i]}, v{vT0}, 5, v{vT1}
            """)
        for r in range(48): a(f"v_mov_b32 v{vACC+16*nf+r}, 0")
        a("s_waitcnt vmcnt(0)")
        for i in range(nf):
            for t in range(4):
                acc = vACC + (i * 4 + t) * 4
                a(f"""
                v_lshlrev_b32 v{acc}, 16, v{vB+2*i}
                v_and_b32 v{acc+1}, 0xffff0000, v{vB+2*i}
                v_lshlrev_b32 v{acc+2}, 16, v{vB+2*i+1}
                v_and_b32 v{acc+3}, 0xffff0000, v{vB+2*i+1}
                """)
        pf.stamp(1)
        a("s_barrier")
        a(check("p"))
        pf.stamp(2)
        a("\n".join(reads(0)))
        a(f"ds_read_b32 v{vFV}, v{vFA} offset:4")
        a.raw(".p2align 6")
        a.label(f"L_k1_{name}_loop")
        start = len(a.lines)
        for buf in range(2):
            M = mfmas(buf)
            R = reads(buf ^ 1) + [f"ds_read_b32 v{vFV}, v{vFA} offset:4"]
            G = [f"""s_mov_b64 exec, 1
                 ds_add_u32 v{vFA}, v{vOne} offset:64
                 s_mov_b64 exec, -1""",
                 f"""s_add_u32 s{sSL}, s{sSL}, 1
                 s_cmp_eq_u32 s{sSL}, {NW}
                 s_cselect_b32 s{sDW}, s{sW1w}, {W1S}""",
                 f"""s_cselect_b32 s{sDQ}, s{sWQw}, {WQS}
                 s_cselect_b32 s{sSL}, 0, s{sSL}
                 v_add_u32 v{vFA}, 4, v{vFA}""",
                 f"""v_add_u32 v{vQr}, s{sDQ}, v{vQr}
                 v_add_u32 v{vWr[0]}, s{sDW}, v{vWr[0]}""",
                 "\n".join(f"v_add_u32 v{r}, s{sDW}, v{r}" for r in vWr[1:nf])]
            if buf == 1:
                G += [f"""s_add_u32 s{sSLX}, s{sSLX}, 1
                      s_cmp_eq_u32 s{sSLX}, {NX}
                      s_cselect_b32 s{sD}, s{sWX}, {XS}""",
                      f"""s_cselect_b32 s{sSLX}, 0, s{sSLX}
                      v_add_u32 v{vXr[0]}, s{sD}, v{vXr[0]}
                      v_add_u32 v{vXr[1]}, s{sD}, v{vXr[1]}"""]
            G.append(check(buf))
            while R:
                n = 1 if (len(G) + len(R) <= len(M) - 2) else 2
                G.append("\n".join(R[:n])); R = R[n:]
            assert len(G) <= len(M), (len(G), len(M))
            if buf == 1:
                a(f"""
                s_add_u32 s{sC}, s{sC}, 1
                s_cmp_eq_u32 s{sC}, 8
                s_waitcnt lgkmcnt(0)
                s_cbranch_scc1 L_k1_{name}_last
                """)
            else:
                a("s_waitcnt lgkmcnt(0)")
            for i, m in enumerate(M):
                a(m)
                if i < len(G): a(G[i])
        a(f"s_branch L_k1_{name}_loop")
        seam, inner = check_loop(a.lines[start:])
        assert seam == 0 and inner == 0, (seam, inner)
        a.label(f"L_k1_{name}_last")
        a.window = []
        M = mfmas(1)
        for m in M[4*nf:] + M[:4*nf]: a(m)
        pf.stamp(3)
        vP = vF
        a(f"""
        s_lshl_b32 s{sT0}, s{sI}, 2
        s_lshl_b32 s{sT1}, s{sWM}, 1
        s_add_u32 s{sD}, s{sT0}, s{sT1}
        v_lshlrev_b32 v{vT0}, 4, v0
        s_lshl_b32 s{sT0}, s{sD}, 10
        s_lshl_b32 s{sT1}, s{sJ}, 2
        s_add_u32 s{sT1}, s{sT1}, s{sWN}
        s_lshl_b32 s{sT1}, s{sT1}, 16
        s_add_u32 s{sT1}, s{sT1}, s{sT0}
        s_add_u32 s{sDW}, s{sT1}, {2*65536}
        s_lshl_b32 s{sN}, s{sJ}, 1
        s_add_u32 s{sN}, s{sN}, s{sWN}
        s_lshl_b32 s{sN}, s{sN}, 16
        s_add_u32 s{sN}, s{sN}, s{sT0}
        s_add_u32 s{sN}, s{sN}, {WS_V}
        s_mov_b32 s{sT2}, {hex(f32bits(QSCALE))}
        s_cmp_lt_u32 s{sJ}, 8
        s_cselect_b32 s{sK2}, s{sT2}, 1.0
        s_mov_b32 s{sK2+1}, s{sK2}
        """)
        assert WS_Q == 0 and WS_K == 32 * 65536
        k = 0
        for c3 in (2, 0, 1):
            for tp in range(2):
                p = vP + 4 * k; k += 1
                a0 = vACC + ((nf + c3) * 4 + 2 * tp) * 4; a1 = a0 + 4
                if c3 < 2:
                    for r in range(0, 8, 2): a(f"v_pk_mul_f32 {vr(a0+r,2)}, {vr(a0+r,2)}, s[{sK2}:{sK2+1}]")
                sw = "v_permlane32_swap_b32" if c3 == 2 else "v_permlane16_swap_b32"
                a(f"""
                v_cvt_pk_bf16_f32 v{p}, v{a0}, v{a0+1}
                v_cvt_pk_bf16_f32 v{p+1}, v{a0+2}, v{a0+3}
                v_cvt_pk_bf16_f32 v{p+2}, v{a1}, v{a1+1}
                v_cvt_pk_bf16_f32 v{p+3}, v{a1+2}, v{a1+3}
                {sw} v{p}, v{p+2}
                {sw} v{p+1}, v{p+3}
                buffer_store_dwordx4 {vr(p,4)}, v{vT0}, s[{sWS}:{sWS+3}], s{[sT1, sDW, sN][c3]} offen offset:{tp*1024} {SC}
                """)
        a(f"""
        s_mul_i32 s{sT0}, s{sD}, 112
        s_mul_i32 s{sT1}, s{sJ}, 7
        s_add_u32 s{sT0}, s{sT0}, s{sT1}
        s_add_u32 s{sT0}, s{sT0}, {F[0]}
        s_lshl_b32 s{sT0}, s{sT0}, 10
        s_add_u32 s{sT0}, s{sT0}, {WS_A}
        s_add_u32 s{sT1}, s{sT0}, {112*1024}
        s_mov_b32 s{sK2}, {hex(f32bits(LOG2E))}
        s_mov_b32 s{sK2+1}, {hex(f32bits(LOG2E))}
        """)
        E0 = vF + FSZ
        PK = vACC + 16 * nf
        k = 0
        for i in range(nf):
            hs = [vACC + (i * 4 + 2 * tp) * 4 for tp in range(2)]
            es = [E0, E0 + 16]; ds = [E0 + 8, E0 + 24]
            def both(f):
                for tp in range(2): f(hs[tp], es[tp], ds[tp])
            both(lambda h, e, d: [a(f"v_pk_mul_f32 {vr(e+r,2)}, {vr(h+r,2)}, s[{sK2}:{sK2+1}]") for r in range(0, 8, 2)])
            both(lambda h, e, d: [a(f"v_exp_f32 v{e+r}, v{e+r}") for r in range(8)])
            both(lambda h, e, d: [a(f"v_pk_add_f32 {vr(e+r,2)}, {vr(e+r,2)}, 1.0 op_sel_hi:[1,0]") for r in range(0, 8, 2)])
            both(lambda h, e, d: [a(f"v_pk_fma_f32 {vr(d+r,2)}, {vr(e+r,2)}, {vr(e+r,2)}, 1.0 op_sel_hi:[1,1,0]") for r in range(0, 8, 2)])
            both(lambda h, e, d: [a(f"v_rcp_f32 v{d+r}, v{d+r}") for r in range(8)])
            both(lambda h, e, d: [a(f"v_pk_mul_f32 {vr(d+r,2)}, {vr(d+r,2)}, {vr(h+r,2)}") for r in range(0, 8, 2)])
            both(lambda h, e, d: [a(f"v_pk_fma_f32 {vr(d+r,2)}, {vr(d+r,2)}, -2.0, {vr(h+r,2)} op_sel_hi:[1,0,1]") for r in range(0, 8, 2)])
            ps = [PK + 4 * (k + tp) for tp in range(2)]; k += 2
            for tp in range(2):
                p, d = ps[tp], ds[tp]
                a(f"""
                v_cvt_pk_bf16_f32 v{p}, v{d}, v{d+1}
                v_cvt_pk_bf16_f32 v{p+1}, v{d+2}, v{d+3}
                v_cvt_pk_bf16_f32 v{p+2}, v{d+4}, v{d+5}
                v_cvt_pk_bf16_f32 v{p+3}, v{d+6}, v{d+7}
                """)
            for tp in range(2):
                p = ps[tp]
                a(f"""
                v_permlane16_swap_b32 v{p}, v{p+2}
                v_permlane16_swap_b32 v{p+1}, v{p+3}
                buffer_store_dwordx4 {vr(p,4)}, v{vT0}, s[{sWS}:{sWS+3}], s{sT1 if tp else sT0} offen offset:{i*1024} {SC}
                """)
        pf.stamp(4)
        if asmlib.PROF: a("s_waitcnt vmcnt(0)")
        pf.stamp(5)
        pf.dump(6, 2, sWAVE, 8, vT0, vT1)
        a("s_endpgm")
    role("ga", [0, 1, 2])
    a.label("L_k1_gb")
    a.window = []
    role("gb", [3, 4, 5, 6])
    a.label("L_k1_end")
    a("s_endpgm")
    assert NV <= 256
    return a.text(), kernel_desc(NAME, NV, 72), f"; @launch kernel={NAME} grid=(256,1,1) block=(512,1,1) lds={LDS_BYTES}"

if __name__ == "__main__":
    t, d, l = gen()
    print(l); print(len(t.splitlines()))
```

```python
from asmlib import *
import asmlib
from layout import *

NAME = "k2_main_kernel"
LDS_BYTES = 49152
SENT = -1
PSLEEP = 12
import os
EXP = os.environ.get('EXP', '')
SPIN_MAX = 1 << 18

def attn_role(a):
    P = "at"
    sWS, sKV = 8, 28
    sW, sH, sQB = 12, 13, 14
    sT0, sT1, sT2 = 15, 16, 17
    sKT, sC, sM, sQ0, sA = 18, 19, 20, 22, 23
    sRB, sPO, sD, sVT = 26, 27, 32, 33
    vKo, vVo = 1, 2
    vT0, vT1, vT2, vT3, vG = 3, 4, 5, 6, 7
    vQ, vK, vV, vP, vS, vO = 8, 24, 32, 48, 56, 88
    vKr, vVr = 152, 153
    NV = 154
    RING = 12288
    pf = Prof(a, 1)
    pf.stamp(0)
    a(f"""
    s_setprio 3
    s_load_dwordx2 s[4:5], s[0:1], 80
    s_sub_u32 s{sA}, s2, 256
    v_lshrrev_b32 v1, 6, v0
    v_and_b32 v0, 63, v0
    v_readfirstlane_b32 s{sW}, v1
    s_lshr_b32 s{sH}, s{sA}, 8
    s_lshl_b32 s{sH}, s{sH}, 4
    s_and_b32 s{sT0}, s{sA}, 7
    s_lshl_b32 s{sT0}, s{sT0}, 1
    s_add_u32 s{sH}, s{sH}, s{sT0}
    s_bfe_u32 s{sT0}, s{sA}, 0x10003
    s_add_u32 s{sH}, s{sH}, s{sT0}
    s_bfe_u32 s{sQB}, s{sA}, 0x40004
    s_mov_b32 s{sWS+2}, {WS_SIZE}
    s_mov_b32 s{sWS+3}, 0x00020000
    s_mov_b32 s{sKV+2}, {WS_SIZE}
    s_mov_b32 s{sKV+3}, 0x00020000
    s_mov_b32 s{sM}, 0x0000ffff
    s_mov_b32 s{sM+1}, 0x0000ffff
    s_lshl_b32 s{sT0}, s{sH}, 16
    s_lshl_b32 s{sT1}, s{sQB}, 12
    s_add_u32 s{sQ0}, s{sT0}, s{sT1}
    s_lshl_b32 s{sT1}, s{sW}, 14
    s_add_u32 s{sKT}, s{sT0}, s{sT1}
    s_add_u32 s{sKT}, s{sKT}, {WS_K}
    s_mul_i32 s{sRB}, s{sW}, {RING}
    v_lshlrev_b32 v{vKo}, 4, v0
    v_add_u32 v{vVo}, {WS_V - WS_K}, v{vKo}
    s_lshl_b32 s{sT1}, s{sW}, 10
    v_xor_b32 v{vT2}, s{sT1}, v{vKo}
    s_mov_b32 m0, s{sRB}
    s_mov_b32 s{sC}, 0
    s_waitcnt lgkmcnt(0)
    s_mov_b32 s{sWS}, s4
    s_mov_b32 s{sWS+1}, s5
    s_mov_b32 s{sKV}, s4
    s_mov_b32 s{sKV+1}, s5
    """)
    srd = f"s[{sWS}:{sWS+3}]"
    kv = f"s[{sKV}:{sKV+3}]"
    for q in range(4):
        if q: a(f"v_xor_b32 v{vT3}, {q*1024}, v{vT2}")
        a(f"buffer_load_dwordx4 {vr(vQ+4*q,4)}, v{vT3 if q else vT2}, {srd}, s{sQ0} offen")
    a(f"""
    L_{P}_pre:
    buffer_load_dwordx4 v{vKo}, {kv}, s{sKT} offen lds
    s_add_u32 m0, m0, 1024
    s_add_u32 s{sC}, s{sC}, 1
    buffer_load_dwordx4 v{vVo}, {kv}, s{sKT} offen lds
    s_add_u32 m0, m0, 1024
    s_add_u32 s{sKT}, s{sKT}, 1024
    s_cmp_lt_u32 s{sC}, 6
    s_cbranch_scc1 L_{P}_pre
    s_lshl_b32 s{sT0}, s{sQB}, 2
    s_add_u32 s{sT0}, s{sT0}, s{sW}
    s_lshl_b32 s{sT0}, s{sT0}, 7
    s_add_u32 s{sT0}, s{sT0}, {WS_G}
    v_and_b32 v{vT0}, 31, v0
    v_lshlrev_b32 v{vT0}, 2, v{vT0}
    buffer_load_dword v{vG}, v{vT0}, {srd}, s{sT0} offen
    v_add_u32 v{vKr}, s{sRB}, v{vKo}
    v_and_b32 v{vT0}, 15, v0
    v_lshlrev_b32 v{vT0}, 4, v{vT0}
    v_lshrrev_b32 v{vT1}, 5, v0
    v_lshl_add_u32 v{vT0}, v{vT1}, 8, v{vT0}
    v_add_u32 v{vVr}, s{sRB}, v{vT0}
    v_and_b32 v{vT1}, 27, v0
    v_cmp_eq_u32 vcc, 16, v{vT1}
    v_mov_b32 v{vT1}, 0x3f803f80
    v_cndmask_b32 v{vT1}, 0, v{vT1}, vcc
    """)
    for r in range(16): a(f"v_mov_b32 v{vV+r}, v{vT1}")
    def reads(st, off):
        return f"""ds_read_b128 {vr(vK+4*st,4)}, v{vKr} offset:{off}
        s_mov_b64 exec, s[{sM}:{sM+1}]
        ds_read_b128 {vr(vV+8*st,4)}, v{vVr} offset:{off+1024}
        ds_read_b128 {vr(vV+8*st+4,4)}, v{vVr} offset:{off+1536}
        s_mov_b64 exec, -1"""
    def dma(off):
        return f"""s_add_u32 m0, s{sPO}, {off}
        s_setprio 3
        buffer_load_dwordx4 v{vKo}, {kv}, s{sKT} offen lds
        s_add_u32 m0, s{sPO}, {off+1024}
        s_nop 0
        buffer_load_dwordx4 v{vVo}, {kv}, s{sKT} offen lds
        s_setprio 0
        s_add_u32 s{sKT}, s{sKT}, 1024"""
    for r in range(64): a(f"v_mov_b32 v{vO+r}, 0")
    for r in range(4, 8): a(f"v_mov_b32 v{vP+r}, 0")
    a(f"s_mov_b32 s{sC}, 0")
    a(f"s_mov_b32 s{sPO}, s{sRB}")
    pf.stamp(1)
    a("s_waitcnt vmcnt(11)")
    pf.stamp(2)
    a(reads(0, 0))
    a("s_waitcnt lgkmcnt(0)")
    def mfS(sb, st, q): return f"v_mfma_f32_32x32x16_bf16 {vr(vS+16*sb,16)}, {vr(vK+4*st,4)}, {vr(vQ+4*q,4)}, 0"
    def mfPV(q, st, u): return f"v_mfma_f32_32x32x16_bf16 {vr(vO+16*q,16)}, {vr(vV+8*st+4*u,4)}, {vr(vP+4*u,4)}, {vr(vO+16*q,16)}"
    a(mfS(0, 0, 0))
    a(dma(0))
    if 'diag' in EXP: a("s_mov_b32 s40, 0\ns_mov_b32 s41, 0")
    a("s_nop 7")
    a.raw(".p2align 6")
    a.label(f"L_{P}_loop")
    start = len(a.lines)
    for st in range(2):
        off = 2048 if st == 0 else 0
        for q in range(4):
            sb = q & 1
            S = vS + 16 * sb
            ex = lambda i: f"v_exp_f32 v{S+i}, v{S+i}"
            cv = lambda i: f"v_cvt_pk_bf16_f32 v{vP+i}, v{S+2*i}, v{S+2*i+1}"
            pq, pst = (q - 1, st) if q > 0 else (3, st ^ 1)
            nq, nst = (q + 1, st) if q < 3 else (0, st ^ 1)
            a(ex(0)); a(ex(1))
            a(mfPV(pq, pst, 1))
            if q == 0 and st == 1:
                a(f"""
                s_add_u32 s{sT0}, s{sPO}, 4096
                s_add_u32 s{sT1}, s{sRB}, {RING}
                s_cmp_eq_u32 s{sT0}, s{sT1}
                s_cselect_b32 s{sT0}, s{sRB}, s{sT0}
                s_sub_u32 s{sD}, s{sT0}, s{sPO}
                s_mov_b32 s{sPO}, s{sT0}
                v_add_u32 v{vKr}, s{sD}, v{vKr}
                v_add_u32 v{vVr}, s{sD}, v{vVr}
                """)
            if q == 1:
                if 'diag' in EXP: a("s_memtime s[44:45]")
                a("s_waitcnt vmcnt(10)")
                if 'diag' in EXP:
                    a("s_memtime s[46:47]\ns_waitcnt lgkmcnt(0)\ns_sub_u32 s44, s46, s44\ns_add_u32 s41, s41, s44")
                a(reads(st ^ 1, off))
            for i in range(2, 6): a(ex(i))
            if q == 3: a("s_waitcnt lgkmcnt(0)")
            a(mfS(sb ^ 1, nst, nq))
            if q == 3:
                if st == 1:
                    a(f"""
                    s_cmp_ge_u32 s{sC}, 4
                    s_cselect_b32 s{sKV+2}, 0, s{sKV+2}
                    """)
                if 'diag' in EXP: a("s_memtime s[44:45]")
                a(dma(off))
                if 'diag' in EXP:
                    a("s_memtime s[46:47]\ns_waitcnt lgkmcnt(0)\ns_sub_u32 s44, s46, s44\ns_add_u32 s40, s40, s44")
            a(ex(6)); a(ex(7))
            for i in range(4): a(cv(i))
            a(ex(8)); a(ex(9))
            a(mfPV(q, st, 0))
            for i in range(10, 16): a(ex(i))
            for i in range(4, 8): a(cv(i))
    a(f"""
    s_add_u32 s{sC}, s{sC}, 1
    s_cmp_lt_u32 s{sC}, 8
    s_cbranch_scc1 L_{P}_loop
    """)
    seam, inner = check_loop(a.lines[start:])
    assert seam == 0 and inner == 0, (seam, inner)
    a(mfPV(3, 1, 1))
    a("s_setprio 3")
    pf.stamp(3)
    a(f"""
    v_add_u32 v{vT0}, s{sRB}, v{vKo}
    v_lshlrev_b32 v{vT1}, 2, v0
    v_add_u32 v{vT2}, s{sRB}, v{vT1}
    s_waitcnt vmcnt(0)
    """)
    for j in range(1, 4):
        o = vO + 16 * j
        a(f"""
        ds_write_b128 v{vT0}, {vr(o,4)} offset:{(j-1)*2304}
        ds_write_b128 v{vT0}, {vr(o+4,4)} offset:{(j-1)*2304+1024}
        ds_write_b32 v{vT2}, v{o+8} offset:{(j-1)*2304+2048}
        """)
    a(f"""
    s_waitcnt lgkmcnt(0)
    s_barrier
    """)
    R = vO
    for j in range(1, 4):
        o = vO + 16 * j
        a(f"""
        s_xor_b32 s{sT0}, s{sW}, {j}
        s_mul_i32 s{sT0}, s{sT0}, {RING}
        v_add_u32 v{vT0}, s{sT0}, v{vKo}
        v_add_u32 v{vT2}, s{sT0}, v{vT1}
        ds_read_b128 {vr(o,4)}, v{vT0} offset:{(j-1)*2304}
        ds_read_b128 {vr(o+4,4)}, v{vT0} offset:{(j-1)*2304+1024}
        ds_read_b32 v{o+8}, v{vT2} offset:{(j-1)*2304+2048}
        """)
    a("s_waitcnt lgkmcnt(0)")
    for r in range(0, 8, 2):
        a(f"v_pk_add_f32 {vr(R+r,2)}, {vr(R+r,2)}, {vr(R+16+r,2)}")
        a(f"v_pk_add_f32 {vr(R+32+r,2)}, {vr(R+32+r,2)}, {vr(R+48+r,2)}")
    a(f"v_add_f32 v{R+8}, v{R+8}, v{R+24}")
    a(f"v_add_f32 v{R+40}, v{R+40}, v{R+56}")
    for r in range(0, 8, 2):
        a(f"v_pk_add_f32 {vr(R+r,2)}, {vr(R+r,2)}, {vr(R+32+r,2)}")
    a(f"v_add_f32 v{R+8}, v{R+8}, v{R+40}")
    a(f"v_mov_b32 v{vT2}, v{R+8}")
    for r in range(8): a(f"v_fma_f32 v{vT2}, v{R+r}, 0, v{vT2}")
    a(f"""
    s_mov_b32 s{sT0}, {hex(f32bits(2.0**-30))}
    s_mov_b32 s{sT1}, {hex(f32bits(2.0**30))}
    v_cmp_le_f32 vcc, s{sT0}, v{vT2}
    v_cmp_ge_f32 s[24:25], s{sT1}, v{vT2}
    s_and_b64 vcc, vcc, s[24:25]
    s_cmp_eq_u64 vcc, -1
    s_cbranch_scc0 L_{P}_slow
    L_{P}_fin:
    v_rcp_f32 v{vT2}, v{R+8}
    s_lshl_b32 s{sT0}, s{sQB}, 2
    s_add_u32 s{sT0}, s{sT0}, s{sW}
    s_lshl_b32 s{sT0}, s{sT0}, 5
    s_add_u32 s{sT0}, s{sT0}, s{sH}
    s_lshl_b32 s{sT0}, s{sT0}, 10
    s_add_u32 s{sT0}, s{sT0}, {WS_O}
    v_mul_f32 v{vT2}, v{vT2}, v{vG}
    """)
    for r in range(8): a(f"v_mul_f32 v{R+r}, v{R+r}, v{vT2}")
    a(f"""
    v_cvt_pk_bf16_f32 v{vP}, v{R}, v{R+1}
    v_cvt_pk_bf16_f32 v{vP+1}, v{R+2}, v{R+3}
    v_cvt_pk_bf16_f32 v{vP+2}, v{R+4}, v{R+5}
    v_cvt_pk_bf16_f32 v{vP+3}, v{R+6}, v{R+7}
    v_min_u32 v{vP}, -2, v{vP}
    v_min_u32 v{vP+1}, -2, v{vP+1}
    v_min_u32 v{vP+2}, -2, v{vP+2}
    v_min_u32 v{vP+3}, -2, v{vP+3}
    v_permlane32_swap_b32 v{vP}, v{vP+2}
    v_permlane32_swap_b32 v{vP+1}, v{vP+3}
    buffer_store_dwordx4 {vr(vP,4)}, v{vKo}, {srd}, s{sT0} offen sc1
    """)
    pf.stamp(4)
    if asmlib.PROF: a("s_waitcnt vmcnt(0)")
    pf.stamp(5)
    if 'diag' in EXP: a("s_mov_b32 s92, s40\ns_mov_b32 s94, s41")
    pf.dump(6, sA, sW, 4, vT0, vT1)
    a("s_endpgm")
    a.label(f"L_{P}_slow")
    a.window = []
    vM = vT3
    S = vS
    a(f"""
    s_lshl_b32 s{sT1}, s{sH}, 16
    s_add_u32 s{sT1}, s{sT1}, {WS_K}
    s_mov_b32 s{sKT}, s{sT1}
    s_mov_b32 s{sC}, 0
    v_mov_b32 v{vM}, 0xff800000
    v_and_b32 v{vT0}, 15, v0
    v_lshlrev_b32 v{vT0}, 4, v{vT0}
    v_lshrrev_b32 v{vT1}, 5, v0
    v_lshl_add_u32 v{vT0}, v{vT1}, 8, v{vT0}
    v_add_u32 v{vVo}, {WS_V - WS_K}, v{vT0}
    L_{P}_slow1:
    buffer_load_dwordx4 {vr(vK,4)}, v{vKo}, {srd}, s{sKT} offen
    s_add_u32 s{sKT}, s{sKT}, 1024
    s_waitcnt vmcnt(0)
    {mfS(0,0,0)}
    """)
    for r in range(0, 16, 2): a(f"v_max3_f32 v{vM}, v{vM}, v{S+r}, v{S+r+1}")
    a(f"""
    s_add_u32 s{sC}, s{sC}, 1
    s_cmp_lt_u32 s{sC}, 64
    s_cbranch_scc1 L_{P}_slow1
    v_mov_b32 v{vT0}, v{vM}
    v_mov_b32 v{vT1}, v{vM}
    v_permlane32_swap_b32 v{vT0}, v{vT1}
    v_max_f32 v{vM}, v{vT0}, v{vT1}
    s_mov_b32 s{sKT}, s{sT1}
    s_mov_b32 s{sC}, 0
    """)
    for r in range(16): a(f"v_mov_b32 v{R+r}, 0")
    a(f"""
    L_{P}_slow2:
    buffer_load_dwordx4 {vr(vK,4)}, v{vKo}, {srd}, s{sKT} offen
    s_mov_b64 exec, s[{sM}:{sM+1}]
    buffer_load_dwordx4 {vr(vV,4)}, v{vVo}, {srd}, s{sKT} offen
    buffer_load_dwordx4 {vr(vV+4,4)}, v{vVo}, {srd}, s{sKT} offen offset:512
    s_mov_b64 exec, -1
    s_add_u32 s{sKT}, s{sKT}, 1024
    s_waitcnt vmcnt(0)
    {mfS(0,0,0)}
    """)
    for r in range(16): a(f"v_sub_f32 v{S+r}, v{S+r}, v{vM}")
    for r in range(16): a(f"v_exp_f32 v{S+r}, v{S+r}")
    for i in range(8): a(f"v_cvt_pk_bf16_f32 v{vP+i}, v{S+2*i}, v{S+2*i+1}")
    a(mfPV(0, 0, 0)); a(mfPV(0, 0, 1))
    a(f"""
    s_nop 7
    s_add_u32 s{sC}, s{sC}, 1
    s_cmp_lt_u32 s{sC}, 64
    s_cbranch_scc1 L_{P}_slow2
    s_nop 15
    s_branch L_{P}_fin
    """)
    return NV

def gemm_role(a):
    P = "gm"
    sWS, sX, sW1, sB1, sWT, sOUT = 16, 20, 24, 28, 32, 36
    sW, sXCD, sIDX = 40, 41, 42
    sT0, sT1, sT2 = 43, 44, 45
    sC = 46
    sSOX, sSOW, sOS, sD, sN = 47, 48, 49, 50, 51
    sMD = 52
    sWM, sWN, sI, sJJ = 53, 54, 55, 56
    sTW, sFJ, sAO, sWO, sWO2, sLB = 57, 58, 59, 60, 61, 62
    sK2 = 64
    vL16 = 1
    vT0, vT1, vT2, vT3 = 2, 3, 4, 5
    vXd, vWd = 6, 7
    vXr, vWr = [8, 9], [10, 11]
    vAo = [12, 13]
    vG1 = [14, 15]
    vF = 16
    vA = 48
    vACC = 80
    NV = vACC + 64
    ST = 16384
    pf = Prof(a, 2)
    pf.stamp(0)
    cp = f"""s_getpc_b64 s[66:67]
    L_k2_pc:
    s_sub_u32 s66, s66, L_k2_pc-{NAME}
    s_subb_u32 s67, s67, 0
    s_lshl_b32 s{sT0}, s{sW}, 12
    v_lshlrev_b32 v{vT0}, 6, v0
    v_add_u32 v{vT0}, s{sT0}, v{vT0}
    v_min_u32 v{vT0}, L_code_end-{NAME}-4, v{vT0}
    global_load_dword v{vA}, v{vT0}, s[66:67]""" if 'cp2' in EXP else ""
    a(f"""
    s_setprio {0 if 'prio0' in EXP else 2}
    s_load_dwordx2 s[4:5], s[0:1], 0
    s_load_dwordx2 s[6:7], s[0:1], 16
    s_load_dwordx4 s[8:11], s[0:1], 32
    s_load_dwordx2 s[12:13], s[0:1], 48
    s_load_dwordx2 s[{sOUT}:{sOUT+1}], s[0:1], 64
    s_load_dwordx2 s[14:15], s[0:1], 80
    v_lshrrev_b32 v1, 6, v0
    v_and_b32 v0, 63, v0
    v_readfirstlane_b32 s{sW}, v1
    s_and_b32 s{sXCD}, s2, 7
    s_lshr_b32 s{sIDX}, s2, 3
    s_mov_b32 s{sWS+2}, {WS_SIZE}
    s_mov_b32 s{sWS+3}, 0x00020000
    s_mov_b32 s{sX+2}, {2048*512*2}
    s_mov_b32 s{sX+3}, 0x00020000
    s_mov_b32 s{sW1+2}, {512*1792*2}
    s_mov_b32 s{sW1+3}, 0x00020000
    s_mov_b32 s{sB1+2}, {1792*2}
    s_mov_b32 s{sB1+3}, 0x00020000
    s_mov_b32 s{sWT+2}, {1792*512*2}
    s_mov_b32 s{sWT+3}, 0x00020000
    s_mov_b32 s{sOUT+2}, {2048*512*2}
    s_mov_b32 s{sOUT+3}, 0x00020000
    s_and_b32 s{sWM}, s{sW}, 1
    s_lshr_b32 s{sWN}, s{sW}, 1
    v_lshlrev_b32 v{vL16}, 4, v0
    {cp}
    {f's_mov_b32 s{sX+2}, 0' if 'noload' in EXP else ''}
    {f's_mov_b32 s{sW1+2}, 0' if 'noload' in EXP else ''}
    {f's_mov_b32 s{sWT+2}, 0' if 'noload' in EXP else ''}
    s_waitcnt lgkmcnt(0)
    s_mov_b32 s{sX}, s4
    s_mov_b32 s{sX+1}, s5
    s_mov_b32 s{sW1}, s8
    s_mov_b32 s{sW1+1}, s9
    s_mov_b32 s{sB1}, s10
    s_mov_b32 s{sB1+1}, s11
    s_mov_b32 s{sWT}, s12
    s_mov_b32 s{sWT+1}, s13
    s_mov_b32 s{sWS}, s14
    s_mov_b32 s{sWS+1}, s15
    """)
    wsrd = f"s[{sWS}:{sWS+3}]"
    pf.stamp(1)
    if 'gexit' in EXP or 'f1only' in EXP: a("s_endpgm")
    pf.stamp(2)
    D = 4
    a(f"""
    s_lshl_b32 s{sTW}, s{sXCD}, 2
    s_and_b32 s{sT0}, s{sIDX}, 3
    s_add_u32 s{sTW}, s{sTW}, s{sT0}
    s_lshr_b32 s{sFJ}, s{sIDX}, 2
    s_mul_i32 s{sT0}, s{sTW}, 224
    s_mul_i32 s{sT1}, s{sW}, 28
    s_add_u32 s{sT0}, s{sT0}, s{sT1}
    s_lshl_b32 s{sAO}, s{sT0}, 10
    s_add_u32 s{sAO}, s{sAO}, {WS_A}
    s_lshl_b32 s{sWO}, s{sT1}, 14
    s_lshl_b32 s{sT2}, s{sFJ}, 7
    s_add_u32 s{sWO}, s{sWO}, s{sT2}
    s_lshl_b32 s{sLB}, s{sW}, 13
    s_mul_i32 s{sT0}, s{sWM}, {112*1024}
    s_sub_u32 s{sT1}, {112*1024}, s{sT0}
    v_add_u32 v{vAo[0]}, s{sT0}, v{vL16}
    v_add_u32 v{vAo[1]}, s{sT1}, v{vL16}
    v_lshrrev_b32 v{vT0}, 2, v0
    v_lshrrev_b32 v{vT1}, 4, v0
    v_xor_b32 v{vT0}, v{vT0}, v{vT1}
    v_and_b32 v{vT0}, 1, v{vT0}
    v_lshlrev_b32 v{vT0}, 6, v{vT0}
    v_and_b32 v{vT1}, 3, v0
    v_lshl_add_u32 v{vT0}, v{vT1}, 4, v{vT0}
    v_lshrrev_b32 v{vT1}, 3, v0
    v_lshl_add_u32 v{vWd}, v{vT1}, 10, v{vT0}
    v_lshrrev_b32 v{vT0}, 5, v0
    v_bfe_u32 v{vT1}, v0, 2, 2
    v_lshl_add_u32 v{vT0}, v{vT0}, 3, v{vT1}
    v_lshlrev_b32 v{vT0}, 7, v{vT0}
    v_lshrrev_b32 v{vT1}, 1, v{vT1}
    v_xor_b32 v{vT1}, s{sWN}, v{vT1}
    v_lshl_add_u32 v{vT0}, v{vT1}, 6, v{vT0}
    v_bfe_u32 v{vT1}, v0, 4, 1
    v_lshl_add_u32 v{vT0}, v{vT1}, 5, v{vT0}
    v_and_b32 v{vT1}, 3, v0
    v_lshl_add_u32 v{vT0}, v{vT1}, 3, v{vT0}
    v_add_u32 v{vWr[0]}, s{sLB}, v{vT0}
    v_xor_b32 v{vWr[1]}, 64, v{vWr[0]}
    s_lshl_b32 s{sT0}, s{sTW}, 8
    s_add_u32 s{sT0}, s{sT0}, {WS_G}
    v_and_b32 v{vT0}, 31, v0
    v_lshlrev_b32 v{vT0}, 2, v{vT0}
    s_lshl_b32 s{sT1}, s{sWM}, 7
    v_xor_b32 v{vT0}, s{sT1}, v{vT0}
    v_xor_b32 v{vT1}, 128, v{vT0}
    buffer_load_dword v{vG1[0]}, v{vT0}, {wsrd}, s{sT0} offen
    buffer_load_dword v{vG1[1]}, v{vT1}, {wsrd}, s{sT0} offen
    s_mov_b32 s{sD}, {SPIN_MAX}
    """)
    def wloads(d):
        return [f"s_add_u32 m0, s{sLB}, {d*2048}",
                f"s_add_u32 s{sWO2}, s{sWO}, 8192",
                f"buffer_load_dwordx4 v{vWd}, s[{sWT}:{sWT+3}], s{sWO} offen lds",
                f"s_add_u32 m0, s{sLB}, {d*2048+1024}",
                f"s_add_u32 s{sWO}, s{sWO}, 16384",
                f"buffer_load_dwordx4 v{vWd}, s[{sWT}:{sWT+3}], s{sWO2} offen lds"]
    def aloads(d):
        asrd = f"s[{sX}:{sX+3}]" if 'noload' in EXP else wsrd
        return [f"buffer_load_dwordx4 {vr(vA+8*d,4)}, v{vAo[0]}, {asrd}, s{sAO} offen",
                f"buffer_load_dwordx4 {vr(vA+8*d+4,4)}, v{vAo[1]}, {asrd}, s{sAO} offen",
                f"s_add_u32 s{sAO}, s{sAO}, 1024"]
    def wreads(d, buf):
        return [f"ds_read_b64_tr_b16 {vr(vF+8*buf+4*fi+2*t2,2)}, v{vWr[fi]} offset:{d*2048+t2*512}"
                for fi in range(2) for t2 in range(2)]
    def mfmas(d, buf):
        L = []
        for fi in range(2):
            for ti in range(2):
                acc = vACC + 16 * (fi * 2 + ti)
                L.append(f"v_mfma_f32_32x32x16_bf16 {vr(acc,16)}, {vr(vF+8*buf+4*fi,4)}, {vr(vA+8*d+4*ti,4)}, {vr(acc,16)}")
        if 'nomfma' in EXP: L = ["s_nop 0"] * 4
        if 'space' in EXP: L = [m + "\ns_sleep 1" for m in L]
        return L
    for d in range(D): a("\n".join(wloads(d) + aloads(d)))
    for r in range(64): a(f"v_mov_b32 v{vACC+r}, 0")
    a(f"s_mov_b32 s{sC}, 0")
    a(f"s_waitcnt vmcnt({4*(D-1)})")
    a("\n".join(wreads(0, 0)))
    a.raw(".p2align 6")
    a.label(f"L_{P}_f2loop")
    start = len(a.lines)
    for s in range(D):
        a(f"s_waitcnt vmcnt({4*(D-2)})")
        a("\n".join(wreads((s + 1) % D, (s + 1) & 1)))
        a("s_waitcnt lgkmcnt(4)")
        a("\n".join(mfmas(s, s & 1)))
        a("\n".join(wloads(s) + aloads(s)))
    a(f"""
    s_add_u32 s{sC}, s{sC}, 1
    s_cmp_lt_u32 s{sC}, {1 if 'nof2' in EXP else 6}
    s_cbranch_scc1 L_{P}_f2loop
    """)
    seam, inner = check_loop(a.lines[start:])
    assert seam == 0 and inner == 0, (seam, inner)
    a(f"""
    s_mov_b32 s{sWT}, s6
    s_mov_b32 s{sWT+1}, s7
    s_mov_b32 s{sWT+2}, {512*512*2}
    s_lshl_b32 s{sWO}, s{sW}, 16
    s_lshl_b32 s{sT2}, s{sFJ}, 7
    s_add_u32 s{sWO}, s{sWO}, s{sT2}
    """)
    for s in range(D):
        if s < D - 1:
            a(f"s_waitcnt vmcnt({4*(D-2-s) + 2*s})")
            a("\n".join(wreads(s + 1, (s + 1) & 1)))
            a("s_waitcnt lgkmcnt(4)")
        else:
            a("s_waitcnt lgkmcnt(0)")
        a("\n".join(mfmas(s, s & 1)))
        a("\n".join(wloads(s)))
    pf.stamp(3)
    if 'nopoll' in EXP: a("s_endpgm")
    a(f"""
    v_sub_f32 v{vG1[0]}, 1.0, v{vG1[0]}
    v_sub_f32 v{vG1[1]}, 1.0, v{vG1[1]}
    s_lshl_b32 s{sAO}, s{sTW}, 16
    s_lshl_b32 s{sT0}, s{sW}, 12
    s_add_u32 s{sAO}, s{sAO}, s{sT0}
    s_add_u32 s{sAO}, s{sAO}, {WS_O}
    s_lshl_b32 s{sT0}, s{sWM}, 15
    v_add_u32 v{vAo[0]}, s{sT0}, v{vL16}
    v_xor_b32 v{vAo[1]}, 0x8000, v{vAo[0]}
    v_and_b32 v{vT0}, 3, v0
    v_bfe_u32 v{vT1}, v0, 2, 1
    v_lshlrev_b32 v{vT0}, 10, v{vT0}
    v_lshl_add_u32 v{vT3}, v{vT1}, 15, v{vT0}
    s_add_u32 s{sWO}, s{sWO}, {(16-4)*16384}
    s_mov_b32 s{sC}, 0
    """)
    for fi in range(2):
        for ti in range(2):
            acc = vACC + 16 * (fi * 2 + ti)
            for r in range(16): a(f"v_mul_f32 v{acc+r}, v{vG1[ti]}, v{acc+r}")
    a.label(f"L_{P}_ph")
    a(f"""
    s_mov_b64 exec, 0xff
    L_{P}_pollO:
    buffer_load_dword v{vT1}, v{vT3}, {wsrd}, s{sAO} offen offset:1020 sc1
    s_waitcnt vmcnt(0)
    v_cmp_eq_u32 vcc, -1, v{vT1}
    s_cbranch_vccz L_{P}_loadO
    s_sleep {PSLEEP}
    s_sub_u32 s{sD}, s{sD}, 1
    s_cbranch_scc0 L_{P}_pollO
    s_mov_b32 s{sD}, 0
    L_{P}_loadO:
    s_mov_b64 exec, -1
    """)
    for d in range(D):
        a(f"buffer_load_dwordx4 {vr(vA+8*d,4)}, v{vAo[0]}, {wsrd}, s{sAO} offen offset:{d*1024} sc1")
        a(f"buffer_load_dwordx4 {vr(vA+8*d+4,4)}, v{vAo[1]}, {wsrd}, s{sAO} offen offset:{d*1024} sc1")
    a("\n".join(wreads(0, 0)))
    a("s_waitcnt vmcnt(0)")
    a(f"v_max3_u32 v{vT1}, v{vA}, v{vA+1}, v{vA+2}")
    for r in range(3, 31, 2): a(f"v_max3_u32 v{vT1}, v{vT1}, v{vA+r}, v{vA+r+1}")
    a(f"""
    v_max_u32 v{vT1}, v{vT1}, v{vA+31}
    v_cmp_eq_u32 vcc, -1, v{vT1}
    s_cbranch_vccz L_{P}_okO
    s_sub_u32 s{sD}, s{sD}, 1
    s_cbranch_scc0 L_{P}_loadO
    s_mov_b32 s{sD}, 0
    L_{P}_okO:
    """)
    for s in range(D):
        if s < D - 1:
            a("\n".join(wreads(s + 1, (s + 1) & 1)))
            a("s_waitcnt lgkmcnt(4)")
        else:
            a("s_waitcnt lgkmcnt(0)")
        a("\n".join(mfmas(s, s & 1)))
    a(f"""
    s_cmp_eq_u32 s{sC}, 1
    s_cbranch_scc1 L_{P}_red
    """)
    for s in range(D): a("\n".join(wloads(s)))
    a(f"""
    s_add_u32 s{sAO}, s{sAO}, 16384
    s_mov_b32 s{sC}, 1
    s_branch L_{P}_ph
    L_{P}_red:
    s_nop 7
    """)
    pf.stamp(4)
    a("s_barrier")
    for j in range(1, 4):
        a(f"""
        s_xor_b32 s{sT0}, s{sW}, {j}
        s_mul_i32 s{sT0}, s{sT0}, 12288
        v_add_u32 v{vT0}, s{sT0}, v{vL16}
        """)
        for q in range(4):
            a(f"ds_write_b128 v{vT0}, {vr(vACC+16*j+4*q,4)} offset:{(j-1)*4096+q*1024}")
    a(f"""
    s_mul_i32 s{sT0}, s{sW}, 12288
    v_add_u32 v{vT1}, s{sT0}, v{vL16}
    s_lshl_b32 s{sT0}, s{sTW}, 1
    s_add_u32 s{sT0}, s{sT0}, s{sWM}
    s_lshl_b32 s{sT0}, s{sT0}, 15
    s_lshl_b32 s{sT1}, s{sFJ}, 7
    s_add_u32 s{sT0}, s{sT0}, s{sT1}
    s_lshl_b32 s{sT1}, s{sWN}, 6
    s_add_u32 s{sT0}, s{sT0}, s{sT1}
    v_and_b32 v{vT0}, 31, v0
    v_lshlrev_b32 v{vT0}, 10, v{vT0}
    v_lshrrev_b32 v{vT2}, 5, v0
    v_lshl_add_u32 v{vT0}, v{vT2}, 4, v{vT0}
    s_waitcnt lgkmcnt(0)
    s_barrier
    """)
    for s in range(3):
        for q in range(4):
            a(f"ds_read_b128 {vr(vACC+16*(s+1)+4*q,4)}, v{vT1} offset:{s*4096+q*1024}")
    a("s_waitcnt lgkmcnt(8)")
    for r in range(0, 16, 2): a(f"v_pk_add_f32 {vr(vACC+r,2)}, {vr(vACC+r,2)}, {vr(vACC+16+r,2)}")
    a("s_waitcnt lgkmcnt(0)")
    for r in range(0, 16, 2): a(f"v_pk_add_f32 {vr(vACC+32+r,2)}, {vr(vACC+32+r,2)}, {vr(vACC+48+r,2)}")
    for r in range(0, 16, 2): a(f"v_pk_add_f32 {vr(vACC+r,2)}, {vr(vACC+r,2)}, {vr(vACC+32+r,2)}")
    p = vF
    for i in range(8): a(f"v_cvt_pk_bf16_f32 v{p+i}, v{vACC+2*i}, v{vACC+2*i+1}")
    a(f"""
    v_permlane32_swap_b32 v{p}, v{p+2}
    v_permlane32_swap_b32 v{p+1}, v{p+3}
    v_permlane32_swap_b32 v{p+4}, v{p+6}
    v_permlane32_swap_b32 v{p+5}, v{p+7}
    buffer_store_dwordx4 {vr(p,4)}, v{vT0}, s[{sOUT}:{sOUT+3}], s{sT0} offen
    buffer_store_dwordx4 {vr(p+4,4)}, v{vT0}, s[{sOUT}:{sOUT+3}], s{sT0} offen offset:32
    """)
    if asmlib.PROF: a("s_waitcnt vmcnt(0)")
    pf.stamp(5)
    pf.dump(6, 2, sW, 4, vT0, vT1)
    a("s_endpgm")
    return NV

def gen():
    a = Asm()
    a.raw(kernel_header(NAME))
    a(f"""
    s_cmp_ge_u32 s2, 768
    s_cbranch_scc1 L_k2_end
    s_cmp_lt_u32 s2, 256
    s_cbranch_scc1 L_k2_gemm
    """)
    nv1 = attn_role(a)
    a.label("L_k2_end")
    a("s_endpgm")
    a.raw(".p2align 6")
    a.label("L_k2_gemm")
    a.window = []
    nv2 = gemm_role(a)
    NV = max(nv1, nv2)
    assert NV <= 168
    return a.text(), kernel_desc(NAME, NV, 72), f"; @launch kernel={NAME} grid=(768,1,1) block=(256,1,1) lds={LDS_BYTES}"

if __name__ == "__main__":
    t, d, l = gen()
    print(l); print(len(t.splitlines()))
```

```python
from asmlib import *
import asmlib
from layout import *
import os
SC = os.environ.get('K1SC', 'sc1')
EXP1 = os.environ.get('EXP1', '')

NAME = "k1_proj_kernel"
NW, NX = 6, 4
XS, WQS, W1S = 16384, 6144, 8192
WQ_BASE = NX * XS
W1_BASE = WQ_BASE + NW * WQS
FL_BASE = W1_BASE + NW * W1S
LDS_BYTES = FL_BASE + 128
SPIN_MAX = 1 << 20

def gen():
    a = Asm()
    a.raw(kernel_header(NAME))
    pf = Prof(a, 0)
    pf.stamp(0)
    sX, sWQ, sW1, sWS, sB1, sGW = 16, 20, 24, 28, 32, 36
    sWAVE, sW, sI, sJ = 40, 41, 42, 43
    sSOX, sSOQ, sSO1 = 44, 45, 46
    sSL, sSLX = 47, 69
    sN, sD, sDW = 48, 49, 50
    sC = 51
    sMX, sMQ, sM1 = 52, 53, 54
    sT0, sT1, sT2 = 55, 56, 57
    sSP, sFV = 58, 59
    sK2 = 60
    sKC, sBX, sBQ, sB1o, sKX = 64, 65, 66, 67, 68
    vG = 3
    vT0, vT1, vT2, vT3 = 6, 7, 8, 9
    cp = f"""s_getpc_b64 s[62:63]
    L_k1_pc0:
    v_lshlrev_b32 v1, 6, v0
    v_min_u32 v1, L_code_end-L_k1_pc0-4, v1
    global_load_dword v108, v1, s[62:63]""" if ('nocp' not in EXP1 and 'cpold' not in EXP1) else ""
    a(f"""
    s_cmp_ge_u32 s2, 256
    s_cbranch_scc1 L_k1_end
    {cp}
    s_load_dwordx4 s[4:7], s[0:1], 0
    s_load_dwordx4 s[8:11], s[0:1], 32
    s_load_dwordx2 s[12:13], s[0:1], 56
    s_load_dwordx2 s[14:15], s[0:1], 80
    v_lshrrev_b32 v1, 6, v0
    v_lshlrev_b32 v2, 2, v0
    v_readfirstlane_b32 s{sWAVE}, v1
    v_mov_b32 v3, 0
    v_cmp_gt_u32 vcc, 32, v0
    v_add_u32 v2, {FL_BASE}, v2
    s_and_saveexec_b64 s[62:63], vcc
    s_cbranch_execz L_k1_noinit
    ds_write_b32 v2, v3
    L_k1_noinit:
    s_mov_b64 exec, -1
    v_and_b32 v0, 63, v0
    s_and_b32 s{sT0}, s2, 7
    s_lshr_b32 s{sT1}, s2, 3
    s_and_b32 s{sI}, s{sT0}, 1
    s_lshl_b32 s{sI}, s{sI}, 3
    s_and_b32 s{sT2}, s{sT1}, 7
    s_add_u32 s{sI}, s{sI}, s{sT2}
    s_lshr_b32 s{sJ}, s{sT0}, 1
    s_lshl_b32 s{sJ}, s{sJ}, 2
    s_lshr_b32 s{sT2}, s{sT1}, 3
    s_add_u32 s{sJ}, s{sJ}, s{sT2}
    s_and_b32 s{sW}, s{sWAVE}, 3
    s_mov_b32 s{sWS+2}, {WS_SIZE}
    s_mov_b32 s{sWS+3}, 0x00020000
    s_mov_b32 s{sSP}, {SPIN_MAX}
    v_lshrrev_b32 v{vG}, 4, v0
    s_cmp_lt_u32 s{sWAVE}, 4
    s_cbranch_scc1 L_k1_comp
    """)
    vXd, vXd2, vQd, vQd2, v1d, v1d2 = 10, 18, 11, 12, 13, 14
    vFA, vOne, vFV = 15, 16, 17
    vGX, vGW, vOnes = 20, 28, 36
    a(f"""
    s_mov_b32 s{sX+2}, {2048*512*2}
    s_mov_b32 s{sX+3}, 0x00020000
    s_mov_b32 s{sWQ+2}, {512*1536*2}
    s_mov_b32 s{sWQ+3}, 0x00020000
    s_mov_b32 s{sW1+2}, {512*1792*2}
    s_mov_b32 s{sW1+3}, 0x00020000
    v_and_b32 v{vT0}, 7, v0
    v_xor_b32 v{vT0}, v{vT0}, v{vG}
    v_lshlrev_b32 v{vT0}, 4, v{vT0}
    v_lshrrev_b32 v{vT1}, 3, v0
    v_lshl_add_u32 v{vXd}, v{vT1}, 10, v{vT0}
    v_xor_b32 v{vXd2}, 64, v{vXd}
    v_add_u32 v{vXd2}, 8192, v{vXd2}
    s_lshl_b32 s{sBX}, s{sI}, 17
    s_lshl_b32 s{sT0}, s{sW}, 14
    s_add_u32 s{sBX}, s{sBX}, s{sT0}
    s_lshl_b32 s{sMX}, s{sW}, 11
    ; Wq: rows 8w..8w+7, pieces p = l (+64): pos = p>>1, k = pos/6, ct = (pos%6) ^ (w&1)
    s_mul_i32 s{sMQ}, s{sW}, 1536
    s_add_u32 s{sMQ}, s{sMQ}, {WQ_BASE}
    s_mul_i32 s{sBQ}, s{sW}, {8*3072}
    s_lshl_b32 s{sT0}, s{sJ}, 7
    s_add_u32 s{sBQ}, s{sBQ}, s{sT0}
    s_and_b32 s{sT1}, s{sW}, 1
    s_lshl_b32 s{sT2}, s{sJ}, 6
    s_sub_u32 s{sT2}, {2048-128}, s{sT2}
    """)
    for q, dst in ((0, vQd), (1, vQd2)):
        a(f"""
        v_lshrrev_b32 v{vT1}, 1, v0
        v_add_u32 v{vT1}, {32*q}, v{vT1}
        v_mul_u32_u24 v{vT2}, 0xaaab, v{vT1}
        v_lshrrev_b32 v{vT2}, 18, v{vT2}
        v_mul_u32_u24 v{vT3}, 6, v{vT2}
        v_sub_u32 v{vT1}, v{vT1}, v{vT3}
        v_xor_b32 v{vT1}, s{sT1}, v{vT1}
        v_mul_u32_u24 v{vT2}, 3072, v{vT2}
        v_lshl_add_u32 v{vT2}, v{vT1}, 5, v{vT2}
        v_lshrrev_b32 v{vT3}, 2, v{vT1}
        v_mul_u32_u24 v{vT3}, s{sT2}, v{vT3}
        v_add_u32 v{vT2}, v{vT2}, v{vT3}
        v_and_b32 v{vT3}, 1, v0
        v_lshl_add_u32 v{dst}, v{vT3}, 4, v{vT2}
        """)
    a(f"""
    s_lshl_b32 s{sM1}, s{sW}, 11
    s_add_u32 s{sM1}, s{sM1}, {W1_BASE}
    s_mul_i32 s{sB1o}, s{sW}, {8*3584}
    s_mul_i32 s{sT0}, s{sJ}, 224
    s_add_u32 s{sB1o}, s{sB1o}, s{sT0}
    s_lshl_b32 s{sT1}, s{sT1}, 2
    v_lshrrev_b32 v{vT1}, 1, v0
    v_sub_u32 v{vT1}, v{vT1}, v{vG}
    v_subrev_u32 v{vT1}, s{sT1}, v{vT1}
    v_and_b32 v{vT1}, 7, v{vT1}
    v_min_u32 v{vT1}, 6, v{vT1}
    v_mul_u32_u24 v{vT2}, 3584, v{vG}
    v_lshl_add_u32 v{vT2}, v{vT1}, 5, v{vT2}
    v_and_b32 v{vT3}, 1, v0
    v_lshl_add_u32 v{v1d}, v{vT3}, 4, v{vT2}
    v_add_u32 v{v1d2}, {4*3584}, v{v1d}
    v_mov_b32 v{vFA}, {FL_BASE}
    v_mov_b32 v{vOne}, 1
    s_lshr_b32 s{sKX}, s2, 3
    s_and_b32 s{sKX}, s{sKX}, 7
    s_lshl_b32 s{sKC}, s{sKX}, 1
    s_waitcnt lgkmcnt(0)
    s_mov_b32 s{sX}, s4
    s_mov_b32 s{sX+1}, s5
    s_mov_b32 s{sWQ}, s6
    s_mov_b32 s{sWQ+1}, s7
    s_mov_b32 s{sW1}, s8
    s_mov_b32 s{sW1+1}, s9
    """)
    def woffs():
        return f"""s_mul_i32 s{sT0}, s{sKC}, {32*3584}
        s_add_u32 s{sSO1}, s{sB1o}, s{sT0}
        s_mul_i32 s{sT0}, s{sKC}, {32*3072}
        s_add_u32 s{sSOQ}, s{sBQ}, s{sT0}
        s_add_u32 s{sKC}, s{sKC}, 1
        s_and_b32 s{sKC}, s{sKC}, 15"""
    def xoffs(half):
        t = f"""s_lshl_b32 s{sT0}, s{sKX}, 7
        s_add_u32 s{sSOX}, s{sBX}, s{sT0}"""
        if half:
            t += f"""
            s_add_u32 s{sSOX}, s{sSOX}, 65536
            s_add_u32 s{sKX}, s{sKX}, 1
            s_and_b32 s{sKX}, s{sKX}, 7"""
        return t
    def xdma(m, half, e):
        return (f"s_add_u32 m0, s{sMX}, {(m % NX)*XS + half*8192 + e*1024}",
                f"buffer_load_dwordx4 v{vXd2 if e else vXd}, s[{sX}:{sX+3}], s{sSOX} offen lds")
    def ready_txt(c, younger):
        return f"""s_waitcnt vmcnt({younger})
        s_mov_b64 exec, 1
        ds_add_u32 v{vFA}, v{vOne} offset:{4*c}
        s_mov_b64 exec, -1"""
    cnt = []
    def issue(c, sig, nxt):
        sl = c % NW
        m, half = (c + 1) >> 1, (c + 1) & 1
        hasx = m < 8
        n = 0
        if hasx:
            x = xdma(m, half, 0)
            a(x[0]); a(f"ds_read_b32 v{vFV}, v{vFA} offset:{64+4*nxt}" if nxt is not None else "s_nop 0"); a(x[1]); n += 1
        a(f"""
        s_add_u32 m0, s{sM1}, {sl*W1S}
        s_nop 0
        buffer_load_dwordx4 v{v1d}, s[{sW1}:{sW1+3}], s{sSO1} offen lds
        s_add_u32 m0, s{sMQ}, {sl*WQS}
        s_nop 0
        buffer_load_dwordx4 v{vQd}, s[{sWQ}:{sWQ+3}], s{sSOQ} offen lds
        """); n += 2
        if sig == 0: a("s_barrier")
        if sig is not None: a(ready_txt(sig, sum(cnt[sig + 1:]) + n))
        if hasx:
            x = xdma(m, half, 1)
            a(x[0]); a("s_nop 0"); a(x[1]); n += 1
        a(f"""
        s_add_u32 m0, s{sM1}, {sl*W1S+1024}
        s_nop 0
        buffer_load_dwordx4 v{v1d2}, s[{sW1}:{sW1+3}], s{sSO1} offen lds
        s_add_u32 m0, s{sMQ}, {sl*WQS+1024}
        s_mov_b32 s{sT1}, s{sSOQ}
        """); n += 1
        a(woffs())
        a(xoffs((c + 2) & 1))
        if nxt is not None:
            a(f"""
            s_waitcnt lgkmcnt(0)
            v_readfirstlane_b32 s{sFV}, v{vFV}
            """)
        a(f"""
        s_mov_b32 exec_hi, 0
        buffer_load_dwordx4 v{vQd2}, s[{sWQ}:{sWQ+3}], s{sT1} offen lds
        s_mov_b32 exec_hi, -1
        """); n += 1
        if nxt is not None:
            a(f"""
            L_k1_wc{nxt}:
            s_cmp_ge_u32 s{sFV}, 4
            s_cbranch_scc1 L_k1_wdok{nxt}
            ds_read_b32 v{vFV}, v{vFA} offset:{64+4*nxt}
            s_sub_u32 s{sSP}, s{sSP}, 1
            s_waitcnt lgkmcnt(0)
            v_readfirstlane_b32 s{sFV}, v{vFV}
            s_cbranch_scc0 L_k1_wc{nxt}
            s_mov_b32 s{sSP}, 0
            L_k1_wdok{nxt}:
            """)
        cnt.append(n)
    LAG = int(os.environ.get('K1LAG', '3'))
    a(woffs()); a(xoffs(0))
    for e in range(2):
        x = xdma(0, 0, e); a(x[0]); a("s_nop 0"); a(x[1])
    a(xoffs(1))
    for c in range(16):
        if c == LAG: pf.stamp(1); pf.stamp(2)
        issue(c, sig=(c - LAG if c >= LAG else None), nxt=(c + 1 - NW if NW <= c + 1 < 16 else None))
    pf.stamp(3)
    a(f"""
    s_mov_b32 s{sWS}, s14
    s_mov_b32 s{sWS+1}, s15
    s_mov_b32 s{sGW}, s12
    s_mov_b32 s{sGW+1}, s13
    s_mov_b32 s{sGW+2}, 1024
    s_mov_b32 s{sGW+3}, 0x00020000
    s_lshl_b32 s{sT0}, s{sI}, 7
    s_lshl_b32 s{sT1}, s{sJ}, 3
    s_add_u32 s{sT0}, s{sT0}, s{sT1}
    s_lshl_b32 s{sT1}, s{sW}, 1
    s_add_u32 s{sN}, s{sT0}, s{sT1}
    s_lshl_b32 s{sT1}, s{sN}, 10
    v_and_b32 v{vT1}, 31, v0
    v_lshlrev_b32 v{vT1}, 5, v{vT1}
    v_lshrrev_b32 v{vT2}, 5, v0
    v_lshl_add_u32 v{vT2}, v{vT2}, 10, v{vT1}
    buffer_load_dwordx4 {vr(vGX,4)}, v{vT2}, s[{sX}:{sX+3}], s{sT1} offen
    buffer_load_dwordx4 {vr(vGX+4,4)}, v{vT2}, s[{sX}:{sX+3}], s{sT1} offen offset:16
    buffer_load_dwordx4 {vr(vGW,4)}, v{vT1}, s[{sGW}:{sGW+3}], 0 offen
    buffer_load_dwordx4 {vr(vGW+4,4)}, v{vT1}, s[{sGW}:{sGW+3}], 0 offen offset:16
    v_mov_b32 v{vOnes}, -1
    v_mov_b32 v{vOnes+1}, -1
    v_mov_b32 v{vOnes+2}, -1
    v_mov_b32 v{vOnes+3}, -1
    v_lshlrev_b32 v{vT0}, 4, v0
    s_lshl_b32 s{sT0}, s2, 2
    s_add_u32 s{sT0}, s{sT0}, s{sW}
    s_lshl_b32 s{sT1}, s{sT0}, 11
    s_add_u32 s{sT1}, s{sT1}, {WS_O}
    buffer_store_dwordx4 {vr(vOnes,4)}, v{vT0}, s[{sWS}:{sWS+3}], s{sT1} offen {SC}
    buffer_store_dwordx4 {vr(vOnes,4)}, v{vT0}, s[{sWS}:{sWS+3}], s{sT1} offen offset:1024 {SC}
    """)
    for c in range(16 - LAG, 16): a(ready_txt(c, sum(cnt[c + 1:]) + 6))
    a("s_waitcnt vmcnt(2)")
    acc = vT1
    a(f"v_mov_b32 v{acc}, 0")
    for r in range(8): a(f"v_dot2_f32_bf16 v{acc}, v{vGX+r}, v{vGW+r}, v{acc}")
    a("s_nop 3")
    for mod in ["quad_perm:[1,0,3,2]", "quad_perm:[2,3,0,1]", "row_half_mirror", "row_mirror"]:
        a(f"v_add_f32_dpp v{acc}, v{acc}, v{acc} {mod} row_mask:0xf bank_mask:0xf")
    a(f"""
    v_mov_b32 v{vT2}, v{acc}
    v_mov_b32 v{vT3}, v{acc}
    v_permlane16_swap_b32 v{vT2}, v{vT3}
    v_add_f32 v{acc}, v{vT2}, v{vT3}
    v_mul_f32 v{acc}, {hex(f32bits(-LOG2E))}, v{acc}
    v_exp_f32 v{acc}, v{acc}
    v_add_f32 v{acc}, 1.0, v{acc}
    v_rcp_f32 v{acc}, v{acc}
    s_lshl_b32 s{sT0}, s{sN}, 2
    s_add_u32 s{sT0}, s{sT0}, {WS_G}
    v_lshrrev_b32 v{vT2}, 5, v0
    v_lshlrev_b32 v{vT2}, 2, v{vT2}
    s_mov_b32 exec_lo, 1
    s_mov_b32 exec_hi, 1
    buffer_store_dword v{acc}, v{vT2}, s[{sWS}:{sWS+3}], s{sT0} offen
    """)
    pf.stamp(4); pf.stamp(5)
    pf.dump(6, 2, sWAVE, 8, vT0, vT1)
    a("s_endpgm")
    a.label("L_k1_comp")
    a.window = []
    vN16, vR, vC = 2, 4, 5
    vXr, vQr = [10, 19], 14
    vFA, vOne, vFV = 11, 12, 13
    vWr = list(range(15, 19))
    vF = 20
    FSZ = 44
    vACC = vF + 2 * FSZ
    NV = vACC + 112
    sWM, sWN = sSOX, sSOQ
    sWX, sWQw, sW1w = sMX, sMQ, sM1
    sDQ = sN
    wu = f"""s_load_dwordx2 s[{sX}:{sX+1}], s[0:1], 48
    s_load_dwordx2 s[{sWQ}:{sWQ+1}], s[0:1], 16
    s_mov_b32 s{sX+2}, {1792*512*2}
    s_mov_b32 s{sX+3}, 0x00020000
    s_mov_b32 s{sWQ+2}, {512*512*2}
    s_mov_b32 s{sWQ+3}, 0x00020000
    s_lshl_b32 s{sT0}, s2, 2
    s_add_u32 s{sT0}, s{sT0}, s{sW}
    s_lshl_b32 s{sT0}, s{sT0}, 7
    v_lshlrev_b32 v{vT0}, 17, v0
    s_waitcnt lgkmcnt(0)
    s_mov_b64 exec, 0x3fff
    buffer_load_dword v{vACC+1}, v{vT0}, s[{sX}:{sX+3}], s{sT0} offen
    s_mov_b64 exec, 0xf
    buffer_load_dword v{vACC+1}, v{vT0}, s[{sWQ}:{sWQ+3}], s{sT0} offen
    s_mov_b64 exec, -1""" if 'wu' in EXP1 else ""
    if 'cpold' in EXP1:
        a(f"""
        s_getpc_b64 s[62:63]
        L_k1_pc:
        s_sub_u32 s62, s62, L_k1_pc-{NAME}
        s_subb_u32 s63, s63, 0
        s_lshl_b32 s{sT0}, s{sW}, 13
        v_lshlrev_b32 v{vT0}, 7, v0
        v_add_u32 v{vT0}, s{sT0}, v{vT0}
        v_min_u32 v{vT0}, L_code_end-{NAME}-4, v{vT0}
        global_load_dword v{vACC}, v{vT0}, s[62:63]
        """)
    a(f"""
    s_and_b32 s{sWM}, s{sW}, 1
    s_lshr_b32 s{sWN}, s{sW}, 1
    v_and_b32 v{vN16}, 15, v0
    v_bfe_u32 v{vR}, v0, 2, 2
    v_and_b32 v{vC}, 3, v0
    v_lshrrev_b32 v{vT0}, 1, v{vN16}
    v_xor_b32 v{vT0}, v{vG}, v{vT0}
    v_lshlrev_b32 v{vT0}, 4, v{vT0}
    v_lshl_add_u32 v{vT0}, v{vN16}, 7, v{vT0}
    s_lshl_b32 s{sT0}, s{sWM}, 13
    v_add_u32 v{vXr[0]}, s{sT0}, v{vT0}
    v_xor_b32 v{vXr[1]}, 64, v{vXr[0]}
    v_mov_b32 v{vFA}, {FL_BASE}
    v_mov_b32 v{vOne}, 1
    v_mov_b32 v{vFV}, 0
    s_mov_b32 s{sSL}, 0
    s_mov_b32 s{sSLX}, 0
    s_mov_b32 s{sC}, 0
    s_mov_b32 s{sWX}, {-(NX-1)*XS}
    s_mov_b32 s{sWQw}, {-(NW-1)*WQS}
    s_mov_b32 s{sW1w}, {-(NW-1)*W1S}
    v_lshl_add_u32 v{vT1}, v{vG}, 3, v{vR}
    v_and_b32 v{vT2}, 1, v{vG}
    v_mul_u32_u24 v{vT0}, 192, v{vT1}
    v_lshl_add_u32 v{vT0}, v{vC}, 3, v{vT0}
    v_add_u32 v{vT0}, {WQ_BASE}, v{vT0}
    v_xor_b32 v{vT3}, s{sWN}, v{vT2}
    v_lshl_add_u32 v{vQr}, v{vT3}, 5, v{vT0}
    v_lshlrev_b32 v{vT1}, 8, v{vT1}
    v_lshl_add_u32 v{vT1}, v{vC}, 3, v{vT1}
    v_add_u32 v{vT1}, {W1_BASE}, v{vT1}
    v_lshl_add_u32 v{vT2}, v{vT2}, 2, v{vR}
    v_lshlrev_b32 v{vT3}, 3, v{vG}
    s_mul_i32 s{sT1}, s{sJ}, 224
    s_mov_b32 s{sB1+2}, {1792*2}
    s_mov_b32 s{sB1+3}, 0x00020000
    s_waitcnt lgkmcnt(0)
    s_mov_b32 s{sWS}, s14
    s_mov_b32 s{sWS+1}, s15
    s_mov_b32 s{sB1}, s10
    s_mov_b32 s{sB1+1}, s11
    {wu}
    s_cmp_eq_u32 s{sWN}, 1
    s_cbranch_scc1 L_k1_gb
    """)
    def frag(buf):
        b = vF + buf * FSZ
        return [b + 4 * t for t in range(4)], [b + 16 + 4 * i for i in range(7)]
    def role(name, F):
        nf = len(F); nt = 3 + nf
        def reads(buf):
            X, W = frag(buf); L = []
            def wr(i):
                for t2 in range(2):
                    if i < nf: va, off = vWr[i], 4 * t2 * 256
                    else:      va, off = vQr, 4 * t2 * 192 + (i - nf) * 64
                    L.append(f"ds_read_b64_tr_b16 {vr(W[i]+2*t2,2)}, v{va} offset:{off}")
            for t in range(4):
                L.append(f"ds_read_b128 {vr(X[t],4)}, v{vXr[buf]} offset:{t*2048}")
                wr(t)
            for i in range(4, nt): wr(i)
            return L
        def mfmas(buf):
            X, W = frag(buf); L = []
            for i in range(nt):
                for t in range(4):
                    acc = vACC + (i * 4 + t) * 4
                    if i == nt - 1: L.append(f"v_mfma_f32_16x16x32_bf16 {vr(acc,4)}, {vr(X[t],4)}, {vr(W[i],4)}, {vr(acc,4)}")
                    else:           L.append(f"v_mfma_f32_16x16x32_bf16 {vr(acc,4)}, {vr(W[i],4)}, {vr(X[t],4)}, {vr(acc,4)}")
            return L
        def check(tag):
            return f"""
            L_k1_{name}_ck{tag}:
            v_readfirstlane_b32 s{sFV}, v{vFV}
            s_cmp_ge_u32 s{sFV}, 4
            s_cbranch_scc1 L_k1_{name}_ok{tag}
            ds_read_b32 v{vFV}, v{vFA}
            s_sub_u32 s{sSP}, s{sSP}, 1
            s_waitcnt lgkmcnt(0)
            s_cbranch_scc0 L_k1_{name}_ck{tag}
            s_mov_b32 s{sSP}, 0
            L_k1_{name}_ok{tag}:
            """
        vB = vF + FSZ
        for i, ct in enumerate(F):
            a(f"buffer_load_dwordx2 {vr(vB+2*i,2)}, v{vT3}, s[{sB1}:{sB1+3}], s{sT1} offen offset:{ct*32}")
        for i, ct in enumerate(F):
            a(f"""
            v_add_u32 v{vT0}, {ct}, v{vT2}
            v_and_b32 v{vT0}, 7, v{vT0}
            v_lshl_add_u32 v{vWr[i]}, v{vT0}, 5, v{vT1}
            """)
        for r in range(48): a(f"v_mov_b32 v{vACC+16*nf+r}, 0")
        a("s_waitcnt vmcnt(0)")
        for i in range(nf):
            for t in range(4):
                acc = vACC + (i * 4 + t) * 4
                a(f"""
                v_lshlrev_b32 v{acc}, 16, v{vB+2*i}
                v_and_b32 v{acc+1}, 0xffff0000, v{vB+2*i}
                v_lshlrev_b32 v{acc+2}, 16, v{vB+2*i+1}
                v_and_b32 v{acc+3}, 0xffff0000, v{vB+2*i+1}
                """)
        pf.stamp(1)
        a("s_barrier")
        a(check("p"))
        pf.stamp(2)
        a("\n".join(reads(0)))
        a(f"ds_read_b32 v{vFV}, v{vFA} offset:4")
        a.raw(".p2align 6")
        a.label(f"L_k1_{name}_loop")
        start = len(a.lines)
        for buf in range(2):
            M = mfmas(buf)
            R = reads(buf ^ 1) + [f"ds_read_b32 v{vFV}, v{vFA} offset:4"]
            G = [f"""s_mov_b64 exec, 1
                 ds_add_u32 v{vFA}, v{vOne} offset:64
                 s_mov_b64 exec, -1""",
                 f"""s_add_u32 s{sSL}, s{sSL}, 1
                 s_cmp_eq_u32 s{sSL}, {NW}
                 s_cselect_b32 s{sDW}, s{sW1w}, {W1S}""",
                 f"""s_cselect_b32 s{sDQ}, s{sWQw}, {WQS}
                 s_cselect_b32 s{sSL}, 0, s{sSL}
                 v_add_u32 v{vFA}, 4, v{vFA}""",
                 f"""v_add_u32 v{vQr}, s{sDQ}, v{vQr}
                 v_add_u32 v{vWr[0]}, s{sDW}, v{vWr[0]}""",
                 "\n".join(f"v_add_u32 v{r}, s{sDW}, v{r}" for r in vWr[1:nf])]
            if buf == 1:
                G += [f"""s_add_u32 s{sSLX}, s{sSLX}, 1
                      s_cmp_eq_u32 s{sSLX}, {NX}
                      s_cselect_b32 s{sD}, s{sWX}, {XS}""",
                      f"""s_cselect_b32 s{sSLX}, 0, s{sSLX}
                      v_add_u32 v{vXr[0]}, s{sD}, v{vXr[0]}
                      v_add_u32 v{vXr[1]}, s{sD}, v{vXr[1]}"""]
            G.append(check(buf))
            while R:
                n = 1 if (len(G) + len(R) <= len(M) - 2) else 2
                G.append("\n".join(R[:n])); R = R[n:]
            assert len(G) <= len(M), (len(G), len(M))
            if buf == 1:
                a(f"""
                s_add_u32 s{sC}, s{sC}, 1
                s_cmp_eq_u32 s{sC}, 8
                s_waitcnt lgkmcnt(0)
                s_cbranch_scc1 L_k1_{name}_last
                """)
            else:
                a("s_waitcnt lgkmcnt(0)")
            for i, m in enumerate(M):
                a(m)
                if i < len(G): a(G[i])
        a(f"s_branch L_k1_{name}_loop")
        seam, inner = check_loop(a.lines[start:])
        assert seam == 0 and inner == 0, (seam, inner)
        a.label(f"L_k1_{name}_last")
        a.window = []
        M = mfmas(1)
        for m in M[4*nf:] + M[:4*nf]: a(m)
        pf.stamp(3)
        vP = vF
        a(f"""
        s_lshl_b32 s{sT0}, s{sI}, 2
        s_lshl_b32 s{sT1}, s{sWM}, 1
        s_add_u32 s{sD}, s{sT0}, s{sT1}
        v_lshlrev_b32 v{vT0}, 4, v0
        s_lshl_b32 s{sT0}, s{sD}, 10
        s_lshl_b32 s{sT1}, s{sJ}, 2
        s_add_u32 s{sT1}, s{sT1}, s{sWN}
        s_lshl_b32 s{sT1}, s{sT1}, 16
        s_add_u32 s{sT1}, s{sT1}, s{sT0}
        s_add_u32 s{sDW}, s{sT1}, {2*65536}
        s_lshl_b32 s{sN}, s{sJ}, 1
        s_add_u32 s{sN}, s{sN}, s{sWN}
        s_lshl_b32 s{sN}, s{sN}, 16
        s_add_u32 s{sN}, s{sN}, s{sT0}
        s_add_u32 s{sN}, s{sN}, {WS_V}
        s_mov_b32 s{sT2}, {hex(f32bits(QSCALE))}
        s_cmp_lt_u32 s{sJ}, 8
        s_cselect_b32 s{sK2}, s{sT2}, 1.0
        s_mov_b32 s{sK2+1}, s{sK2}
        """)
        assert WS_Q == 0 and WS_K == 32 * 65536
        k = 0
        for c3 in (2, 0, 1):
            for tp in range(2):
                p = vP + 4 * k; k += 1
                a0 = vACC + ((nf + c3) * 4 + 2 * tp) * 4; a1 = a0 + 4
                if c3 < 2:
                    for r in range(0, 8, 2): a(f"v_pk_mul_f32 {vr(a0+r,2)}, {vr(a0+r,2)}, s[{sK2}:{sK2+1}]")
                sw = "v_permlane32_swap_b32" if c3 == 2 else "v_permlane16_swap_b32"
                a(f"""
                v_cvt_pk_bf16_f32 v{p}, v{a0}, v{a0+1}
                v_cvt_pk_bf16_f32 v{p+1}, v{a0+2}, v{a0+3}
                v_cvt_pk_bf16_f32 v{p+2}, v{a1}, v{a1+1}
                v_cvt_pk_bf16_f32 v{p+3}, v{a1+2}, v{a1+3}
                {sw} v{p}, v{p+2}
                {sw} v{p+1}, v{p+3}
                buffer_store_dwordx4 {vr(p,4)}, v{vT0}, s[{sWS}:{sWS+3}], s{[sT1, sDW, sN][c3]} offen offset:{tp*1024} {SC}
                """)
        a(f"""
        s_mul_i32 s{sT0}, s{sD}, 112
        s_mul_i32 s{sT1}, s{sJ}, 7
        s_add_u32 s{sT0}, s{sT0}, s{sT1}
        s_add_u32 s{sT0}, s{sT0}, {F[0]}
        s_lshl_b32 s{sT0}, s{sT0}, 10
        s_add_u32 s{sT0}, s{sT0}, {WS_A}
        s_add_u32 s{sT1}, s{sT0}, {112*1024}
        s_mov_b32 s{sK2}, {hex(f32bits(LOG2E))}
        s_mov_b32 s{sK2+1}, {hex(f32bits(LOG2E))}
        """)
        E0 = vF + FSZ
        PK = vACC + 16 * nf
        k = 0
        for i in range(nf):
            hs = [vACC + (i * 4 + 2 * tp) * 4 for tp in range(2)]
            es = [E0, E0 + 16]; ds = [E0 + 8, E0 + 24]
            def both(f):
                for tp in range(2): f(hs[tp], es[tp], ds[tp])
            both(lambda h, e, d: [a(f"v_pk_mul_f32 {vr(e+r,2)}, {vr(h+r,2)}, s[{sK2}:{sK2+1}]") for r in range(0, 8, 2)])
            both(lambda h, e, d: [a(f"v_exp_f32 v{e+r}, v{e+r}") for r in range(8)])
            both(lambda h, e, d: [a(f"v_pk_add_f32 {vr(e+r,2)}, {vr(e+r,2)}, 1.0 op_sel_hi:[1,0]") for r in range(0, 8, 2)])
            both(lambda h, e, d: [a(f"v_pk_fma_f32 {vr(d+r,2)}, {vr(e+r,2)}, {vr(e+r,2)}, 1.0 op_sel_hi:[1,1,0]") for r in range(0, 8, 2)])
            both(lambda h, e, d: [a(f"v_rcp_f32 v{d+r}, v{d+r}") for r in range(8)])
            both(lambda h, e, d: [a(f"v_pk_mul_f32 {vr(d+r,2)}, {vr(d+r,2)}, {vr(h+r,2)}") for r in range(0, 8, 2)])
            both(lambda h, e, d: [a(f"v_pk_fma_f32 {vr(d+r,2)}, {vr(d+r,2)}, -2.0, {vr(h+r,2)} op_sel_hi:[1,0,1]") for r in range(0, 8, 2)])
            ps = [PK + 4 * (k + tp) for tp in range(2)]; k += 2
            for tp in range(2):
                p, d = ps[tp], ds[tp]
                a(f"""
                v_cvt_pk_bf16_f32 v{p}, v{d}, v{d+1}
                v_cvt_pk_bf16_f32 v{p+1}, v{d+2}, v{d+3}
                v_cvt_pk_bf16_f32 v{p+2}, v{d+4}, v{d+5}
                v_cvt_pk_bf16_f32 v{p+3}, v{d+6}, v{d+7}
                """)
            for tp in range(2):
                p = ps[tp]
                a(f"""
                v_permlane16_swap_b32 v{p}, v{p+2}
                v_permlane16_swap_b32 v{p+1}, v{p+3}
                buffer_store_dwordx4 {vr(p,4)}, v{vT0}, s[{sWS}:{sWS+3}], s{sT1 if tp else sT0} offen offset:{i*1024} {SC}
                """)
        pf.stamp(4)
        if asmlib.PROF: a("s_waitcnt vmcnt(0)")
        pf.stamp(5)
        pf.dump(6, 2, sWAVE, 8, vT0, vT1)
        a("s_endpgm")
    role("ga", [0, 1, 2])
    a.label("L_k1_gb")
    a.window = []
    role("gb", [3, 4, 5, 6])
    a.label("L_k1_end")
    a("s_endpgm")
    assert NV <= 256
    return a.text(), kernel_desc(NAME, NV, 72), f"; @launch kernel={NAME} grid=(256,1,1) block=(512,1,1) lds={LDS_BYTES}"

if __name__ == "__main__":
    t, d, l = gen()
    print(l); print(len(t.splitlines()))
```

```python
import sys
import asmlib
import k1e, k2d
from build import build
A, B = k1e.gen(), k2d.gen()
build([A, B], "r_ab.s"); build([A, A, B], "r_aab.s"); build([A, B, A, B], "r_abab.s"); build([A, B, B], "r_abb.s"); build([A, B, A, B, A, B], "r_ababab.s")
```

```python
from asmlib import *
import asmlib
from layout import *
import os
SC = os.environ.get('K1SC', 'sc1')
EXP1 = os.environ.get('EXP1', '')

NAME = "k1_proj_kernel"
NW, NX = 6, 4
XS, WQS, W1S = 16384, 6144, 8192
WQ_BASE = NX * XS
W1_BASE = WQ_BASE + NW * WQS
FL_BASE = W1_BASE + NW * W1S
LDS_BYTES = FL_BASE + 128
SPIN_MAX = 1 << 20

def gen():
    a = Asm()
    a.raw(kernel_header(NAME))
    pf = Prof(a, 0)
    pf.stamp(0)
    sX, sWQ, sW1, sWS, sB1, sGW = 16, 20, 24, 28, 32, 36
    sWAVE, sW, sI, sJ = 40, 41, 42, 43
    sSOX, sSOQ, sSO1 = 44, 45, 46
    sSL, sSLX = 47, 69
    sN, sD, sDW = 48, 49, 50
    sC = 51
    sMX, sMQ, sM1 = 52, 53, 54
    sT0, sT1, sT2 = 55, 56, 57
    sSP, sFV = 58, 59
    sK2 = 60
    sKC, sBX, sBQ, sB1o, sKX = 64, 65, 66, 67, 68
    vG = 3
    vT0, vT1, vT2, vT3 = 6, 7, 8, 9
    cp = f"""s_getpc_b64 s[62:63]
    L_k1_pc0:
    v_lshlrev_b32 v1, 6, v0
    v_min_u32 v1, L_code_end-L_k1_pc0-4, v1
    global_load_dword v108, v1, s[62:63]""" if ('nocp' not in EXP1 and 'cpold' not in EXP1) else ""
    a(f"""
    s_cmp_ge_u32 s2, 256
    s_cbranch_scc1 L_k1_end
    {'s_memrealtime s[70:71]' if 'tdiag' in EXP1 else ''}
    {cp}
    s_load_dwordx4 s[4:7], s[0:1], 0
    s_load_dwordx4 s[8:11], s[0:1], 32
    s_load_dwordx2 s[12:13], s[0:1], 56
    s_load_dwordx2 s[14:15], s[0:1], 80
    v_lshrrev_b32 v1, 6, v0
    v_lshlrev_b32 v2, 2, v0
    v_readfirstlane_b32 s{sWAVE}, v1
    v_mov_b32 v3, 0
    v_cmp_gt_u32 vcc, 32, v0
    v_add_u32 v2, {FL_BASE}, v2
    s_and_saveexec_b64 s[62:63], vcc
    s_cbranch_execz L_k1_noinit
    ds_write_b32 v2, v3
    L_k1_noinit:
    s_mov_b64 exec, -1
    v_and_b32 v0, 63, v0
    s_and_b32 s{sT0}, s2, 7
    s_lshr_b32 s{sT1}, s2, 3
    s_and_b32 s{sI}, s{sT0}, 1
    s_lshl_b32 s{sI}, s{sI}, 3
    s_and_b32 s{sT2}, s{sT1}, 7
    s_add_u32 s{sI}, s{sI}, s{sT2}
    s_lshr_b32 s{sJ}, s{sT0}, 1
    s_lshl_b32 s{sJ}, s{sJ}, 2
    s_lshr_b32 s{sT2}, s{sT1}, 3
    s_add_u32 s{sJ}, s{sJ}, s{sT2}
    s_and_b32 s{sW}, s{sWAVE}, 3
    s_mov_b32 s{sWS+2}, {WS_SIZE}
    s_mov_b32 s{sWS+3}, 0x00020000
    s_mov_b32 s{sSP}, {SPIN_MAX}
    v_lshrrev_b32 v{vG}, 4, v0
    s_cmp_lt_u32 s{sWAVE}, 4
    s_cbranch_scc1 L_k1_comp
    """)
    vXd, vXd2, vQd, vQd2, v1d, v1d2 = 10, 18, 11, 12, 13, 14
    vFA, vOne, vFV = 15, 16, 17
    vGX, vGW, vOnes = 20, 28, 36
    a(f"""
    s_mov_b32 s{sX+2}, {2048*512*2}
    s_mov_b32 s{sX+3}, 0x00020000
    s_mov_b32 s{sWQ+2}, {512*1536*2}
    s_mov_b32 s{sWQ+3}, 0x00020000
    s_mov_b32 s{sW1+2}, {512*1792*2}
    s_mov_b32 s{sW1+3}, 0x00020000
    v_and_b32 v{vT0}, 7, v0
    v_xor_b32 v{vT0}, v{vT0}, v{vG}
    v_lshlrev_b32 v{vT0}, 4, v{vT0}
    v_lshrrev_b32 v{vT1}, 3, v0
    v_lshl_add_u32 v{vXd}, v{vT1}, 10, v{vT0}
    v_xor_b32 v{vXd2}, 64, v{vXd}
    v_add_u32 v{vXd2}, 8192, v{vXd2}
    s_lshl_b32 s{sBX}, s{sI}, 17
    s_lshl_b32 s{sT0}, s{sW}, 14
    s_add_u32 s{sBX}, s{sBX}, s{sT0}
    s_lshl_b32 s{sMX}, s{sW}, 11
    ; Wq: rows 8w..8w+7, pieces p = l (+64): pos = p>>1, k = pos/6, ct = (pos%6) ^ (w&1)
    s_mul_i32 s{sMQ}, s{sW}, 1536
    s_add_u32 s{sMQ}, s{sMQ}, {WQ_BASE}
    s_mul_i32 s{sBQ}, s{sW}, {8*3072}
    s_lshl_b32 s{sT0}, s{sJ}, 7
    s_add_u32 s{sBQ}, s{sBQ}, s{sT0}
    s_and_b32 s{sT1}, s{sW}, 1
    s_lshl_b32 s{sT2}, s{sJ}, 6
    s_sub_u32 s{sT2}, {2048-128}, s{sT2}
    """)
    for q, dst in ((0, vQd), (1, vQd2)):
        a(f"""
        v_lshrrev_b32 v{vT1}, 1, v0
        v_add_u32 v{vT1}, {32*q}, v{vT1}
        v_mul_u32_u24 v{vT2}, 0xaaab, v{vT1}
        v_lshrrev_b32 v{vT2}, 18, v{vT2}
        v_mul_u32_u24 v{vT3}, 6, v{vT2}
        v_sub_u32 v{vT1}, v{vT1}, v{vT3}
        v_xor_b32 v{vT1}, s{sT1}, v{vT1}
        v_mul_u32_u24 v{vT2}, 3072, v{vT2}
        v_lshl_add_u32 v{vT2}, v{vT1}, 5, v{vT2}
        v_lshrrev_b32 v{vT3}, 2, v{vT1}
        v_mul_u32_u24 v{vT3}, s{sT2}, v{vT3}
        v_add_u32 v{vT2}, v{vT2}, v{vT3}
        v_and_b32 v{vT3}, 1, v0
        v_lshl_add_u32 v{dst}, v{vT3}, 4, v{vT2}
        """)
    a(f"""
    s_lshl_b32 s{sM1}, s{sW}, 11
    s_add_u32 s{sM1}, s{sM1}, {W1_BASE}
    s_mul_i32 s{sB1o}, s{sW}, {8*3584}
    s_mul_i32 s{sT0}, s{sJ}, 224
    s_add_u32 s{sB1o}, s{sB1o}, s{sT0}
    s_lshl_b32 s{sT1}, s{sT1}, 2
    v_lshrrev_b32 v{vT1}, 1, v0
    v_sub_u32 v{vT1}, v{vT1}, v{vG}
    v_subrev_u32 v{vT1}, s{sT1}, v{vT1}
    v_and_b32 v{vT1}, 7, v{vT1}
    v_min_u32 v{vT1}, 6, v{vT1}
    v_mul_u32_u24 v{vT2}, 3584, v{vG}
    v_lshl_add_u32 v{vT2}, v{vT1}, 5, v{vT2}
    v_and_b32 v{vT3}, 1, v0
    v_lshl_add_u32 v{v1d}, v{vT3}, 4, v{vT2}
    v_add_u32 v{v1d2}, {4*3584}, v{v1d}
    v_mov_b32 v{vFA}, {FL_BASE}
    v_mov_b32 v{vOne}, 1
    s_lshr_b32 s{sKX}, s2, 3
    s_and_b32 s{sKX}, s{sKX}, 7
    s_lshl_b32 s{sKC}, s{sKX}, 1
    s_waitcnt lgkmcnt(0)
    s_mov_b32 s{sX}, s4
    s_mov_b32 s{sX+1}, s5
    s_mov_b32 s{sWQ}, s6
    s_mov_b32 s{sWQ+1}, s7
    s_mov_b32 s{sW1}, s8
    s_mov_b32 s{sW1+1}, s9
    """)
    def woffs():
        return f"""s_mul_i32 s{sT0}, s{sKC}, {32*3584}
        s_add_u32 s{sSO1}, s{sB1o}, s{sT0}
        s_mul_i32 s{sT0}, s{sKC}, {32*3072}
        s_add_u32 s{sSOQ}, s{sBQ}, s{sT0}
        s_add_u32 s{sKC}, s{sKC}, 1
        s_and_b32 s{sKC}, s{sKC}, 15"""
    def xoffs(half):
        t = f"""s_lshl_b32 s{sT0}, s{sKX}, 7
        s_add_u32 s{sSOX}, s{sBX}, s{sT0}"""
        if half:
            t += f"""
            s_add_u32 s{sSOX}, s{sSOX}, 65536
            s_add_u32 s{sKX}, s{sKX}, 1
            s_and_b32 s{sKX}, s{sKX}, 7"""
        return t
    def xdma(m, half, e):
        return (f"s_add_u32 m0, s{sMX}, {(m % NX)*XS + half*8192 + e*1024}",
                f"buffer_load_dwordx4 v{vXd2 if e else vXd}, s[{sX}:{sX+3}], s{sSOX} offen lds")
    def ready_txt(c, younger):
        return f"""s_waitcnt vmcnt({younger})
        s_mov_b64 exec, 1
        ds_add_u32 v{vFA}, v{vOne} offset:{4*c}
        s_mov_b64 exec, -1"""
    cnt = []
    def issue(c, sig, nxt):
        sl = c % NW
        m, half = (c + 1) >> 1, (c + 1) & 1
        hasx = m < 8
        n = 0
        if hasx:
            x = xdma(m, half, 0)
            a(x[0]); a(f"ds_read_b32 v{vFV}, v{vFA} offset:{64+4*nxt}" if nxt is not None else "s_nop 0"); a(x[1]); n += 1
        a(f"""
        s_add_u32 m0, s{sM1}, {sl*W1S}
        s_nop 0
        buffer_load_dwordx4 v{v1d}, s[{sW1}:{sW1+3}], s{sSO1} offen lds
        s_add_u32 m0, s{sMQ}, {sl*WQS}
        s_nop 0
        buffer_load_dwordx4 v{vQd}, s[{sWQ}:{sWQ+3}], s{sSOQ} offen lds
        """); n += 2
        if sig == 0: a("s_barrier")
        if sig is not None: a(ready_txt(sig, sum(cnt[sig + 1:]) + n))
        if hasx:
            x = xdma(m, half, 1)
            a(x[0]); a("s_nop 0"); a(x[1]); n += 1
        a(f"""
        s_add_u32 m0, s{sM1}, {sl*W1S+1024}
        s_nop 0
        buffer_load_dwordx4 v{v1d2}, s[{sW1}:{sW1+3}], s{sSO1} offen lds
        s_add_u32 m0, s{sMQ}, {sl*WQS+1024}
        s_mov_b32 s{sT1}, s{sSOQ}
        """); n += 1
        a(woffs())
        a(xoffs((c + 2) & 1))
        if nxt is not None:
            a(f"""
            s_waitcnt lgkmcnt(0)
            v_readfirstlane_b32 s{sFV}, v{vFV}
            """)
        a(f"""
        s_mov_b32 exec_hi, 0
        buffer_load_dwordx4 v{vQd2}, s[{sWQ}:{sWQ+3}], s{sT1} offen lds
        s_mov_b32 exec_hi, -1
        """); n += 1
        if nxt is not None:
            a(f"""
            L_k1_wc{nxt}:
            s_cmp_ge_u32 s{sFV}, 4
            s_cbranch_scc1 L_k1_wdok{nxt}
            ds_read_b32 v{vFV}, v{vFA} offset:{64+4*nxt}
            s_sub_u32 s{sSP}, s{sSP}, 1
            s_waitcnt lgkmcnt(0)
            v_readfirstlane_b32 s{sFV}, v{vFV}
            s_cbranch_scc0 L_k1_wc{nxt}
            s_mov_b32 s{sSP}, 0
            L_k1_wdok{nxt}:
            """)
        cnt.append(n)
    LAG = int(os.environ.get('K1LAG', '3'))
    a(woffs()); a(xoffs(0))
    for e in range(2):
        x = xdma(0, 0, e); a(x[0]); a("s_nop 0"); a(x[1])
    a(xoffs(1))
    for c in range(16):
        if c == LAG: pf.stamp(1); pf.stamp(2)
        issue(c, sig=(c - LAG if c >= LAG else None), nxt=(c + 1 - NW if NW <= c + 1 < 16 else None))
    pf.stamp(3)
    a(f"""
    s_mov_b32 s{sWS}, s14
    s_mov_b32 s{sWS+1}, s15
    s_mov_b32 s{sGW}, s12
    s_mov_b32 s{sGW+1}, s13
    s_mov_b32 s{sGW+2}, 1024
    s_mov_b32 s{sGW+3}, 0x00020000
    s_lshl_b32 s{sT0}, s{sI}, 7
    s_lshl_b32 s{sT1}, s{sJ}, 3
    s_add_u32 s{sT0}, s{sT0}, s{sT1}
    s_lshl_b32 s{sT1}, s{sW}, 1
    s_add_u32 s{sN}, s{sT0}, s{sT1}
    s_lshl_b32 s{sT1}, s{sN}, 10
    v_and_b32 v{vT1}, 31, v0
    v_lshlrev_b32 v{vT1}, 5, v{vT1}
    v_lshrrev_b32 v{vT2}, 5, v0
    v_lshl_add_u32 v{vT2}, v{vT2}, 10, v{vT1}
    buffer_load_dwordx4 {vr(vGX,4)}, v{vT2}, s[{sX}:{sX+3}], s{sT1} offen
    buffer_load_dwordx4 {vr(vGX+4,4)}, v{vT2}, s[{sX}:{sX+3}], s{sT1} offen offset:16
    buffer_load_dwordx4 {vr(vGW,4)}, v{vT1}, s[{sGW}:{sGW+3}], 0 offen
    buffer_load_dwordx4 {vr(vGW+4,4)}, v{vT1}, s[{sGW}:{sGW+3}], 0 offen offset:16
    v_mov_b32 v{vOnes}, -1
    v_mov_b32 v{vOnes+1}, -1
    v_mov_b32 v{vOnes+2}, -1
    v_mov_b32 v{vOnes+3}, -1
    v_lshlrev_b32 v{vT0}, 4, v0
    s_lshl_b32 s{sT0}, s2, 2
    s_add_u32 s{sT0}, s{sT0}, s{sW}
    s_lshl_b32 s{sT1}, s{sT0}, 11
    s_add_u32 s{sT1}, s{sT1}, {WS_O}
    buffer_store_dwordx4 {vr(vOnes,4)}, v{vT0}, s[{sWS}:{sWS+3}], s{sT1} offen {SC}
    buffer_store_dwordx4 {vr(vOnes,4)}, v{vT0}, s[{sWS}:{sWS+3}], s{sT1} offen offset:1024 {SC}
    """)
    for c in range(16 - LAG, 16): a(ready_txt(c, sum(cnt[c + 1:]) + 6))
    a("s_waitcnt vmcnt(2)")
    acc = vT1
    a(f"v_mov_b32 v{acc}, 0")
    for r in range(8): a(f"v_dot2_f32_bf16 v{acc}, v{vGX+r}, v{vGW+r}, v{acc}")
    a("s_nop 3")
    for mod in ["quad_perm:[1,0,3,2]", "quad_perm:[2,3,0,1]", "row_half_mirror", "row_mirror"]:
        a(f"v_add_f32_dpp v{acc}, v{acc}, v{acc} {mod} row_mask:0xf bank_mask:0xf")
    a(f"""
    v_mov_b32 v{vT2}, v{acc}
    v_mov_b32 v{vT3}, v{acc}
    v_permlane16_swap_b32 v{vT2}, v{vT3}
    v_add_f32 v{acc}, v{vT2}, v{vT3}
    v_mul_f32 v{acc}, {hex(f32bits(-LOG2E))}, v{acc}
    v_exp_f32 v{acc}, v{acc}
    v_add_f32 v{acc}, 1.0, v{acc}
    v_rcp_f32 v{acc}, v{acc}
    s_lshl_b32 s{sT0}, s{sN}, 2
    s_add_u32 s{sT0}, s{sT0}, {WS_G}
    v_lshrrev_b32 v{vT2}, 5, v0
    v_lshlrev_b32 v{vT2}, 2, v{vT2}
    s_mov_b32 exec_lo, 1
    s_mov_b32 exec_hi, 1
    buffer_store_dword v{acc}, v{vT2}, s[{sWS}:{sWS+3}], s{sT0} offen
    """)
    pf.stamp(4); pf.stamp(5)
    pf.dump(6, 2, sWAVE, 8, vT0, vT1)
    a("s_endpgm")
    a.label("L_k1_comp")
    a.window = []
    vN16, vR, vC = 2, 4, 5
    vXr, vQr = [10, 19], 14
    vFA, vOne, vFV = 11, 12, 13
    vWr = list(range(15, 19))
    vF = 20
    FSZ = 44
    vACC = vF + 2 * FSZ
    NV = vACC + 112
    sWM, sWN = sSOX, sSOQ
    sWX, sWQw, sW1w = sMX, sMQ, sM1
    sDQ = sN
    td = f"""s_or_b32 s{sT0}, s2, s{sWAVE}
    s_cmp_lg_u32 s{sT0}, 0
    s_cbranch_scc1 L_k1_td
    v_mov_b32 v{vT0}, s70
    v_mov_b32 v1, 0
    s_mov_b32 s{sT0}, {WS_FA}
    buffer_store_dword v{vT0}, v1, s[{sWS}:{sWS+3}], s{sT0} offen
    L_k1_td:""" if 'tdiag' in EXP1 else ""
    wu = f"""s_load_dwordx2 s[{sX}:{sX+1}], s[0:1], 48
    s_load_dwordx2 s[{sWQ}:{sWQ+1}], s[0:1], 16
    s_mov_b32 s{sX+2}, {1792*512*2}
    s_mov_b32 s{sX+3}, 0x00020000
    s_mov_b32 s{sWQ+2}, {512*512*2}
    s_mov_b32 s{sWQ+3}, 0x00020000
    s_lshl_b32 s{sT0}, s2, 2
    s_add_u32 s{sT0}, s{sT0}, s{sW}
    s_lshl_b32 s{sT0}, s{sT0}, 7
    v_lshlrev_b32 v{vT0}, 17, v0
    s_waitcnt lgkmcnt(0)
    s_mov_b64 exec, 0x3fff
    buffer_load_dword v{vACC+1}, v{vT0}, s[{sX}:{sX+3}], s{sT0} offen
    s_mov_b64 exec, 0xf
    buffer_load_dword v{vACC+1}, v{vT0}, s[{sWQ}:{sWQ+3}], s{sT0} offen
    s_mov_b64 exec, -1""" if 'wu' in EXP1 else ""
    if 'cpold' in EXP1:
        a(f"""
        s_getpc_b64 s[62:63]
        L_k1_pc:
        s_sub_u32 s62, s62, L_k1_pc-{NAME}
        s_subb_u32 s63, s63, 0
        s_lshl_b32 s{sT0}, s{sW}, 13
        v_lshlrev_b32 v{vT0}, 7, v0
        v_add_u32 v{vT0}, s{sT0}, v{vT0}
        v_min_u32 v{vT0}, L_code_end-{NAME}-4, v{vT0}
        global_load_dword v{vACC}, v{vT0}, s[62:63]
        """)
    a(f"""
    s_and_b32 s{sWM}, s{sW}, 1
    s_lshr_b32 s{sWN}, s{sW}, 1
    v_and_b32 v{vN16}, 15, v0
    v_bfe_u32 v{vR}, v0, 2, 2
    v_and_b32 v{vC}, 3, v0
    v_lshrrev_b32 v{vT0}, 1, v{vN16}
    v_xor_b32 v{vT0}, v{vG}, v{vT0}
    v_lshlrev_b32 v{vT0}, 4, v{vT0}
    v_lshl_add_u32 v{vT0}, v{vN16}, 7, v{vT0}
    s_lshl_b32 s{sT0}, s{sWM}, 13
    v_add_u32 v{vXr[0]}, s{sT0}, v{vT0}
    v_xor_b32 v{vXr[1]}, 64, v{vXr[0]}
    v_mov_b32 v{vFA}, {FL_BASE}
    v_mov_b32 v{vOne}, 1
    v_mov_b32 v{vFV}, 0
    s_mov_b32 s{sSL}, 0
    s_mov_b32 s{sSLX}, 0
    s_mov_b32 s{sC}, 0
    s_mov_b32 s{sWX}, {-(NX-1)*XS}
    s_mov_b32 s{sWQw}, {-(NW-1)*WQS}
    s_mov_b32 s{sW1w}, {-(NW-1)*W1S}
    v_lshl_add_u32 v{vT1}, v{vG}, 3, v{vR}
    v_and_b32 v{vT2}, 1, v{vG}
    v_mul_u32_u24 v{vT0}, 192, v{vT1}
    v_lshl_add_u32 v{vT0}, v{vC}, 3, v{vT0}
    v_add_u32 v{vT0}, {WQ_BASE}, v{vT0}
    v_xor_b32 v{vT3}, s{sWN}, v{vT2}
    v_lshl_add_u32 v{vQr}, v{vT3}, 5, v{vT0}
    v_lshlrev_b32 v{vT1}, 8, v{vT1}
    v_lshl_add_u32 v{vT1}, v{vC}, 3, v{vT1}
    v_add_u32 v{vT1}, {W1_BASE}, v{vT1}
    v_lshl_add_u32 v{vT2}, v{vT2}, 2, v{vR}
    v_lshlrev_b32 v{vT3}, 3, v{vG}
    s_mul_i32 s{sT1}, s{sJ}, 224
    s_mov_b32 s{sB1+2}, {1792*2}
    s_mov_b32 s{sB1+3}, 0x00020000
    s_waitcnt lgkmcnt(0)
    s_mov_b32 s{sWS}, s14
    s_mov_b32 s{sWS+1}, s15
    s_mov_b32 s{sB1}, s10
    s_mov_b32 s{sB1+1}, s11
    {wu}
    {td}
    s_cmp_eq_u32 s{sWN}, 1
    s_cbranch_scc1 L_k1_gb
    """)
    def frag(buf):
        b = vF + buf * FSZ
        return [b + 4 * t for t in range(4)], [b + 16 + 4 * i for i in range(7)]
    def role(name, F):
        nf = len(F); nt = 3 + nf
        def reads(buf):
            X, W = frag(buf); L = []
            def wr(i):
                for t2 in range(2):
                    if i < nf: va, off = vWr[i], 4 * t2 * 256
                    else:      va, off = vQr, 4 * t2 * 192 + (i - nf) * 64
                    L.append(f"ds_read_b64_tr_b16 {vr(W[i]+2*t2,2)}, v{va} offset:{off}")
            for t in range(4):
                L.append(f"ds_read_b128 {vr(X[t],4)}, v{vXr[buf]} offset:{t*2048}")
                wr(t)
            for i in range(4, nt): wr(i)
            return L
        def mfmas(buf):
            X, W = frag(buf); L = []
            for i in range(nt):
                for t in range(4):
                    acc = vACC + (i * 4 + t) * 4
                    if i == nt - 1: L.append(f"v_mfma_f32_16x16x32_bf16 {vr(acc,4)}, {vr(X[t],4)}, {vr(W[i],4)}, {vr(acc,4)}")
                    else:           L.append(f"v_mfma_f32_16x16x32_bf16 {vr(acc,4)}, {vr(W[i],4)}, {vr(X[t],4)}, {vr(acc,4)}")
            return L
        def check(tag):
            return f"""
            L_k1_{name}_ck{tag}:
            v_readfirstlane_b32 s{sFV}, v{vFV}
            s_cmp_ge_u32 s{sFV}, 4
            s_cbranch_scc1 L_k1_{name}_ok{tag}
            ds_read_b32 v{vFV}, v{vFA}
            s_sub_u32 s{sSP}, s{sSP}, 1
            s_waitcnt lgkmcnt(0)
            s_cbranch_scc0 L_k1_{name}_ck{tag}
            s_mov_b32 s{sSP}, 0
            L_k1_{name}_ok{tag}:
            """
        vB = vF + FSZ
        for i, ct in enumerate(F):
            a(f"buffer_load_dwordx2 {vr(vB+2*i,2)}, v{vT3}, s[{sB1}:{sB1+3}], s{sT1} offen offset:{ct*32}")
        for i, ct in enumerate(F):
            a(f"""
            v_add_u32 v{vT0}, {ct}, v{vT2}
            v_and_b32 v{vT0}, 7, v{vT0}
            v_lshl_add_u32 v{vWr[i]}, v{vT0}, 5, v{vT1}
            """)
        for r in range(48): a(f"v_mov_b32 v{vACC+16*nf+r}, 0")
        a("s_waitcnt vmcnt(0)")
        for i in range(nf):
            for t in range(4):
                acc = vACC + (i * 4 + t) * 4
                a(f"""
                v_lshlrev_b32 v{acc}, 16, v{vB+2*i}
                v_and_b32 v{acc+1}, 0xffff0000, v{vB+2*i}
                v_lshlrev_b32 v{acc+2}, 16, v{vB+2*i+1}
                v_and_b32 v{acc+3}, 0xffff0000, v{vB+2*i+1}
                """)
        pf.stamp(1)
        a("s_barrier")
        a(check("p"))
        pf.stamp(2)
        a("\n".join(reads(0)))
        a(f"ds_read_b32 v{vFV}, v{vFA} offset:4")
        a.raw(".p2align 6")
        a.label(f"L_k1_{name}_loop")
        start = len(a.lines)
        for buf in range(2):
            M = mfmas(buf)
            R = reads(buf ^ 1) + [f"ds_read_b32 v{vFV}, v{vFA} offset:4"]
            G = [f"""s_mov_b64 exec, 1
                 ds_add_u32 v{vFA}, v{vOne} offset:64
                 s_mov_b64 exec, -1""",
                 f"""s_add_u32 s{sSL}, s{sSL}, 1
                 s_cmp_eq_u32 s{sSL}, {NW}
                 s_cselect_b32 s{sDW}, s{sW1w}, {W1S}""",
                 f"""s_cselect_b32 s{sDQ}, s{sWQw}, {WQS}
                 s_cselect_b32 s{sSL}, 0, s{sSL}
                 v_add_u32 v{vFA}, 4, v{vFA}""",
                 f"""v_add_u32 v{vQr}, s{sDQ}, v{vQr}
                 v_add_u32 v{vWr[0]}, s{sDW}, v{vWr[0]}""",
                 "\n".join(f"v_add_u32 v{r}, s{sDW}, v{r}" for r in vWr[1:nf])]
            if buf == 1:
                G += [f"""s_add_u32 s{sSLX}, s{sSLX}, 1
                      s_cmp_eq_u32 s{sSLX}, {NX}
                      s_cselect_b32 s{sD}, s{sWX}, {XS}""",
                      f"""s_cselect_b32 s{sSLX}, 0, s{sSLX}
                      v_add_u32 v{vXr[0]}, s{sD}, v{vXr[0]}
                      v_add_u32 v{vXr[1]}, s{sD}, v{vXr[1]}"""]
            G.append(check(buf))
            while R:
                n = 1 if (len(G) + len(R) <= len(M) - 2) else 2
                G.append("\n".join(R[:n])); R = R[n:]
            assert len(G) <= len(M), (len(G), len(M))
            if buf == 1:
                a(f"""
                s_add_u32 s{sC}, s{sC}, 1
                s_cmp_eq_u32 s{sC}, 8
                s_waitcnt lgkmcnt(0)
                s_cbranch_scc1 L_k1_{name}_last
                """)
            else:
                a("s_waitcnt lgkmcnt(0)")
            for i, m in enumerate(M):
                a(m)
                if i < len(G): a(G[i])
        a(f"s_branch L_k1_{name}_loop")
        seam, inner = check_loop(a.lines[start:])
        assert seam == 0 and inner == 0, (seam, inner)
        a.label(f"L_k1_{name}_last")
        a.window = []
        M = mfmas(1)
        for m in M[4*nf:] + M[:4*nf]: a(m)
        pf.stamp(3)
        vP = vF
        a(f"""
        s_lshl_b32 s{sT0}, s{sI}, 2
        s_lshl_b32 s{sT1}, s{sWM}, 1
        s_add_u32 s{sD}, s{sT0}, s{sT1}
        v_lshlrev_b32 v{vT0}, 4, v0
        s_lshl_b32 s{sT0}, s{sD}, 10
        s_lshl_b32 s{sT1}, s{sJ}, 2
        s_add_u32 s{sT1}, s{sT1}, s{sWN}
        s_lshl_b32 s{sT1}, s{sT1}, 16
        s_add_u32 s{sT1}, s{sT1}, s{sT0}
        s_add_u32 s{sDW}, s{sT1}, {2*65536}
        s_lshl_b32 s{sN}, s{sJ}, 1
        s_add_u32 s{sN}, s{sN}, s{sWN}
        s_lshl_b32 s{sN}, s{sN}, 16
        s_add_u32 s{sN}, s{sN}, s{sT0}
        s_add_u32 s{sN}, s{sN}, {WS_V}
        s_mov_b32 s{sT2}, {hex(f32bits(QSCALE))}
        s_cmp_lt_u32 s{sJ}, 8
        s_cselect_b32 s{sK2}, s{sT2}, 1.0
        s_mov_b32 s{sK2+1}, s{sK2}
        """)
        assert WS_Q == 0 and WS_K == 32 * 65536
        k = 0
        for c3 in (2, 0, 1):
            for tp in range(2):
                p = vP + 4 * k; k += 1
                a0 = vACC + ((nf + c3) * 4 + 2 * tp) * 4; a1 = a0 + 4
                if c3 < 2:
                    for r in range(0, 8, 2): a(f"v_pk_mul_f32 {vr(a0+r,2)}, {vr(a0+r,2)}, s[{sK2}:{sK2+1}]")
                sw = "v_permlane32_swap_b32" if c3 == 2 else "v_permlane16_swap_b32"
                a(f"""
                v_cvt_pk_bf16_f32 v{p}, v{a0}, v{a0+1}
                v_cvt_pk_bf16_f32 v{p+1}, v{a0+2}, v{a0+3}
                v_cvt_pk_bf16_f32 v{p+2}, v{a1}, v{a1+1}
                v_cvt_pk_bf16_f32 v{p+3}, v{a1+2}, v{a1+3}
                {sw} v{p}, v{p+2}
                {sw} v{p+1}, v{p+3}
                buffer_store_dwordx4 {vr(p,4)}, v{vT0}, s[{sWS}:{sWS+3}], s{[sT1, sDW, sN][c3]} offen offset:{tp*1024} {SC}
                """)
        a(f"""
        s_mul_i32 s{sT0}, s{sD}, 112
        s_mul_i32 s{sT1}, s{sJ}, 7
        s_add_u32 s{sT0}, s{sT0}, s{sT1}
        s_add_u32 s{sT0}, s{sT0}, {F[0]}
        s_lshl_b32 s{sT0}, s{sT0}, 10
        s_add_u32 s{sT0}, s{sT0}, {WS_A}
        s_add_u32 s{sT1}, s{sT0}, {112*1024}
        s_mov_b32 s{sK2}, {hex(f32bits(LOG2E))}
        s_mov_b32 s{sK2+1}, {hex(f32bits(LOG2E))}
        """)
        E0 = vF + FSZ
        PK = vACC + 16 * nf
        k = 0
        for i in range(nf):
            hs = [vACC + (i * 4 + 2 * tp) * 4 for tp in range(2)]
            es = [E0, E0 + 16]; ds = [E0 + 8, E0 + 24]
            def both(f):
                for tp in range(2): f(hs[tp], es[tp], ds[tp])
            both(lambda h, e, d: [a(f"v_pk_mul_f32 {vr(e+r,2)}, {vr(h+r,2)}, s[{sK2}:{sK2+1}]") for r in range(0, 8, 2)])
            both(lambda h, e, d: [a(f"v_exp_f32 v{e+r}, v{e+r}") for r in range(8)])
            both(lambda h, e, d: [a(f"v_pk_add_f32 {vr(e+r,2)}, {vr(e+r,2)}, 1.0 op_sel_hi:[1,0]") for r in range(0, 8, 2)])
            both(lambda h, e, d: [a(f"v_pk_fma_f32 {vr(d+r,2)}, {vr(e+r,2)}, {vr(e+r,2)}, 1.0 op_sel_hi:[1,1,0]") for r in range(0, 8, 2)])
            both(lambda h, e, d: [a(f"v_rcp_f32 v{d+r}, v{d+r}") for r in range(8)])
            both(lambda h, e, d: [a(f"v_pk_mul_f32 {vr(d+r,2)}, {vr(d+r,2)}, {vr(h+r,2)}") for r in range(0, 8, 2)])
            both(lambda h, e, d: [a(f"v_pk_fma_f32 {vr(d+r,2)}, {vr(d+r,2)}, -2.0, {vr(h+r,2)} op_sel_hi:[1,0,1]") for r in range(0, 8, 2)])
            ps = [PK + 4 * (k + tp) for tp in range(2)]; k += 2
            for tp in range(2):
                p, d = ps[tp], ds[tp]
                a(f"""
                v_cvt_pk_bf16_f32 v{p}, v{d}, v{d+1}
                v_cvt_pk_bf16_f32 v{p+1}, v{d+2}, v{d+3}
                v_cvt_pk_bf16_f32 v{p+2}, v{d+4}, v{d+5}
                v_cvt_pk_bf16_f32 v{p+3}, v{d+6}, v{d+7}
                """)
            for tp in range(2):
                p = ps[tp]
                a(f"""
                v_permlane16_swap_b32 v{p}, v{p+2}
                v_permlane16_swap_b32 v{p+1}, v{p+3}
                buffer_store_dwordx4 {vr(p,4)}, v{vT0}, s[{sWS}:{sWS+3}], s{sT1 if tp else sT0} offen offset:{i*1024} {SC}
                """)
        pf.stamp(4)
        if asmlib.PROF: a("s_waitcnt vmcnt(0)")
        pf.stamp(5)
        pf.dump(6, 2, sWAVE, 8, vT0, vT1)
        a("s_endpgm")
    role("ga", [0, 1, 2])
    a.label("L_k1_gb")
    a.window = []
    role("gb", [3, 4, 5, 6])
    a.label("L_k1_end")
    a("s_endpgm")
    assert NV <= 256
    return a.text(), kernel_desc(NAME, NV, 72), f"; @launch kernel={NAME} grid=(256,1,1) block=(512,1,1) lds={LDS_BYTES}"

if __name__ == "__main__":
    t, d, l = gen()
    print(l); print(len(t.splitlines()))
```

```python
from asmlib import *
import asmlib
from layout import *

NAME = "k2_main_kernel"
LDS_BYTES = 49152
SENT = -1
PSLEEP = 12
import os
EXP = os.environ.get('EXP', '')
SPIN_MAX = 1 << 18

def attn_role(a):
    P = "at"
    sWS, sKV = 8, 28
    sW, sH, sQB = 12, 13, 14
    sT0, sT1, sT2 = 15, 16, 17
    sKT, sC, sM, sQ0, sA = 18, 19, 20, 22, 23
    sRB, sPO, sD, sVT = 26, 27, 32, 33
    vKo, vVo = 1, 2
    vT0, vT1, vT2, vT3, vG = 3, 4, 5, 6, 7
    vQ, vK, vV, vP, vS, vO = 8, 24, 32, 48, 56, 88
    vKr, vVr = 152, 153
    NV = 154
    RING = 12288
    pf = Prof(a, 1)
    pf.stamp(0)
    a(f"""
    s_setprio 3
    s_load_dwordx2 s[4:5], s[0:1], 80
    s_sub_u32 s{sA}, s2, 256
    v_lshrrev_b32 v1, 6, v0
    v_and_b32 v0, 63, v0
    v_readfirstlane_b32 s{sW}, v1
    s_lshr_b32 s{sH}, s{sA}, 8
    s_lshl_b32 s{sH}, s{sH}, 4
    s_and_b32 s{sT0}, s{sA}, 7
    s_lshl_b32 s{sT0}, s{sT0}, 1
    s_add_u32 s{sH}, s{sH}, s{sT0}
    s_bfe_u32 s{sT0}, s{sA}, 0x10003
    s_add_u32 s{sH}, s{sH}, s{sT0}
    s_bfe_u32 s{sQB}, s{sA}, 0x40004
    s_mov_b32 s{sWS+2}, {WS_SIZE}
    s_mov_b32 s{sWS+3}, 0x00020000
    s_mov_b32 s{sKV+2}, {WS_SIZE}
    s_mov_b32 s{sKV+3}, 0x00020000
    s_mov_b32 s{sM}, 0x0000ffff
    s_mov_b32 s{sM+1}, 0x0000ffff
    s_lshl_b32 s{sT0}, s{sH}, 16
    s_lshl_b32 s{sT1}, s{sQB}, 12
    s_add_u32 s{sQ0}, s{sT0}, s{sT1}
    s_lshl_b32 s{sT1}, s{sW}, 14
    s_add_u32 s{sKT}, s{sT0}, s{sT1}
    s_add_u32 s{sKT}, s{sKT}, {WS_K}
    s_mul_i32 s{sRB}, s{sW}, {RING}
    v_lshlrev_b32 v{vKo}, 4, v0
    v_add_u32 v{vVo}, {WS_V - WS_K}, v{vKo}
    s_lshl_b32 s{sT1}, s{sW}, 10
    v_xor_b32 v{vT2}, s{sT1}, v{vKo}
    s_mov_b32 m0, s{sRB}
    s_mov_b32 s{sC}, 0
    s_waitcnt lgkmcnt(0)
    s_mov_b32 s{sWS}, s4
    s_mov_b32 s{sWS+1}, s5
    s_mov_b32 s{sKV}, s4
    s_mov_b32 s{sKV+1}, s5
    """)
    srd = f"s[{sWS}:{sWS+3}]"
    kv = f"s[{sKV}:{sKV+3}]"
    for q in range(4):
        if q: a(f"v_xor_b32 v{vT3}, {q*1024}, v{vT2}")
        a(f"buffer_load_dwordx4 {vr(vQ+4*q,4)}, v{vT3 if q else vT2}, {srd}, s{sQ0} offen")
    a(f"""
    L_{P}_pre:
    buffer_load_dwordx4 v{vKo}, {kv}, s{sKT} offen lds
    s_add_u32 m0, m0, 1024
    s_add_u32 s{sC}, s{sC}, 1
    buffer_load_dwordx4 v{vVo}, {kv}, s{sKT} offen lds
    s_add_u32 m0, m0, 1024
    s_add_u32 s{sKT}, s{sKT}, 1024
    s_cmp_lt_u32 s{sC}, 6
    s_cbranch_scc1 L_{P}_pre
    s_lshl_b32 s{sT0}, s{sQB}, 2
    s_add_u32 s{sT0}, s{sT0}, s{sW}
    s_lshl_b32 s{sT0}, s{sT0}, 7
    s_add_u32 s{sT0}, s{sT0}, {WS_G}
    v_and_b32 v{vT0}, 31, v0
    v_lshlrev_b32 v{vT0}, 2, v{vT0}
    buffer_load_dword v{vG}, v{vT0}, {srd}, s{sT0} offen
    v_add_u32 v{vKr}, s{sRB}, v{vKo}
    v_and_b32 v{vT0}, 15, v0
    v_lshlrev_b32 v{vT0}, 4, v{vT0}
    v_lshrrev_b32 v{vT1}, 5, v0
    v_lshl_add_u32 v{vT0}, v{vT1}, 8, v{vT0}
    v_add_u32 v{vVr}, s{sRB}, v{vT0}
    v_and_b32 v{vT1}, 27, v0
    v_cmp_eq_u32 vcc, 16, v{vT1}
    v_mov_b32 v{vT1}, 0x3f803f80
    v_cndmask_b32 v{vT1}, 0, v{vT1}, vcc
    """)
    for r in range(16): a(f"v_mov_b32 v{vV+r}, v{vT1}")
    def reads(st, off):
        return f"""ds_read_b128 {vr(vK+4*st,4)}, v{vKr} offset:{off}
        s_mov_b64 exec, s[{sM}:{sM+1}]
        ds_read_b128 {vr(vV+8*st,4)}, v{vVr} offset:{off+1024}
        ds_read_b128 {vr(vV+8*st+4,4)}, v{vVr} offset:{off+1536}
        s_mov_b64 exec, -1"""
    def dma(off):
        return f"""s_add_u32 m0, s{sPO}, {off}
        s_setprio 3
        buffer_load_dwordx4 v{vKo}, {kv}, s{sKT} offen lds
        s_add_u32 m0, s{sPO}, {off+1024}
        s_nop 0
        buffer_load_dwordx4 v{vVo}, {kv}, s{sKT} offen lds
        s_setprio 0
        s_add_u32 s{sKT}, s{sKT}, 1024"""
    for r in range(64): a(f"v_mov_b32 v{vO+r}, 0")
    for r in range(4, 8): a(f"v_mov_b32 v{vP+r}, 0")
    a(f"s_mov_b32 s{sC}, 0")
    a(f"s_mov_b32 s{sPO}, s{sRB}")
    pf.stamp(1)
    a("s_waitcnt vmcnt(11)")
    pf.stamp(2)
    a(reads(0, 0))
    a("s_waitcnt lgkmcnt(0)")
    def mfS(sb, st, q): return f"v_mfma_f32_32x32x16_bf16 {vr(vS+16*sb,16)}, {vr(vK+4*st,4)}, {vr(vQ+4*q,4)}, 0"
    def mfPV(q, st, u): return f"v_mfma_f32_32x32x16_bf16 {vr(vO+16*q,16)}, {vr(vV+8*st+4*u,4)}, {vr(vP+4*u,4)}, {vr(vO+16*q,16)}"
    a(mfS(0, 0, 0))
    a(dma(0))
    if 'diag' in EXP: a("s_mov_b32 s40, 0\ns_mov_b32 s41, 0")
    a("s_nop 7")
    a.raw(".p2align 6")
    a.label(f"L_{P}_loop")
    start = len(a.lines)
    for st in range(2):
        off = 2048 if st == 0 else 0
        for q in range(4):
            sb = q & 1
            S = vS + 16 * sb
            ex = lambda i: f"v_exp_f32 v{S+i}, v{S+i}"
            cv = lambda i: f"v_cvt_pk_bf16_f32 v{vP+i}, v{S+2*i}, v{S+2*i+1}"
            pq, pst = (q - 1, st) if q > 0 else (3, st ^ 1)
            nq, nst = (q + 1, st) if q < 3 else (0, st ^ 1)
            a(ex(0)); a(ex(1))
            a(mfPV(pq, pst, 1))
            if q == 0 and st == 1:
                a(f"""
                s_add_u32 s{sT0}, s{sPO}, 4096
                s_add_u32 s{sT1}, s{sRB}, {RING}
                s_cmp_eq_u32 s{sT0}, s{sT1}
                s_cselect_b32 s{sT0}, s{sRB}, s{sT0}
                s_sub_u32 s{sD}, s{sT0}, s{sPO}
                s_mov_b32 s{sPO}, s{sT0}
                v_add_u32 v{vKr}, s{sD}, v{vKr}
                v_add_u32 v{vVr}, s{sD}, v{vVr}
                """)
            if q == 1:
                if 'diag' in EXP: a("s_memtime s[44:45]")
                a("s_waitcnt vmcnt(10)")
                if 'diag' in EXP:
                    a("s_memtime s[46:47]\ns_waitcnt lgkmcnt(0)\ns_sub_u32 s44, s46, s44\ns_add_u32 s41, s41, s44")
                a(reads(st ^ 1, off))
            for i in range(2, 6): a(ex(i))
            if q == 3: a("s_waitcnt lgkmcnt(0)")
            a(mfS(sb ^ 1, nst, nq))
            if q == 3:
                if st == 1:
                    a(f"""
                    s_cmp_ge_u32 s{sC}, 4
                    s_cselect_b32 s{sKV+2}, 0, s{sKV+2}
                    """)
                if 'diag' in EXP: a("s_memtime s[44:45]")
                a(dma(off))
                if 'diag' in EXP:
                    a("s_memtime s[46:47]\ns_waitcnt lgkmcnt(0)\ns_sub_u32 s44, s46, s44\ns_add_u32 s40, s40, s44")
            a(ex(6)); a(ex(7))
            for i in range(4): a(cv(i))
            a(ex(8)); a(ex(9))
            a(mfPV(q, st, 0))
            for i in range(10, 16): a(ex(i))
            for i in range(4, 8): a(cv(i))
    a(f"""
    s_add_u32 s{sC}, s{sC}, 1
    s_cmp_lt_u32 s{sC}, 8
    s_cbranch_scc1 L_{P}_loop
    """)
    seam, inner = check_loop(a.lines[start:])
    assert seam == 0 and inner == 0, (seam, inner)
    a(mfPV(3, 1, 1))
    a("s_setprio 3")
    pf.stamp(3)
    a(f"""
    v_add_u32 v{vT0}, s{sRB}, v{vKo}
    v_lshlrev_b32 v{vT1}, 2, v0
    v_add_u32 v{vT2}, s{sRB}, v{vT1}
    s_waitcnt vmcnt(0)
    """)
    for j in range(1, 4):
        o = vO + 16 * j
        a(f"""
        ds_write_b128 v{vT0}, {vr(o,4)} offset:{(j-1)*2304}
        ds_write_b128 v{vT0}, {vr(o+4,4)} offset:{(j-1)*2304+1024}
        ds_write_b32 v{vT2}, v{o+8} offset:{(j-1)*2304+2048}
        """)
    a(f"""
    s_waitcnt lgkmcnt(0)
    s_barrier
    """)
    R = vO
    for j in range(1, 4):
        o = vO + 16 * j
        a(f"""
        s_xor_b32 s{sT0}, s{sW}, {j}
        s_mul_i32 s{sT0}, s{sT0}, {RING}
        v_add_u32 v{vT0}, s{sT0}, v{vKo}
        v_add_u32 v{vT2}, s{sT0}, v{vT1}
        ds_read_b128 {vr(o,4)}, v{vT0} offset:{(j-1)*2304}
        ds_read_b128 {vr(o+4,4)}, v{vT0} offset:{(j-1)*2304+1024}
        ds_read_b32 v{o+8}, v{vT2} offset:{(j-1)*2304+2048}
        """)
    a("s_waitcnt lgkmcnt(0)")
    for r in range(0, 8, 2):
        a(f"v_pk_add_f32 {vr(R+r,2)}, {vr(R+r,2)}, {vr(R+16+r,2)}")
        a(f"v_pk_add_f32 {vr(R+32+r,2)}, {vr(R+32+r,2)}, {vr(R+48+r,2)}")
    a(f"v_add_f32 v{R+8}, v{R+8}, v{R+24}")
    a(f"v_add_f32 v{R+40}, v{R+40}, v{R+56}")
    for r in range(0, 8, 2):
        a(f"v_pk_add_f32 {vr(R+r,2)}, {vr(R+r,2)}, {vr(R+32+r,2)}")
    a(f"v_add_f32 v{R+8}, v{R+8}, v{R+40}")
    a(f"v_mov_b32 v{vT2}, v{R+8}")
    for r in range(8): a(f"v_fma_f32 v{vT2}, v{R+r}, 0, v{vT2}")
    a(f"""
    s_mov_b32 s{sT0}, {hex(f32bits(2.0**-30))}
    s_mov_b32 s{sT1}, {hex(f32bits(2.0**30))}
    v_cmp_le_f32 vcc, s{sT0}, v{vT2}
    v_cmp_ge_f32 s[24:25], s{sT1}, v{vT2}
    s_and_b64 vcc, vcc, s[24:25]
    s_cmp_eq_u64 vcc, -1
    s_cbranch_scc0 L_{P}_slow
    L_{P}_fin:
    v_rcp_f32 v{vT2}, v{R+8}
    s_lshl_b32 s{sT0}, s{sQB}, 2
    s_add_u32 s{sT0}, s{sT0}, s{sW}
    s_lshl_b32 s{sT0}, s{sT0}, 5
    s_add_u32 s{sT0}, s{sT0}, s{sH}
    s_lshl_b32 s{sT0}, s{sT0}, 10
    s_add_u32 s{sT0}, s{sT0}, {WS_O}
    v_mul_f32 v{vT2}, v{vT2}, v{vG}
    """)
    for r in range(8): a(f"v_mul_f32 v{R+r}, v{R+r}, v{vT2}")
    a(f"""
    v_cvt_pk_bf16_f32 v{vP}, v{R}, v{R+1}
    v_cvt_pk_bf16_f32 v{vP+1}, v{R+2}, v{R+3}
    v_cvt_pk_bf16_f32 v{vP+2}, v{R+4}, v{R+5}
    v_cvt_pk_bf16_f32 v{vP+3}, v{R+6}, v{R+7}
    v_min_u32 v{vP}, -2, v{vP}
    v_min_u32 v{vP+1}, -2, v{vP+1}
    v_min_u32 v{vP+2}, -2, v{vP+2}
    v_min_u32 v{vP+3}, -2, v{vP+3}
    v_permlane32_swap_b32 v{vP}, v{vP+2}
    v_permlane32_swap_b32 v{vP+1}, v{vP+3}
    buffer_store_dwordx4 {vr(vP,4)}, v{vKo}, {srd}, s{sT0} offen sc1
    """)
    pf.stamp(4)
    if asmlib.PROF: a("s_waitcnt vmcnt(0)")
    pf.stamp(5)
    if 'diag' in EXP: a("s_mov_b32 s92, s40\ns_mov_b32 s94, s41")
    pf.dump(6, sA, sW, 4, vT0, vT1)
    a("s_endpgm")
    a.label(f"L_{P}_slow")
    a.window = []
    vM = vT3
    S = vS
    a(f"""
    s_lshl_b32 s{sT1}, s{sH}, 16
    s_add_u32 s{sT1}, s{sT1}, {WS_K}
    s_mov_b32 s{sKT}, s{sT1}
    s_mov_b32 s{sC}, 0
    v_mov_b32 v{vM}, 0xff800000
    v_and_b32 v{vT0}, 15, v0
    v_lshlrev_b32 v{vT0}, 4, v{vT0}
    v_lshrrev_b32 v{vT1}, 5, v0
    v_lshl_add_u32 v{vT0}, v{vT1}, 8, v{vT0}
    v_add_u32 v{vVo}, {WS_V - WS_K}, v{vT0}
    L_{P}_slow1:
    buffer_load_dwordx4 {vr(vK,4)}, v{vKo}, {srd}, s{sKT} offen
    s_add_u32 s{sKT}, s{sKT}, 1024
    s_waitcnt vmcnt(0)
    {mfS(0,0,0)}
    """)
    for r in range(0, 16, 2): a(f"v_max3_f32 v{vM}, v{vM}, v{S+r}, v{S+r+1}")
    a(f"""
    s_add_u32 s{sC}, s{sC}, 1
    s_cmp_lt_u32 s{sC}, 64
    s_cbranch_scc1 L_{P}_slow1
    v_mov_b32 v{vT0}, v{vM}
    v_mov_b32 v{vT1}, v{vM}
    v_permlane32_swap_b32 v{vT0}, v{vT1}
    v_max_f32 v{vM}, v{vT0}, v{vT1}
    s_mov_b32 s{sKT}, s{sT1}
    s_mov_b32 s{sC}, 0
    """)
    for r in range(16): a(f"v_mov_b32 v{R+r}, 0")
    a(f"""
    L_{P}_slow2:
    buffer_load_dwordx4 {vr(vK,4)}, v{vKo}, {srd}, s{sKT} offen
    s_mov_b64 exec, s[{sM}:{sM+1}]
    buffer_load_dwordx4 {vr(vV,4)}, v{vVo}, {srd}, s{sKT} offen
    buffer_load_dwordx4 {vr(vV+4,4)}, v{vVo}, {srd}, s{sKT} offen offset:512
    s_mov_b64 exec, -1
    s_add_u32 s{sKT}, s{sKT}, 1024
    s_waitcnt vmcnt(0)
    {mfS(0,0,0)}
    """)
    for r in range(16): a(f"v_sub_f32 v{S+r}, v{S+r}, v{vM}")
    for r in range(16): a(f"v_exp_f32 v{S+r}, v{S+r}")
    for i in range(8): a(f"v_cvt_pk_bf16_f32 v{vP+i}, v{S+2*i}, v{S+2*i+1}")
    a(mfPV(0, 0, 0)); a(mfPV(0, 0, 1))
    a(f"""
    s_nop 7
    s_add_u32 s{sC}, s{sC}, 1
    s_cmp_lt_u32 s{sC}, 64
    s_cbranch_scc1 L_{P}_slow2
    s_nop 15
    s_branch L_{P}_fin
    """)
    return NV

def gemm_role(a):
    P = "gm"
    sWS, sX, sW1, sB1, sWT, sOUT = 16, 20, 24, 28, 32, 36
    sW, sXCD, sIDX = 40, 41, 42
    sT0, sT1, sT2 = 43, 44, 45
    sC = 46
    sSOX, sSOW, sOS, sD, sN = 47, 48, 49, 50, 51
    sMD = 52
    sWM, sWN, sI, sJJ = 53, 54, 55, 56
    sTW, sFJ, sAO, sWO, sWO2, sLB = 57, 58, 59, 60, 61, 62
    sK2 = 64
    vL16 = 1
    vT0, vT1, vT2, vT3 = 2, 3, 4, 5
    vXd, vWd = 6, 7
    vXr, vWr = [8, 9], [10, 11]
    vAo = [12, 13]
    vG1 = [14, 15]
    vF = 16
    vA = 48
    vACC = 80
    NV = vACC + 64
    ST = 16384
    pf = Prof(a, 2)
    pf.stamp(0)
    cp = f"""s_getpc_b64 s[66:67]
    L_k2_pc:
    s_sub_u32 s66, s66, L_k2_pc-{NAME}
    s_subb_u32 s67, s67, 0
    s_lshl_b32 s{sT0}, s{sW}, 12
    v_lshlrev_b32 v{vT0}, 6, v0
    v_add_u32 v{vT0}, s{sT0}, v{vT0}
    v_min_u32 v{vT0}, L_code_end-{NAME}-4, v{vT0}
    global_load_dword v{vA}, v{vT0}, s[66:67]""" if 'cp2' in EXP else ""
    a(f"""
    s_setprio {0 if 'prio0' in EXP else 2}
    {'s_memrealtime s[68:69]' if 'tdiag' in EXP else ''}
    s_load_dwordx2 s[4:5], s[0:1], 0
    s_load_dwordx2 s[6:7], s[0:1], 16
    s_load_dwordx4 s[8:11], s[0:1], 32
    s_load_dwordx2 s[12:13], s[0:1], 48
    s_load_dwordx2 s[{sOUT}:{sOUT+1}], s[0:1], 64
    s_load_dwordx2 s[14:15], s[0:1], 80
    v_lshrrev_b32 v1, 6, v0
    v_and_b32 v0, 63, v0
    v_readfirstlane_b32 s{sW}, v1
    s_and_b32 s{sXCD}, s2, 7
    s_lshr_b32 s{sIDX}, s2, 3
    s_mov_b32 s{sWS+2}, {WS_SIZE}
    s_mov_b32 s{sWS+3}, 0x00020000
    s_mov_b32 s{sX+2}, {2048*512*2}
    s_mov_b32 s{sX+3}, 0x00020000
    s_mov_b32 s{sW1+2}, {512*1792*2}
    s_mov_b32 s{sW1+3}, 0x00020000
    s_mov_b32 s{sB1+2}, {1792*2}
    s_mov_b32 s{sB1+3}, 0x00020000
    s_mov_b32 s{sWT+2}, {1792*512*2}
    s_mov_b32 s{sWT+3}, 0x00020000
    s_mov_b32 s{sOUT+2}, {2048*512*2}
    s_mov_b32 s{sOUT+3}, 0x00020000
    s_and_b32 s{sWM}, s{sW}, 1
    s_lshr_b32 s{sWN}, s{sW}, 1
    v_lshlrev_b32 v{vL16}, 4, v0
    {cp}
    {f's_mov_b32 s{sX+2}, 0' if 'noload' in EXP else ''}
    {f's_mov_b32 s{sW1+2}, 0' if 'noload' in EXP else ''}
    {f's_mov_b32 s{sWT+2}, 0' if 'noload' in EXP else ''}
    s_waitcnt lgkmcnt(0)
    s_mov_b32 s{sX}, s4
    s_mov_b32 s{sX+1}, s5
    s_mov_b32 s{sW1}, s8
    s_mov_b32 s{sW1+1}, s9
    s_mov_b32 s{sB1}, s10
    s_mov_b32 s{sB1+1}, s11
    s_mov_b32 s{sWT}, s12
    s_mov_b32 s{sWT+1}, s13
    s_mov_b32 s{sWS}, s14
    s_mov_b32 s{sWS+1}, s15
    """)
    wsrd = f"s[{sWS}:{sWS+3}]"
    pf.stamp(1)
    if 'gexit' in EXP or 'f1only' in EXP: a("s_endpgm")
    pf.stamp(2)
    D = 4
    a(f"""
    s_lshl_b32 s{sTW}, s{sXCD}, 2
    s_and_b32 s{sT0}, s{sIDX}, 3
    s_add_u32 s{sTW}, s{sTW}, s{sT0}
    s_lshr_b32 s{sFJ}, s{sIDX}, 2
    s_mul_i32 s{sT0}, s{sTW}, 224
    s_mul_i32 s{sT1}, s{sW}, 28
    s_add_u32 s{sT0}, s{sT0}, s{sT1}
    s_lshl_b32 s{sAO}, s{sT0}, 10
    s_add_u32 s{sAO}, s{sAO}, {WS_A}
    s_lshl_b32 s{sWO}, s{sT1}, 14
    s_lshl_b32 s{sT2}, s{sFJ}, 7
    s_add_u32 s{sWO}, s{sWO}, s{sT2}
    s_lshl_b32 s{sLB}, s{sW}, 13
    s_mul_i32 s{sT0}, s{sWM}, {112*1024}
    s_sub_u32 s{sT1}, {112*1024}, s{sT0}
    v_add_u32 v{vAo[0]}, s{sT0}, v{vL16}
    v_add_u32 v{vAo[1]}, s{sT1}, v{vL16}
    v_lshrrev_b32 v{vT0}, 2, v0
    v_lshrrev_b32 v{vT1}, 4, v0
    v_xor_b32 v{vT0}, v{vT0}, v{vT1}
    v_and_b32 v{vT0}, 1, v{vT0}
    v_lshlrev_b32 v{vT0}, 6, v{vT0}
    v_and_b32 v{vT1}, 3, v0
    v_lshl_add_u32 v{vT0}, v{vT1}, 4, v{vT0}
    v_lshrrev_b32 v{vT1}, 3, v0
    v_lshl_add_u32 v{vWd}, v{vT1}, 10, v{vT0}
    v_lshrrev_b32 v{vT0}, 5, v0
    v_bfe_u32 v{vT1}, v0, 2, 2
    v_lshl_add_u32 v{vT0}, v{vT0}, 3, v{vT1}
    v_lshlrev_b32 v{vT0}, 7, v{vT0}
    v_lshrrev_b32 v{vT1}, 1, v{vT1}
    v_xor_b32 v{vT1}, s{sWN}, v{vT1}
    v_lshl_add_u32 v{vT0}, v{vT1}, 6, v{vT0}
    v_bfe_u32 v{vT1}, v0, 4, 1
    v_lshl_add_u32 v{vT0}, v{vT1}, 5, v{vT0}
    v_and_b32 v{vT1}, 3, v0
    v_lshl_add_u32 v{vT0}, v{vT1}, 3, v{vT0}
    v_add_u32 v{vWr[0]}, s{sLB}, v{vT0}
    v_xor_b32 v{vWr[1]}, 64, v{vWr[0]}
    s_lshl_b32 s{sT0}, s{sTW}, 8
    s_add_u32 s{sT0}, s{sT0}, {WS_G}
    v_and_b32 v{vT0}, 31, v0
    v_lshlrev_b32 v{vT0}, 2, v{vT0}
    s_lshl_b32 s{sT1}, s{sWM}, 7
    v_xor_b32 v{vT0}, s{sT1}, v{vT0}
    v_xor_b32 v{vT1}, 128, v{vT0}
    buffer_load_dword v{vG1[0]}, v{vT0}, {wsrd}, s{sT0} offen
    buffer_load_dword v{vG1[1]}, v{vT1}, {wsrd}, s{sT0} offen
    s_mov_b32 s{sD}, {SPIN_MAX}
    """)
    def wloads(d):
        return [f"s_add_u32 m0, s{sLB}, {d*2048}",
                f"s_add_u32 s{sWO2}, s{sWO}, 8192",
                f"buffer_load_dwordx4 v{vWd}, s[{sWT}:{sWT+3}], s{sWO} offen lds",
                f"s_add_u32 m0, s{sLB}, {d*2048+1024}",
                f"s_add_u32 s{sWO}, s{sWO}, 16384",
                f"buffer_load_dwordx4 v{vWd}, s[{sWT}:{sWT+3}], s{sWO2} offen lds"]
    def aloads(d):
        asrd = f"s[{sX}:{sX+3}]" if 'noload' in EXP else wsrd
        return [f"buffer_load_dwordx4 {vr(vA+8*d,4)}, v{vAo[0]}, {asrd}, s{sAO} offen",
                f"buffer_load_dwordx4 {vr(vA+8*d+4,4)}, v{vAo[1]}, {asrd}, s{sAO} offen",
                f"s_add_u32 s{sAO}, s{sAO}, 1024"]
    def wreads(d, buf):
        return [f"ds_read_b64_tr_b16 {vr(vF+8*buf+4*fi+2*t2,2)}, v{vWr[fi]} offset:{d*2048+t2*512}"
                for fi in range(2) for t2 in range(2)]
    def mfmas(d, buf):
        L = []
        for fi in range(2):
            for ti in range(2):
                acc = vACC + 16 * (fi * 2 + ti)
                L.append(f"v_mfma_f32_32x32x16_bf16 {vr(acc,16)}, {vr(vF+8*buf+4*fi,4)}, {vr(vA+8*d+4*ti,4)}, {vr(acc,16)}")
        if 'nomfma' in EXP: L = ["s_nop 0"] * 4
        if 'space' in EXP: L = [m + "\ns_sleep 1" for m in L]
        return L
    for d in range(D): a("\n".join(wloads(d) + aloads(d)))
    for r in range(64): a(f"v_mov_b32 v{vACC+r}, 0")
    a(f"s_mov_b32 s{sC}, 0")
    a(f"s_waitcnt vmcnt({4*(D-1)})")
    a("\n".join(wreads(0, 0)))
    a.raw(".p2align 6")
    a.label(f"L_{P}_f2loop")
    start = len(a.lines)
    for s in range(D):
        a(f"s_waitcnt vmcnt({4*(D-2)})")
        a("\n".join(wreads((s + 1) % D, (s + 1) & 1)))
        a("s_waitcnt lgkmcnt(4)")
        a("\n".join(mfmas(s, s & 1)))
        a("\n".join(wloads(s) + aloads(s)))
    a(f"""
    s_add_u32 s{sC}, s{sC}, 1
    s_cmp_lt_u32 s{sC}, {1 if 'nof2' in EXP else 6}
    s_cbranch_scc1 L_{P}_f2loop
    """)
    seam, inner = check_loop(a.lines[start:])
    assert seam == 0 and inner == 0, (seam, inner)
    a(f"""
    s_mov_b32 s{sWT}, s6
    s_mov_b32 s{sWT+1}, s7
    s_mov_b32 s{sWT+2}, {512*512*2}
    s_lshl_b32 s{sWO}, s{sW}, 16
    s_lshl_b32 s{sT2}, s{sFJ}, 7
    s_add_u32 s{sWO}, s{sWO}, s{sT2}
    """)
    for s in range(D):
        if s < D - 1:
            a(f"s_waitcnt vmcnt({4*(D-2-s) + 2*s})")
            a("\n".join(wreads(s + 1, (s + 1) & 1)))
            a("s_waitcnt lgkmcnt(4)")
        else:
            a("s_waitcnt lgkmcnt(0)")
        a("\n".join(mfmas(s, s & 1)))
        a("\n".join(wloads(s)))
    pf.stamp(3)
    if 'nopoll' in EXP: a("s_endpgm")
    a(f"""
    v_sub_f32 v{vG1[0]}, 1.0, v{vG1[0]}
    v_sub_f32 v{vG1[1]}, 1.0, v{vG1[1]}
    s_lshl_b32 s{sAO}, s{sTW}, 16
    s_lshl_b32 s{sT0}, s{sW}, 12
    s_add_u32 s{sAO}, s{sAO}, s{sT0}
    s_add_u32 s{sAO}, s{sAO}, {WS_O}
    s_lshl_b32 s{sT0}, s{sWM}, 15
    v_add_u32 v{vAo[0]}, s{sT0}, v{vL16}
    v_xor_b32 v{vAo[1]}, 0x8000, v{vAo[0]}
    v_and_b32 v{vT0}, 3, v0
    v_bfe_u32 v{vT1}, v0, 2, 1
    v_lshlrev_b32 v{vT0}, 10, v{vT0}
    v_lshl_add_u32 v{vT3}, v{vT1}, 15, v{vT0}
    s_add_u32 s{sWO}, s{sWO}, {(16-4)*16384}
    s_mov_b32 s{sC}, 0
    """)
    for fi in range(2):
        for ti in range(2):
            acc = vACC + 16 * (fi * 2 + ti)
            for r in range(16): a(f"v_mul_f32 v{acc+r}, v{vG1[ti]}, v{acc+r}")
    a.label(f"L_{P}_ph")
    a(f"""
    s_mov_b64 exec, 0xff
    L_{P}_pollO:
    buffer_load_dword v{vT1}, v{vT3}, {wsrd}, s{sAO} offen offset:1020 sc1
    s_waitcnt vmcnt(0)
    v_cmp_eq_u32 vcc, -1, v{vT1}
    s_cbranch_vccz L_{P}_loadO
    s_sleep {PSLEEP}
    s_sub_u32 s{sD}, s{sD}, 1
    s_cbranch_scc0 L_{P}_pollO
    s_mov_b32 s{sD}, 0
    L_{P}_loadO:
    s_mov_b64 exec, -1
    """)
    for d in range(D):
        a(f"buffer_load_dwordx4 {vr(vA+8*d,4)}, v{vAo[0]}, {wsrd}, s{sAO} offen offset:{d*1024} sc1")
        a(f"buffer_load_dwordx4 {vr(vA+8*d+4,4)}, v{vAo[1]}, {wsrd}, s{sAO} offen offset:{d*1024} sc1")
    a("\n".join(wreads(0, 0)))
    a("s_waitcnt vmcnt(0)")
    a(f"v_max3_u32 v{vT1}, v{vA}, v{vA+1}, v{vA+2}")
    for r in range(3, 31, 2): a(f"v_max3_u32 v{vT1}, v{vT1}, v{vA+r}, v{vA+r+1}")
    a(f"""
    v_max_u32 v{vT1}, v{vT1}, v{vA+31}
    v_cmp_eq_u32 vcc, -1, v{vT1}
    s_cbranch_vccz L_{P}_okO
    s_sub_u32 s{sD}, s{sD}, 1
    s_cbranch_scc0 L_{P}_loadO
    s_mov_b32 s{sD}, 0
    L_{P}_okO:
    """)
    for s in range(D):
        if s < D - 1:
            a("\n".join(wreads(s + 1, (s + 1) & 1)))
            a("s_waitcnt lgkmcnt(4)")
        else:
            a("s_waitcnt lgkmcnt(0)")
        a("\n".join(mfmas(s, s & 1)))
    a(f"""
    s_cmp_eq_u32 s{sC}, 1
    s_cbranch_scc1 L_{P}_red
    """)
    for s in range(D): a("\n".join(wloads(s)))
    a(f"""
    s_add_u32 s{sAO}, s{sAO}, 16384
    s_mov_b32 s{sC}, 1
    s_branch L_{P}_ph
    L_{P}_red:
    s_nop 7
    """)
    pf.stamp(4)
    a("s_barrier")
    for j in range(1, 4):
        a(f"""
        s_xor_b32 s{sT0}, s{sW}, {j}
        s_mul_i32 s{sT0}, s{sT0}, 12288
        v_add_u32 v{vT0}, s{sT0}, v{vL16}
        """)
        for q in range(4):
            a(f"ds_write_b128 v{vT0}, {vr(vACC+16*j+4*q,4)} offset:{(j-1)*4096+q*1024}")
    a(f"""
    s_mul_i32 s{sT0}, s{sW}, 12288
    v_add_u32 v{vT1}, s{sT0}, v{vL16}
    s_lshl_b32 s{sT0}, s{sTW}, 1
    s_add_u32 s{sT0}, s{sT0}, s{sWM}
    s_lshl_b32 s{sT0}, s{sT0}, 15
    s_lshl_b32 s{sT1}, s{sFJ}, 7
    s_add_u32 s{sT0}, s{sT0}, s{sT1}
    s_lshl_b32 s{sT1}, s{sWN}, 6
    s_add_u32 s{sT0}, s{sT0}, s{sT1}
    v_and_b32 v{vT0}, 31, v0
    v_lshlrev_b32 v{vT0}, 10, v{vT0}
    v_lshrrev_b32 v{vT2}, 5, v0
    v_lshl_add_u32 v{vT0}, v{vT2}, 4, v{vT0}
    s_waitcnt lgkmcnt(0)
    s_barrier
    """)
    for s in range(3):
        for q in range(4):
            a(f"ds_read_b128 {vr(vACC+16*(s+1)+4*q,4)}, v{vT1} offset:{s*4096+q*1024}")
    a("s_waitcnt lgkmcnt(8)")
    for r in range(0, 16, 2): a(f"v_pk_add_f32 {vr(vACC+r,2)}, {vr(vACC+r,2)}, {vr(vACC+16+r,2)}")
    a("s_waitcnt lgkmcnt(0)")
    for r in range(0, 16, 2): a(f"v_pk_add_f32 {vr(vACC+32+r,2)}, {vr(vACC+32+r,2)}, {vr(vACC+48+r,2)}")
    for r in range(0, 16, 2): a(f"v_pk_add_f32 {vr(vACC+r,2)}, {vr(vACC+r,2)}, {vr(vACC+32+r,2)}")
    p = vF
    for i in range(8): a(f"v_cvt_pk_bf16_f32 v{p+i}, v{vACC+2*i}, v{vACC+2*i+1}")
    a(f"""
    v_permlane32_swap_b32 v{p}, v{p+2}
    v_permlane32_swap_b32 v{p+1}, v{p+3}
    v_permlane32_swap_b32 v{p+4}, v{p+6}
    v_permlane32_swap_b32 v{p+5}, v{p+7}
    buffer_store_dwordx4 {vr(p,4)}, v{vT0}, s[{sOUT}:{sOUT+3}], s{sT0} offen
    buffer_store_dwordx4 {vr(p+4,4)}, v{vT0}, s[{sOUT}:{sOUT+3}], s{sT0} offen offset:32
    """)
    if asmlib.PROF: a("s_waitcnt vmcnt(0)")
    pf.stamp(5)
    pf.dump(6, 2, sW, 4, vT0, vT1)
    if 'tdiag' in EXP:
        a(f"""
        s_or_b32 s{sT0}, s2, s{sW}
        s_cmp_lg_u32 s{sT0}, 0
        s_cbranch_scc1 L_td_end
        s_memrealtime s[70:71]
        v_mov_b32 v1, 0
        s_mov_b32 s{sT0}, {WS_FA}
        buffer_load_dword v2, v1, {wsrd}, s{sT0} offen
        s_waitcnt vmcnt(0) lgkmcnt(0)
        v_readfirstlane_b32 s{sT1}, v2
        {f's_sub_u32 s{sT1}, s68, s{sT1}' if 'tdiag1' in EXP else f's_sub_u32 s{sT1}, s70, s68'}
        s_min_u32 s{sT1}, s{sT1}, 10000
        s_mul_i32 s{sT1}, s{sT1}, 10
        L_td_spin:
        s_memrealtime s[66:67]
        s_waitcnt lgkmcnt(0)
        s_sub_u32 s{sT2}, s66, s70
        s_cmp_lt_u32 s{sT2}, s{sT1}
        s_cbranch_scc1 L_td_spin
        L_td_end:
        """)
    a("s_endpgm")
    return NV

def gen():
    a = Asm()
    a.raw(kernel_header(NAME))
    a(f"""
    s_cmp_ge_u32 s2, 768
    s_cbranch_scc1 L_k2_end
    s_cmp_lt_u32 s2, 256
    s_cbranch_scc1 L_k2_gemm
    """)
    nv1 = attn_role(a)
    a.label("L_k2_end")
    a("s_endpgm")
    a.raw(".p2align 6")
    a.label("L_k2_gemm")
    a.window = []
    nv2 = gemm_role(a)
    NV = max(nv1, nv2)
    assert NV <= 168
    return a.text(), kernel_desc(NAME, NV, 80), f"; @launch kernel={NAME} grid=(768,1,1) block=(256,1,1) lds={LDS_BYTES}"

if __name__ == "__main__":
    t, d, l = gen()
    print(l); print(len(t.splitlines()))
```

```python
from asmlib import *
import asmlib
from layout import *
import os
SC = os.environ.get('K1SC', 'sc1')
EXP1 = os.environ.get('EXP1', '')

NAME = "k1_proj_kernel"
NW, NX = 6, 4
XS, WQS, W1S = 16384, 6144, 8192
WQ_BASE = NX * XS
W1_BASE = WQ_BASE + NW * WQS
FL_BASE = W1_BASE + NW * W1S
LDS_BYTES = FL_BASE + 128
SPIN_MAX = 1 << 20

def gen():
    a = Asm()
    a.raw(kernel_header(NAME))
    pf = Prof(a, 0)
    pf.stamp(0)
    sX, sWQ, sW1, sWS, sB1, sGW = 16, 20, 24, 28, 32, 36
    sWAVE, sW, sI, sJ = 40, 41, 42, 43
    sSOX, sSOQ, sSO1 = 44, 45, 46
    sSL, sSLX = 47, 69
    sN, sD, sDW = 48, 49, 50
    sC = 51
    sMX, sMQ, sM1 = 52, 53, 54
    sT0, sT1, sT2 = 55, 56, 57
    sSP, sFV = 58, 59
    sK2 = 60
    sKC, sBX, sBQ, sB1o, sKX = 64, 65, 66, 67, 68
    vG = 3
    vT0, vT1, vT2, vT3 = 6, 7, 8, 9
    cp = f"""s_getpc_b64 s[62:63]
    L_k1_pc0:
    v_lshlrev_b32 v1, 6, v0
    v_min_u32 v1, L_code_end-L_k1_pc0-4, v1
    global_load_dword v108, v1, s[62:63]""" if ('nocp' not in EXP1 and 'cpold' not in EXP1) else ""
    a(f"""
    s_cmp_ge_u32 s2, 256
    s_cbranch_scc1 L_k1_end
    {'s_memrealtime s[70:71]' if 'tdiag' in EXP1 else ''}
    {cp}
    s_load_dwordx4 s[4:7], s[0:1], 0
    s_load_dwordx4 s[8:11], s[0:1], 32
    s_load_dwordx2 s[12:13], s[0:1], 56
    s_load_dwordx2 s[14:15], s[0:1], 80
    v_lshrrev_b32 v1, 6, v0
    v_lshlrev_b32 v2, 2, v0
    v_readfirstlane_b32 s{sWAVE}, v1
    v_mov_b32 v3, 0
    v_cmp_gt_u32 vcc, 32, v0
    v_add_u32 v2, {FL_BASE}, v2
    s_and_saveexec_b64 s[62:63], vcc
    s_cbranch_execz L_k1_noinit
    ds_write_b32 v2, v3
    L_k1_noinit:
    s_mov_b64 exec, -1
    v_and_b32 v0, 63, v0
    s_and_b32 s{sT0}, s2, 7
    s_lshr_b32 s{sT1}, s2, 3
    s_and_b32 s{sI}, s{sT0}, 1
    s_lshl_b32 s{sI}, s{sI}, 3
    s_and_b32 s{sT2}, s{sT1}, 7
    s_add_u32 s{sI}, s{sI}, s{sT2}
    s_lshr_b32 s{sJ}, s{sT0}, 1
    s_lshl_b32 s{sJ}, s{sJ}, 2
    s_lshr_b32 s{sT2}, s{sT1}, 3
    s_add_u32 s{sJ}, s{sJ}, s{sT2}
    s_and_b32 s{sW}, s{sWAVE}, 3
    s_mov_b32 s{sWS+2}, {WS_SIZE}
    s_mov_b32 s{sWS+3}, 0x00020000
    s_mov_b32 s{sSP}, {SPIN_MAX}
    v_lshrrev_b32 v{vG}, 4, v0
    s_cmp_lt_u32 s{sWAVE}, 4
    s_cbranch_scc1 L_k1_comp
    """)
    vXd, vXd2, vQd, vQd2, v1d, v1d2 = 10, 18, 11, 12, 13, 14
    vFA, vOne, vFV = 15, 16, 17
    vGX, vGW, vOnes = 20, 28, 36
    a(f"""
    {'' if 'noprio' in EXP1 else 's_setprio 3'}
    {'s_endpgm' if 'conly' in EXP1 else ''}
    s_mov_b32 s{sX+2}, {2048*512*2}
    s_mov_b32 s{sX+3}, 0x00020000
    s_mov_b32 s{sWQ+2}, {512*1536*2}
    s_mov_b32 s{sWQ+3}, 0x00020000
    s_mov_b32 s{sW1+2}, {512*1792*2}
    s_mov_b32 s{sW1+3}, 0x00020000
    v_and_b32 v{vT0}, 7, v0
    v_xor_b32 v{vT0}, v{vT0}, v{vG}
    v_lshlrev_b32 v{vT0}, 4, v{vT0}
    v_lshrrev_b32 v{vT1}, 3, v0
    v_lshl_add_u32 v{vXd}, v{vT1}, 10, v{vT0}
    v_xor_b32 v{vXd2}, 64, v{vXd}
    v_add_u32 v{vXd2}, 8192, v{vXd2}
    s_lshl_b32 s{sBX}, s{sI}, 17
    s_lshl_b32 s{sT0}, s{sW}, 14
    s_add_u32 s{sBX}, s{sBX}, s{sT0}
    s_lshl_b32 s{sMX}, s{sW}, 11
    ; Wq: rows 8w..8w+7, pieces p = l (+64): pos = p>>1, k = pos/6, ct = (pos%6) ^ (w&1)
    s_mul_i32 s{sMQ}, s{sW}, 1536
    s_add_u32 s{sMQ}, s{sMQ}, {WQ_BASE}
    s_mul_i32 s{sBQ}, s{sW}, {8*3072}
    s_lshl_b32 s{sT0}, s{sJ}, 7
    s_add_u32 s{sBQ}, s{sBQ}, s{sT0}
    s_and_b32 s{sT1}, s{sW}, 1
    s_lshl_b32 s{sT2}, s{sJ}, 6
    s_sub_u32 s{sT2}, {2048-128}, s{sT2}
    """)
    for q, dst in ((0, vQd), (1, vQd2)):
        a(f"""
        v_lshrrev_b32 v{vT1}, 1, v0
        v_add_u32 v{vT1}, {32*q}, v{vT1}
        v_mul_u32_u24 v{vT2}, 0xaaab, v{vT1}
        v_lshrrev_b32 v{vT2}, 18, v{vT2}
        v_mul_u32_u24 v{vT3}, 6, v{vT2}
        v_sub_u32 v{vT1}, v{vT1}, v{vT3}
        v_xor_b32 v{vT1}, s{sT1}, v{vT1}
        v_mul_u32_u24 v{vT2}, 3072, v{vT2}
        v_lshl_add_u32 v{vT2}, v{vT1}, 5, v{vT2}
        v_lshrrev_b32 v{vT3}, 2, v{vT1}
        v_mul_u32_u24 v{vT3}, s{sT2}, v{vT3}
        v_add_u32 v{vT2}, v{vT2}, v{vT3}
        v_and_b32 v{vT3}, 1, v0
        v_lshl_add_u32 v{dst}, v{vT3}, 4, v{vT2}
        """)
    a(f"""
    s_lshl_b32 s{sM1}, s{sW}, 11
    s_add_u32 s{sM1}, s{sM1}, {W1_BASE}
    s_mul_i32 s{sB1o}, s{sW}, {8*3584}
    s_mul_i32 s{sT0}, s{sJ}, 224
    s_add_u32 s{sB1o}, s{sB1o}, s{sT0}
    s_lshl_b32 s{sT1}, s{sT1}, 2
    v_lshrrev_b32 v{vT1}, 1, v0
    v_sub_u32 v{vT1}, v{vT1}, v{vG}
    v_subrev_u32 v{vT1}, s{sT1}, v{vT1}
    v_and_b32 v{vT1}, 7, v{vT1}
    v_min_u32 v{vT1}, 6, v{vT1}
    v_mul_u32_u24 v{vT2}, 3584, v{vG}
    v_lshl_add_u32 v{vT2}, v{vT1}, 5, v{vT2}
    v_and_b32 v{vT3}, 1, v0
    v_lshl_add_u32 v{v1d}, v{vT3}, 4, v{vT2}
    v_add_u32 v{v1d2}, {4*3584}, v{v1d}
    v_mov_b32 v{vFA}, {FL_BASE}
    v_mov_b32 v{vOne}, 1
    s_lshr_b32 s{sKX}, s2, 3
    s_and_b32 s{sKX}, s{sKX}, 7
    s_lshl_b32 s{sKC}, s{sKX}, 1
    s_waitcnt lgkmcnt(0)
    s_mov_b32 s{sX}, s4
    s_mov_b32 s{sX+1}, s5
    s_mov_b32 s{sWQ}, s6
    s_mov_b32 s{sWQ+1}, s7
    s_mov_b32 s{sW1}, s8
    s_mov_b32 s{sW1+1}, s9
    {f's_mov_b32 s{sX+2}, 0' if 'nox' in EXP1 else ''}
    {f's_mov_b32 s{sWQ+2}, 0' if 'noq' in EXP1 else ''}
    {f's_mov_b32 s{sW1+2}, 0' if 'no1' in EXP1 else ''}
    """)
    def woffs():
        return f"""s_mul_i32 s{sT0}, s{sKC}, {32*3584}
        s_add_u32 s{sSO1}, s{sB1o}, s{sT0}
        s_mul_i32 s{sT0}, s{sKC}, {32*3072}
        s_add_u32 s{sSOQ}, s{sBQ}, s{sT0}
        s_add_u32 s{sKC}, s{sKC}, 1
        s_and_b32 s{sKC}, s{sKC}, 15"""
    def xoffs(half):
        t = f"""s_lshl_b32 s{sT0}, s{sKX}, 7
        s_add_u32 s{sSOX}, s{sBX}, s{sT0}"""
        if half:
            t += f"""
            s_add_u32 s{sSOX}, s{sSOX}, 65536
            s_add_u32 s{sKX}, s{sKX}, 1
            s_and_b32 s{sKX}, s{sKX}, 7"""
        return t
    def xdma(m, half, e):
        return (f"s_add_u32 m0, s{sMX}, {(m % NX)*XS + half*8192 + e*1024}",
                f"buffer_load_dwordx4 v{vXd2 if e else vXd}, s[{sX}:{sX+3}], s{sSOX} offen lds")
    def ready_txt(c, younger):
        return f"""s_waitcnt vmcnt({younger})
        s_mov_b64 exec, 1
        ds_add_u32 v{vFA}, v{vOne} offset:{4*c}
        s_mov_b64 exec, -1"""
    cnt = []
    def issue(c, sig, nxt):
        sl = c % NW
        m, half = (c + 1) >> 1, (c + 1) & 1
        hasx = m < 8
        n = 0
        if hasx:
            x = xdma(m, half, 0)
            a(x[0]); a(f"ds_read_b32 v{vFV}, v{vFA} offset:{64+4*nxt}" if nxt is not None else "s_nop 0"); a(x[1]); n += 1
        a(f"""
        s_add_u32 m0, s{sM1}, {sl*W1S}
        s_nop 0
        buffer_load_dwordx4 v{v1d}, s[{sW1}:{sW1+3}], s{sSO1} offen lds
        s_add_u32 m0, s{sMQ}, {sl*WQS}
        s_nop 0
        buffer_load_dwordx4 v{vQd}, s[{sWQ}:{sWQ+3}], s{sSOQ} offen lds
        """); n += 2
        if sig == 0: a("s_barrier")
        if sig is not None and 'nosig' not in EXP1: a(ready_txt(sig, sum(cnt[sig + 1:]) + n))
        if hasx:
            x = xdma(m, half, 1)
            a(x[0]); a("s_nop 0"); a(x[1]); n += 1
        a(f"""
        s_add_u32 m0, s{sM1}, {sl*W1S+1024}
        s_nop 0
        buffer_load_dwordx4 v{v1d2}, s[{sW1}:{sW1+3}], s{sSO1} offen lds
        s_add_u32 m0, s{sMQ}, {sl*WQS+1024}
        s_mov_b32 s{sT1}, s{sSOQ}
        """); n += 1
        a(woffs())
        a(xoffs((c + 2) & 1))
        if nxt is not None:
            a(f"""
            s_waitcnt lgkmcnt({1 if sig is not None else 0})
            v_readfirstlane_b32 s{sFV}, v{vFV}
            """)
        a(f"""
        s_mov_b32 exec_hi, 0
        buffer_load_dwordx4 v{vQd2}, s[{sWQ}:{sWQ+3}], s{sT1} offen lds
        s_mov_b32 exec_hi, -1
        """); n += 1
        if nxt is not None:
            a(f"""
            L_k1_wc{nxt}:
            s_cmp_ge_u32 s{sFV}, {0 if ('solo' in EXP1 or 'nowait' in EXP1) else 4}
            s_cbranch_scc1 L_k1_wdok{nxt}
            ds_read_b32 v{vFV}, v{vFA} offset:{64+4*nxt}
            s_sub_u32 s{sSP}, s{sSP}, 1
            s_waitcnt lgkmcnt(0)
            v_readfirstlane_b32 s{sFV}, v{vFV}
            s_cbranch_scc0 L_k1_wc{nxt}
            s_mov_b32 s{sSP}, 0
            L_k1_wdok{nxt}:
            """)
        cnt.append(n)
    LAG = int(os.environ.get('K1LAG', '3'))
    a(woffs()); a(xoffs(0))
    for e in range(2):
        x = xdma(0, 0, e); a(x[0]); a("s_nop 0"); a(x[1])
    a(xoffs(1))
    for c in range(16):
        if c == LAG: pf.stamp(1); pf.stamp(2)
        issue(c, sig=(c - LAG if c >= LAG else None), nxt=(c + 1 - NW if NW <= c + 1 < 16 else None))
    pf.stamp(3)
    a(f"""
    s_mov_b32 s{sWS}, s14
    s_mov_b32 s{sWS+1}, s15
    s_mov_b32 s{sGW}, s12
    s_mov_b32 s{sGW+1}, s13
    s_mov_b32 s{sGW+2}, 1024
    s_mov_b32 s{sGW+3}, 0x00020000
    s_lshl_b32 s{sT0}, s{sI}, 7
    s_lshl_b32 s{sT1}, s{sJ}, 3
    s_add_u32 s{sT0}, s{sT0}, s{sT1}
    s_lshl_b32 s{sT1}, s{sW}, 1
    s_add_u32 s{sN}, s{sT0}, s{sT1}
    s_lshl_b32 s{sT1}, s{sN}, 10
    v_and_b32 v{vT1}, 31, v0
    v_lshlrev_b32 v{vT1}, 5, v{vT1}
    v_lshrrev_b32 v{vT2}, 5, v0
    v_lshl_add_u32 v{vT2}, v{vT2}, 10, v{vT1}
    buffer_load_dwordx4 {vr(vGX,4)}, v{vT2}, s[{sX}:{sX+3}], s{sT1} offen
    buffer_load_dwordx4 {vr(vGX+4,4)}, v{vT2}, s[{sX}:{sX+3}], s{sT1} offen offset:16
    buffer_load_dwordx4 {vr(vGW,4)}, v{vT1}, s[{sGW}:{sGW+3}], 0 offen
    buffer_load_dwordx4 {vr(vGW+4,4)}, v{vT1}, s[{sGW}:{sGW+3}], 0 offen offset:16
    v_mov_b32 v{vOnes}, -1
    v_mov_b32 v{vOnes+1}, -1
    v_mov_b32 v{vOnes+2}, -1
    v_mov_b32 v{vOnes+3}, -1
    v_lshlrev_b32 v{vT0}, 4, v0
    s_lshl_b32 s{sT0}, s2, 2
    s_add_u32 s{sT0}, s{sT0}, s{sW}
    s_lshl_b32 s{sT1}, s{sT0}, 11
    s_add_u32 s{sT1}, s{sT1}, {WS_O}
    buffer_store_dwordx4 {vr(vOnes,4)}, v{vT0}, s[{sWS}:{sWS+3}], s{sT1} offen {SC}
    buffer_store_dwordx4 {vr(vOnes,4)}, v{vT0}, s[{sWS}:{sWS+3}], s{sT1} offen offset:1024 {SC}
    """)
    for c in range(16 - LAG, 16): a(ready_txt(c, sum(cnt[c + 1:]) + 6))
    a("s_waitcnt vmcnt(2)")
    acc = vT1
    a(f"v_mov_b32 v{acc}, 0")
    for r in range(8): a(f"v_dot2_f32_bf16 v{acc}, v{vGX+r}, v{vGW+r}, v{acc}")
    a("s_nop 3")
    for mod in ["quad_perm:[1,0,3,2]", "quad_perm:[2,3,0,1]", "row_half_mirror", "row_mirror"]:
        a(f"v_add_f32_dpp v{acc}, v{acc}, v{acc} {mod} row_mask:0xf bank_mask:0xf")
    a(f"""
    v_mov_b32 v{vT2}, v{acc}
    v_mov_b32 v{vT3}, v{acc}
    v_permlane16_swap_b32 v{vT2}, v{vT3}
    v_add_f32 v{acc}, v{vT2}, v{vT3}
    v_mul_f32 v{acc}, {hex(f32bits(-LOG2E))}, v{acc}
    v_exp_f32 v{acc}, v{acc}
    v_add_f32 v{acc}, 1.0, v{acc}
    v_rcp_f32 v{acc}, v{acc}
    s_lshl_b32 s{sT0}, s{sN}, 2
    s_add_u32 s{sT0}, s{sT0}, {WS_G}
    v_lshrrev_b32 v{vT2}, 5, v0
    v_lshlrev_b32 v{vT2}, 2, v{vT2}
    s_mov_b32 exec_lo, 1
    s_mov_b32 exec_hi, 1
    buffer_store_dword v{acc}, v{vT2}, s[{sWS}:{sWS+3}], s{sT0} offen
    """)
    pf.stamp(4); pf.stamp(5)
    pf.dump(6, 2, sWAVE, 8, vT0, vT1)
    a("s_endpgm")
    a.label("L_k1_comp")
    a.window = []
    vN16, vR, vC = 2, 4, 5
    vXr, vQr = [10, 19], 14
    vFA, vOne, vFV = 11, 12, 13
    vWr = list(range(15, 19))
    vF = 20
    FSZ = 44
    vACC = vF + 2 * FSZ
    NV = vACC + 112
    sWM, sWN = sSOX, sSOQ
    sWX, sWQw, sW1w = sMX, sMQ, sM1
    sDQ = sN
    td = f"""s_or_b32 s{sT0}, s2, s{sWAVE}
    s_cmp_lg_u32 s{sT0}, 0
    s_cbranch_scc1 L_k1_td
    v_mov_b32 v{vT0}, s70
    v_mov_b32 v1, 0
    s_mov_b32 s{sT0}, {WS_FA}
    buffer_store_dword v{vT0}, v1, s[{sWS}:{sWS+3}], s{sT0} offen
    L_k1_td:""" if 'tdiag' in EXP1 else ""
    wu = f"""s_load_dwordx2 s[{sX}:{sX+1}], s[0:1], 48
    s_load_dwordx2 s[{sWQ}:{sWQ+1}], s[0:1], 16
    s_mov_b32 s{sX+2}, {1792*512*2}
    s_mov_b32 s{sX+3}, 0x00020000
    s_mov_b32 s{sWQ+2}, {512*512*2}
    s_mov_b32 s{sWQ+3}, 0x00020000
    s_lshl_b32 s{sT0}, s2, 2
    s_add_u32 s{sT0}, s{sT0}, s{sW}
    s_lshl_b32 s{sT0}, s{sT0}, 7
    v_lshlrev_b32 v{vT0}, 17, v0
    s_waitcnt lgkmcnt(0)
    s_mov_b64 exec, 0x3fff
    buffer_load_dword v{vACC+1}, v{vT0}, s[{sX}:{sX+3}], s{sT0} offen
    s_mov_b64 exec, 0xf
    buffer_load_dword v{vACC+1}, v{vT0}, s[{sWQ}:{sWQ+3}], s{sT0} offen
    s_mov_b64 exec, -1""" if 'wu' in EXP1 else ""
    if 'cpold' in EXP1:
        a(f"""
        s_getpc_b64 s[62:63]
        L_k1_pc:
        s_sub_u32 s62, s62, L_k1_pc-{NAME}
        s_subb_u32 s63, s63, 0
        s_lshl_b32 s{sT0}, s{sW}, 13
        v_lshlrev_b32 v{vT0}, 7, v0
        v_add_u32 v{vT0}, s{sT0}, v{vT0}
        v_min_u32 v{vT0}, L_code_end-{NAME}-4, v{vT0}
        global_load_dword v{vACC}, v{vT0}, s[62:63]
        """)
    a(f"""
    s_and_b32 s{sWM}, s{sW}, 1
    s_lshr_b32 s{sWN}, s{sW}, 1
    v_and_b32 v{vN16}, 15, v0
    v_bfe_u32 v{vR}, v0, 2, 2
    v_and_b32 v{vC}, 3, v0
    v_lshrrev_b32 v{vT0}, 1, v{vN16}
    v_xor_b32 v{vT0}, v{vG}, v{vT0}
    v_lshlrev_b32 v{vT0}, 4, v{vT0}
    v_lshl_add_u32 v{vT0}, v{vN16}, 7, v{vT0}
    s_lshl_b32 s{sT0}, s{sWM}, 13
    v_add_u32 v{vXr[0]}, s{sT0}, v{vT0}
    v_xor_b32 v{vXr[1]}, 64, v{vXr[0]}
    v_mov_b32 v{vFA}, {FL_BASE}
    v_mov_b32 v{vOne}, 1
    v_mov_b32 v{vFV}, 0
    s_mov_b32 s{sSL}, 0
    s_mov_b32 s{sSLX}, 0
    s_mov_b32 s{sC}, 0
    s_mov_b32 s{sWX}, {-(NX-1)*XS}
    s_mov_b32 s{sWQw}, {-(NW-1)*WQS}
    s_mov_b32 s{sW1w}, {-(NW-1)*W1S}
    v_lshl_add_u32 v{vT1}, v{vG}, 3, v{vR}
    v_and_b32 v{vT2}, 1, v{vG}
    v_mul_u32_u24 v{vT0}, 192, v{vT1}
    v_lshl_add_u32 v{vT0}, v{vC}, 3, v{vT0}
    v_add_u32 v{vT0}, {WQ_BASE}, v{vT0}
    v_xor_b32 v{vT3}, s{sWN}, v{vT2}
    v_lshl_add_u32 v{vQr}, v{vT3}, 5, v{vT0}
    v_lshlrev_b32 v{vT1}, 8, v{vT1}
    v_lshl_add_u32 v{vT1}, v{vC}, 3, v{vT1}
    v_add_u32 v{vT1}, {W1_BASE}, v{vT1}
    v_lshl_add_u32 v{vT2}, v{vT2}, 2, v{vR}
    v_lshlrev_b32 v{vT3}, 3, v{vG}
    s_mul_i32 s{sT1}, s{sJ}, 224
    s_mov_b32 s{sB1+2}, {1792*2}
    s_mov_b32 s{sB1+3}, 0x00020000
    s_waitcnt lgkmcnt(0)
    s_mov_b32 s{sWS}, s14
    s_mov_b32 s{sWS+1}, s15
    s_mov_b32 s{sB1}, s10
    s_mov_b32 s{sB1+1}, s11
    {wu}
    {td}
    s_cmp_eq_u32 s{sWN}, 1
    s_cbranch_scc1 L_k1_gb
    """)
    def frag(buf):
        b = vF + buf * FSZ
        return [b + 4 * t for t in range(4)], [b + 16 + 4 * i for i in range(7)]
    def role(name, F):
        nf = len(F); nt = 3 + nf
        def reads(buf):
            X, W = frag(buf); L = []
            def wr(i):
                for t2 in range(2):
                    if i < nf: va, off = vWr[i], 4 * t2 * 256
                    else:      va, off = vQr, 4 * t2 * 192 + (i - nf) * 64
                    L.append(f"ds_read_b64_tr_b16 {vr(W[i]+2*t2,2)}, v{va} offset:{off}")
            for t in range(4):
                L.append(f"ds_read_b128 {vr(X[t],4)}, v{vXr[buf]} offset:{t*2048}")
                wr(t)
            for i in range(4, nt): wr(i)
            if 'noread' in EXP1: L = ["s_nop 0"] * len(L)
            return L
        def mfmas(buf):
            X, W = frag(buf); L = []
            for i in range(nt):
                for t in range(4):
                    acc = vACC + (i * 4 + t) * 4
                    if i == nt - 1: L.append(f"v_mfma_f32_16x16x32_bf16 {vr(acc,4)}, {vr(X[t],4)}, {vr(W[i],4)}, {vr(acc,4)}")
                    else:           L.append(f"v_mfma_f32_16x16x32_bf16 {vr(acc,4)}, {vr(W[i],4)}, {vr(X[t],4)}, {vr(acc,4)}")
            if 'nomfma' in EXP1: L = ["s_nop 0"] * len(L)
            return L
        def check(tag):
            return f"""
            L_k1_{name}_ck{tag}:
            v_readfirstlane_b32 s{sFV}, v{vFV}
            s_cmp_ge_u32 s{sFV}, {0 if ('conly' in EXP1 or 'nowait' in EXP1) else 4}
            s_cbranch_scc1 L_k1_{name}_ok{tag}
            ds_read_b32 v{vFV}, v{vFA}
            s_sub_u32 s{sSP}, s{sSP}, 1
            s_waitcnt lgkmcnt(0)
            s_cbranch_scc0 L_k1_{name}_ck{tag}
            s_mov_b32 s{sSP}, 0
            L_k1_{name}_ok{tag}:
            """
        vB = vF + FSZ
        for i, ct in enumerate(F):
            a(f"buffer_load_dwordx2 {vr(vB+2*i,2)}, v{vT3}, s[{sB1}:{sB1+3}], s{sT1} offen offset:{ct*32}")
        for i, ct in enumerate(F):
            a(f"""
            v_add_u32 v{vT0}, {ct}, v{vT2}
            v_and_b32 v{vT0}, 7, v{vT0}
            v_lshl_add_u32 v{vWr[i]}, v{vT0}, 5, v{vT1}
            """)
        for r in range(48): a(f"v_mov_b32 v{vACC+16*nf+r}, 0")
        a("s_waitcnt vmcnt(0)")
        for i in range(nf):
            for t in range(4):
                acc = vACC + (i * 4 + t) * 4
                a(f"""
                v_lshlrev_b32 v{acc}, 16, v{vB+2*i}
                v_and_b32 v{acc+1}, 0xffff0000, v{vB+2*i}
                v_lshlrev_b32 v{acc+2}, 16, v{vB+2*i+1}
                v_and_b32 v{acc+3}, 0xffff0000, v{vB+2*i+1}
                """)
        pf.stamp(1)
        if 'solo' in EXP1: a("s_endpgm")
        a("s_barrier")
        a(check("p"))
        pf.stamp(2)
        def adv(buf_next):
            G = [f"""s_add_u32 s{sSL}, s{sSL}, 1
                 s_cmp_eq_u32 s{sSL}, {NW}""",
                 f"""s_cselect_b32 s{sDW}, s{sW1w}, {W1S}
                 s_cselect_b32 s{sDQ}, s{sWQw}, {WQS}""",
                 f"""s_cselect_b32 s{sSL}, 0, s{sSL}
                 v_add_u32 v{vFA}, 4, v{vFA}""",
                 f"""v_add_u32 v{vQr}, s{sDQ}, v{vQr}
                 v_add_u32 v{vWr[0]}, s{sDW}, v{vWr[0]}""",
                 "\n".join(f"v_add_u32 v{r}, s{sDW}, v{r}" for r in vWr[1:3])]
            if nf > 3: G.append(f"v_add_u32 v{vWr[3]}, s{sDW}, v{vWr[3]}")
            if buf_next == 0:
                G += [f"""s_add_u32 s{sSLX}, s{sSLX}, 1
                      s_cmp_eq_u32 s{sSLX}, {NX}""",
                      f"""s_cselect_b32 s{sD}, s{sWX}, {XS}
                      s_cselect_b32 s{sSLX}, 0, s{sSLX}""",
                      f"""v_add_u32 v{vXr[0]}, s{sD}, v{vXr[0]}
                      v_add_u32 v{vXr[1]}, s{sD}, v{vXr[1]}"""]
            G.append(f"ds_read_b32 v{vFV}, v{vFA}")
            return G
        a("\n".join(reads(0)))
        a("\n".join(adv(1)))
        a.raw(".p2align 6")
        a.label(f"L_k1_{name}_loop")
        start = len(a.lines)
        for buf in range(2):
            M = mfmas(buf)
            R = reads(buf ^ 1)
            G = [check(buf)]
            while R:
                G.append("\n".join(R[:2])); R = R[2:]
            G.insert(2, f"""s_mov_b64 exec, 1
                 ds_add_u32 v{vFA}, v{vOne} offset:60
                 s_mov_b64 exec, -1""")
            G += adv(buf)
            assert len(G) <= len(M) - 2, (len(G), len(M))
            if buf == 1:
                a(f"""
                s_add_u32 s{sC}, s{sC}, 1
                s_cmp_eq_u32 s{sC}, 8
                s_waitcnt lgkmcnt(0)
                s_cbranch_scc1 L_k1_{name}_last
                """)
            else:
                a("s_waitcnt lgkmcnt(0)")
            for i, m in enumerate(M):
                a(m)
                if i < len(G): a(G[i])
        a(f"s_branch L_k1_{name}_loop")
        seam, inner = check_loop(a.lines[start:])
        assert seam == 0 and inner == 0, (seam, inner)
        a.label(f"L_k1_{name}_last")
        a.window = []
        M = mfmas(1)
        for m in M[4*nf:] + M[:4*nf]: a(m)
        pf.stamp(3)
        vP = vF
        a(f"""
        s_lshl_b32 s{sT0}, s{sI}, 2
        s_lshl_b32 s{sT1}, s{sWM}, 1
        s_add_u32 s{sD}, s{sT0}, s{sT1}
        v_lshlrev_b32 v{vT0}, 4, v0
        s_lshl_b32 s{sT0}, s{sD}, 10
        s_lshl_b32 s{sT1}, s{sJ}, 2
        s_add_u32 s{sT1}, s{sT1}, s{sWN}
        s_lshl_b32 s{sT1}, s{sT1}, 16
        s_add_u32 s{sT1}, s{sT1}, s{sT0}
        s_add_u32 s{sDW}, s{sT1}, {2*65536}
        s_lshl_b32 s{sN}, s{sJ}, 1
        s_add_u32 s{sN}, s{sN}, s{sWN}
        s_lshl_b32 s{sN}, s{sN}, 16
        s_add_u32 s{sN}, s{sN}, s{sT0}
        s_add_u32 s{sN}, s{sN}, {WS_V}
        s_mov_b32 s{sT2}, {hex(f32bits(QSCALE))}
        s_cmp_lt_u32 s{sJ}, 8
        s_cselect_b32 s{sK2}, s{sT2}, 1.0
        s_mov_b32 s{sK2+1}, s{sK2}
        """)
        assert WS_Q == 0 and WS_K == 32 * 65536
        k = 0
        for c3 in (2, 0, 1):
            for tp in range(2):
                p = vP + 4 * k; k += 1
                a0 = vACC + ((nf + c3) * 4 + 2 * tp) * 4; a1 = a0 + 4
                if c3 < 2:
                    for r in range(0, 8, 2): a(f"v_pk_mul_f32 {vr(a0+r,2)}, {vr(a0+r,2)}, s[{sK2}:{sK2+1}]")
                sw = "v_permlane32_swap_b32" if c3 == 2 else "v_permlane16_swap_b32"
                a(f"""
                v_cvt_pk_bf16_f32 v{p}, v{a0}, v{a0+1}
                v_cvt_pk_bf16_f32 v{p+1}, v{a0+2}, v{a0+3}
                v_cvt_pk_bf16_f32 v{p+2}, v{a1}, v{a1+1}
                v_cvt_pk_bf16_f32 v{p+3}, v{a1+2}, v{a1+3}
                {sw} v{p}, v{p+2}
                {sw} v{p+1}, v{p+3}
                buffer_store_dwordx4 {vr(p,4)}, v{vT0}, s[{sWS}:{sWS+3}], s{[sT1, sDW, sN][c3]} offen offset:{tp*1024} {SC}
                """)
        a(f"""
        s_mul_i32 s{sT0}, s{sD}, 112
        s_mul_i32 s{sT1}, s{sJ}, 7
        s_add_u32 s{sT0}, s{sT0}, s{sT1}
        s_add_u32 s{sT0}, s{sT0}, {F[0]}
        s_lshl_b32 s{sT0}, s{sT0}, 10
        s_add_u32 s{sT0}, s{sT0}, {WS_A}
        s_add_u32 s{sT1}, s{sT0}, {112*1024}
        s_mov_b32 s{sK2}, {hex(f32bits(LOG2E))}
        s_mov_b32 s{sK2+1}, {hex(f32bits(LOG2E))}
        """)
        E0 = vF + FSZ
        PK = vACC + 16 * nf
        k = 0
        for i in range(nf):
            hs = [vACC + (i * 4 + 2 * tp) * 4 for tp in range(2)]
            es = [E0, E0 + 16]; ds = [E0 + 8, E0 + 24]
            def both(f):
                for tp in range(2): f(hs[tp], es[tp], ds[tp])
            both(lambda h, e, d: [a(f"v_pk_mul_f32 {vr(e+r,2)}, {vr(h+r,2)}, s[{sK2}:{sK2+1}]") for r in range(0, 8, 2)])
            both(lambda h, e, d: [a(f"v_exp_f32 v{e+r}, v{e+r}") for r in range(8)])
            both(lambda h, e, d: [a(f"v_pk_add_f32 {vr(e+r,2)}, {vr(e+r,2)}, 1.0 op_sel_hi:[1,0]") for r in range(0, 8, 2)])
            both(lambda h, e, d: [a(f"v_pk_fma_f32 {vr(d+r,2)}, {vr(e+r,2)}, {vr(e+r,2)}, 1.0 op_sel_hi:[1,1,0]") for r in range(0, 8, 2)])
            both(lambda h, e, d: [a(f"v_rcp_f32 v{d+r}, v{d+r}") for r in range(8)])
            both(lambda h, e, d: [a(f"v_pk_mul_f32 {vr(d+r,2)}, {vr(d+r,2)}, {vr(h+r,2)}") for r in range(0, 8, 2)])
            both(lambda h, e, d: [a(f"v_pk_fma_f32 {vr(d+r,2)}, {vr(d+r,2)}, -2.0, {vr(h+r,2)} op_sel_hi:[1,0,1]") for r in range(0, 8, 2)])
            ps = [PK + 4 * (k + tp) for tp in range(2)]; k += 2
            for tp in range(2):
                p, d = ps[tp], ds[tp]
                a(f"""
                v_cvt_pk_bf16_f32 v{p}, v{d}, v{d+1}
                v_cvt_pk_bf16_f32 v{p+1}, v{d+2}, v{d+3}
                v_cvt_pk_bf16_f32 v{p+2}, v{d+4}, v{d+5}
                v_cvt_pk_bf16_f32 v{p+3}, v{d+6}, v{d+7}
                """)
            for tp in range(2):
                p = ps[tp]
                a(f"""
                v_permlane16_swap_b32 v{p}, v{p+2}
                v_permlane16_swap_b32 v{p+1}, v{p+3}
                buffer_store_dwordx4 {vr(p,4)}, v{vT0}, s[{sWS}:{sWS+3}], s{sT1 if tp else sT0} offen offset:{i*1024} {SC}
                """)
        pf.stamp(4)
        if asmlib.PROF: a("s_waitcnt vmcnt(0)")
        pf.stamp(5)
        pf.dump(6, 2, sWAVE, 8, vT0, vT1)
        a("s_endpgm")
    role("ga", [0, 1, 2])
    a.label("L_k1_gb")
    a.window = []
    role("gb", [3, 4, 5, 6])
    a.label("L_k1_end")
    a("s_endpgm")
    assert NV <= 256
    return a.text(), kernel_desc(NAME, NV, 72), f"; @launch kernel={NAME} grid=(256,1,1) block=(512,1,1) lds={LDS_BYTES}"

if __name__ == "__main__":
    t, d, l = gen()
    print(l); print(len(t.splitlines()))
```

```python
from asmlib import *
import asmlib
from layout import *

NAME = "k2_main_kernel"
LDS_BYTES = 49152
import os
SENT = -1
PSLEEP = int(os.environ.get('PSLEEP', '12'))
import os
EXP = os.environ.get('EXP', '')
SPIN_MAX = 1 << 18

def attn_role(a):
    P = "at"
    sWS, sKV = 8, 28
    sW, sH, sQB = 12, 13, 14
    sT0, sT1, sT2 = 15, 16, 17
    sKT, sC, sM, sQ0, sA = 18, 19, 20, 22, 23
    sRB, sPO, sD, sVT = 26, 27, 32, 33
    vKo, vVo = 1, 2
    vT0, vT1, vT2, vT3, vG = 3, 4, 5, 6, 7
    vQ, vK, vV, vP, vS, vO = 8, 24, 32, 48, 56, 88
    vKr, vVr = 152, 153
    NV = 154
    RING = 12288
    pf = Prof(a, 1)
    pf.stamp(0)
    a(f"""
    s_setprio 3
    s_load_dwordx2 s[4:5], s[0:1], 80
    s_sub_u32 s{sA}, s2, 256
    v_lshrrev_b32 v1, 6, v0
    v_and_b32 v0, 63, v0
    v_readfirstlane_b32 s{sW}, v1
    s_lshr_b32 s{sH}, s{sA}, 8
    s_lshl_b32 s{sH}, s{sH}, 4
    s_and_b32 s{sT0}, s{sA}, 7
    s_lshl_b32 s{sT0}, s{sT0}, 1
    s_add_u32 s{sH}, s{sH}, s{sT0}
    s_bfe_u32 s{sT0}, s{sA}, 0x10003
    s_add_u32 s{sH}, s{sH}, s{sT0}
    s_bfe_u32 s{sQB}, s{sA}, 0x40004
    s_mov_b32 s{sWS+2}, {WS_SIZE}
    s_mov_b32 s{sWS+3}, 0x00020000
    s_mov_b32 s{sKV+2}, {WS_SIZE}
    s_mov_b32 s{sKV+3}, 0x00020000
    s_mov_b32 s{sM}, 0x0000ffff
    s_mov_b32 s{sM+1}, 0x0000ffff
    s_lshl_b32 s{sT0}, s{sH}, 16
    s_lshl_b32 s{sT1}, s{sQB}, 12
    s_add_u32 s{sQ0}, s{sT0}, s{sT1}
    s_lshl_b32 s{sT1}, s{sW}, 14
    s_add_u32 s{sKT}, s{sT0}, s{sT1}
    s_add_u32 s{sKT}, s{sKT}, {WS_K}
    s_mul_i32 s{sRB}, s{sW}, {RING}
    v_lshlrev_b32 v{vKo}, 4, v0
    v_add_u32 v{vVo}, {WS_V - WS_K}, v{vKo}
    s_lshl_b32 s{sT1}, s{sW}, 10
    v_xor_b32 v{vT2}, s{sT1}, v{vKo}
    s_mov_b32 m0, s{sRB}
    s_mov_b32 s{sC}, 0
    s_waitcnt lgkmcnt(0)
    s_mov_b32 s{sWS}, s4
    s_mov_b32 s{sWS+1}, s5
    s_mov_b32 s{sKV}, s4
    s_mov_b32 s{sKV+1}, s5
    """)
    srd = f"s[{sWS}:{sWS+3}]"
    kv = f"s[{sKV}:{sKV+3}]"
    for q in range(4):
        if q: a(f"v_xor_b32 v{vT3}, {q*1024}, v{vT2}")
        a(f"buffer_load_dwordx4 {vr(vQ+4*q,4)}, v{vT3 if q else vT2}, {srd}, s{sQ0} offen")
    a(f"""
    L_{P}_pre:
    buffer_load_dwordx4 v{vKo}, {kv}, s{sKT} offen lds
    s_add_u32 m0, m0, 1024
    s_add_u32 s{sC}, s{sC}, 1
    buffer_load_dwordx4 v{vVo}, {kv}, s{sKT} offen lds
    s_add_u32 m0, m0, 1024
    s_add_u32 s{sKT}, s{sKT}, 1024
    s_cmp_lt_u32 s{sC}, 6
    s_cbranch_scc1 L_{P}_pre
    s_lshl_b32 s{sT0}, s{sQB}, 2
    s_add_u32 s{sT0}, s{sT0}, s{sW}
    s_lshl_b32 s{sT0}, s{sT0}, 7
    s_add_u32 s{sT0}, s{sT0}, {WS_G}
    v_and_b32 v{vT0}, 31, v0
    v_lshlrev_b32 v{vT0}, 2, v{vT0}
    buffer_load_dword v{vG}, v{vT0}, {srd}, s{sT0} offen
    v_add_u32 v{vKr}, s{sRB}, v{vKo}
    v_and_b32 v{vT0}, 15, v0
    v_lshlrev_b32 v{vT0}, 4, v{vT0}
    v_lshrrev_b32 v{vT1}, 5, v0
    v_lshl_add_u32 v{vT0}, v{vT1}, 8, v{vT0}
    v_add_u32 v{vVr}, s{sRB}, v{vT0}
    v_and_b32 v{vT1}, 27, v0
    v_cmp_eq_u32 vcc, 16, v{vT1}
    v_mov_b32 v{vT1}, 0x3f803f80
    {'' if 'vones' in EXP else f'v_cndmask_b32 v{vT1}, 0, v{vT1}, vcc'}
    """)
    for r in range(16): a(f"v_mov_b32 v{vV+r}, v{vT1}")
    def reads(st, off):
        return f"""ds_read_b128 {vr(vK+4*st,4)}, v{vKr} offset:{off}
        s_mov_b64 exec, s[{sM}:{sM+1}]
        ds_read_b128 {vr(vV+8*st,4)}, v{vVr} offset:{off+1024}
        ds_read_b128 {vr(vV+8*st+4,4)}, v{vVr} offset:{off+1536}
        s_mov_b64 exec, -1"""
    def dma(off):
        return f"""s_add_u32 m0, s{sPO}, {off}
        s_setprio 3
        buffer_load_dwordx4 v{vKo}, {kv}, s{sKT} offen lds
        s_add_u32 m0, s{sPO}, {off+1024}
        s_nop 0
        buffer_load_dwordx4 v{vVo}, {kv}, s{sKT} offen lds
        s_setprio {1 if 'lowprio' in EXP else 0}
        s_add_u32 s{sKT}, s{sKT}, 1024"""
    for r in range(64): a(f"v_mov_b32 v{vO+r}, 0")
    for r in range(4, 8): a(f"v_mov_b32 v{vP+r}, 0")
    a(f"s_mov_b32 s{sC}, 0")
    a(f"s_mov_b32 s{sPO}, s{sRB}")
    pf.stamp(1)
    a("s_waitcnt vmcnt(11)")
    pf.stamp(2)
    a(reads(0, 0))
    a("s_waitcnt lgkmcnt(0)")
    def mfS(sb, st, q): return f"v_mfma_f32_32x32x16_bf16 {vr(vS+16*sb,16)}, {vr(vK+4*st,4)}, {vr(vQ+4*q,4)}, 0"
    def mfPV(q, st, u):
        if 'nopv' in EXP: return "s_nop 0"
        if 'pv16' in EXP: return f"v_mfma_f32_16x16x32_bf16 {vr(vO+16*q+4*u,4)}, {vr(vK+4*st,4)}, {vr(vP+4*u,4)}, {vr(vO+16*q+4*u,4)}"
        return f"v_mfma_f32_32x32x16_bf16 {vr(vO+16*q,16)}, {vr(vV+8*st+4*u,4)}, {vr(vP+4*u,4)}, {vr(vO+16*q,16)}"
    a(mfS(0, 0, 0))
    a(dma(0))
    if 'diag' in EXP: a("s_mov_b32 s40, 0\ns_mov_b32 s41, 0")
    a("s_nop 7")
    a.raw(".p2align 6")
    a.label(f"L_{P}_loop")
    start = len(a.lines)
    for st in range(2):
        off = 2048 if st == 0 else 0
        for q in range(4):
            sb = q & 1
            S = vS + 16 * sb
            ex = lambda i: f"v_exp_f32 v{S+i}, v{S+i}" if 'noexp' not in EXP else f"v_mov_b32 v{S+i}, v{S+i}\nv_mov_b32 v{S+i}, v{S+i}"
            cv = lambda i: f"v_cvt_pk_bf16_f32 v{vP+i}, v{S+2*i}, v{S+2*i+1}"
            pq, pst = (q - 1, st) if q > 0 else (3, st ^ 1)
            nq, nst = (q + 1, st) if q < 3 else (0, st ^ 1)
            a(ex(0)); a(ex(1))
            a(mfPV(pq, pst, 1))
            if q == 0 and st == 1:
                a(f"""
                s_add_u32 s{sT0}, s{sPO}, 4096
                s_add_u32 s{sT1}, s{sRB}, {RING}
                s_cmp_eq_u32 s{sT0}, s{sT1}
                s_cselect_b32 s{sT0}, s{sRB}, s{sT0}
                s_sub_u32 s{sD}, s{sT0}, s{sPO}
                s_mov_b32 s{sPO}, s{sT0}
                v_add_u32 v{vKr}, s{sD}, v{vKr}
                v_add_u32 v{vVr}, s{sD}, v{vVr}
                """)
            if q == 1:
                if 'diag' in EXP: a("s_memtime s[44:45]")
                a("s_waitcnt vmcnt(10)")
                if 'diag' in EXP:
                    a("s_memtime s[46:47]\ns_waitcnt lgkmcnt(0)\ns_sub_u32 s44, s46, s44\ns_add_u32 s41, s41, s44")
                a(reads(st ^ 1, off))
            for i in range(2, 6): a(ex(i))
            if q == 3: a("s_waitcnt lgkmcnt(0)")
            a(mfS(sb ^ 1, nst, nq))
            if q == 3:
                if st == 1:
                    a(f"""
                    s_cmp_ge_u32 s{sC}, 4
                    s_cselect_b32 s{sKV+2}, 0, s{sKV+2}
                    """)
                if 'diag' in EXP: a("s_memtime s[44:45]")
                a(dma(off))
                if 'diag' in EXP:
                    a("s_memtime s[46:47]\ns_waitcnt lgkmcnt(0)\ns_sub_u32 s44, s46, s44\ns_add_u32 s40, s40, s44")
            a(ex(6)); a(ex(7))
            for i in range(4): a(cv(i))
            a(ex(8)); a(ex(9))
            a(mfPV(q, st, 0))
            for i in range(10, 16): a(ex(i))
            for i in range(4, 8): a(cv(i))
    a(f"""
    s_add_u32 s{sC}, s{sC}, 1
    s_cmp_lt_u32 s{sC}, 8
    s_cbranch_scc1 L_{P}_loop
    """)
    seam, inner = check_loop(a.lines[start:])
    assert seam == 0 and inner == 0, (seam, inner)
    a(mfPV(3, 1, 1))
    a("s_setprio 3")
    pf.stamp(3)
    a(f"""
    v_add_u32 v{vT0}, s{sRB}, v{vKo}
    v_lshlrev_b32 v{vT1}, 2, v0
    v_add_u32 v{vT2}, s{sRB}, v{vT1}
    s_waitcnt vmcnt(0)
    """)
    for j in range(1, 4):
        o = vO + 16 * j
        a(f"""
        ds_write_b128 v{vT0}, {vr(o,4)} offset:{(j-1)*2304}
        ds_write_b128 v{vT0}, {vr(o+4,4)} offset:{(j-1)*2304+1024}
        ds_write_b32 v{vT2}, v{o+8} offset:{(j-1)*2304+2048}
        """)
    a(f"""
    s_waitcnt lgkmcnt(0)
    s_barrier
    """)
    R = vO
    for j in range(1, 4):
        o = vO + 16 * j
        a(f"""
        s_xor_b32 s{sT0}, s{sW}, {j}
        s_mul_i32 s{sT0}, s{sT0}, {RING}
        v_add_u32 v{vT0}, s{sT0}, v{vKo}
        v_add_u32 v{vT2}, s{sT0}, v{vT1}
        ds_read_b128 {vr(o,4)}, v{vT0} offset:{(j-1)*2304}
        ds_read_b128 {vr(o+4,4)}, v{vT0} offset:{(j-1)*2304+1024}
        ds_read_b32 v{o+8}, v{vT2} offset:{(j-1)*2304+2048}
        """)
    a("s_waitcnt lgkmcnt(0)")
    for r in range(0, 8, 2):
        a(f"v_pk_add_f32 {vr(R+r,2)}, {vr(R+r,2)}, {vr(R+16+r,2)}")
        a(f"v_pk_add_f32 {vr(R+32+r,2)}, {vr(R+32+r,2)}, {vr(R+48+r,2)}")
    a(f"v_add_f32 v{R+8}, v{R+8}, v{R+24}")
    a(f"v_add_f32 v{R+40}, v{R+40}, v{R+56}")
    for r in range(0, 8, 2):
        a(f"v_pk_add_f32 {vr(R+r,2)}, {vr(R+r,2)}, {vr(R+32+r,2)}")
    a(f"v_add_f32 v{R+8}, v{R+8}, v{R+40}")
    a(f"v_mov_b32 v{vT2}, v{R+8}")
    for r in range(8): a(f"v_fma_f32 v{vT2}, v{R+r}, 0, v{vT2}")
    a(f"""
    s_mov_b32 s{sT0}, {hex(f32bits(2.0**-30))}
    s_mov_b32 s{sT1}, {hex(f32bits(2.0**30))}
    v_cmp_le_f32 vcc, s{sT0}, v{vT2}
    v_cmp_ge_f32 s[24:25], s{sT1}, v{vT2}
    s_and_b64 vcc, vcc, s[24:25]
    s_cmp_eq_u64 vcc, -1
    {'' if ('nopv' in EXP or 'pv16' in EXP or 'noexp' in EXP) else f's_cbranch_scc0 L_{P}_slow'}
    L_{P}_fin:
    v_rcp_f32 v{vT2}, v{R+8}
    s_lshl_b32 s{sT0}, s{sQB}, 2
    s_add_u32 s{sT0}, s{sT0}, s{sW}
    s_lshl_b32 s{sT0}, s{sT0}, 5
    s_add_u32 s{sT0}, s{sT0}, s{sH}
    s_lshl_b32 s{sT0}, s{sT0}, 10
    s_add_u32 s{sT0}, s{sT0}, {WS_O}
    v_mul_f32 v{vT2}, v{vT2}, v{vG}
    """)
    for r in range(8): a(f"v_mul_f32 v{R+r}, v{R+r}, v{vT2}")
    a(f"""
    v_cvt_pk_bf16_f32 v{vP}, v{R}, v{R+1}
    v_cvt_pk_bf16_f32 v{vP+1}, v{R+2}, v{R+3}
    v_cvt_pk_bf16_f32 v{vP+2}, v{R+4}, v{R+5}
    v_cvt_pk_bf16_f32 v{vP+3}, v{R+6}, v{R+7}
    v_min_u32 v{vP}, -2, v{vP}
    v_min_u32 v{vP+1}, -2, v{vP+1}
    v_min_u32 v{vP+2}, -2, v{vP+2}
    v_min_u32 v{vP+3}, -2, v{vP+3}
    v_permlane32_swap_b32 v{vP}, v{vP+2}
    v_permlane32_swap_b32 v{vP+1}, v{vP+3}
    buffer_store_dwordx4 {vr(vP,4)}, v{vKo}, {srd}, s{sT0} offen sc1
    """)
    pf.stamp(4)
    if asmlib.PROF: a("s_waitcnt vmcnt(0)")
    pf.stamp(5)
    if 'diag' in EXP: a("s_mov_b32 s92, s40\ns_mov_b32 s94, s41")
    pf.dump(6, sA, sW, 4, vT0, vT1)
    a("s_endpgm")
    a.label(f"L_{P}_slow")
    a.window = []
    vM = vT3
    S = vS
    a(f"""
    s_lshl_b32 s{sT1}, s{sH}, 16
    s_add_u32 s{sT1}, s{sT1}, {WS_K}
    s_mov_b32 s{sKT}, s{sT1}
    s_mov_b32 s{sC}, 0
    v_mov_b32 v{vM}, 0xff800000
    v_and_b32 v{vT0}, 15, v0
    v_lshlrev_b32 v{vT0}, 4, v{vT0}
    v_lshrrev_b32 v{vT1}, 5, v0
    v_lshl_add_u32 v{vT0}, v{vT1}, 8, v{vT0}
    v_add_u32 v{vVo}, {WS_V - WS_K}, v{vT0}
    L_{P}_slow1:
    buffer_load_dwordx4 {vr(vK,4)}, v{vKo}, {srd}, s{sKT} offen
    s_add_u32 s{sKT}, s{sKT}, 1024
    s_waitcnt vmcnt(0)
    {mfS(0,0,0)}
    """)
    for r in range(0, 16, 2): a(f"v_max3_f32 v{vM}, v{vM}, v{S+r}, v{S+r+1}")
    a(f"""
    s_add_u32 s{sC}, s{sC}, 1
    s_cmp_lt_u32 s{sC}, 64
    s_cbranch_scc1 L_{P}_slow1
    v_mov_b32 v{vT0}, v{vM}
    v_mov_b32 v{vT1}, v{vM}
    v_permlane32_swap_b32 v{vT0}, v{vT1}
    v_max_f32 v{vM}, v{vT0}, v{vT1}
    s_mov_b32 s{sKT}, s{sT1}
    s_mov_b32 s{sC}, 0
    """)
    for r in range(16): a(f"v_mov_b32 v{R+r}, 0")
    a(f"""
    L_{P}_slow2:
    buffer_load_dwordx4 {vr(vK,4)}, v{vKo}, {srd}, s{sKT} offen
    s_mov_b64 exec, s[{sM}:{sM+1}]
    buffer_load_dwordx4 {vr(vV,4)}, v{vVo}, {srd}, s{sKT} offen
    buffer_load_dwordx4 {vr(vV+4,4)}, v{vVo}, {srd}, s{sKT} offen offset:512
    s_mov_b64 exec, -1
    s_add_u32 s{sKT}, s{sKT}, 1024
    s_waitcnt vmcnt(0)
    {mfS(0,0,0)}
    """)
    for r in range(16): a(f"v_sub_f32 v{S+r}, v{S+r}, v{vM}")
    for r in range(16): a(f"v_exp_f32 v{S+r}, v{S+r}")
    for i in range(8): a(f"v_cvt_pk_bf16_f32 v{vP+i}, v{S+2*i}, v{S+2*i+1}")
    a(mfPV(0, 0, 0)); a(mfPV(0, 0, 1))
    a(f"""
    s_nop 7
    s_add_u32 s{sC}, s{sC}, 1
    s_cmp_lt_u32 s{sC}, 64
    s_cbranch_scc1 L_{P}_slow2
    s_nop 15
    s_branch L_{P}_fin
    """)
    return NV

def gemm_role(a):
    P = "gm"
    sWS, sX, sW1, sB1, sWT, sOUT = 16, 20, 24, 28, 32, 36
    sW, sXCD, sIDX = 40, 41, 42
    sT0, sT1, sT2 = 43, 44, 45
    sC = 46
    sSOX, sSOW, sOS, sD, sN = 47, 48, 49, 50, 51
    sMD = 52
    sWM, sWN, sI, sJJ = 53, 54, 55, 56
    sTW, sFJ, sAO, sWO, sWO2, sLB = 57, 58, 59, 60, 61, 62
    sK2 = 64
    vL16 = 1
    vT0, vT1, vT2, vT3 = 2, 3, 4, 5
    vXd, vWd = 6, 7
    vXr, vWr = [8, 9], [10, 11]
    vAo = [12, 13]
    vG1 = [14, 15]
    vF = 16
    vA = 48
    vACC = 80
    NV = vACC + 64
    ST = 16384
    pf = Prof(a, 2)
    pf.stamp(0)
    cp = f"""s_getpc_b64 s[66:67]
    L_k2_pc:
    s_sub_u32 s66, s66, L_k2_pc-{NAME}
    s_subb_u32 s67, s67, 0
    s_lshl_b32 s{sT0}, s{sW}, 12
    v_lshlrev_b32 v{vT0}, 6, v0
    v_add_u32 v{vT0}, s{sT0}, v{vT0}
    v_min_u32 v{vT0}, L_code_end-{NAME}-4, v{vT0}
    global_load_dword v{vA}, v{vT0}, s[66:67]""" if 'cp2' in EXP else ""
    a(f"""
    s_setprio {0 if ('prio0' in EXP or 'lowprio' in EXP) else 2}
    {'s_memrealtime s[68:69]' if 'tdiag' in EXP else ''}
    s_load_dwordx2 s[4:5], s[0:1], 0
    s_load_dwordx2 s[6:7], s[0:1], 16
    s_load_dwordx4 s[8:11], s[0:1], 32
    s_load_dwordx2 s[12:13], s[0:1], 48
    s_load_dwordx2 s[{sOUT}:{sOUT+1}], s[0:1], 64
    s_load_dwordx2 s[14:15], s[0:1], 80
    v_lshrrev_b32 v1, 6, v0
    v_and_b32 v0, 63, v0
    v_readfirstlane_b32 s{sW}, v1
    s_and_b32 s{sXCD}, s2, 7
    s_lshr_b32 s{sIDX}, s2, 3
    s_mov_b32 s{sWS+2}, {WS_SIZE}
    s_mov_b32 s{sWS+3}, 0x00020000
    s_mov_b32 s{sX+2}, {2048*512*2}
    s_mov_b32 s{sX+3}, 0x00020000
    s_mov_b32 s{sW1+2}, {512*1792*2}
    s_mov_b32 s{sW1+3}, 0x00020000
    s_mov_b32 s{sB1+2}, {1792*2}
    s_mov_b32 s{sB1+3}, 0x00020000
    s_mov_b32 s{sWT+2}, {1792*512*2}
    s_mov_b32 s{sWT+3}, 0x00020000
    s_mov_b32 s{sOUT+2}, {2048*512*2}
    s_mov_b32 s{sOUT+3}, 0x00020000
    s_and_b32 s{sWM}, s{sW}, 1
    s_lshr_b32 s{sWN}, s{sW}, 1
    v_lshlrev_b32 v{vL16}, 4, v0
    {cp}
    {f's_mov_b32 s{sX+2}, 0' if 'noload' in EXP else ''}
    {f's_mov_b32 s{sW1+2}, 0' if 'noload' in EXP else ''}
    {f's_mov_b32 s{sWT+2}, 0' if 'noload' in EXP else ''}
    s_waitcnt lgkmcnt(0)
    s_mov_b32 s{sX}, s4
    s_mov_b32 s{sX+1}, s5
    s_mov_b32 s{sW1}, s8
    s_mov_b32 s{sW1+1}, s9
    s_mov_b32 s{sB1}, s10
    s_mov_b32 s{sB1+1}, s11
    s_mov_b32 s{sWT}, s12
    s_mov_b32 s{sWT+1}, s13
    s_mov_b32 s{sWS}, s14
    s_mov_b32 s{sWS+1}, s15
    """)
    wsrd = f"s[{sWS}:{sWS+3}]"
    pf.stamp(1)
    if 'gexit' in EXP or 'f1only' in EXP: a("s_endpgm")
    pf.stamp(2)
    D = 4
    a(f"""
    s_lshl_b32 s{sTW}, s{sXCD}, 2
    s_and_b32 s{sT0}, s{sIDX}, 3
    s_add_u32 s{sTW}, s{sTW}, s{sT0}
    s_lshr_b32 s{sFJ}, s{sIDX}, 2
    s_mul_i32 s{sT0}, s{sTW}, 224
    s_mul_i32 s{sT1}, s{sW}, 28
    s_add_u32 s{sT0}, s{sT0}, s{sT1}
    s_lshl_b32 s{sAO}, s{sT0}, 10
    s_add_u32 s{sAO}, s{sAO}, {WS_A}
    s_lshl_b32 s{sWO}, s{sT1}, 14
    s_lshl_b32 s{sT2}, s{sFJ}, 7
    s_add_u32 s{sWO}, s{sWO}, s{sT2}
    s_lshl_b32 s{sLB}, s{sW}, 13
    s_mul_i32 s{sT0}, s{sWM}, {112*1024}
    s_sub_u32 s{sT1}, {112*1024}, s{sT0}
    v_add_u32 v{vAo[0]}, s{sT0}, v{vL16}
    v_add_u32 v{vAo[1]}, s{sT1}, v{vL16}
    v_lshrrev_b32 v{vT0}, 2, v0
    v_lshrrev_b32 v{vT1}, 4, v0
    v_xor_b32 v{vT0}, v{vT0}, v{vT1}
    v_and_b32 v{vT0}, 1, v{vT0}
    v_lshlrev_b32 v{vT0}, 6, v{vT0}
    v_and_b32 v{vT1}, 3, v0
    v_lshl_add_u32 v{vT0}, v{vT1}, 4, v{vT0}
    v_lshrrev_b32 v{vT1}, 3, v0
    v_lshl_add_u32 v{vWd}, v{vT1}, 10, v{vT0}
    v_lshrrev_b32 v{vT0}, 5, v0
    v_bfe_u32 v{vT1}, v0, 2, 2
    v_lshl_add_u32 v{vT0}, v{vT0}, 3, v{vT1}
    v_lshlrev_b32 v{vT0}, 7, v{vT0}
    v_lshrrev_b32 v{vT1}, 1, v{vT1}
    v_xor_b32 v{vT1}, s{sWN}, v{vT1}
    v_lshl_add_u32 v{vT0}, v{vT1}, 6, v{vT0}
    v_bfe_u32 v{vT1}, v0, 4, 1
    v_lshl_add_u32 v{vT0}, v{vT1}, 5, v{vT0}
    v_and_b32 v{vT1}, 3, v0
    v_lshl_add_u32 v{vT0}, v{vT1}, 3, v{vT0}
    v_add_u32 v{vWr[0]}, s{sLB}, v{vT0}
    v_xor_b32 v{vWr[1]}, 64, v{vWr[0]}
    s_lshl_b32 s{sT0}, s{sTW}, 8
    s_add_u32 s{sT0}, s{sT0}, {WS_G}
    v_and_b32 v{vT0}, 31, v0
    v_lshlrev_b32 v{vT0}, 2, v{vT0}
    s_lshl_b32 s{sT1}, s{sWM}, 7
    v_xor_b32 v{vT0}, s{sT1}, v{vT0}
    v_xor_b32 v{vT1}, 128, v{vT0}
    buffer_load_dword v{vG1[0]}, v{vT0}, {wsrd}, s{sT0} offen
    buffer_load_dword v{vG1[1]}, v{vT1}, {wsrd}, s{sT0} offen
    s_mov_b32 s{sD}, {SPIN_MAX}
    """)
    def wloads(d):
        return [f"s_add_u32 m0, s{sLB}, {d*2048}",
                f"s_add_u32 s{sWO2}, s{sWO}, 8192",
                f"buffer_load_dwordx4 v{vWd}, s[{sWT}:{sWT+3}], s{sWO} offen lds",
                f"s_add_u32 m0, s{sLB}, {d*2048+1024}",
                f"s_add_u32 s{sWO}, s{sWO}, 16384",
                f"buffer_load_dwordx4 v{vWd}, s[{sWT}:{sWT+3}], s{sWO2} offen lds"]
    def aloads(d):
        asrd = f"s[{sX}:{sX+3}]" if 'noload' in EXP else wsrd
        return [f"buffer_load_dwordx4 {vr(vA+8*d,4)}, v{vAo[0]}, {asrd}, s{sAO} offen",
                f"buffer_load_dwordx4 {vr(vA+8*d+4,4)}, v{vAo[1]}, {asrd}, s{sAO} offen",
                f"s_add_u32 s{sAO}, s{sAO}, 1024"]
    def wreads(d, buf):
        return [f"ds_read_b64_tr_b16 {vr(vF+8*buf+4*fi+2*t2,2)}, v{vWr[fi]} offset:{d*2048+t2*512}"
                for fi in range(2) for t2 in range(2)]
    def mfmas(d, buf):
        L = []
        for fi in range(2):
            for ti in range(2):
                acc = vACC + 16 * (fi * 2 + ti)
                L.append(f"v_mfma_f32_32x32x16_bf16 {vr(acc,16)}, {vr(vF+8*buf+4*fi,4)}, {vr(vA+8*d+4*ti,4)}, {vr(acc,16)}")
        if 'nomfma' in EXP: L = ["s_nop 0"] * 4
        if 'space' in EXP: L = [m + "\ns_sleep 1" for m in L]
        return L
    for d in range(D): a("\n".join(wloads(d) + aloads(d)))
    for r in range(64): a(f"v_mov_b32 v{vACC+r}, 0")
    a(f"s_mov_b32 s{sC}, 0")
    a(f"s_waitcnt vmcnt({4*(D-1)})")
    a("\n".join(wreads(0, 0)))
    a.raw(".p2align 6")
    a.label(f"L_{P}_f2loop")
    start = len(a.lines)
    for s in range(D):
        a(f"s_waitcnt vmcnt({4*(D-2)})")
        a("\n".join(wreads((s + 1) % D, (s + 1) & 1)))
        a("s_waitcnt lgkmcnt(4)")
        a("\n".join(mfmas(s, s & 1)))
        a("\n".join(wloads(s) + aloads(s)))
    a(f"""
    s_add_u32 s{sC}, s{sC}, 1
    s_cmp_lt_u32 s{sC}, {1 if 'nof2' in EXP else 6}
    s_cbranch_scc1 L_{P}_f2loop
    """)
    seam, inner = check_loop(a.lines[start:])
    assert seam == 0 and inner == 0, (seam, inner)
    a(f"""
    s_mov_b32 s{sWT}, s6
    s_mov_b32 s{sWT+1}, s7
    s_mov_b32 s{sWT+2}, {512*512*2}
    s_lshl_b32 s{sWO}, s{sW}, 16
    s_lshl_b32 s{sT2}, s{sFJ}, 7
    s_add_u32 s{sWO}, s{sWO}, s{sT2}
    """)
    for s in range(D):
        if s < D - 1:
            a(f"s_waitcnt vmcnt({4*(D-2-s) + 2*s})")
            a("\n".join(wreads(s + 1, (s + 1) & 1)))
            a("s_waitcnt lgkmcnt(4)")
        else:
            a("s_waitcnt lgkmcnt(0)")
        a("\n".join(mfmas(s, s & 1)))
        a("\n".join(wloads(s)))
    pf.stamp(3)
    if 'nopoll' in EXP: a("s_endpgm")
    a(f"""
    s_setprio 2
    v_sub_f32 v{vG1[0]}, 1.0, v{vG1[0]}
    v_sub_f32 v{vG1[1]}, 1.0, v{vG1[1]}
    s_lshl_b32 s{sAO}, s{sTW}, 16
    s_lshl_b32 s{sT0}, s{sW}, 12
    s_add_u32 s{sAO}, s{sAO}, s{sT0}
    s_add_u32 s{sAO}, s{sAO}, {WS_O}
    s_lshl_b32 s{sT0}, s{sWM}, 15
    v_add_u32 v{vAo[0]}, s{sT0}, v{vL16}
    v_xor_b32 v{vAo[1]}, 0x8000, v{vAo[0]}
    v_and_b32 v{vT0}, 3, v0
    v_bfe_u32 v{vT1}, v0, 2, 1
    v_lshlrev_b32 v{vT0}, 10, v{vT0}
    v_lshl_add_u32 v{vT3}, v{vT1}, 15, v{vT0}
    s_add_u32 s{sWO}, s{sWO}, {(16-4)*16384}
    s_mov_b32 s{sC}, 0
    """)
    for fi in range(2):
        for ti in range(2):
            acc = vACC + 16 * (fi * 2 + ti)
            for r in range(16): a(f"v_mul_f32 v{acc+r}, v{vG1[ti]}, v{acc+r}")
    a.label(f"L_{P}_ph")
    a(f"""
    s_mov_b64 exec, 0xff
    L_{P}_pollO:
    buffer_load_dword v{vT1}, v{vT3}, {wsrd}, s{sAO} offen offset:1020 sc1
    s_waitcnt vmcnt(0)
    v_cmp_eq_u32 vcc, -1, v{vT1}
    s_cbranch_vccz L_{P}_loadO
    s_sleep {PSLEEP}
    s_sub_u32 s{sD}, s{sD}, 1
    s_cbranch_scc0 L_{P}_pollO
    s_mov_b32 s{sD}, 0
    L_{P}_loadO:
    s_mov_b64 exec, -1
    """)
    for d in range(D):
        a(f"buffer_load_dwordx4 {vr(vA+8*d,4)}, v{vAo[0]}, {wsrd}, s{sAO} offen offset:{d*1024} sc1")
        a(f"buffer_load_dwordx4 {vr(vA+8*d+4,4)}, v{vAo[1]}, {wsrd}, s{sAO} offen offset:{d*1024} sc1")
    a("\n".join(wreads(0, 0)))
    a("s_waitcnt vmcnt(0)")
    a(f"v_max3_u32 v{vT1}, v{vA}, v{vA+1}, v{vA+2}")
    for r in range(3, 31, 2): a(f"v_max3_u32 v{vT1}, v{vT1}, v{vA+r}, v{vA+r+1}")
    a(f"""
    v_max_u32 v{vT1}, v{vT1}, v{vA+31}
    v_cmp_eq_u32 vcc, -1, v{vT1}
    s_cbranch_vccz L_{P}_okO
    s_sub_u32 s{sD}, s{sD}, 1
    s_cbranch_scc0 L_{P}_loadO
    s_mov_b32 s{sD}, 0
    L_{P}_okO:
    """)
    for s in range(D):
        if s < D - 1:
            a("\n".join(wreads(s + 1, (s + 1) & 1)))
            a("s_waitcnt lgkmcnt(4)")
        else:
            a("s_waitcnt lgkmcnt(0)")
        a("\n".join(mfmas(s, s & 1)))
    a(f"""
    s_cmp_eq_u32 s{sC}, 1
    s_cbranch_scc1 L_{P}_red
    """)
    for s in range(D): a("\n".join(wloads(s)))
    a(f"""
    s_add_u32 s{sAO}, s{sAO}, 16384
    s_mov_b32 s{sC}, 1
    s_branch L_{P}_ph
    L_{P}_red:
    s_nop 7
    """)
    pf.stamp(4)
    a("s_barrier")
    for j in range(1, 4):
        a(f"""
        s_xor_b32 s{sT0}, s{sW}, {j}
        s_mul_i32 s{sT0}, s{sT0}, 12288
        v_add_u32 v{vT0}, s{sT0}, v{vL16}
        """)
        for q in range(4):
            a(f"ds_write_b128 v{vT0}, {vr(vACC+16*j+4*q,4)} offset:{(j-1)*4096+q*1024}")
    a(f"""
    s_mul_i32 s{sT0}, s{sW}, 12288
    v_add_u32 v{vT1}, s{sT0}, v{vL16}
    s_lshl_b32 s{sT0}, s{sTW}, 1
    s_add_u32 s{sT0}, s{sT0}, s{sWM}
    s_lshl_b32 s{sT0}, s{sT0}, 15
    s_lshl_b32 s{sT1}, s{sFJ}, 7
    s_add_u32 s{sT0}, s{sT0}, s{sT1}
    s_lshl_b32 s{sT1}, s{sWN}, 6
    s_add_u32 s{sT0}, s{sT0}, s{sT1}
    v_and_b32 v{vT0}, 31, v0
    v_lshlrev_b32 v{vT0}, 10, v{vT0}
    v_lshrrev_b32 v{vT2}, 5, v0
    v_lshl_add_u32 v{vT0}, v{vT2}, 4, v{vT0}
    s_waitcnt lgkmcnt(0)
    s_barrier
    """)
    for s in range(3):
        for q in range(4):
            a(f"ds_read_b128 {vr(vACC+16*(s+1)+4*q,4)}, v{vT1} offset:{s*4096+q*1024}")
    a("s_waitcnt lgkmcnt(8)")
    for r in range(0, 16, 2): a(f"v_pk_add_f32 {vr(vACC+r,2)}, {vr(vACC+r,2)}, {vr(vACC+16+r,2)}")
    a("s_waitcnt lgkmcnt(0)")
    for r in range(0, 16, 2): a(f"v_pk_add_f32 {vr(vACC+32+r,2)}, {vr(vACC+32+r,2)}, {vr(vACC+48+r,2)}")
    for r in range(0, 16, 2): a(f"v_pk_add_f32 {vr(vACC+r,2)}, {vr(vACC+r,2)}, {vr(vACC+32+r,2)}")
    p = vF
    for i in range(8): a(f"v_cvt_pk_bf16_f32 v{p+i}, v{vACC+2*i}, v{vACC+2*i+1}")
    a(f"""
    v_permlane32_swap_b32 v{p}, v{p+2}
    v_permlane32_swap_b32 v{p+1}, v{p+3}
    v_permlane32_swap_b32 v{p+4}, v{p+6}
    v_permlane32_swap_b32 v{p+5}, v{p+7}
    buffer_store_dwordx4 {vr(p,4)}, v{vT0}, s[{sOUT}:{sOUT+3}], s{sT0} offen
    buffer_store_dwordx4 {vr(p+4,4)}, v{vT0}, s[{sOUT}:{sOUT+3}], s{sT0} offen offset:32
    """)
    if asmlib.PROF: a("s_waitcnt vmcnt(0)")
    pf.stamp(5)
    pf.dump(6, 2, sW, 4, vT0, vT1)
    if 'tdiag' in EXP:
        a(f"""
        s_or_b32 s{sT0}, s2, s{sW}
        s_cmp_lg_u32 s{sT0}, 0
        s_cbranch_scc1 L_td_end
        s_memrealtime s[70:71]
        v_mov_b32 v1, 0
        s_mov_b32 s{sT0}, {WS_FA}
        buffer_load_dword v2, v1, {wsrd}, s{sT0} offen
        s_waitcnt vmcnt(0) lgkmcnt(0)
        v_readfirstlane_b32 s{sT1}, v2
        {f's_sub_u32 s{sT1}, s68, s{sT1}' if 'tdiag1' in EXP else f's_sub_u32 s{sT1}, s70, s68'}
        s_min_u32 s{sT1}, s{sT1}, 10000
        s_mul_i32 s{sT1}, s{sT1}, 10
        L_td_spin:
        s_memrealtime s[66:67]
        s_waitcnt lgkmcnt(0)
        s_sub_u32 s{sT2}, s66, s70
        s_cmp_lt_u32 s{sT2}, s{sT1}
        s_cbranch_scc1 L_td_spin
        L_td_end:
        """)
    a("s_endpgm")
    return NV

def gen():
    a = Asm()
    a.raw(kernel_header(NAME))
    a(f"""
    s_cmp_ge_u32 s2, 768
    s_cbranch_scc1 L_k2_end
    s_cmp_lt_u32 s2, 256
    s_cbranch_scc1 L_k2_gemm
    """)
    nv1 = attn_role(a)
    a.label("L_k2_end")
    a("s_endpgm")
    a.raw(".p2align 6")
    a.label("L_k2_gemm")
    a.window = []
    nv2 = gemm_role(a)
    NV = max(nv1, nv2)
    assert NV <= 168
    return a.text(), kernel_desc(NAME, NV, 80), f"; @launch kernel={NAME} grid=(768,1,1) block=(256,1,1) lds={LDS_BYTES}"

if __name__ == "__main__":
    t, d, l = gen()
    print(l); print(len(t.splitlines()))
```

```python
from asmlib import *
import asmlib
from layout import *
import os
SC = os.environ.get('K1SC', 'sc1')
EXP1 = os.environ.get('EXP1', '')

NAME = "k1_proj_kernel"
NW, NX = 6, 4
XS, WQS, W1S = 16384, 6144, 8192
WQ_BASE = NX * XS
W1_BASE = WQ_BASE + NW * WQS
FL_BASE = W1_BASE + NW * W1S
LDS_BYTES = FL_BASE
SPIN_MAX = 1 << 20

def gen():
    a = Asm()
    a.raw(kernel_header(NAME))
    pf = Prof(a, 0)
    pf.stamp(0)
    sX, sWQ, sW1, sWS, sB1, sGW = 16, 20, 24, 28, 32, 36
    sWAVE, sW, sI, sJ = 40, 41, 42, 43
    sSOX, sSOQ, sSO1 = 44, 45, 46
    sSL, sSLX = 47, 69
    sN, sD, sDW = 48, 49, 50
    sC = 51
    sMX, sMQ, sM1 = 52, 53, 54
    sT0, sT1, sT2 = 55, 56, 57
    sSP, sFV = 58, 59
    sK2 = 60
    sKC, sBX, sBQ, sB1o, sKX = 64, 65, 66, 67, 68
    vG = 3
    vT0, vT1, vT2, vT3 = 6, 7, 8, 9
    cp = f"""s_getpc_b64 s[62:63]
    L_k1_pc0:
    v_lshlrev_b32 v1, 6, v0
    v_min_u32 v1, L_code_end-L_k1_pc0-4, v1
    global_load_dword v108, v1, s[62:63]""" if ('nocp' not in EXP1 and 'cpold' not in EXP1) else ""
    a(f"""
    s_cmp_ge_u32 s2, 256
    s_cbranch_scc1 L_k1_end
    {'s_memrealtime s[70:71]' if 'tdiag' in EXP1 else ''}
    {cp}
    s_load_dwordx4 s[4:7], s[0:1], 0
    s_load_dwordx4 s[8:11], s[0:1], 32
    s_load_dwordx2 s[12:13], s[0:1], 56
    s_load_dwordx2 s[14:15], s[0:1], 80
    v_lshrrev_b32 v1, 6, v0
    s_nop 0
    v_readfirstlane_b32 s{sWAVE}, v1
    v_and_b32 v0, 63, v0
    s_and_b32 s{sT0}, s2, 7
    s_lshr_b32 s{sT1}, s2, 3
    s_and_b32 s{sI}, s{sT0}, 1
    s_lshl_b32 s{sI}, s{sI}, 3
    s_and_b32 s{sT2}, s{sT1}, 7
    s_add_u32 s{sI}, s{sI}, s{sT2}
    s_lshr_b32 s{sJ}, s{sT0}, 1
    s_lshl_b32 s{sJ}, s{sJ}, 2
    s_lshr_b32 s{sT2}, s{sT1}, 3
    s_add_u32 s{sJ}, s{sJ}, s{sT2}
    s_and_b32 s{sW}, s{sWAVE}, 3
    s_mov_b32 s{sWS+2}, {WS_SIZE}
    s_mov_b32 s{sWS+3}, 0x00020000
    s_mov_b32 s{sSP}, {SPIN_MAX}
    v_lshrrev_b32 v{vG}, 4, v0
    s_cmp_lt_u32 s{sWAVE}, 4
    s_cbranch_scc1 L_k1_comp
    """)
    vXd, vXd2, vQd, vQd2, v1d, v1d2 = 10, 18, 11, 12, 13, 14
    vFA, vOne, vFV = 15, 16, 17
    vGX, vGW, vOnes = 20, 28, 36
    a(f"""
    {'' if 'noprio' in EXP1 else 's_setprio 2'}
    {'s_endpgm' if 'conly' in EXP1 else ''}
    s_mov_b32 s{sX+2}, {2048*512*2}
    s_mov_b32 s{sX+3}, 0x00020000
    s_mov_b32 s{sWQ+2}, {512*1536*2}
    s_mov_b32 s{sWQ+3}, 0x00020000
    s_mov_b32 s{sW1+2}, {512*1792*2}
    s_mov_b32 s{sW1+3}, 0x00020000
    v_and_b32 v{vT0}, 7, v0
    v_xor_b32 v{vT0}, v{vT0}, v{vG}
    v_lshlrev_b32 v{vT0}, 4, v{vT0}
    v_lshrrev_b32 v{vT1}, 3, v0
    v_lshl_add_u32 v{vXd}, v{vT1}, 10, v{vT0}
    v_xor_b32 v{vXd2}, 64, v{vXd}
    v_add_u32 v{vXd2}, 8192, v{vXd2}
    s_lshl_b32 s{sBX}, s{sI}, 17
    s_lshl_b32 s{sT0}, s{sW}, 14
    s_add_u32 s{sBX}, s{sBX}, s{sT0}
    s_lshl_b32 s{sMX}, s{sW}, 11
    ; Wq: rows 8w..8w+7, pieces p = l (+64): pos = p>>1, k = pos/6, ct = (pos%6) ^ (w&1)
    s_mul_i32 s{sMQ}, s{sW}, 1536
    s_add_u32 s{sMQ}, s{sMQ}, {WQ_BASE}
    s_mul_i32 s{sBQ}, s{sW}, {8*3072}
    s_lshl_b32 s{sT0}, s{sJ}, 7
    s_add_u32 s{sBQ}, s{sBQ}, s{sT0}
    s_and_b32 s{sT1}, s{sW}, 1
    s_lshl_b32 s{sT2}, s{sJ}, 6
    s_sub_u32 s{sT2}, {2048-128}, s{sT2}
    """)
    for q, dst in ((0, vQd), (1, vQd2)):
        a(f"""
        v_lshrrev_b32 v{vT1}, 1, v0
        v_add_u32 v{vT1}, {32*q}, v{vT1}
        v_mul_u32_u24 v{vT2}, 0xaaab, v{vT1}
        v_lshrrev_b32 v{vT2}, 18, v{vT2}
        v_mul_u32_u24 v{vT3}, 6, v{vT2}
        v_sub_u32 v{vT1}, v{vT1}, v{vT3}
        v_xor_b32 v{vT1}, s{sT1}, v{vT1}
        v_mul_u32_u24 v{vT2}, 3072, v{vT2}
        v_lshl_add_u32 v{vT2}, v{vT1}, 5, v{vT2}
        v_lshrrev_b32 v{vT3}, 2, v{vT1}
        v_mul_u32_u24 v{vT3}, s{sT2}, v{vT3}
        v_add_u32 v{vT2}, v{vT2}, v{vT3}
        v_and_b32 v{vT3}, 1, v0
        v_lshl_add_u32 v{dst}, v{vT3}, 4, v{vT2}
        """)
    a(f"""
    s_lshl_b32 s{sM1}, s{sW}, 11
    s_add_u32 s{sM1}, s{sM1}, {W1_BASE}
    s_mul_i32 s{sB1o}, s{sW}, {8*3584}
    s_mul_i32 s{sT0}, s{sJ}, 224
    s_add_u32 s{sB1o}, s{sB1o}, s{sT0}
    s_lshl_b32 s{sT1}, s{sT1}, 2
    v_lshrrev_b32 v{vT1}, 1, v0
    v_sub_u32 v{vT1}, v{vT1}, v{vG}
    v_subrev_u32 v{vT1}, s{sT1}, v{vT1}
    v_and_b32 v{vT1}, 7, v{vT1}
    v_min_u32 v{vT1}, 6, v{vT1}
    v_mul_u32_u24 v{vT2}, 3584, v{vG}
    v_lshl_add_u32 v{vT2}, v{vT1}, 5, v{vT2}
    v_and_b32 v{vT3}, 1, v0
    v_lshl_add_u32 v{v1d}, v{vT3}, 4, v{vT2}
    v_add_u32 v{v1d2}, {4*3584}, v{v1d}
    v_mov_b32 v{vFA}, {FL_BASE}
    v_mov_b32 v{vOne}, 1
    s_lshr_b32 s{sKX}, s2, 3
    s_and_b32 s{sKX}, s{sKX}, 7
    s_lshl_b32 s{sKC}, s{sKX}, 1
    s_waitcnt lgkmcnt(0)
    s_mov_b32 s{sX}, s4
    s_mov_b32 s{sX+1}, s5
    s_mov_b32 s{sWQ}, s6
    s_mov_b32 s{sWQ+1}, s7
    s_mov_b32 s{sW1}, s8
    s_mov_b32 s{sW1+1}, s9
    {f's_mov_b32 s{sX+2}, 0' if 'nox' in EXP1 else ''}
    {f's_mov_b32 s{sWQ+2}, 0' if 'noq' in EXP1 else ''}
    {f's_mov_b32 s{sW1+2}, 0' if 'no1' in EXP1 else ''}
    """)
    def woffs():
        return f"""s_mul_i32 s{sT0}, s{sKC}, {32*3584}
        s_add_u32 s{sSO1}, s{sB1o}, s{sT0}
        s_mul_i32 s{sT0}, s{sKC}, {32*3072}
        s_add_u32 s{sSOQ}, s{sBQ}, s{sT0}
        s_add_u32 s{sKC}, s{sKC}, 1
        s_and_b32 s{sKC}, s{sKC}, 15"""
    def xoffs(half):
        t = f"""s_lshl_b32 s{sT0}, s{sKX}, 7
        s_add_u32 s{sSOX}, s{sBX}, s{sT0}"""
        if half:
            t += f"""
            s_add_u32 s{sSOX}, s{sSOX}, 65536
            s_add_u32 s{sKX}, s{sKX}, 1
            s_and_b32 s{sKX}, s{sKX}, 7"""
        return t
    def xdma(m, half, e):
        return (f"s_add_u32 m0, s{sMX}, {(m % NX)*XS + half*8192 + e*1024}",
                f"buffer_load_dwordx4 v{vXd2 if e else vXd}, s[{sX}:{sX+3}], s{sSOX} offen lds")
    cnt = []
    def issue(c):
        sl = c % NW
        m, half = (c + 1) >> 1, (c + 1) & 1
        hasx = m < 8
        n = 0
        if hasx:
            x = xdma(m, half, 0); a(x[0]); a("s_nop 0"); a(x[1]); n += 1
        a(f"""
        s_add_u32 m0, s{sM1}, {sl*W1S}
        s_nop 0
        buffer_load_dwordx4 v{v1d}, s[{sW1}:{sW1+3}], s{sSO1} offen lds
        s_add_u32 m0, s{sMQ}, {sl*WQS}
        s_nop 0
        buffer_load_dwordx4 v{vQd}, s[{sWQ}:{sWQ+3}], s{sSOQ} offen lds
        """); n += 2
        if hasx:
            x = xdma(m, half, 1); a(x[0]); a("s_nop 0"); a(x[1]); n += 1
        a(f"""
        s_add_u32 m0, s{sM1}, {sl*W1S+1024}
        s_nop 0
        buffer_load_dwordx4 v{v1d2}, s[{sW1}:{sW1+3}], s{sSO1} offen lds
        s_add_u32 m0, s{sMQ}, {sl*WQS+1024}
        s_mov_b32 s{sT1}, s{sSOQ}
        """); n += 1
        a(woffs())
        a(xoffs((c + 2) & 1))
        a(f"""
        s_mov_b32 exec_hi, 0
        buffer_load_dwordx4 v{vQd2}, s[{sWQ}:{sWQ+3}], s{sT1} offen lds
        s_mov_b32 exec_hi, -1
        """); n += 1
        cnt.append(n)
    ld_start = len(a.lines)
    a(woffs()); a(xoffs(0))
    for e in range(2):
        x = xdma(0, 0, e); a(x[0]); a("s_nop 0"); a(x[1])
    a(xoffs(1))
    FIRST = int(os.environ.get('K1FIRST', '3'))
    for c in range(FIRST): issue(c)
    pf.stamp(1)
    NB = 11
    for c in range(NB):
        a(f"s_waitcnt vmcnt({sum(cnt[c+1:])})")
        a("s_barrier")
        if c == 0: pf.stamp(2)
        tgt = min(16, c + NW, len(cnt) + 2)
        while len(cnt) < tgt: issue(len(cnt))
    assert len(cnt) == 16
    pf.stamp(3)
    a(f"""
    s_mov_b32 s{sWS}, s14
    s_mov_b32 s{sWS+1}, s15
    s_mov_b32 s{sGW}, s12
    s_mov_b32 s{sGW+1}, s13
    s_mov_b32 s{sGW+2}, 1024
    s_mov_b32 s{sGW+3}, 0x00020000
    s_lshl_b32 s{sT0}, s{sI}, 7
    s_lshl_b32 s{sT1}, s{sJ}, 3
    s_add_u32 s{sT0}, s{sT0}, s{sT1}
    s_lshl_b32 s{sT1}, s{sW}, 1
    s_add_u32 s{sN}, s{sT0}, s{sT1}
    s_lshl_b32 s{sT1}, s{sN}, 10
    v_and_b32 v{vT1}, 31, v0
    v_lshlrev_b32 v{vT1}, 5, v{vT1}
    v_lshrrev_b32 v{vT2}, 5, v0
    v_lshl_add_u32 v{vT2}, v{vT2}, 10, v{vT1}
    buffer_load_dwordx4 {vr(vGX,4)}, v{vT2}, s[{sX}:{sX+3}], s{sT1} offen
    buffer_load_dwordx4 {vr(vGX+4,4)}, v{vT2}, s[{sX}:{sX+3}], s{sT1} offen offset:16
    buffer_load_dwordx4 {vr(vGW,4)}, v{vT1}, s[{sGW}:{sGW+3}], 0 offen
    buffer_load_dwordx4 {vr(vGW+4,4)}, v{vT1}, s[{sGW}:{sGW+3}], 0 offen offset:16
    v_mov_b32 v{vOnes}, -1
    v_mov_b32 v{vOnes+1}, -1
    v_mov_b32 v{vOnes+2}, -1
    v_mov_b32 v{vOnes+3}, -1
    v_lshlrev_b32 v{vT0}, 4, v0
    s_lshl_b32 s{sT0}, s2, 2
    s_add_u32 s{sT0}, s{sT0}, s{sW}
    s_lshl_b32 s{sT1}, s{sT0}, 11
    s_add_u32 s{sT1}, s{sT1}, {WS_O}
    buffer_store_dwordx4 {vr(vOnes,4)}, v{vT0}, s[{sWS}:{sWS+3}], s{sT1} offen {SC}
    buffer_store_dwordx4 {vr(vOnes,4)}, v{vT0}, s[{sWS}:{sWS+3}], s{sT1} offen offset:1024 {SC}
    """)
    for c in range(NB, 16):
        a(f"s_waitcnt vmcnt({sum(cnt[c+1:]) + 6})")
        a("s_barrier")
    a("s_waitcnt vmcnt(2)")
    acc = vT1
    a(f"v_mov_b32 v{acc}, 0")
    for r in range(8): a(f"v_dot2_f32_bf16 v{acc}, v{vGX+r}, v{vGW+r}, v{acc}")
    a("s_nop 3")
    for mod in ["quad_perm:[1,0,3,2]", "quad_perm:[2,3,0,1]", "row_half_mirror", "row_mirror"]:
        a(f"v_add_f32_dpp v{acc}, v{acc}, v{acc} {mod} row_mask:0xf bank_mask:0xf")
    a(f"""
    v_mov_b32 v{vT2}, v{acc}
    v_mov_b32 v{vT3}, v{acc}
    v_permlane16_swap_b32 v{vT2}, v{vT3}
    v_add_f32 v{acc}, v{vT2}, v{vT3}
    v_mul_f32 v{acc}, {hex(f32bits(-LOG2E))}, v{acc}
    v_exp_f32 v{acc}, v{acc}
    v_add_f32 v{acc}, 1.0, v{acc}
    v_rcp_f32 v{acc}, v{acc}
    s_lshl_b32 s{sT0}, s{sN}, 2
    s_add_u32 s{sT0}, s{sT0}, {WS_G}
    v_lshrrev_b32 v{vT2}, 5, v0
    v_lshlrev_b32 v{vT2}, 2, v{vT2}
    s_mov_b32 exec_lo, 1
    s_mov_b32 exec_hi, 1
    buffer_store_dword v{acc}, v{vT2}, s[{sWS}:{sWS+3}], s{sT0} offen
    """)
    pf.stamp(4); pf.stamp(5)
    pf.dump(6, 2, sWAVE, 8, vT0, vT1)
    a("s_endpgm")
    a.label("L_k1_comp")
    a.window = []
    vN16, vR, vC = 2, 4, 5
    vXr, vQr = [10, 19], 14
    vFA, vOne, vFV = 11, 12, 13
    vWr = list(range(15, 19))
    vF = 20
    FSZ = 44
    vACC = vF + 2 * FSZ
    NV = vACC + 112
    sWM, sWN = sSOX, sSOQ
    sWX, sWQw, sW1w = sMX, sMQ, sM1
    sDQ = sN
    td = f"""s_or_b32 s{sT0}, s2, s{sWAVE}
    s_cmp_lg_u32 s{sT0}, 0
    s_cbranch_scc1 L_k1_td
    v_mov_b32 v{vT0}, s70
    v_mov_b32 v1, 0
    s_mov_b32 s{sT0}, {WS_FA}
    buffer_store_dword v{vT0}, v1, s[{sWS}:{sWS+3}], s{sT0} offen
    L_k1_td:""" if 'tdiag' in EXP1 else ""
    wu = f"""s_load_dwordx2 s[{sX}:{sX+1}], s[0:1], 48
    s_load_dwordx2 s[{sWQ}:{sWQ+1}], s[0:1], 16
    s_mov_b32 s{sX+2}, {1792*512*2}
    s_mov_b32 s{sX+3}, 0x00020000
    s_mov_b32 s{sWQ+2}, {512*512*2}
    s_mov_b32 s{sWQ+3}, 0x00020000
    s_lshl_b32 s{sT0}, s2, 2
    s_add_u32 s{sT0}, s{sT0}, s{sW}
    s_lshl_b32 s{sT0}, s{sT0}, 7
    v_lshlrev_b32 v{vT0}, 17, v0
    s_waitcnt lgkmcnt(0)
    s_mov_b64 exec, 0x3fff
    buffer_load_dword v{vACC+1}, v{vT0}, s[{sX}:{sX+3}], s{sT0} offen
    s_mov_b64 exec, 0xf
    buffer_load_dword v{vACC+1}, v{vT0}, s[{sWQ}:{sWQ+3}], s{sT0} offen
    s_mov_b64 exec, -1""" if 'wu' in EXP1 else ""
    if 'cpold' in EXP1:
        a(f"""
        s_getpc_b64 s[62:63]
        L_k1_pc:
        s_sub_u32 s62, s62, L_k1_pc-{NAME}
        s_subb_u32 s63, s63, 0
        s_lshl_b32 s{sT0}, s{sW}, 13
        v_lshlrev_b32 v{vT0}, 7, v0
        v_add_u32 v{vT0}, s{sT0}, v{vT0}
        v_min_u32 v{vT0}, L_code_end-{NAME}-4, v{vT0}
        global_load_dword v{vACC}, v{vT0}, s[62:63]
        """)
    a(f"""
    s_setprio 3
    s_and_b32 s{sWM}, s{sW}, 1
    s_lshr_b32 s{sWN}, s{sW}, 1
    v_and_b32 v{vN16}, 15, v0
    v_bfe_u32 v{vR}, v0, 2, 2
    v_and_b32 v{vC}, 3, v0
    v_lshrrev_b32 v{vT0}, 1, v{vN16}
    v_xor_b32 v{vT0}, v{vG}, v{vT0}
    v_lshlrev_b32 v{vT0}, 4, v{vT0}
    v_lshl_add_u32 v{vT0}, v{vN16}, 7, v{vT0}
    s_lshl_b32 s{sT0}, s{sWM}, 13
    v_add_u32 v{vXr[0]}, s{sT0}, v{vT0}
    v_xor_b32 v{vXr[1]}, 64, v{vXr[0]}
    v_mov_b32 v{vFA}, {FL_BASE}
    v_mov_b32 v{vOne}, 1
    v_mov_b32 v{vFV}, 0
    s_mov_b32 s{sSL}, 0
    s_mov_b32 s{sSLX}, 0
    s_mov_b32 s{sC}, 0
    s_mov_b32 s{sWX}, {-(NX-1)*XS}
    s_mov_b32 s{sWQw}, {-(NW-1)*WQS}
    s_mov_b32 s{sW1w}, {-(NW-1)*W1S}
    v_lshl_add_u32 v{vT1}, v{vG}, 3, v{vR}
    v_and_b32 v{vT2}, 1, v{vG}
    v_mul_u32_u24 v{vT0}, 192, v{vT1}
    v_lshl_add_u32 v{vT0}, v{vC}, 3, v{vT0}
    v_add_u32 v{vT0}, {WQ_BASE}, v{vT0}
    v_xor_b32 v{vT3}, s{sWN}, v{vT2}
    v_lshl_add_u32 v{vQr}, v{vT3}, 5, v{vT0}
    v_lshlrev_b32 v{vT1}, 8, v{vT1}
    v_lshl_add_u32 v{vT1}, v{vC}, 3, v{vT1}
    v_add_u32 v{vT1}, {W1_BASE}, v{vT1}
    v_lshl_add_u32 v{vT2}, v{vT2}, 2, v{vR}
    v_lshlrev_b32 v{vT3}, 3, v{vG}
    s_mul_i32 s{sT1}, s{sJ}, 224
    s_mov_b32 s{sB1+2}, {1792*2}
    s_mov_b32 s{sB1+3}, 0x00020000
    s_waitcnt lgkmcnt(0)
    s_mov_b32 s{sWS}, s14
    s_mov_b32 s{sWS+1}, s15
    s_mov_b32 s{sB1}, s10
    s_mov_b32 s{sB1+1}, s11
    {wu}
    {td}
    s_cmp_eq_u32 s{sWN}, 1
    s_cbranch_scc1 L_k1_gb
    """)
    def frag(buf):
        b = vF + buf * FSZ
        return [b + 4 * t for t in range(4)], [b + 16 + 4 * i for i in range(7)]
    def role(name, F):
        nf = len(F); nt = 3 + nf
        def reads(buf):
            X, W = frag(buf); L = []
            def wr(i):
                for t2 in range(2):
                    if i < nf: va, off = vWr[i], 4 * t2 * 256
                    else:      va, off = vQr, 4 * t2 * 192 + (i - nf) * 64
                    L.append(f"ds_read_b64_tr_b16 {vr(W[i]+2*t2,2)}, v{va} offset:{off}")
            for t in range(4):
                L.append(f"ds_read_b128 {vr(X[t],4)}, v{vXr[buf]} offset:{t*2048}")
                wr(t)
            for i in range(4, nt): wr(i)
            if 'noread' in EXP1: L = ["s_nop 0"] * len(L)
            return L
        def mfmas(buf):
            X, W = frag(buf); L = []
            for i in range(nt):
                for t in range(4):
                    acc = vACC + (i * 4 + t) * 4
                    if i == nt - 1: L.append(f"v_mfma_f32_16x16x32_bf16 {vr(acc,4)}, {vr(X[t],4)}, {vr(W[i],4)}, {vr(acc,4)}")
                    else:           L.append(f"v_mfma_f32_16x16x32_bf16 {vr(acc,4)}, {vr(W[i],4)}, {vr(X[t],4)}, {vr(acc,4)}")
            if 'nomfma' in EXP1: L = ["s_nop 0"] * len(L)
            return L
        def check(tag):
            return f"""
            L_k1_{name}_ck{tag}:
            v_readfirstlane_b32 s{sFV}, v{vFV}
            s_cmp_ge_u32 s{sFV}, {0 if ('conly' in EXP1 or 'nowait' in EXP1) else 4}
            s_cbranch_scc1 L_k1_{name}_ok{tag}
            ds_read_b32 v{vFV}, v{vFA}
            s_sub_u32 s{sSP}, s{sSP}, 1
            s_waitcnt lgkmcnt(0)
            s_cbranch_scc0 L_k1_{name}_ck{tag}
            s_mov_b32 s{sSP}, 0
            L_k1_{name}_ok{tag}:
            """
        vB = vF + FSZ
        for i, ct in enumerate(F):
            a(f"buffer_load_dwordx2 {vr(vB+2*i,2)}, v{vT3}, s[{sB1}:{sB1+3}], s{sT1} offen offset:{ct*32}")
        for i, ct in enumerate(F):
            a(f"""
            v_add_u32 v{vT0}, {ct}, v{vT2}
            v_and_b32 v{vT0}, 7, v{vT0}
            v_lshl_add_u32 v{vWr[i]}, v{vT0}, 5, v{vT1}
            """)
        for r in range(48): a(f"v_mov_b32 v{vACC+16*nf+r}, 0")
        a("s_waitcnt vmcnt(0)")
        for i in range(nf):
            for t in range(4):
                acc = vACC + (i * 4 + t) * 4
                a(f"""
                v_lshlrev_b32 v{acc}, 16, v{vB+2*i}
                v_and_b32 v{acc+1}, 0xffff0000, v{vB+2*i}
                v_lshlrev_b32 v{acc+2}, 16, v{vB+2*i+1}
                v_and_b32 v{acc+3}, 0xffff0000, v{vB+2*i+1}
                """)
        pf.stamp(1)
        if 'solo' in EXP1: a("s_endpgm")
        a("s_setprio 0")
        a("s_barrier")
        pf.stamp(2)
        def adv(buf_next):
            G = [f"""s_add_u32 s{sSL}, s{sSL}, 1
                 s_cmp_eq_u32 s{sSL}, {NW}""",
                 f"""s_cselect_b32 s{sDW}, s{sW1w}, {W1S}
                 s_cselect_b32 s{sDQ}, s{sWQw}, {WQS}""",
                 f"""s_cselect_b32 s{sSL}, 0, s{sSL}""",
                 f"""v_add_u32 v{vQr}, s{sDQ}, v{vQr}
                 v_add_u32 v{vWr[0]}, s{sDW}, v{vWr[0]}""",
                 "\n".join(f"v_add_u32 v{r}, s{sDW}, v{r}" for r in vWr[1:3])]
            if nf > 3: G.append(f"v_add_u32 v{vWr[3]}, s{sDW}, v{vWr[3]}")
            if buf_next == 0:
                G += [f"""s_add_u32 s{sSLX}, s{sSLX}, 1
                      s_cmp_eq_u32 s{sSLX}, {NX}""",
                      f"""s_cselect_b32 s{sD}, s{sWX}, {XS}
                      s_cselect_b32 s{sSLX}, 0, s{sSLX}""",
                      f"""v_add_u32 v{vXr[0]}, s{sD}, v{vXr[0]}
                      v_add_u32 v{vXr[1]}, s{sD}, v{vXr[1]}"""]
            return G
        a("\n".join(reads(0)))
        a("\n".join(adv(1)))
        a.raw(".p2align 6")
        a.label(f"L_k1_{name}_loop")
        start = len(a.lines)
        for buf in range(2):
            M = mfmas(buf)
            R = reads(buf ^ 1)
            G = ["s_barrier"]
            while R:
                G.append("\n".join(R[:2])); R = R[2:]
            G += adv(buf)
            assert len(G) <= len(M) - 2, (len(G), len(M))
            if buf == 1:
                a(f"""
                s_add_u32 s{sC}, s{sC}, 1
                s_cmp_eq_u32 s{sC}, 8
                s_waitcnt lgkmcnt(0)
                s_cbranch_scc1 L_k1_{name}_last
                """)
            else:
                a("s_waitcnt lgkmcnt(0)")
            for i, m in enumerate(M):
                a(m)
                if i < len(G): a(G[i])
        a(f"s_branch L_k1_{name}_loop")
        seam, inner = check_loop(a.lines[start:])
        assert seam == 0 and inner == 0, (seam, inner)
        a.label(f"L_k1_{name}_last")
        a.window = []
        M = mfmas(1)
        for m in M[4*nf:] + M[:4*nf]: a(m)
        pf.stamp(3)
        vP = vF
        a(f"""
        s_lshl_b32 s{sT0}, s{sI}, 2
        s_lshl_b32 s{sT1}, s{sWM}, 1
        s_add_u32 s{sD}, s{sT0}, s{sT1}
        v_lshlrev_b32 v{vT0}, 4, v0
        s_lshl_b32 s{sT0}, s{sD}, 10
        s_lshl_b32 s{sT1}, s{sJ}, 2
        s_add_u32 s{sT1}, s{sT1}, s{sWN}
        s_lshl_b32 s{sT1}, s{sT1}, 16
        s_add_u32 s{sT1}, s{sT1}, s{sT0}
        s_add_u32 s{sDW}, s{sT1}, {2*65536}
        s_lshl_b32 s{sN}, s{sJ}, 1
        s_add_u32 s{sN}, s{sN}, s{sWN}
        s_lshl_b32 s{sN}, s{sN}, 16
        s_add_u32 s{sN}, s{sN}, s{sT0}
        s_add_u32 s{sN}, s{sN}, {WS_V}
        s_mov_b32 s{sT2}, {hex(f32bits(QSCALE))}
        s_cmp_lt_u32 s{sJ}, 8
        s_cselect_b32 s{sK2}, s{sT2}, 1.0
        s_mov_b32 s{sK2+1}, s{sK2}
        """)
        assert WS_Q == 0 and WS_K == 32 * 65536
        k = 0
        for c3 in (2, 0, 1):
            for tp in range(2):
                p = vP + 4 * k; k += 1
                a0 = vACC + ((nf + c3) * 4 + 2 * tp) * 4; a1 = a0 + 4
                if c3 < 2:
                    for r in range(0, 8, 2): a(f"v_pk_mul_f32 {vr(a0+r,2)}, {vr(a0+r,2)}, s[{sK2}:{sK2+1}]")
                sw = "v_permlane32_swap_b32" if c3 == 2 else "v_permlane16_swap_b32"
                a(f"""
                v_cvt_pk_bf16_f32 v{p}, v{a0}, v{a0+1}
                v_cvt_pk_bf16_f32 v{p+1}, v{a0+2}, v{a0+3}
                v_cvt_pk_bf16_f32 v{p+2}, v{a1}, v{a1+1}
                v_cvt_pk_bf16_f32 v{p+3}, v{a1+2}, v{a1+3}
                {sw} v{p}, v{p+2}
                {sw} v{p+1}, v{p+3}
                buffer_store_dwordx4 {vr(p,4)}, v{vT0}, s[{sWS}:{sWS+3}], s{[sT1, sDW, sN][c3]} offen offset:{tp*1024} {SC}
                """)
        a(f"""
        s_mul_i32 s{sT0}, s{sD}, 112
        s_mul_i32 s{sT1}, s{sJ}, 7
        s_add_u32 s{sT0}, s{sT0}, s{sT1}
        s_add_u32 s{sT0}, s{sT0}, {F[0]}
        s_lshl_b32 s{sT0}, s{sT0}, 10
        s_add_u32 s{sT0}, s{sT0}, {WS_A}
        s_add_u32 s{sT1}, s{sT0}, {112*1024}
        s_mov_b32 s{sK2}, {hex(f32bits(LOG2E))}
        s_mov_b32 s{sK2+1}, {hex(f32bits(LOG2E))}
        """)
        E0 = vF + FSZ
        PK = vACC + 16 * nf
        k = 0
        for i in range(nf):
            hs = [vACC + (i * 4 + 2 * tp) * 4 for tp in range(2)]
            es = [E0, E0 + 16]; ds = [E0 + 8, E0 + 24]
            def both(f):
                for tp in range(2): f(hs[tp], es[tp], ds[tp])
            both(lambda h, e, d: [a(f"v_pk_mul_f32 {vr(e+r,2)}, {vr(h+r,2)}, s[{sK2}:{sK2+1}]") for r in range(0, 8, 2)])
            both(lambda h, e, d: [a(f"v_exp_f32 v{e+r}, v{e+r}") for r in range(8)])
            both(lambda h, e, d: [a(f"v_pk_add_f32 {vr(e+r,2)}, {vr(e+r,2)}, 1.0 op_sel_hi:[1,0]") for r in range(0, 8, 2)])
            both(lambda h, e, d: [a(f"v_pk_fma_f32 {vr(d+r,2)}, {vr(e+r,2)}, {vr(e+r,2)}, 1.0 op_sel_hi:[1,1,0]") for r in range(0, 8, 2)])
            both(lambda h, e, d: [a(f"v_rcp_f32 v{d+r}, v{d+r}") for r in range(8)])
            both(lambda h, e, d: [a(f"v_pk_mul_f32 {vr(d+r,2)}, {vr(d+r,2)}, {vr(h+r,2)}") for r in range(0, 8, 2)])
            both(lambda h, e, d: [a(f"v_pk_fma_f32 {vr(d+r,2)}, {vr(d+r,2)}, -2.0, {vr(h+r,2)} op_sel_hi:[1,0,1]") for r in range(0, 8, 2)])
            ps = [PK + 4 * (k + tp) for tp in range(2)]; k += 2
            for tp in range(2):
                p, d = ps[tp], ds[tp]
                a(f"""
                v_cvt_pk_bf16_f32 v{p}, v{d}, v{d+1}
                v_cvt_pk_bf16_f32 v{p+1}, v{d+2}, v{d+3}
                v_cvt_pk_bf16_f32 v{p+2}, v{d+4}, v{d+5}
                v_cvt_pk_bf16_f32 v{p+3}, v{d+6}, v{d+7}
                """)
            for tp in range(2):
                p = ps[tp]
                a(f"""
                v_permlane16_swap_b32 v{p}, v{p+2}
                v_permlane16_swap_b32 v{p+1}, v{p+3}
                buffer_store_dwordx4 {vr(p,4)}, v{vT0}, s[{sWS}:{sWS+3}], s{sT1 if tp else sT0} offen offset:{i*1024} {SC}
                """)
        pf.stamp(4)
        if asmlib.PROF: a("s_waitcnt vmcnt(0)")
        pf.stamp(5)
        pf.dump(6, 2, sWAVE, 8, vT0, vT1)
        a("s_endpgm")
    role("ga", [0, 1, 2])
    a.label("L_k1_gb")
    a.window = []
    role("gb", [3, 4, 5, 6])
    a.label("L_k1_end")
    a("s_endpgm")
    assert NV <= 256
    return a.text(), kernel_desc(NAME, NV, 72), f"; @launch kernel={NAME} grid=(256,1,1) block=(512,1,1) lds={LDS_BYTES}"

if __name__ == "__main__":
    t, d, l = gen()
    print(l); print(len(t.splitlines()))
```

```python
from asmlib import *
import asmlib
from layout import *

NAME = "k2_main_kernel"
LDS_BYTES = 49152
import os
SENT = -1
OSC = os.environ.get('OSC', '')
PSLEEP = int(os.environ.get('PSLEEP', '12'))
import os
EXP = os.environ.get('EXP', '')
SPIN_MAX = 1 << 18

def attn_role(a):
    P = "at"
    sWS, sKV = 8, 28
    sW, sH, sQB = 12, 13, 14
    sT0, sT1, sT2 = 15, 16, 17
    sKT, sC, sM, sQ0, sA = 18, 19, 20, 22, 23
    sRB, sPO, sD, sVT = 26, 27, 32, 33
    vKo, vVo = 1, 2
    vT0, vT1, vT2, vT3, vG = 3, 4, 5, 6, 7
    vQ, vK, vV, vP, vS, vO = 8, 24, 32, 48, 56, 88
    vKr, vVr = 152, 153
    NV = 156
    RING = 12288
    pf = Prof(a, 1)
    pf.stamp(0)
    a(f"""
    s_setprio 3
    s_load_dwordx2 s[4:5], s[0:1], 80
    s_sub_u32 s{sA}, s2, 256
    v_lshrrev_b32 v1, 6, v0
    v_and_b32 v0, 63, v0
    v_readfirstlane_b32 s{sW}, v1
    s_lshr_b32 s{sH}, s{sA}, 8
    s_lshl_b32 s{sH}, s{sH}, 4
    s_and_b32 s{sT0}, s{sA}, 7
    s_lshl_b32 s{sT0}, s{sT0}, 1
    s_add_u32 s{sH}, s{sH}, s{sT0}
    s_bfe_u32 s{sT0}, s{sA}, 0x10003
    s_add_u32 s{sH}, s{sH}, s{sT0}
    s_bfe_u32 s{sQB}, s{sA}, 0x40004
    s_mov_b32 s{sWS+2}, {WS_SIZE}
    s_mov_b32 s{sWS+3}, 0x00020000
    s_mov_b32 s{sKV+2}, {WS_SIZE}
    s_mov_b32 s{sKV+3}, 0x00020000
    s_mov_b32 s{sM}, 0x0000ffff
    s_mov_b32 s{sM+1}, 0x0000ffff
    s_lshl_b32 s{sT0}, s{sH}, 16
    s_lshl_b32 s{sT1}, s{sQB}, 12
    s_add_u32 s{sQ0}, s{sT0}, s{sT1}
    s_lshl_b32 s{sT1}, s{sW}, 14
    s_add_u32 s{sKT}, s{sT0}, s{sT1}
    s_add_u32 s{sKT}, s{sKT}, {WS_K}
    s_mul_i32 s{sRB}, s{sW}, {RING}
    v_lshlrev_b32 v{vKo}, 4, v0
    v_add_u32 v{vVo}, {WS_V - WS_K}, v{vKo}
    s_lshl_b32 s{sT1}, s{sW}, 10
    v_xor_b32 v{vT2}, s{sT1}, v{vKo}
    s_mov_b32 m0, s{sRB}
    s_mov_b32 s{sC}, 0
    s_waitcnt lgkmcnt(0)
    s_mov_b32 s{sWS}, s4
    s_mov_b32 s{sWS+1}, s5
    s_mov_b32 s{sKV}, s4
    s_mov_b32 s{sKV+1}, s5
    """)
    srd = f"s[{sWS}:{sWS+3}]"
    kv = f"s[{sKV}:{sKV+3}]"
    for q in range(4):
        if q: a(f"v_xor_b32 v{vT3}, {q*1024}, v{vT2}")
        a(f"buffer_load_dwordx4 {vr(vQ+4*q,4)}, v{vT3 if q else vT2}, {srd}, s{sQ0} offen")
    a(f"""
    L_{P}_pre:
    buffer_load_dwordx4 v{vKo}, {kv}, s{sKT} offen lds
    s_add_u32 m0, m0, 1024
    s_add_u32 s{sC}, s{sC}, 1
    buffer_load_dwordx4 v{vVo}, {kv}, s{sKT} offen lds
    s_add_u32 m0, m0, 1024
    s_add_u32 s{sKT}, s{sKT}, 1024
    s_cmp_lt_u32 s{sC}, 6
    s_cbranch_scc1 L_{P}_pre
    s_lshl_b32 s{sT0}, s{sQB}, 2
    s_add_u32 s{sT0}, s{sT0}, s{sW}
    s_lshl_b32 s{sT0}, s{sT0}, 7
    s_add_u32 s{sT0}, s{sT0}, {WS_G}
    v_and_b32 v{vT0}, 31, v0
    v_lshlrev_b32 v{vT0}, 2, v{vT0}
    buffer_load_dword v{vG}, v{vT0}, {srd}, s{sT0} offen
    v_add_u32 v{vKr}, s{sRB}, v{vKo}
    v_and_b32 v{vT0}, 15, v0
    v_lshlrev_b32 v{vT0}, 4, v{vT0}
    v_lshrrev_b32 v{vT1}, 5, v0
    v_lshl_add_u32 v{vT0}, v{vT1}, 8, v{vT0}
    v_add_u32 v{vVr}, s{sRB}, v{vT0}
    v_and_b32 v{vT1}, 27, v0
    v_cmp_eq_u32 vcc, 16, v{vT1}
    v_mov_b32 v{vT1}, 0x3f803f80
    {'' if 'vones' in EXP else f'v_cndmask_b32 v{vT1}, 0, v{vT1}, vcc'}
    """)
    for r in range(16): a(f"v_mov_b32 v{vV+r}, v{vT1}")
    def reads(st, off):
        return f"""ds_read_b128 {vr(vK+4*st,4)}, v{vKr} offset:{off}
        s_mov_b64 exec, s[{sM}:{sM+1}]
        ds_read_b128 {vr(vV+8*st,4)}, v{vVr} offset:{off+1024}
        ds_read_b128 {vr(vV+8*st+4,4)}, v{vVr} offset:{off+1536}
        s_mov_b64 exec, -1"""
    def dma(off):
        return f"""s_add_u32 m0, s{sPO}, {off}
        s_setprio 3
        buffer_load_dwordx4 v{vKo}, {kv}, s{sKT} offen lds
        s_add_u32 m0, s{sPO}, {off+1024}
        s_nop 0
        buffer_load_dwordx4 v{vVo}, {kv}, s{sKT} offen lds
        s_setprio {1 if 'lowprio' in EXP else 0}
        s_add_u32 s{sKT}, s{sKT}, 1024"""
    for r in range(4, 8): a(f"v_mov_b32 v{vP+r}, 0")
    for t in range(4): a(f"v_mfma_f32_32x32x16_bf16 {vr(vO+16*t,16)}, {vr(vP+4,4)}, {vr(vP+4,4)}, 0")
    a(f"s_mov_b32 s{sC}, 0")
    a(f"s_mov_b32 s{sPO}, s{sRB}")
    pf.stamp(1)
    a("s_waitcnt vmcnt(11)")
    pf.stamp(2)
    a(reads(0, 0))
    a("s_waitcnt lgkmcnt(0)")
    def mfS(sb, st, q): return f"v_mfma_f32_32x32x16_bf16 {vr(vS+16*sb,16)}, {vr(vK+4*st,4)}, {vr(vQ+4*q,4)}, 0"
    def mfPV(q, st, u):
        if 'nopv' in EXP: return "s_nop 0"
        if 'pv16' in EXP: return f"v_mfma_f32_16x16x32_bf16 {vr(vO+16*q+4*u,4)}, {vr(vK+4*st,4)}, {vr(vP+4*u,4)}, {vr(vO+16*q+4*u,4)}"
        return f"v_mfma_f32_32x32x16_bf16 {vr(vO+16*q,16)}, {vr(vV+8*st+4*u,4)}, {vr(vP+4*u,4)}, {vr(vO+16*q,16)}"
    a(mfS(0, 0, 0))
    a(dma(0))
    if 'diag' in EXP: a("s_mov_b32 s40, 0\ns_mov_b32 s41, 0")
    a("s_nop 7")
    a.raw(".p2align 6")
    a.label(f"L_{P}_loop")
    start = len(a.lines)
    for st in range(2):
        off = 2048 if st == 0 else 0
        for q in range(4):
            sb = q & 1
            S = vS + 16 * sb
            ex = lambda i: f"v_exp_f32 v{S+i}, v{S+i}" if 'noexp' not in EXP else f"v_mov_b32 v{S+i}, v{S+i}\nv_mov_b32 v{S+i}, v{S+i}"
            cv = lambda i: f"v_cvt_pk_bf16_f32 v{vP+i}, v{S+2*i}, v{S+2*i+1}"
            pq, pst = (q - 1, st) if q > 0 else (3, st ^ 1)
            nq, nst = (q + 1, st) if q < 3 else (0, st ^ 1)
            a(ex(0)); a(ex(1))
            a(mfPV(pq, pst, 1))
            if q == 0 and st == 1:
                a(f"""
                s_add_u32 s{sT0}, s{sPO}, 4096
                s_add_u32 s{sT1}, s{sRB}, {RING}
                s_cmp_eq_u32 s{sT0}, s{sT1}
                s_cselect_b32 s{sT0}, s{sRB}, s{sT0}
                s_sub_u32 s{sD}, s{sT0}, s{sPO}
                s_mov_b32 s{sPO}, s{sT0}
                v_add_u32 v{vKr}, s{sD}, v{vKr}
                v_add_u32 v{vVr}, s{sD}, v{vVr}
                """)
            if q == 1:
                if 'diag' in EXP: a("s_memtime s[44:45]")
                a("s_waitcnt vmcnt(10)")
                if 'diag' in EXP:
                    a("s_memtime s[46:47]\ns_waitcnt lgkmcnt(0)\ns_sub_u32 s44, s46, s44\ns_add_u32 s41, s41, s44")
                a(reads(st ^ 1, off))
            for i in range(2, 6): a(ex(i))
            if q == 3: a("s_waitcnt lgkmcnt(0)")
            a(mfS(sb ^ 1, nst, nq))
            if q == 3:
                if st == 1:
                    a(f"""
                    s_cmp_ge_u32 s{sC}, {400 if 'clk' in EXP else 4}
                    s_cselect_b32 s{sKV+2}, 0, s{sKV+2}
                    """)
                if 'diag' in EXP: a("s_memtime s[44:45]")
                a(dma(off))
                if 'diag' in EXP:
                    a("s_memtime s[46:47]\ns_waitcnt lgkmcnt(0)\ns_sub_u32 s44, s46, s44\ns_add_u32 s40, s40, s44")
            a(ex(6)); a(ex(7))
            for i in range(4): a(cv(i))
            a(ex(8)); a(ex(9))
            a(mfPV(q, st, 0))
            for i in range(10, 16): a(ex(i))
            for i in range(4, 8): a(cv(i))
    if 'clk' in EXP:
        a(f"""
        s_memtime s[44:45]
        s_memrealtime s[46:47]
        s_waitcnt lgkmcnt(0)
        s_mov_b32 m0, s{sC}
        s_nop 0
        v_writelane_b32 v154, s44, m0
        v_writelane_b32 v155, s46, m0
        """)
    a(f"""
    s_add_u32 s{sC}, s{sC}, 1
    s_cmp_lt_u32 s{sC}, {64 if 'clk' in EXP else 8}
    s_cbranch_scc1 L_{P}_loop
    """)
    if 'clk' in EXP:
        a(f"""
        s_lshl_b32 s{sT0}, s{sA}, 2
        s_add_u32 s{sT0}, s{sT0}, s{sW}
        s_lshl_b32 s{sT0}, s{sT0}, 9
        s_add_u32 s{sT0}, s{sT0}, {WS_A}
        v_lshlrev_b32 v{vT0}, 2, v0
        buffer_store_dword v154, v{vT0}, {srd}, s{sT0} offen
        buffer_store_dword v155, v{vT0}, {srd}, s{sT0} offen offset:256
        s_endpgm
        """)
    seam, inner = check_loop(a.lines[start:])
    assert seam == 0 and inner == 0, (seam, inner)
    a(mfPV(3, 1, 1))
    a("s_setprio 3")
    pf.stamp(3)
    a(f"""
    v_add_u32 v{vT0}, s{sRB}, v{vKo}
    v_lshlrev_b32 v{vT1}, 2, v0
    v_add_u32 v{vT2}, s{sRB}, v{vT1}
    s_waitcnt vmcnt(0)
    """)
    for j in range(1, 4):
        o = vO + 16 * j
        a(f"""
        ds_write_b128 v{vT0}, {vr(o,4)} offset:{(j-1)*2304}
        ds_write_b128 v{vT0}, {vr(o+4,4)} offset:{(j-1)*2304+1024}
        ds_write_b32 v{vT2}, v{o+8} offset:{(j-1)*2304+2048}
        """)
    a(f"""
    s_waitcnt lgkmcnt(0)
    s_barrier
    """)
    R = vO
    for j in range(1, 4):
        o = vO + 16 * j
        a(f"""
        s_xor_b32 s{sT0}, s{sW}, {j}
        s_mul_i32 s{sT0}, s{sT0}, {RING}
        v_add_u32 v{vT0}, s{sT0}, v{vKo}
        v_add_u32 v{vT2}, s{sT0}, v{vT1}
        ds_read_b128 {vr(o,4)}, v{vT0} offset:{(j-1)*2304}
        ds_read_b128 {vr(o+4,4)}, v{vT0} offset:{(j-1)*2304+1024}
        ds_read_b32 v{o+8}, v{vT2} offset:{(j-1)*2304+2048}
        """)
    a("s_waitcnt lgkmcnt(0)")
    for r in range(0, 8, 2):
        a(f"v_pk_add_f32 {vr(R+r,2)}, {vr(R+r,2)}, {vr(R+16+r,2)}")
        a(f"v_pk_add_f32 {vr(R+32+r,2)}, {vr(R+32+r,2)}, {vr(R+48+r,2)}")
    a(f"v_add_f32 v{R+8}, v{R+8}, v{R+24}")
    a(f"v_add_f32 v{R+40}, v{R+40}, v{R+56}")
    for r in range(0, 8, 2):
        a(f"v_pk_add_f32 {vr(R+r,2)}, {vr(R+r,2)}, {vr(R+32+r,2)}")
    a(f"v_add_f32 v{R+8}, v{R+8}, v{R+40}")
    a(f"v_mov_b32 v{vT2}, v{R+8}")
    for r in range(8): a(f"v_fma_f32 v{vT2}, v{R+r}, 0, v{vT2}")
    a(f"""
    s_mov_b32 s{sT0}, {hex(f32bits(2.0**-30))}
    s_mov_b32 s{sT1}, {hex(f32bits(2.0**30))}
    v_cmp_le_f32 vcc, s{sT0}, v{vT2}
    v_cmp_ge_f32 s[24:25], s{sT1}, v{vT2}
    s_and_b64 vcc, vcc, s[24:25]
    s_cmp_eq_u64 vcc, -1
    {'' if ('nopv' in EXP or 'pv16' in EXP or 'noexp' in EXP) else f's_cbranch_scc0 L_{P}_slow'}
    L_{P}_fin:
    v_rcp_f32 v{vT2}, v{R+8}
    s_lshl_b32 s{sT0}, s{sQB}, 2
    s_add_u32 s{sT0}, s{sT0}, s{sW}
    s_lshl_b32 s{sT0}, s{sT0}, 5
    s_add_u32 s{sT0}, s{sT0}, s{sH}
    s_lshl_b32 s{sT0}, s{sT0}, 10
    s_add_u32 s{sT0}, s{sT0}, {WS_O}
    v_mul_f32 v{vT2}, v{vT2}, v{vG}
    """)
    for r in range(8): a(f"v_mul_f32 v{R+r}, v{R+r}, v{vT2}")
    a(f"""
    v_cvt_pk_bf16_f32 v{vP}, v{R}, v{R+1}
    v_cvt_pk_bf16_f32 v{vP+1}, v{R+2}, v{R+3}
    v_cvt_pk_bf16_f32 v{vP+2}, v{R+4}, v{R+5}
    v_cvt_pk_bf16_f32 v{vP+3}, v{R+6}, v{R+7}
    v_min_u32 v{vP}, -2, v{vP}
    v_min_u32 v{vP+1}, -2, v{vP+1}
    v_min_u32 v{vP+2}, -2, v{vP+2}
    v_min_u32 v{vP+3}, -2, v{vP+3}
    v_permlane32_swap_b32 v{vP}, v{vP+2}
    v_permlane32_swap_b32 v{vP+1}, v{vP+3}
    buffer_store_dwordx4 {vr(vP,4)}, v{vKo}, {srd}, s{sT0} offen sc1
    """)
    pf.stamp(4)
    if asmlib.PROF: a("s_waitcnt vmcnt(0)")
    pf.stamp(5)
    if 'diag' in EXP: a("s_mov_b32 s92, s40\ns_mov_b32 s94, s41")
    pf.dump(6, sA, sW, 4, vT0, vT1)
    a("s_endpgm")
    a.label(f"L_{P}_slow")
    a.window = []
    vM = vT3
    S = vS
    a(f"""
    s_lshl_b32 s{sT1}, s{sH}, 16
    s_add_u32 s{sT1}, s{sT1}, {WS_K}
    s_mov_b32 s{sKT}, s{sT1}
    s_mov_b32 s{sC}, 0
    v_mov_b32 v{vM}, 0xff800000
    v_and_b32 v{vT0}, 15, v0
    v_lshlrev_b32 v{vT0}, 4, v{vT0}
    v_lshrrev_b32 v{vT1}, 5, v0
    v_lshl_add_u32 v{vT0}, v{vT1}, 8, v{vT0}
    v_add_u32 v{vVo}, {WS_V - WS_K}, v{vT0}
    L_{P}_slow1:
    buffer_load_dwordx4 {vr(vK,4)}, v{vKo}, {srd}, s{sKT} offen
    s_add_u32 s{sKT}, s{sKT}, 1024
    s_waitcnt vmcnt(0)
    {mfS(0,0,0)}
    """)
    for r in range(0, 16, 2): a(f"v_max3_f32 v{vM}, v{vM}, v{S+r}, v{S+r+1}")
    a(f"""
    s_add_u32 s{sC}, s{sC}, 1
    s_cmp_lt_u32 s{sC}, 64
    s_cbranch_scc1 L_{P}_slow1
    v_mov_b32 v{vT0}, v{vM}
    v_mov_b32 v{vT1}, v{vM}
    v_permlane32_swap_b32 v{vT0}, v{vT1}
    v_max_f32 v{vM}, v{vT0}, v{vT1}
    s_mov_b32 s{sKT}, s{sT1}
    s_mov_b32 s{sC}, 0
    """)
    for r in range(16): a(f"v_mov_b32 v{R+r}, 0")
    a(f"""
    L_{P}_slow2:
    buffer_load_dwordx4 {vr(vK,4)}, v{vKo}, {srd}, s{sKT} offen
    s_mov_b64 exec, s[{sM}:{sM+1}]
    buffer_load_dwordx4 {vr(vV,4)}, v{vVo}, {srd}, s{sKT} offen
    buffer_load_dwordx4 {vr(vV+4,4)}, v{vVo}, {srd}, s{sKT} offen offset:512
    s_mov_b64 exec, -1
    s_add_u32 s{sKT}, s{sKT}, 1024
    s_waitcnt vmcnt(0)
    {mfS(0,0,0)}
    """)
    for r in range(16): a(f"v_sub_f32 v{S+r}, v{S+r}, v{vM}")
    for r in range(16): a(f"v_exp_f32 v{S+r}, v{S+r}")
    for i in range(8): a(f"v_cvt_pk_bf16_f32 v{vP+i}, v{S+2*i}, v{S+2*i+1}")
    a(mfPV(0, 0, 0)); a(mfPV(0, 0, 1))
    a(f"""
    s_nop 7
    s_add_u32 s{sC}, s{sC}, 1
    s_cmp_lt_u32 s{sC}, 64
    s_cbranch_scc1 L_{P}_slow2
    s_nop 15
    s_branch L_{P}_fin
    """)
    return NV

def gemm_role(a):
    P = "gm"
    sWS, sX, sW1, sB1, sWT, sOUT = 16, 20, 24, 28, 32, 36
    sW, sXCD, sIDX = 40, 41, 42
    sT0, sT1, sT2 = 43, 44, 45
    sC = 46
    sSOX, sSOW, sOS, sD, sN = 47, 48, 49, 50, 51
    sMD = 52
    sWM, sWN, sI, sJJ = 53, 54, 55, 56
    sTW, sFJ, sAO, sWO, sWO2, sLB = 57, 58, 59, 60, 61, 62
    sK2 = 64
    vL16 = 1
    vT0, vT1, vT2, vT3 = 2, 3, 4, 5
    vXd, vWd = 6, 7
    vXr, vWr = [8, 9], [10, 11]
    vAo = [12, 13]
    vG1 = [14, 15]
    vF = 16
    vA = 48
    vACC = 80
    NV = vACC + 64
    ST = 16384
    pf = Prof(a, 2)
    pf.stamp(0)
    cp = f"""s_getpc_b64 s[66:67]
    L_k2_pc:
    s_sub_u32 s66, s66, L_k2_pc-{NAME}
    s_subb_u32 s67, s67, 0
    s_lshl_b32 s{sT0}, s{sW}, 12
    v_lshlrev_b32 v{vT0}, 6, v0
    v_add_u32 v{vT0}, s{sT0}, v{vT0}
    v_min_u32 v{vT0}, L_code_end-{NAME}-4, v{vT0}
    global_load_dword v{vA}, v{vT0}, s[66:67]""" if 'cp2' in EXP else ""
    a(f"""
    s_setprio {0 if ('prio0' in EXP or 'lowprio' in EXP) else 2}
    {'s_memrealtime s[68:69]' if 'tdiag' in EXP else ''}
    s_load_dwordx2 s[4:5], s[0:1], 0
    s_load_dwordx2 s[6:7], s[0:1], 16
    s_load_dwordx4 s[8:11], s[0:1], 32
    s_load_dwordx2 s[12:13], s[0:1], 48
    s_load_dwordx2 s[{sOUT}:{sOUT+1}], s[0:1], 64
    s_load_dwordx2 s[14:15], s[0:1], 80
    v_lshrrev_b32 v1, 6, v0
    v_and_b32 v0, 63, v0
    v_readfirstlane_b32 s{sW}, v1
    s_and_b32 s{sXCD}, s2, 7
    s_lshr_b32 s{sIDX}, s2, 3
    s_mov_b32 s{sWS+2}, {WS_SIZE}
    s_mov_b32 s{sWS+3}, 0x00020000
    s_mov_b32 s{sX+2}, {2048*512*2}
    s_mov_b32 s{sX+3}, 0x00020000
    s_mov_b32 s{sW1+2}, {512*1792*2}
    s_mov_b32 s{sW1+3}, 0x00020000
    s_mov_b32 s{sB1+2}, {1792*2}
    s_mov_b32 s{sB1+3}, 0x00020000
    s_mov_b32 s{sWT+2}, {1792*512*2}
    s_mov_b32 s{sWT+3}, 0x00020000
    s_mov_b32 s{sOUT+2}, {2048*512*2}
    s_mov_b32 s{sOUT+3}, 0x00020000
    s_and_b32 s{sWM}, s{sW}, 1
    s_lshr_b32 s{sWN}, s{sW}, 1
    v_lshlrev_b32 v{vL16}, 4, v0
    {cp}
    {f's_mov_b32 s{sX+2}, 0' if 'noload' in EXP else ''}
    {f's_mov_b32 s{sW1+2}, 0' if 'noload' in EXP else ''}
    {f's_mov_b32 s{sWT+2}, 0' if 'noload' in EXP else ''}
    s_waitcnt lgkmcnt(0)
    s_mov_b32 s{sX}, s4
    s_mov_b32 s{sX+1}, s5
    s_mov_b32 s{sW1}, s8
    s_mov_b32 s{sW1+1}, s9
    s_mov_b32 s{sB1}, s10
    s_mov_b32 s{sB1+1}, s11
    s_mov_b32 s{sWT}, s12
    s_mov_b32 s{sWT+1}, s13
    s_mov_b32 s{sWS}, s14
    s_mov_b32 s{sWS+1}, s15
    """)
    wsrd = f"s[{sWS}:{sWS+3}]"
    pf.stamp(1)
    if 'gexit' in EXP or 'f1only' in EXP: a("s_endpgm")
    pf.stamp(2)
    D = 4
    a(f"""
    s_lshl_b32 s{sTW}, s{sXCD}, 2
    s_and_b32 s{sT0}, s{sIDX}, 3
    s_add_u32 s{sTW}, s{sTW}, s{sT0}
    s_lshr_b32 s{sFJ}, s{sIDX}, 2
    s_mul_i32 s{sT0}, s{sTW}, 224
    s_mul_i32 s{sT1}, s{sW}, 28
    s_add_u32 s{sT0}, s{sT0}, s{sT1}
    s_lshl_b32 s{sAO}, s{sT0}, 10
    s_add_u32 s{sAO}, s{sAO}, {WS_A}
    s_lshl_b32 s{sWO}, s{sT1}, 14
    s_lshl_b32 s{sT2}, s{sFJ}, 7
    s_add_u32 s{sWO}, s{sWO}, s{sT2}
    s_lshl_b32 s{sLB}, s{sW}, 13
    s_mul_i32 s{sT0}, s{sWM}, {112*1024}
    s_sub_u32 s{sT1}, {112*1024}, s{sT0}
    v_add_u32 v{vAo[0]}, s{sT0}, v{vL16}
    v_add_u32 v{vAo[1]}, s{sT1}, v{vL16}
    v_lshrrev_b32 v{vT0}, 2, v0
    v_lshrrev_b32 v{vT1}, 4, v0
    v_xor_b32 v{vT0}, v{vT0}, v{vT1}
    v_and_b32 v{vT0}, 1, v{vT0}
    v_lshlrev_b32 v{vT0}, 6, v{vT0}
    v_and_b32 v{vT1}, 3, v0
    v_lshl_add_u32 v{vT0}, v{vT1}, 4, v{vT0}
    v_lshrrev_b32 v{vT1}, 3, v0
    v_lshl_add_u32 v{vWd}, v{vT1}, 10, v{vT0}
    v_lshrrev_b32 v{vT0}, 5, v0
    v_bfe_u32 v{vT1}, v0, 2, 2
    v_lshl_add_u32 v{vT0}, v{vT0}, 3, v{vT1}
    v_lshlrev_b32 v{vT0}, 7, v{vT0}
    v_lshrrev_b32 v{vT1}, 1, v{vT1}
    v_xor_b32 v{vT1}, s{sWN}, v{vT1}
    v_lshl_add_u32 v{vT0}, v{vT1}, 6, v{vT0}
    v_bfe_u32 v{vT1}, v0, 4, 1
    v_lshl_add_u32 v{vT0}, v{vT1}, 5, v{vT0}
    v_and_b32 v{vT1}, 3, v0
    v_lshl_add_u32 v{vT0}, v{vT1}, 3, v{vT0}
    v_add_u32 v{vWr[0]}, s{sLB}, v{vT0}
    v_xor_b32 v{vWr[1]}, 64, v{vWr[0]}
    s_lshl_b32 s{sT0}, s{sTW}, 8
    s_add_u32 s{sT0}, s{sT0}, {WS_G}
    v_and_b32 v{vT0}, 31, v0
    v_lshlrev_b32 v{vT0}, 2, v{vT0}
    s_lshl_b32 s{sT1}, s{sWM}, 7
    v_xor_b32 v{vT0}, s{sT1}, v{vT0}
    v_xor_b32 v{vT1}, 128, v{vT0}
    buffer_load_dword v{vG1[0]}, v{vT0}, {wsrd}, s{sT0} offen
    buffer_load_dword v{vG1[1]}, v{vT1}, {wsrd}, s{sT0} offen
    s_mov_b32 s{sD}, {SPIN_MAX}
    """)
    def wloads(d):
        return [f"s_add_u32 m0, s{sLB}, {d*2048}",
                f"s_add_u32 s{sWO2}, s{sWO}, 8192",
                f"buffer_load_dwordx4 v{vWd}, s[{sWT}:{sWT+3}], s{sWO} offen lds",
                f"s_add_u32 m0, s{sLB}, {d*2048+1024}",
                f"s_add_u32 s{sWO}, s{sWO}, 16384",
                f"buffer_load_dwordx4 v{vWd}, s[{sWT}:{sWT+3}], s{sWO2} offen lds"]
    def aloads(d):
        asrd = f"s[{sX}:{sX+3}]" if 'noload' in EXP else wsrd
        return [f"buffer_load_dwordx4 {vr(vA+8*d,4)}, v{vAo[0]}, {asrd}, s{sAO} offen",
                f"buffer_load_dwordx4 {vr(vA+8*d+4,4)}, v{vAo[1]}, {asrd}, s{sAO} offen",
                f"s_add_u32 s{sAO}, s{sAO}, 1024"]
    def wreads(d, buf):
        return [f"ds_read_b64_tr_b16 {vr(vF+8*buf+4*fi+2*t2,2)}, v{vWr[fi]} offset:{d*2048+t2*512}"
                for fi in range(2) for t2 in range(2)]
    def mfmas(d, buf):
        L = []
        for fi in range(2):
            for ti in range(2):
                acc = vACC + 16 * (fi * 2 + ti)
                L.append(f"v_mfma_f32_32x32x16_bf16 {vr(acc,16)}, {vr(vF+8*buf+4*fi,4)}, {vr(vA+8*d+4*ti,4)}, {vr(acc,16)}")
        if 'nomfma' in EXP: L = ["s_nop 0"] * 4
        if 'space' in EXP: L = [m + "\ns_sleep 1" for m in L]
        return L
    for d in range(D): a("\n".join(wloads(d) + aloads(d)))
    for r in range(4): a(f"v_mov_b32 v{vF+8+r}, 0")
    for t in range(4): a(f"v_mfma_f32_32x32x16_bf16 {vr(vACC+16*t,16)}, {vr(vF+8,4)}, {vr(vF+8,4)}, 0")
    a(f"s_mov_b32 s{sC}, 0")
    a(f"s_waitcnt vmcnt({4*(D-1)})")
    a("\n".join(wreads(0, 0)))
    a.raw(".p2align 6")
    a.label(f"L_{P}_f2loop")
    start = len(a.lines)
    for s in range(D):
        a(f"s_waitcnt vmcnt({4*(D-2)})")
        a("\n".join(wreads((s + 1) % D, (s + 1) & 1)))
        a("s_waitcnt lgkmcnt(4)")
        a("\n".join(mfmas(s, s & 1)))
        a("\n".join(wloads(s) + aloads(s)))
    a(f"""
    s_add_u32 s{sC}, s{sC}, 1
    s_cmp_lt_u32 s{sC}, {1 if 'nof2' in EXP else 6}
    s_cbranch_scc1 L_{P}_f2loop
    """)
    seam, inner = check_loop(a.lines[start:])
    assert seam == 0 and inner == 0, (seam, inner)
    a(f"""
    s_mov_b32 s{sWT}, s6
    s_mov_b32 s{sWT+1}, s7
    s_mov_b32 s{sWT+2}, {512*512*2}
    s_lshl_b32 s{sWO}, s{sW}, 16
    s_lshl_b32 s{sT2}, s{sFJ}, 7
    s_add_u32 s{sWO}, s{sWO}, s{sT2}
    """)
    for s in range(D):
        if s < D - 1:
            a(f"s_waitcnt vmcnt({4*(D-2-s) + 2*s})")
            a("\n".join(wreads(s + 1, (s + 1) & 1)))
            a("s_waitcnt lgkmcnt(4)")
        else:
            a("s_waitcnt lgkmcnt(0)")
        a("\n".join(mfmas(s, s & 1)))
        a("\n".join(wloads(s)))
    pf.stamp(3)
    if 'nopoll' in EXP: a("s_endpgm")
    a(f"""
    s_setprio 2
    v_sub_f32 v{vG1[0]}, 1.0, v{vG1[0]}
    v_sub_f32 v{vG1[1]}, 1.0, v{vG1[1]}
    s_lshl_b32 s{sAO}, s{sTW}, 16
    s_lshl_b32 s{sT0}, s{sW}, 12
    s_add_u32 s{sAO}, s{sAO}, s{sT0}
    s_add_u32 s{sAO}, s{sAO}, {WS_O}
    s_lshl_b32 s{sT0}, s{sWM}, 15
    v_add_u32 v{vAo[0]}, s{sT0}, v{vL16}
    v_xor_b32 v{vAo[1]}, 0x8000, v{vAo[0]}
    v_and_b32 v{vT0}, 3, v0
    v_bfe_u32 v{vT1}, v0, 2, 1
    v_lshlrev_b32 v{vT0}, 10, v{vT0}
    v_lshl_add_u32 v{vT3}, v{vT1}, 15, v{vT0}
    s_add_u32 s{sWO}, s{sWO}, {(16-4)*16384}
    s_mov_b32 s{sC}, 0
    s_mov_b32 s{sN}, 0
    """)
    for fi in range(2):
        for ti in range(2):
            acc = vACC + 16 * (fi * 2 + ti)
            for r in range(0, 16, 2): a(f"v_pk_mul_f32 {vr(acc+r,2)}, {vr(acc+r,2)}, {vr(vG1[0],2)} op_sel:[0,{ti}] op_sel_hi:[1,{ti}]")
    a.label(f"L_{P}_ph")
    a(f"""
    s_mov_b64 exec, 0xff
    L_{P}_pollO:
    buffer_load_dword v{vT1}, v{vT3}, {wsrd}, s{sAO} offen offset:1020 sc1
    s_waitcnt vmcnt(0)
    v_cmp_eq_u32 vcc, -1, v{vT1}
    s_cmp_le_u32 vcc_lo, s{sN}
    s_cbranch_scc1 L_{P}_loadO
    s_sleep {PSLEEP}
    s_sub_u32 s{sD}, s{sD}, 1
    s_cbranch_scc0 L_{P}_pollO
    s_mov_b32 s{sD}, 0
    L_{P}_loadO:
    s_mov_b64 exec, -1
    """)
    for d in range(D):
        a(f"buffer_load_dwordx4 {vr(vA+8*d,4)}, v{vAo[0]}, {wsrd}, s{sAO} offen offset:{d*1024} sc1")
        a(f"buffer_load_dwordx4 {vr(vA+8*d+4,4)}, v{vAo[1]}, {wsrd}, s{sAO} offen offset:{d*1024} sc1")
    a("\n".join(wreads(0, 0)))
    a("s_waitcnt vmcnt(0)")
    a(f"v_max3_u32 v{vT1}, v{vA}, v{vA+1}, v{vA+2}")
    for r in range(3, 31, 2): a(f"v_max3_u32 v{vT1}, v{vT1}, v{vA+r}, v{vA+r+1}")
    a(f"""
    v_max_u32 v{vT1}, v{vT1}, v{vA+31}
    v_cmp_eq_u32 vcc, -1, v{vT1}
    s_cbranch_vccz L_{P}_okO
    s_sub_u32 s{sD}, s{sD}, 1
    s_cbranch_scc0 L_{P}_loadO
    s_mov_b32 s{sD}, 0
    L_{P}_okO:
    """)
    for s in range(D):
        if s < D - 1:
            a("\n".join(wreads(s + 1, (s + 1) & 1)))
            a("s_waitcnt lgkmcnt(4)")
        else:
            a("s_waitcnt lgkmcnt(0)")
        a("\n".join(mfmas(s, s & 1)))
    a(f"""
    s_cmp_eq_u32 s{sC}, 1
    s_cbranch_scc1 L_{P}_red
    """)
    for s in range(D): a("\n".join(wloads(s)))
    a(f"""
    s_add_u32 s{sAO}, s{sAO}, 16384
    s_mov_b32 s{sC}, 1
    s_mov_b32 s{sN}, {0 if 'oldpoll' in EXP else 0xfe}
    s_branch L_{P}_ph
    L_{P}_red:
    s_nop 7
    """)
    pf.stamp(4)
    a("s_barrier")
    for j in range(1, 4):
        a(f"""
        s_xor_b32 s{sT0}, s{sW}, {j}
        s_mul_i32 s{sT0}, s{sT0}, 12288
        v_add_u32 v{vT0}, s{sT0}, v{vL16}
        """)
        for q in range(4):
            a(f"ds_write_b128 v{vT0}, {vr(vACC+16*j+4*q,4)} offset:{(j-1)*4096+q*1024}")
    a(f"""
    s_mul_i32 s{sT0}, s{sW}, 12288
    v_add_u32 v{vT1}, s{sT0}, v{vL16}
    s_lshl_b32 s{sT0}, s{sTW}, 1
    s_add_u32 s{sT0}, s{sT0}, s{sWM}
    s_lshl_b32 s{sT0}, s{sT0}, 15
    s_lshl_b32 s{sT1}, s{sFJ}, 7
    s_add_u32 s{sT0}, s{sT0}, s{sT1}
    s_lshl_b32 s{sT1}, s{sWN}, 6
    s_add_u32 s{sT0}, s{sT0}, s{sT1}
    v_and_b32 v{vT0}, 31, v0
    v_lshlrev_b32 v{vT0}, 10, v{vT0}
    v_lshrrev_b32 v{vT2}, 5, v0
    v_lshl_add_u32 v{vT0}, v{vT2}, 4, v{vT0}
    s_waitcnt lgkmcnt(0)
    s_barrier
    """)
    for s in range(3):
        for q in range(4):
            a(f"ds_read_b128 {vr(vACC+16*(s+1)+4*q,4)}, v{vT1} offset:{s*4096+q*1024}")
    a("s_waitcnt lgkmcnt(8)")
    for r in range(0, 16, 2): a(f"v_pk_add_f32 {vr(vACC+r,2)}, {vr(vACC+r,2)}, {vr(vACC+16+r,2)}")
    a("s_waitcnt lgkmcnt(0)")
    for r in range(0, 16, 2): a(f"v_pk_add_f32 {vr(vACC+32+r,2)}, {vr(vACC+32+r,2)}, {vr(vACC+48+r,2)}")
    for r in range(0, 16, 2): a(f"v_pk_add_f32 {vr(vACC+r,2)}, {vr(vACC+r,2)}, {vr(vACC+32+r,2)}")
    p = vF
    for i in range(8): a(f"v_cvt_pk_bf16_f32 v{p+i}, v{vACC+2*i}, v{vACC+2*i+1}")
    a(f"""
    v_permlane32_swap_b32 v{p}, v{p+2}
    v_permlane32_swap_b32 v{p+1}, v{p+3}
    v_permlane32_swap_b32 v{p+4}, v{p+6}
    v_permlane32_swap_b32 v{p+5}, v{p+7}
    buffer_store_dwordx4 {vr(p,4)}, v{vT0}, s[{sOUT}:{sOUT+3}], s{sT0} offen {OSC}
    buffer_store_dwordx4 {vr(p+4,4)}, v{vT0}, s[{sOUT}:{sOUT+3}], s{sT0} offen offset:32 {OSC}
    """)
    if asmlib.PROF: a("s_waitcnt vmcnt(0)")
    pf.stamp(5)
    pf.dump(6, 2, sW, 4, vT0, vT1)
    if 'tdiag' in EXP:
        a(f"""
        s_or_b32 s{sT0}, s2, s{sW}
        s_cmp_lg_u32 s{sT0}, 0
        s_cbranch_scc1 L_td_end
        s_memrealtime s[70:71]
        v_mov_b32 v1, 0
        s_mov_b32 s{sT0}, {WS_FA}
        buffer_load_dword v2, v1, {wsrd}, s{sT0} offen
        s_waitcnt vmcnt(0) lgkmcnt(0)
        v_readfirstlane_b32 s{sT1}, v2
        {f's_sub_u32 s{sT1}, s68, s{sT1}' if 'tdiag1' in EXP else f's_sub_u32 s{sT1}, s70, s68'}
        s_min_u32 s{sT1}, s{sT1}, 10000
        s_mul_i32 s{sT1}, s{sT1}, 10
        L_td_spin:
        s_memrealtime s[66:67]
        s_waitcnt lgkmcnt(0)
        s_sub_u32 s{sT2}, s66, s70
        s_cmp_lt_u32 s{sT2}, s{sT1}
        s_cbranch_scc1 L_td_spin
        L_td_end:
        """)
    a("s_endpgm")
    return NV

def gen():
    a = Asm()
    a.raw(kernel_header(NAME))
    a(f"""
    s_cmp_ge_u32 s2, 768
    s_cbranch_scc1 L_k2_end
    s_cmp_lt_u32 s2, 256
    s_cbranch_scc1 L_k2_gemm
    """)
    nv1 = attn_role(a)
    a.label("L_k2_end")
    a("s_endpgm")
    a.raw(".p2align 6")
    a.label("L_k2_gemm")
    a.window = []
    nv2 = gemm_role(a)
    NV = max(nv1, nv2)
    assert NV <= 168
    return a.text(), kernel_desc(NAME, NV, 80), f"; @launch kernel={NAME} grid=(768,1,1) block=(256,1,1) lds={LDS_BYTES}"

if __name__ == "__main__":
    t, d, l = gen()
    print(l); print(len(t.splitlines()))
```

```python
from asmlib import *
import asmlib
from layout import *
import os
EXP = os.environ.get('EXP', '')
NAME = "gated_mix__softmax_full_mha__dense_activation_mish__prompt_kernel"
NS = 4
XS = 16384
W_BASE = NS * XS
LDS_BYTES = 163840
RING = 8192
AT_BASE = [131072, 0]
GM_BASE = 32768
CNT_BASE = 81920
SPIN_MAX = 1 << 18
FQ = int(os.environ.get('FQ', '1')); FST = int(os.environ.get('FST', '0'))
PSLEEP = int(os.environ.get('PSLEEP', '12'))

sWS = 8
sDB = 12
sWAVE, sW, sI, sJ = 16, 17, 18, 19
sSP = 20
sT0, sT1, sT2 = 21, 22, 23
vEP = 154
wsrd = f"s[{sWS}:{sWS+3}]"

def epoch_load(a, vz):
    a(f"""
    v_mov_b32 v{vz}, 0
    buffer_load_dwordx2 {vr(vEP,2)}, v{vz}, s[{sDB}:{sDB+3}], 0 offen sc1
    """)
def epoch_check(a, vz, tag):
    a(f"""
    L_ep{tag}:
    v_cmp_ne_u32 vcc, 0, v{vEP}
    s_cbranch_vccnz L_epok{tag}
    v_mov_b32 v{vz}, 0
    buffer_load_dwordx2 {vr(vEP,2)}, v{vz}, s[{sDB}:{sDB+3}], 0 offen sc1
    s_sub_u32 s{sSP}, s{sSP}, 1
    s_waitcnt vmcnt(0)
    s_cbranch_scc0 L_ep{tag}
    s_mov_b32 s{sSP}, 0
    L_epok{tag}:
    """)
def group_sync(a, idx, vt, vt2, tag):
    a(f"""
    v_mov_b32 v{vt}, {CNT_BASE + 4*idx}
    v_mov_b32 v{vt2}, 1
    s_mov_b64 exec, 1
    ds_add_u32 v{vt}, v{vt2}
    s_mov_b64 exec, -1
    L_gs{tag}:
    ds_read_b32 v{vt2}, v{vt}
    s_sub_u32 s{sSP}, s{sSP}, 1
    s_cselect_b32 s{sT1}, 4, 0
    s_waitcnt lgkmcnt(0)
    v_readfirstlane_b32 s{sT0}, v{vt2}
    s_add_u32 s{sT0}, s{sT0}, s{sT1}
    s_cmp_lt_u32 s{sT0}, 4
    s_cbranch_scc1 L_gs{tag}
    """)

class Attn:
    sKV = 24
    sH, sQB, sKT, sC, sM, sQ0 = 28, 29, 30, 31, 32, 34
    sRB, sPO, sD, sGB, sGI = 35, 36, 37, 38, 39
    sFI, sFA = 42, 43
    vKo, vVo = 1, 2
    vT0, vT1, vT2, vT3, vG = 3, 4, 5, 6, 7
    vQ, vK, vV, vP, vS, vO = 8, 24, 32, 48, 56, 88
    vKr, vVr = 152, 153
    vFO, vFV = 156, 158
    def setup(self, a, grp):
        s = self
        a(f"""
        s_and_b32 s{sT0}, s2, 7
        s_lshl_b32 s{s.sH}, s{sT0}, 1
        s_bfe_u32 s{sT0}, s2, 0x10003
        s_add_u32 s{s.sH}, s{s.sH}, s{sT0}
        s_add_u32 s{s.sH}, s{s.sH}, {16*grp}
        s_bfe_u32 s{s.sQB}, s2, 0x40004
        s_mov_b32 s{s.sKV}, s{sWS}
        s_mov_b32 s{s.sKV+1}, s{sWS+1}
        s_mov_b32 s{s.sKV+2}, {WS_SIZE}
        s_mov_b32 s{s.sKV+3}, 0x00020000
        s_mov_b32 s{s.sM}, 0x0000ffff
        s_mov_b32 s{s.sM+1}, 0x0000ffff
        s_lshl_b32 s{sT0}, s{s.sH}, 16
        s_lshl_b32 s{sT1}, s{s.sQB}, 12
        s_add_u32 s{s.sQ0}, s{sT0}, s{sT1}
        s_lshl_b32 s{sT1}, s{sW}, 14
        s_add_u32 s{s.sKT}, s{sT0}, s{sT1}
        s_add_u32 s{s.sKT}, s{s.sKT}, {WS_K}
        s_mov_b32 s{s.sGB}, {AT_BASE[grp]}
        s_mov_b32 s{s.sGI}, {CNT_BASE + 4*grp}
        s_mov_b32 s{s.sFI}, {0 if grp else 99}
        s_lshl_b32 s{s.sFA}, s{sI}, 2
        s_add_u32 s{s.sFA}, s{s.sFA}, s{sW}
        s_lshl_b32 s{s.sFA}, s{s.sFA}, 4
        s_add_u32 s{s.sFA}, s{s.sFA}, s{sJ}
        s_lshl_b32 s{s.sFA}, s{s.sFA}, 3
        s_add_u32 s{s.sFA}, s{s.sFA}, {WS_FA2}
        s_lshl_b32 s{s.sRB}, s{sW}, 13
        s_add_u32 s{s.sRB}, s{s.sRB}, s{s.sGB}
        v_lshlrev_b32 v{s.vKo}, 4, v0
        v_add_u32 v{s.vVo}, {WS_V - WS_K}, v{s.vKo}
        s_lshr_b32 s{sT0}, s{s.sH}, 2
        s_lshl_b32 s{sT0}, s{sT0}, 6
        s_lshl_b32 s{sT1}, s{sW}, 4
        s_add_u32 s{sT2}, s{sT0}, s{sT1}
        s_add_u32 s{sT2}, s{sT2}, 512
        v_add_u32 v{s.vFO}, s{sT2}, v0
        s_lshr_b32 s{sT2}, s{s.sH}, 1
        s_lshl_b32 s{sT2}, s{sT2}, 6
        s_add_u32 s{sT2}, s{sT2}, s{sT1}
        s_sub_u32 s{sT2}, s{sT2}, 16
        v_add_u32 v{s.vT0}, s{sT2}, v0
        v_cmp_le_u32 vcc, 16, v0
        v_cndmask_b32 v{s.vFO}, v{s.vFO}, v{s.vT0}, vcc
        s_lshl_b32 s{sT1}, s{s.sQB}, 2
        s_add_u32 s{sT2}, s{sT0}, s{sT1}
        s_sub_u32 s{sT2}, s{sT2}, 32
        v_add_u32 v{s.vT0}, s{sT2}, v0
        v_cmp_le_u32 vcc, 32, v0
        v_cndmask_b32 v{s.vFO}, v{s.vFO}, v{s.vT0}, vcc
        s_lshl_b32 s{sT2}, s{sW}, 8
        s_add_u32 s{sT2}, s{sT2}, s{sT1}
        v_and_b32 v{s.vT0}, 3, v0
        v_lshlrev_b32 v{s.vT0}, 6, v{s.vT0}
        v_add_u32 v{s.vT0}, s{sT2}, v{s.vT0}
        v_cmp_le_u32 vcc, 36, v0
        v_cndmask_b32 v{s.vFO}, v{s.vFO}, v{s.vT0}, vcc
        v_lshlrev_b32 v{s.vFO}, 3, v{s.vFO}
        v_add_u32 v{s.vFO}, {WS_FQ}, v{s.vFO}
        """)
    def poll_issue(self, a):
        a(f"buffer_load_dwordx2 {vr(self.vFV,2)}, v{self.vFO}, {wsrd}, 0 offen sc1")
    def poll_test(self, a):
        a(f"""
        v_cmp_ne_u64 vcc, {vr(self.vFV,2)}, {vr(vEP,2)}
        s_cmp_eq_u64 vcc, 0
        """)
    def first_loads(self, a, tag):
        s = self
        kv = f"s[{s.sKV}:{s.sKV+3}]"
        a(f"""
        s_lshl_b32 s{sT1}, s{sW}, 10
        v_xor_b32 v{s.vT2}, s{sT1}, v{s.vKo}
        s_mov_b32 m0, s{s.sRB}
        s_mov_b32 s{s.sC}, 0
        """)
        for q in range(4):
            if q: a(f"v_xor_b32 v{s.vT3}, {q*1024}, v{s.vT2}")
            a(f"buffer_load_dwordx4 {vr(s.vQ+4*q,4)}, v{s.vT3 if q else s.vT2}, {wsrd}, s{s.sQ0} offen sc1")
        a(f"""
        L_pre{tag}:
        buffer_load_dwordx4 v{s.vKo}, {kv}, s{s.sKT} offen sc1 lds
        s_add_u32 m0, m0, 1024
        s_add_u32 s{s.sC}, s{s.sC}, 1
        buffer_load_dwordx4 v{s.vVo}, {kv}, s{s.sKT} offen sc1 lds
        s_add_u32 m0, m0, 1024
        s_add_u32 s{s.sKT}, s{s.sKT}, 1024
        s_cmp_lt_u32 s{s.sC}, 4
        s_cbranch_scc1 L_pre{tag}
        s_lshl_b32 s{sT0}, s{s.sQB}, 2
        s_add_u32 s{sT0}, s{sT0}, s{sW}
        s_lshl_b32 s{sT0}, s{sT0}, 7
        s_add_u32 s{sT0}, s{sT0}, {WS_G}
        v_and_b32 v{s.vT0}, 31, v0
        v_lshlrev_b32 v{s.vT0}, 2, v{s.vT0}
        buffer_load_dword v{s.vG}, v{s.vT0}, {wsrd}, s{sT0} offen sc1
        """)
    def body(self, a, pf):
        s = self; P = "at"
        sKV, sH, sQB, sKT, sC, sM, sRB, sPO, sD = s.sKV, s.sH, s.sQB, s.sKT, s.sC, s.sM, s.sRB, s.sPO, s.sD
        vKo, vVo, vT0, vT1, vT2, vT3, vG = s.vKo, s.vVo, s.vT0, s.vT1, s.vT2, s.vT3, s.vG
        vQ, vK, vV, vP, vS, vO, vKr, vVr = s.vQ, s.vK, s.vV, s.vP, s.vS, s.vO, s.vKr, s.vVr
        kv = f"s[{sKV}:{sKV+3}]"
        a.label("L_at_body")
        a.window = []
        a(f"""
        v_add_u32 v{vKr}, s{sRB}, v{vKo}
        v_and_b32 v{vT0}, 15, v0
        v_lshlrev_b32 v{vT0}, 4, v{vT0}
        v_lshrrev_b32 v{vT1}, 5, v0
        v_lshl_add_u32 v{vT0}, v{vT1}, 8, v{vT0}
        v_add_u32 v{vVr}, s{sRB}, v{vT0}
        v_and_b32 v{vT1}, 27, v0
        v_cmp_eq_u32 vcc, 16, v{vT1}
        v_mov_b32 v{vT1}, 0x3f803f80
        v_cndmask_b32 v{vT1}, 0, v{vT1}, vcc
        """)
        for r in range(16): a(f"v_mov_b32 v{vV+r}, v{vT1}")
        def reads(st, off):
            return f"""ds_read_b128 {vr(vK+4*st,4)}, v{vKr} offset:{off}
            s_mov_b64 exec, s[{sM}:{sM+1}]
            ds_read_b128 {vr(vV+8*st,4)}, v{vVr} offset:{off+1024}
            ds_read_b128 {vr(vV+8*st+4,4)}, v{vVr} offset:{off+1536}
            s_mov_b64 exec, -1"""
        def dma(off):
            return f"""s_add_u32 m0, s{sPO}, {off}
            s_setprio 3
            buffer_load_dwordx4 v{vKo}, {kv}, s{sKT} offen sc1 lds
            s_add_u32 m0, s{sPO}, {off+1024}
            s_nop 0
            buffer_load_dwordx4 v{vVo}, {kv}, s{sKT} offen sc1 lds
            s_setprio 1
            s_add_u32 s{sKT}, s{sKT}, 1024"""
        for r in range(4, 8): a(f"v_mov_b32 v{vP+r}, 0")
        for t in range(4): a(f"v_mfma_f32_32x32x16_bf16 {vr(vO+16*t,16)}, {vr(vP+4,4)}, {vr(vP+4,4)}, 0")
        a(f"s_mov_b32 s{sC}, 0")
        a(f"s_mov_b32 s{sPO}, s{sRB}")
        a("s_waitcnt vmcnt(7)")
        pf.stamp(2)
        a(reads(0, 0))
        a("s_waitcnt lgkmcnt(0)")
        def mfS(sb, st, q): return f"v_mfma_f32_32x32x16_bf16 {vr(vS+16*sb,16)}, {vr(vK+4*st,4)}, {vr(vQ+4*q,4)}, 0"
        def mfPV(q, st, u): return f"v_mfma_f32_32x32x16_bf16 {vr(vO+16*q,16)}, {vr(vV+8*st+4*u,4)}, {vr(vP+4*u,4)}, {vr(vO+16*q,16)}"
        a(mfS(0, 0, 0))
        a(dma(0))
        a("s_nop 7")
        a.raw(".p2align 6")
        a.label(f"L_{P}_loop")
        start = len(a.lines)
        for st in range(2):
            off = 2048 if st == 0 else 0
            for q in range(4):
                sb = q & 1
                S = vS + 16 * sb
                ex = lambda i: f"v_exp_f32 v{S+i}, v{S+i}"
                cv = lambda i: f"v_cvt_pk_bf16_f32 v{vP+i}, v{S+2*i}, v{S+2*i+1}"
                pq, pst = (q - 1, st) if q > 0 else (3, st ^ 1)
                nq, nst = (q + 1, st) if q < 3 else (0, st ^ 1)
                a(ex(0)); a(ex(1))
                a(mfPV(pq, pst, 1))
                if q == 0 and st == 1:
                    a(f"""
                    s_xor_b32 s{sPO}, s{sPO}, 4096
                    v_xor_b32 v{vKr}, 0x1000, v{vKr}
                    v_xor_b32 v{vVr}, 0x1000, v{vVr}
                    """)
                if q == FQ and st == FST:
                    a(f"""
                    s_cmp_eq_u32 s{sC}, s{s.sFI}
                    s_cbranch_scc1 L_{P}_flag
                    L_{P}_flagret:
                    """)
                if q == 1:
                    a("s_waitcnt vmcnt(6)")
                    a(reads(st ^ 1, off))
                for i in range(2, 6): a(ex(i))
                if q == 3: a("s_waitcnt lgkmcnt(0)")
                a(mfS(sb ^ 1, nst, nq))
                if q == 3:
                    if st == 1:
                        a(f"""
                        s_cmp_ge_u32 s{sC}, 5
                        s_cselect_b32 s{sKV+2}, 0, s{sKV+2}
                        """)
                    a(dma(off))
                a(ex(6)); a(ex(7))
                for i in range(4): a(cv(i))
                a(ex(8)); a(ex(9))
                a(mfPV(q, st, 0))
                for i in range(10, 16): a(ex(i))
                for i in range(4, 8): a(cv(i))
        a(f"""
        s_add_u32 s{sC}, s{sC}, 1
        s_cmp_lt_u32 s{sC}, 8
        s_cbranch_scc1 L_{P}_loop
        """)
        seam, inner = check_loop(a.lines[start:])
        assert seam == 0 and inner == 0, (seam, inner)
        a(mfPV(3, 1, 1))
        a("s_setprio 3")
        pf.stamp(3)
        a(f"""
        v_add_u32 v{vT0}, s{sRB}, v{vKo}
        v_lshlrev_b32 v{vT1}, 2, v0
        v_add_u32 v{vT2}, s{sRB}, v{vT1}
        s_waitcnt vmcnt(0)
        """)
        for j in range(1, 4):
            o = vO + 16 * j
            a(f"""
            ds_write_b128 v{vT0}, {vr(o,4)} offset:{(j-1)*2304}
            ds_write_b128 v{vT0}, {vr(o+4,4)} offset:{(j-1)*2304+1024}
            ds_write_b32 v{vT2}, v{o+8} offset:{(j-1)*2304+2048}
            """)
        a(f"""
        v_mov_b32 v{vT2}, s{s.sGI}
        v_mov_b32 v{vT3}, 1
        s_waitcnt lgkmcnt(0)
        s_mov_b64 exec, 1
        ds_add_u32 v{vT2}, v{vT3}
        s_mov_b64 exec, -1
        L_at_gs:
        s_sleep 1
        ds_read_b32 v{vT3}, v{vT2}
        s_sub_u32 s{sSP}, s{sSP}, 1
        s_cselect_b32 s{sT1}, 4, 0
        s_waitcnt lgkmcnt(0)
        v_readfirstlane_b32 s{sT0}, v{vT3}
        s_add_u32 s{sT0}, s{sT0}, s{sT1}
        s_cmp_lt_u32 s{sT0}, 4
        s_cbranch_scc1 L_at_gs
        """)
        R = vO
        for j in range(1, 4):
            o = vO + 16 * j
            a(f"""
            s_xor_b32 s{sT0}, s{sW}, {j}
            s_lshl_b32 s{sT0}, s{sT0}, 13
            s_add_u32 s{sT0}, s{sT0}, s{s.sGB}
            v_add_u32 v{vT0}, s{sT0}, v{vKo}
            v_add_u32 v{vT2}, s{sT0}, v{vT1}
            ds_read_b128 {vr(o,4)}, v{vT0} offset:{(j-1)*2304}
            ds_read_b128 {vr(o+4,4)}, v{vT0} offset:{(j-1)*2304+1024}
            ds_read_b32 v{o+8}, v{vT2} offset:{(j-1)*2304+2048}
            """)
        a("s_waitcnt lgkmcnt(0)")
        for r in range(0, 8, 2):
            a(f"v_pk_add_f32 {vr(R+r,2)}, {vr(R+r,2)}, {vr(R+16+r,2)}")
            a(f"v_pk_add_f32 {vr(R+32+r,2)}, {vr(R+32+r,2)}, {vr(R+48+r,2)}")
        a(f"v_add_f32 v{R+8}, v{R+8}, v{R+24}")
        a(f"v_add_f32 v{R+40}, v{R+40}, v{R+56}")
        for r in range(0, 8, 2):
            a(f"v_pk_add_f32 {vr(R+r,2)}, {vr(R+r,2)}, {vr(R+32+r,2)}")
        a(f"v_add_f32 v{R+8}, v{R+8}, v{R+40}")
        a(f"v_mov_b32 v{vT2}, v{R+8}")
        for r in range(8): a(f"v_fma_f32 v{vT2}, v{R+r}, 0, v{vT2}")
        a(f"""
        s_mov_b32 s{sT0}, {hex(f32bits(2.0**-30))}
        s_mov_b32 s{sT1}, {hex(f32bits(2.0**30))}
        v_cmp_le_f32 vcc, s{sT0}, v{vT2}
        v_cmp_ge_f32 s[40:41], s{sT1}, v{vT2}
        s_and_b64 vcc, vcc, s[40:41]
        s_cmp_eq_u64 vcc, -1
        s_cbranch_scc0 L_{P}_slow
        L_{P}_fin:
        v_rcp_f32 v{vT2}, v{R+8}
        s_lshl_b32 s{sT0}, s{sQB}, 2
        s_add_u32 s{sT0}, s{sT0}, s{sW}
        s_lshl_b32 s{sT0}, s{sT0}, 5
        s_add_u32 s{sT0}, s{sT0}, s{sH}
        s_lshl_b32 s{sT0}, s{sT0}, 10
        s_add_u32 s{sT0}, s{sT0}, {WS_O}
        v_mul_f32 v{vT2}, v{vT2}, v{vG}
        """)
        for r in range(8): a(f"v_mul_f32 v{R+r}, v{R+r}, v{vT2}")
        for r in range(4): a(f"v_cvt_pk_bf16_f32 v{vP+r}, v{R+2*r}, v{R+2*r+1}")
        for r in range(4): a(f"v_min_u32 v{vP+r}, -2, v{vP+r}")
        a(f"""
        v_permlane32_swap_b32 v{vP}, v{vP+2}
        v_permlane32_swap_b32 v{vP+1}, v{vP+3}
        buffer_store_dwordx4 {vr(vP,4)}, v{vKo}, {wsrd}, s{sT0} offen sc1
        """)
        pf.stamp(4)
        if asmlib.PROF: a("s_waitcnt vmcnt(0)")
        pf.stamp(5)
        pf.dump(6, 2, sWAVE, 16, vT0, vT1)
        a("s_endpgm")
        a(f"""
        L_{P}_flag:
        s_waitcnt vmcnt({2 + 2*FST})
        v_mov_b32 v{vT0}, 0
        s_mov_b64 exec, 1
        buffer_store_dwordx2 {vr(vEP,2)}, v{vT0}, {wsrd}, s{s.sFA} offen sc1
        s_mov_b64 exec, -1
        s_branch L_{P}_flagret
        """)
        a.label(f"L_{P}_slow")
        a.window = []
        vM = vT3; S = vS
        a(f"""
        s_lshl_b32 s{sT1}, s{sH}, 16
        s_add_u32 s{sT1}, s{sT1}, {WS_K}
        s_mov_b32 s{sKT}, s{sT1}
        s_mov_b32 s{sC}, 0
        v_mov_b32 v{vM}, 0xff800000
        v_and_b32 v{vT0}, 15, v0
        v_lshlrev_b32 v{vT0}, 4, v{vT0}
        v_lshrrev_b32 v{vT1}, 5, v0
        v_lshl_add_u32 v{vT0}, v{vT1}, 8, v{vT0}
        v_add_u32 v{vVo}, {WS_V - WS_K}, v{vT0}
        L_{P}_slow1:
        buffer_load_dwordx4 {vr(vK,4)}, v{vKo}, {wsrd}, s{sKT} offen sc1
        s_add_u32 s{sKT}, s{sKT}, 1024
        s_waitcnt vmcnt(0)
        {mfS(0,0,0)}
        """)
        for r in range(0, 16, 2): a(f"v_max3_f32 v{vM}, v{vM}, v{S+r}, v{S+r+1}")
        a(f"""
        s_add_u32 s{sC}, s{sC}, 1
        s_cmp_lt_u32 s{sC}, 64
        s_cbranch_scc1 L_{P}_slow1
        v_mov_b32 v{vT0}, v{vM}
        v_mov_b32 v{vT1}, v{vM}
        v_permlane32_swap_b32 v{vT0}, v{vT1}
        v_max_f32 v{vM}, v{vT0}, v{vT1}
        s_mov_b32 s{sKT}, s{sT1}
        s_mov_b32 s{sC}, 0
        """)
        for r in range(16): a(f"v_mov_b32 v{R+r}, 0")
        a(f"""
        L_{P}_slow2:
        buffer_load_dwordx4 {vr(vK,4)}, v{vKo}, {wsrd}, s{sKT} offen sc1
        s_mov_b64 exec, s[{sM}:{sM+1}]
        buffer_load_dwordx4 {vr(vV,4)}, v{vVo}, {wsrd}, s{sKT} offen sc1
        buffer_load_dwordx4 {vr(vV+4,4)}, v{vVo}, {wsrd}, s{sKT} offen offset:512 sc1
        s_mov_b64 exec, -1
        s_add_u32 s{sKT}, s{sKT}, 1024
        s_waitcnt vmcnt(0)
        {mfS(0,0,0)}
        """)
        for r in range(16): a(f"v_sub_f32 v{S+r}, v{S+r}, v{vM}")
        for r in range(16): a(f"v_exp_f32 v{S+r}, v{S+r}")
        for i in range(8): a(f"v_cvt_pk_bf16_f32 v{vP+i}, v{S+2*i}, v{S+2*i+1}")
        a(mfPV(0, 0, 0)); a(mfPV(0, 0, 1))
        a(f"""
        s_nop 7
        s_add_u32 s{sC}, s{sC}, 1
        s_cmp_lt_u32 s{sC}, 64
        s_cbranch_scc1 L_{P}_slow2
        s_nop 15
        s_branch L_{P}_fin
        """)

def gemm_role(a, pf):
    P = "gm"
    sWT, sOUT = 24, 28
    sC, sD, sN = 32, 33, 34
    sWM, sWN = 35, 36
    sTW, sFJ, sAO, sWO, sWO2, sLB = 37, 38, 39, 40, 41, 42
    vL16 = 1
    vT0, vT1, vT2, vT3 = 2, 3, 4, 5
    vWd = 7
    vWr, vAo, vG1 = [10, 11], [12, 13], [14, 15]
    vF, vA, vACC = 16, 48, 80
    D = 4
    a(f"""
    s_setprio 0
    s_load_dwordx2 s[{sWT}:{sWT+1}], s[0:1], 48
    s_load_dwordx2 s[44:45], s[0:1], 16
    s_load_dwordx2 s[{sOUT}:{sOUT+1}], s[0:1], 64
    s_mov_b32 s{sWT+2}, {1792*512*2}
    s_mov_b32 s{sWT+3}, 0x00020000
    s_mov_b32 s{sOUT+2}, {2048*512*2}
    s_mov_b32 s{sOUT+3}, 0x00020000
    s_and_b32 s{sWM}, s{sW}, 1
    s_lshr_b32 s{sWN}, s{sW}, 1
    v_lshlrev_b32 v{vL16}, 4, v0
    s_and_b32 s{sT0}, s2, 7
    s_lshl_b32 s{sTW}, s{sT0}, 2
    s_bfe_u32 s{sT0}, s2, 0x20003
    s_add_u32 s{sTW}, s{sTW}, s{sT0}
    s_lshr_b32 s{sFJ}, s2, 5
    s_mul_i32 s{sT0}, s{sTW}, 224
    s_mul_i32 s{sT1}, s{sW}, 28
    s_add_u32 s{sT0}, s{sT0}, s{sT1}
    s_lshl_b32 s{sAO}, s{sT0}, 10
    s_add_u32 s{sAO}, s{sAO}, {WS_A}
    s_lshl_b32 s{sWO}, s{sT1}, 14
    s_lshl_b32 s{sT2}, s{sFJ}, 7
    s_add_u32 s{sWO}, s{sWO}, s{sT2}
    s_mul_i32 s{sLB}, s{sW}, 12288
    s_add_u32 s{sLB}, s{sLB}, {GM_BASE}
    s_mul_i32 s{sT0}, s{sWM}, {112*1024}
    s_sub_u32 s{sT1}, {112*1024}, s{sT0}
    v_add_u32 v{vAo[0]}, s{sT0}, v{vL16}
    v_add_u32 v{vAo[1]}, s{sT1}, v{vL16}
    v_lshrrev_b32 v{vT0}, 2, v0
    v_lshrrev_b32 v{vT1}, 4, v0
    v_xor_b32 v{vT0}, v{vT0}, v{vT1}
    v_and_b32 v{vT0}, 1, v{vT0}
    v_lshlrev_b32 v{vT0}, 6, v{vT0}
    v_and_b32 v{vT1}, 3, v0
    v_lshl_add_u32 v{vT0}, v{vT1}, 4, v{vT0}
    v_lshrrev_b32 v{vT1}, 3, v0
    v_lshl_add_u32 v{vWd}, v{vT1}, 10, v{vT0}
    v_lshrrev_b32 v{vT0}, 5, v0
    v_bfe_u32 v{vT1}, v0, 2, 2
    v_lshl_add_u32 v{vT0}, v{vT0}, 3, v{vT1}
    v_lshlrev_b32 v{vT0}, 7, v{vT0}
    v_lshrrev_b32 v{vT1}, 1, v{vT1}
    v_xor_b32 v{vT1}, s{sWN}, v{vT1}
    v_lshl_add_u32 v{vT0}, v{vT1}, 6, v{vT0}
    v_bfe_u32 v{vT1}, v0, 4, 1
    v_lshl_add_u32 v{vT0}, v{vT1}, 5, v{vT0}
    v_and_b32 v{vT1}, 3, v0
    v_lshl_add_u32 v{vT0}, v{vT1}, 3, v{vT0}
    v_add_u32 v{vWr[0]}, s{sLB}, v{vT0}
    v_xor_b32 v{vWr[1]}, 64, v{vWr[0]}
    s_lshl_b32 s{sT0}, s{sTW}, 5
    s_lshl_b32 s{sT1}, s{sW}, 2
    s_add_u32 s{sT0}, s{sT0}, s{sT1}
    v_bfe_u32 v{vT0}, v0, 2, 1
    v_lshlrev_b32 v{vT0}, 4, v{vT0}
    v_and_b32 v{vT1}, 3, v0
    v_add3_u32 v{vT0}, v{vT0}, v{vT1}, s{sT0}
    v_lshlrev_b32 v{vT0}, 3, v{vT0}
    v_add_u32 v{vT0}, {WS_FA2}, v{vT0}
    s_and_b32 s{sT0}, s{sTW}, 1
    s_lshl_b32 s{sT0}, s{sT0}, 9
    s_lshr_b32 s{sT2}, s{sTW}, 1
    s_lshl_b32 s{sN}, s{sT2}, 2
    s_add_u32 s{sT0}, s{sT0}, s{sN}
    v_and_b32 v{vT2}, 7, v0
    v_lshlrev_b32 v{vT2}, 6, v{vT2}
    v_add_u32 v{vT2}, s{sT0}, v{vT2}
    v_lshlrev_b32 v{vT2}, 3, v{vT2}
    v_add_u32 v{vT2}, {WS_FQ}, v{vT2}
    v_cmp_le_u32 vcc, 8, v0
    v_cndmask_b32 v{vT0}, v{vT0}, v{vT2}, vcc
    v_add_u32 v{vT1}, s{sT1}, v{vT1}
    v_lshrrev_b32 v{vT2}, 1, v{vT1}
    v_and_b32 v{vT1}, 1, v{vT1}
    v_lshl_add_u32 v{vT2}, v{vT1}, 3, v{vT2}
    s_lshl_b32 s{sT2}, s{sT2}, 4
    v_add_u32 v{vT2}, s{sT2}, v{vT2}
    v_and_b32 v{vT1}, 1, v{vT2}
    v_lshlrev_b32 v{vT1}, 3, v{vT1}
    v_bfe_u32 v{vT3}, v{vT2}, 3, 3
    v_add_u32 v{vT1}, v{vT1}, v{vT3}
    v_lshlrev_b32 v{vT1}, 2, v{vT1}
    v_bfe_u32 v{vT3}, v{vT2}, 1, 2
    v_lshl_add_u32 v{vT1}, v{vT3}, 8, v{vT1}
    v_lshrrev_b32 v{vT3}, 6, v{vT2}
    v_lshl_add_u32 v{vT1}, v{vT3}, 6, v{vT1}
    v_lshlrev_b32 v{vT1}, 3, v{vT1}
    v_add_u32 v{vT1}, {WS_FQ}, v{vT1}
    v_cmp_le_u32 vcc, 16, v0
    v_cndmask_b32 v{vT0}, v{vT0}, v{vT1}, vcc
    s_waitcnt vmcnt(0) lgkmcnt(0)
    """)
    epoch_check(a, vT1, "g")
    a(f"""
    s_mov_b64 exec, 0xfffff
    L_{P}_pollF:
    buffer_load_dwordx2 {vr(vT2,2)}, v{vT0}, {wsrd}, 0 offen sc1
    s_waitcnt vmcnt(0)
    v_cmp_ne_u64 vcc, {vr(vT2,2)}, {vr(vEP,2)}
    s_cbranch_vccz L_{P}_okF
    s_sleep 8
    s_sub_u32 s{sSP}, s{sSP}, 1
    s_cbranch_scc0 L_{P}_pollF
    s_mov_b32 s{sSP}, 0
    L_{P}_okF:
    s_mov_b64 exec, -1
    s_lshl_b32 s{sT0}, s{sTW}, 8
    s_add_u32 s{sT0}, s{sT0}, {WS_G}
    v_and_b32 v{vT0}, 31, v0
    v_lshlrev_b32 v{vT0}, 2, v{vT0}
    s_lshl_b32 s{sT1}, s{sWM}, 7
    v_xor_b32 v{vT0}, s{sT1}, v{vT0}
    v_xor_b32 v{vT1}, 128, v{vT0}
    buffer_load_dword v{vG1[0]}, v{vT0}, {wsrd}, s{sT0} offen sc1
    buffer_load_dword v{vG1[1]}, v{vT1}, {wsrd}, s{sT0} offen sc1
    """)
    pf.stamp(2)
    def wloads(d):
        return [f"s_add_u32 m0, s{sLB}, {d*2048}",
                f"s_add_u32 s{sWO2}, s{sWO}, 8192",
                f"buffer_load_dwordx4 v{vWd}, s[{sWT}:{sWT+3}], s{sWO} offen lds",
                f"s_add_u32 m0, s{sLB}, {d*2048+1024}",
                f"s_add_u32 s{sWO}, s{sWO}, 16384",
                f"buffer_load_dwordx4 v{vWd}, s[{sWT}:{sWT+3}], s{sWO2} offen lds"]
    def aloads(d):
        return [f"buffer_load_dwordx4 {vr(vA+8*d,4)}, v{vAo[0]}, {wsrd}, s{sAO} offen sc1",
                f"buffer_load_dwordx4 {vr(vA+8*d+4,4)}, v{vAo[1]}, {wsrd}, s{sAO} offen sc1",
                f"s_add_u32 s{sAO}, s{sAO}, 1024"]
    def wreads(d, buf):
        return [f"ds_read_b64_tr_b16 {vr(vF+8*buf+4*fi+2*t2,2)}, v{vWr[fi]} offset:{d*2048+t2*512}"
                for fi in range(2) for t2 in range(2)]
    def mfmas(d, buf):
        return [f"v_mfma_f32_32x32x16_bf16 {vr(vACC+16*(fi*2+ti),16)}, {vr(vF+8*buf+4*fi,4)}, {vr(vA+8*d+4*ti,4)}, {vr(vACC+16*(fi*2+ti),16)}"
                for fi in range(2) for ti in range(2)]
    for d in range(D): a("\n".join(wloads(d) + aloads(d)))
    for r in range(4): a(f"v_mov_b32 v{vF+8+r}, 0")
    for t in range(4): a(f"v_mfma_f32_32x32x16_bf16 {vr(vACC+16*t,16)}, {vr(vF+8,4)}, {vr(vF+8,4)}, 0")
    a(f"s_mov_b32 s{sC}, 0")
    a(f"s_waitcnt vmcnt({4*(D-1)})")
    a("\n".join(wreads(0, 0)))
    a.raw(".p2align 6")
    a.label(f"L_{P}_f2loop")
    start = len(a.lines)
    for s in range(D):
        a(f"s_waitcnt vmcnt({4*(D-2)})")
        a("\n".join(wreads((s + 1) % D, (s + 1) & 1)))
        a("s_waitcnt lgkmcnt(4)")
        a("\n".join(mfmas(s, s & 1)))
        a("\n".join(wloads(s) + aloads(s)))
    a(f"""
    s_add_u32 s{sC}, s{sC}, 1
    s_cmp_lt_u32 s{sC}, 6
    s_cbranch_scc1 L_{P}_f2loop
    """)
    seam, inner = check_loop(a.lines[start:])
    assert seam == 0 and inner == 0, (seam, inner)
    a(f"""
    s_mov_b32 s{sWT}, s44
    s_mov_b32 s{sWT+1}, s45
    s_mov_b32 s{sWT+2}, {512*512*2}
    s_lshl_b32 s{sWO}, s{sW}, 16
    s_lshl_b32 s{sT2}, s{sFJ}, 7
    s_add_u32 s{sWO}, s{sWO}, s{sT2}
    """)
    for s in range(D):
        if s < D - 1:
            a(f"s_waitcnt vmcnt({4*(D-2-s) + 2*s})")
            a("\n".join(wreads(s + 1, (s + 1) & 1)))
            a("s_waitcnt lgkmcnt(4)")
        else:
            a("s_waitcnt lgkmcnt(0)")
        a("\n".join(mfmas(s, s & 1)))
        a("\n".join(wloads(s)))
    pf.stamp(3)
    a(f"""
    s_setprio 2
    v_sub_f32 v{vG1[0]}, 1.0, v{vG1[0]}
    v_sub_f32 v{vG1[1]}, 1.0, v{vG1[1]}
    s_lshl_b32 s{sAO}, s{sTW}, 16
    s_lshl_b32 s{sT0}, s{sW}, 12
    s_add_u32 s{sAO}, s{sAO}, s{sT0}
    s_add_u32 s{sAO}, s{sAO}, {WS_O}
    s_lshl_b32 s{sT0}, s{sWM}, 15
    v_add_u32 v{vAo[0]}, s{sT0}, v{vL16}
    v_xor_b32 v{vAo[1]}, 0x8000, v{vAo[0]}
    v_and_b32 v{vT0}, 3, v0
    v_bfe_u32 v{vT1}, v0, 2, 1
    v_lshlrev_b32 v{vT0}, 10, v{vT0}
    v_lshl_add_u32 v{vT3}, v{vT1}, 15, v{vT0}
    s_add_u32 s{sWO}, s{sWO}, {(16-4)*16384}
    s_mov_b32 s{sC}, 0
    """)
    for fi in range(2):
        for ti in range(2):
            acc = vACC + 16 * (fi * 2 + ti)
            for r in range(0, 16, 2): a(f"v_pk_mul_f32 {vr(acc+r,2)}, {vr(acc+r,2)}, {vr(vG1[0],2)} op_sel:[0,{ti}] op_sel_hi:[1,{ti}]")
    a(f"""
    L_{P}_ph:
    s_mov_b64 exec, 0xff
    L_{P}_pollO:
    buffer_load_dword v{vT1}, v{vT3}, {wsrd}, s{sAO} offen offset:1020 sc1
    s_waitcnt vmcnt(0)
    v_cmp_eq_u32 vcc, -1, v{vT1}
    s_cbranch_vccz L_{P}_loadO
    s_sleep {PSLEEP}
    s_sub_u32 s{sSP}, s{sSP}, 1
    s_cbranch_scc0 L_{P}_pollO
    s_mov_b32 s{sSP}, 0
    L_{P}_loadO:
    s_mov_b64 exec, -1
    """)
    for d in range(D):
        a(f"buffer_load_dwordx4 {vr(vA+8*d,4)}, v{vAo[0]}, {wsrd}, s{sAO} offen offset:{d*1024} sc1")
        a(f"buffer_load_dwordx4 {vr(vA+8*d+4,4)}, v{vAo[1]}, {wsrd}, s{sAO} offen offset:{d*1024} sc1")
    a("\n".join(wreads(0, 0)))
    a("s_waitcnt vmcnt(0)")
    a(f"v_max3_u32 v{vT1}, v{vA}, v{vA+1}, v{vA+2}")
    for r in range(3, 31, 2): a(f"v_max3_u32 v{vT1}, v{vT1}, v{vA+r}, v{vA+r+1}")
    a(f"""
    v_max_u32 v{vT1}, v{vT1}, v{vA+31}
    v_cmp_eq_u32 vcc, -1, v{vT1}
    s_cbranch_vccz L_{P}_okO
    s_sub_u32 s{sSP}, s{sSP}, 1
    s_cbranch_scc0 L_{P}_loadO
    s_mov_b32 s{sSP}, 0
    L_{P}_okO:
    """)
    for s in range(D):
        if s < D - 1:
            a("\n".join(wreads(s + 1, (s + 1) & 1)))
            a("s_waitcnt lgkmcnt(4)")
        else:
            a("s_waitcnt lgkmcnt(0)")
        a("\n".join(mfmas(s, s & 1)))
    a(f"""
    s_cmp_eq_u32 s{sC}, 1
    s_cbranch_scc1 L_{P}_red
    """)
    for s in range(D): a("\n".join(wloads(s)))
    a(f"""
    s_add_u32 s{sAO}, s{sAO}, 16384
    s_mov_b32 s{sC}, 1
    s_branch L_{P}_ph
    L_{P}_red:
    s_nop 7
    v_add_u32 v{vT0}, s{sLB}, v{vL16}
    s_nop 3
    """)
    pf.stamp(4)
    for j in range(1, 4):
        for q in range(4):
            a(f"ds_write_b128 v{vT0}, {vr(vACC+16*j+4*q,4)} offset:{(j-1)*4096+q*1024}")
    a("s_waitcnt lgkmcnt(0)")
    group_sync(a, 2, vT1, vT2, "gm")
    for j in range(1, 4):
        a(f"""
        s_xor_b32 s{sT0}, s{sW}, {j}
        s_mul_i32 s{sT0}, s{sT0}, 12288
        s_add_u32 s{sT0}, s{sT0}, {GM_BASE}
        v_add_u32 v{vT1}, s{sT0}, v{vL16}
        """)
        for q in range(4):
            a(f"ds_read_b128 {vr(vACC+16*j+4*q,4)}, v{vT1} offset:{(j-1)*4096+q*1024}")
    a(f"""
    s_lshl_b32 s{sT0}, s{sTW}, 1
    s_add_u32 s{sT0}, s{sT0}, s{sWM}
    s_lshl_b32 s{sT0}, s{sT0}, 15
    s_lshl_b32 s{sT1}, s{sFJ}, 7
    s_add_u32 s{sT0}, s{sT0}, s{sT1}
    s_lshl_b32 s{sT1}, s{sWN}, 6
    s_add_u32 s{sT0}, s{sT0}, s{sT1}
    v_and_b32 v{vT0}, 31, v0
    v_lshlrev_b32 v{vT0}, 10, v{vT0}
    v_lshrrev_b32 v{vT2}, 5, v0
    v_lshl_add_u32 v{vT0}, v{vT2}, 4, v{vT0}
    s_waitcnt lgkmcnt(8)
    """)
    for r in range(0, 16, 2): a(f"v_pk_add_f32 {vr(vACC+r,2)}, {vr(vACC+r,2)}, {vr(vACC+16+r,2)}")
    a("s_waitcnt lgkmcnt(0)")
    for r in range(0, 16, 2): a(f"v_pk_add_f32 {vr(vACC+32+r,2)}, {vr(vACC+32+r,2)}, {vr(vACC+48+r,2)}")
    for r in range(0, 16, 2): a(f"v_pk_add_f32 {vr(vACC+r,2)}, {vr(vACC+r,2)}, {vr(vACC+32+r,2)}")
    p = vF
    for i in range(8): a(f"v_cvt_pk_bf16_f32 v{p+i}, v{vACC+2*i}, v{vACC+2*i+1}")
    a(f"""
    v_permlane32_swap_b32 v{p}, v{p+2}
    v_permlane32_swap_b32 v{p+1}, v{p+3}
    v_permlane32_swap_b32 v{p+4}, v{p+6}
    v_permlane32_swap_b32 v{p+5}, v{p+7}
    buffer_store_dwordx4 {vr(p,4)}, v{vT0}, s[{sOUT}:{sOUT+3}], s{sT0} offen
    buffer_store_dwordx4 {vr(p+4,4)}, v{vT0}, s[{sOUT}:{sOUT+3}], s{sT0} offen offset:32
    """)
    if asmlib.PROF: a("s_waitcnt vmcnt(0)")
    pf.stamp(5)
    pf.dump(6, 2, sWAVE, 16, vT0, vT1)
    a("s_endpgm")

def gen():
    a = Asm()
    a.raw(kernel_header(NAME))
    pf = Prof(a, 0)
    pf.stamp(0)
    at = Attn()
    sX, sWQ, sW1, sB1, sGW = 44, 48, 52, 56, 56
    sSOX, sSOW, sSL, sN, sD, sC = 60, 61, 62, 63, 64, 65
    sMX, sMQ, sM1 = 66, 67, 68
    sK2 = 70
    sKX, sBX, sBQ, sB1o, sX2, sW2o = 24, 25, 26, 27, 28, 29
    vG = 3
    vT0, vT1, vT2, vT3 = 6, 7, 8, 9
    a(f"""
    s_cmp_ge_u32 s2, 256
    s_cbranch_scc1 L_end
    s_getpc_b64 s[40:41]
    L_pc0:
    v_lshlrev_b32 v1, 6, v0
    v_min_u32 v1, L_code_end-L_pc0-4, v1
    global_load_dword v96, v1, s[40:41]
    s_load_dwordx4 s[4:7], s[0:1], 0
    s_load_dwordx4 s[32:35], s[0:1], 32
    s_load_dwordx2 s[36:37], s[0:1], 56
    s_load_dwordx2 s[{sDB}:{sDB+1}], s[0:1], 72
    s_load_dwordx2 s[{sWS}:{sWS+1}], s[0:1], 80
    v_lshrrev_b32 v1, 6, v0
    v_and_b32 v0, 63, v0
    v_readfirstlane_b32 s{sWAVE}, v1
    s_and_b32 s{sT0}, s2, 7
    s_lshr_b32 s{sT1}, s2, 3
    s_and_b32 s{sI}, s{sT0}, 1
    s_lshl_b32 s{sI}, s{sI}, 3
    s_and_b32 s{sT2}, s{sT1}, 7
    s_add_u32 s{sI}, s{sI}, s{sT2}
    s_lshr_b32 s{sJ}, s{sT0}, 1
    s_lshl_b32 s{sJ}, s{sJ}, 2
    s_lshr_b32 s{sT2}, s{sT1}, 3
    s_add_u32 s{sJ}, s{sJ}, s{sT2}
    s_and_b32 s{sW}, s{sWAVE}, 3
    s_mov_b32 s{sWS+2}, {WS_SIZE}
    s_mov_b32 s{sWS+3}, 0x00020000
    s_mov_b32 s{sDB+2}, 256
    s_mov_b32 s{sDB+3}, 0x00020000
    s_mov_b32 s{sSP}, {SPIN_MAX}
    v_lshrrev_b32 v{vG}, 4, v0
    s_cmp_lt_u32 s{sWAVE}, 8
    s_cbranch_scc1 L_comp
    """)
    vXd, vXd2, v1d, v1d2 = 10, 11, 12, 13
    vQd = [14, 15, 16]
    vGX, vGW, vOnes = 20, 28, 36
    a(f"""
    s_setprio 2
    s_mov_b32 s{sX+2}, {2048*512*2}
    s_mov_b32 s{sX+3}, 0x00020000
    s_mov_b32 s{sWQ+2}, {512*1536*2}
    s_mov_b32 s{sWQ+3}, 0x00020000
    v_and_b32 v{vT0}, 7, v0
    v_xor_b32 v{vT0}, v{vT0}, v{vG}
    v_lshlrev_b32 v{vT0}, 4, v{vT0}
    v_lshrrev_b32 v{vT1}, 3, v0
    v_lshl_add_u32 v{vXd}, v{vT1}, 10, v{vT0}
    v_xor_b32 v{vXd2}, 64, v{vXd}
    v_add_u32 v{vXd2}, 8192, v{vXd2}
    s_lshl_b32 s{sBX}, s{sI}, 17
    s_lshl_b32 s{sT0}, s{sW}, 15
    s_add_u32 s{sBX}, s{sBX}, s{sT0}
    s_lshl_b32 s{sMX}, s{sW}, 12
    s_mul_i32 s{sMQ}, s{sW}, 3072
    s_add_u32 s{sMQ}, s{sMQ}, {W_BASE}
    s_mul_i32 s{sBQ}, s{sW}, {16*3072}
    s_lshl_b32 s{sT0}, s{sJ}, 7
    s_add_u32 s{sBQ}, s{sBQ}, s{sT0}
    s_lshl_b32 s{sT2}, s{sJ}, 6
    s_sub_u32 s{sT2}, {2048-128}, s{sT2}
    """)
    for q in range(3):
        a(f"""
        v_lshrrev_b32 v{vT1}, 1, v0
        v_add_u32 v{vT1}, {32*q}, v{vT1}
        v_mul_u32_u24 v{vT2}, 0xaaab, v{vT1}
        v_lshrrev_b32 v{vT2}, 18, v{vT2}
        v_mul_u32_u24 v{vT3}, 6, v{vT2}
        v_sub_u32 v{vT1}, v{vT1}, v{vT3}
        v_bfe_u32 v{vT3}, v{vT2}, 3, 1
        v_xor_b32 v{vT1}, v{vT1}, v{vT3}
        v_mul_u32_u24 v{vT2}, 3072, v{vT2}
        v_lshl_add_u32 v{vT2}, v{vT1}, 5, v{vT2}
        v_lshrrev_b32 v{vT3}, 2, v{vT1}
        v_mul_u32_u24 v{vT3}, s{sT2}, v{vT3}
        v_add_u32 v{vT2}, v{vT2}, v{vT3}
        v_and_b32 v{vT3}, 1, v0
        v_lshl_add_u32 v{vQd[q]}, v{vT3}, 4, v{vT2}
        """)
    a(f"""
    s_lshr_b32 s{sKX}, s2, 3
    s_and_b32 s{sKX}, s{sKX}, 7
    s_waitcnt lgkmcnt(0)
    s_mov_b32 s{sX}, s4
    s_mov_b32 s{sX+1}, s5
    s_mov_b32 s{sWQ}, s6
    s_mov_b32 s{sWQ+1}, s7
    """)
    ops = []
    def vm(text, tag): a(text); ops.append(tag)
    def unit(u):
        p2 = u >= 8
        so = (u % NS) * XS
        xr = [f"buffer_load_dwordx4 v{vXd}, s[{sX}:{sX+3}], s{sSOX} offen lds",
              f"buffer_load_dwordx4 v{vXd2}, s[{sX}:{sX+3}], s{sSOX} offen lds",
              f"buffer_load_dwordx4 v{vXd}, s[{sX}:{sX+3}], s{sX2} offen lds",
              f"buffer_load_dwordx4 v{vXd2}, s[{sX}:{sX+3}], s{sX2} offen lds"]
        a(f"""
        s_lshl_b32 s{sT0}, s{sKX}, 7
        s_add_u32 s{sSOX}, s{sBX}, s{sT0}
        s_add_u32 m0, s{sMX}, {so}
        s_add_u32 s{sX2}, s{sSOX}, 16384
        """)
        vm(xr[0], u)
        a(f"""
        s_mul_i32 s{sT0}, s{sKX}, {64*3584 if p2 else 64*3072}
        s_add_u32 s{sSOW}, s{sB1o if p2 else sBQ}, s{sT0}
        """)
        for q in range(4 if p2 else 3):
            if p2:
                a(f"s_add_u32 m0, s{sM1}, {so + q*1024}\ns_add_u32 s{sW2o}, s{sSOW}, {q*4*3584}")
                vm(f"buffer_load_dwordx4 v{v1d2 if q >= 2 else v1d}, s[{sW1}:{sW1+3}], s{sW2o} offen lds", u)
            else:
                a(f"s_add_u32 m0, s{sMQ}, {so + q*1024}\ns_nop 0")
                vm(f"buffer_load_dwordx4 v{vQd[q]}, s[{sWQ}:{sWQ+3}], s{sSOW} offen lds", u)
            if q < 3:
                a(f"s_add_u32 m0, s{sMX}, {so + (q+1)*1024}\ns_nop 0")
                vm(xr[q + 1], u)
        a(f"""
        s_add_u32 s{sKX}, s{sKX}, 1
        s_and_b32 s{sKX}, s{sKX}, 7
        """)
    def wait_for(tag):
        last = max(i for i, t in enumerate(ops) if t == tag)
        a(f"s_waitcnt vmcnt({len(ops) - 1 - last})")
    unit(0); unit(1)
    pf.stamp(1)
    a(f"""
    s_or_b32 s{sT0}, s2, s{sW}
    s_cmp_lg_u32 s{sT0}, 0
    s_cbranch_scc1 L_noep
    s_memrealtime s[42:43]
    v_mov_b32 v{vT0}, 0
    s_waitcnt lgkmcnt(0)
    s_or_b32 s42, s42, 1
    v_mov_b32 v{vOnes}, s42
    v_mov_b32 v{vOnes+1}, s43
    s_mov_b64 exec, 1
    buffer_store_dwordx2 {vr(vOnes,2)}, v{vT0}, s[{sDB}:{sDB+3}], 0 offen sc1
    s_mov_b64 exec, -1
    s_waitcnt vmcnt(0)
    L_noep:
    ; W1 addressing
    s_mov_b32 s{sW1}, s32
    s_mov_b32 s{sW1+1}, s33
    s_mov_b32 s{sW1+2}, {512*1792*2}
    s_mov_b32 s{sW1+3}, 0x00020000
    s_add_u32 s{sM1}, s{sMX}, {W_BASE}
    s_mul_i32 s{sB1o}, s{sW}, {16*3584}
    s_mul_i32 s{sT0}, s{sJ}, 224
    s_add_u32 s{sB1o}, s{sB1o}, s{sT0}
    v_lshrrev_b32 v{vT1}, 1, v0
    v_sub_u32 v{vT1}, v{vT1}, v{vG}
    v_mul_u32_u24 v{vT2}, 3584, v{vG}
    v_and_b32 v{vT3}, 1, v0
    v_lshl_add_u32 v{vT2}, v{vT3}, 4, v{vT2}
    v_and_b32 v{vT3}, 7, v{vT1}
    v_min_u32 v{vT0}, 6, v{vT3}
    v_lshl_add_u32 v{v1d}, v{vT0}, 5, v{vT2}
    v_xor_b32 v{vT3}, 4, v{vT3}
    v_min_u32 v{vT0}, 6, v{vT3}
    v_lshl_add_u32 v{v1d2}, v{vT0}, 5, v{vT2}
    """)
    nxt = 2
    for b in range(16):
        wait_for(b)
        a("s_barrier")
        tgt = min(16, b + NS)
        while nxt < tgt: unit(nxt); nxt += 1
        if b == 1:
            a(f"""
            s_mov_b32 s{sGW}, s36
            s_mov_b32 s{sGW+1}, s37
            s_mov_b32 s{sGW+2}, 1024
            s_mov_b32 s{sGW+3}, 0x00020000
            s_lshl_b32 s{sT0}, s{sI}, 7
            s_lshl_b32 s{sT1}, s{sJ}, 3
            s_add_u32 s{sT0}, s{sT0}, s{sT1}
            s_lshl_b32 s{sT1}, s{sW}, 1
            s_add_u32 s{sN}, s{sT0}, s{sT1}
            s_lshl_b32 s{sT1}, s{sN}, 10
            v_and_b32 v{vT1}, 31, v0
            v_lshlrev_b32 v{vT1}, 5, v{vT1}
            v_lshrrev_b32 v{vT2}, 5, v0
            v_lshl_add_u32 v{vT2}, v{vT2}, 10, v{vT1}
            """)
            vm(f"buffer_load_dwordx4 {vr(vGX,4)}, v{vT2}, s[{sX}:{sX+3}], s{sT1} offen", 'g')
            vm(f"buffer_load_dwordx4 {vr(vGX+4,4)}, v{vT2}, s[{sX}:{sX+3}], s{sT1} offen offset:16", 'g')
            vm(f"buffer_load_dwordx4 {vr(vGW,4)}, v{vT1}, s[{sGW}:{sGW+3}], 0 offen", 'g')
            vm(f"buffer_load_dwordx4 {vr(vGW+4,4)}, v{vT1}, s[{sGW}:{sGW+3}], 0 offen offset:16", 'g')
        if b == 2:
            a(f"""
            v_mov_b32 v{vOnes}, -1
            v_mov_b32 v{vOnes+1}, -1
            v_mov_b32 v{vOnes+2}, -1
            v_mov_b32 v{vOnes+3}, -1
            v_lshlrev_b32 v{vT0}, 4, v0
            s_bfe_u32 s{sT0}, s2, 0x40004
            s_lshl_b32 s{sT0}, s{sT0}, 2
            s_add_u32 s{sT0}, s{sT0}, s{sW}
            s_lshl_b32 s{sT0}, s{sT0}, 5
            s_and_b32 s{sT1}, s2, 7
            s_lshl_b32 s{sT1}, s{sT1}, 1
            s_add_u32 s{sT0}, s{sT0}, s{sT1}
            s_bfe_u32 s{sT1}, s2, 0x10003
            s_add_u32 s{sT0}, s{sT0}, s{sT1}
            s_lshl_b32 s{sT0}, s{sT0}, 10
            s_add_u32 s{sT0}, s{sT0}, {WS_O}
            s_add_u32 s{sT1}, s{sT0}, 16384
            """)
            vm(f"buffer_store_dwordx4 {vr(vOnes,4)}, v{vT0}, {wsrd}, s{sT0} offen sc1", 's')
            vm(f"buffer_store_dwordx4 {vr(vOnes,4)}, v{vT0}, {wsrd}, s{sT1} offen sc1", 's')
        if b == 5:
            wait_for('g')
            acc = vT1
            a(f"v_mov_b32 v{acc}, 0")
            for r in range(8): a(f"v_dot2_f32_bf16 v{acc}, v{vGX+r}, v{vGW+r}, v{acc}")
            a("s_nop 3")
            for mod in ["quad_perm:[1,0,3,2]", "quad_perm:[2,3,0,1]", "row_half_mirror", "row_mirror"]:
                a(f"v_add_f32_dpp v{acc}, v{acc}, v{acc} {mod} row_mask:0xf bank_mask:0xf")
            a(f"""
            v_mov_b32 v{vT2}, v{acc}
            v_mov_b32 v{vT3}, v{acc}
            v_permlane16_swap_b32 v{vT2}, v{vT3}
            v_add_f32 v{acc}, v{vT2}, v{vT3}
            v_mul_f32 v{acc}, {hex(f32bits(-LOG2E))}, v{acc}
            v_exp_f32 v{acc}, v{acc}
            v_add_f32 v{acc}, 1.0, v{acc}
            v_rcp_f32 v{acc}, v{acc}
            s_lshl_b32 s{sT0}, s{sN}, 2
            s_add_u32 s{sT0}, s{sT0}, {WS_G}
            v_lshrrev_b32 v{vT2}, 5, v0
            v_lshlrev_b32 v{vT2}, 2, v{vT2}
            s_mov_b32 exec_lo, 1
            s_mov_b32 exec_hi, 1
            """)
            vm(f"buffer_store_dword v{acc}, v{vT2}, {wsrd}, s{sT0} offen sc1", 'gs')
            a("s_mov_b64 exec, -1")
            assert nxt == 9
        if b == 13: epoch_load(a, vT0); ops.append('e')
        if b == 14:
            a(f"""
            v_lshlrev_b32 v{vT0}, 2, v0
            v_add_u32 v{vT0}, {CNT_BASE}, v{vT0}
            v_mov_b32 v{vT1}, 0
            ds_write_b32 v{vT0}, v{vT1}
            s_waitcnt lgkmcnt(0)
            """)
    a("s_barrier")
    gemm_role(a, pf)
    a.label("L_comp")
    a.window = []
    vN16, vR, vC = 2, 4, 5
    vXr = [10, 11]
    vWr = list(range(12, 19))
    vF = 20
    FSZ = 36
    vACC = 96
    a(f"""
    v_and_b32 v{vN16}, 15, v0
    v_bfe_u32 v{vR}, v0, 2, 2
    v_and_b32 v{vC}, 3, v0
    v_lshrrev_b32 v{vT0}, 1, v{vN16}
    v_xor_b32 v{vT0}, v{vG}, v{vT0}
    v_lshlrev_b32 v{vT0}, 4, v{vT0}
    v_lshl_add_u32 v{vT0}, v{vN16}, 7, v{vT0}
    s_lshl_b32 s{sT0}, s{sW}, 12
    v_add_u32 v{vXr[0]}, s{sT0}, v{vT0}
    v_xor_b32 v{vXr[1]}, 64, v{vXr[0]}
    s_mov_b32 s{sSL}, 0
    s_mov_b32 s{sC}, 0
    s_mov_b32 s{sMX}, {-(NS-1)*XS}
    v_lshl_add_u32 v{vT1}, v{vG}, 3, v{vR}
    v_and_b32 v{vT2}, 1, v{vG}
    s_waitcnt lgkmcnt(0)
    s_cmp_ge_u32 s{sWAVE}, 4
    s_cbranch_scc1 L_ffn
    """)
    def frag(buf):
        b = vF + buf * FSZ
        return [b, b + 4], [b + 8 + 4 * i for i in range(7)]
    def role(name, nt, isq):
        nwr = 2 if isq else 7
        def reads(buf, s2):
            X, W = frag(buf); L = []
            for t in range(2): L.append(f"ds_read_b128 {vr(X[t],4)}, v{vXr[s2]} offset:{t*2048}")
            for ct in range(nt):
                for t2 in range(2):
                    if isq: va, off = vWr[ct & 1], (32 * s2 + 4 * t2) * 192 + ct * 32
                    else:   va, off = vWr[ct], (32 * s2 + 4 * t2) * 256
                    L.append(f"ds_read_b64_tr_b16 {vr(W[ct]+2*t2,2)}, v{va} offset:{off}")
            return L
        def mfmas(buf):
            X, W = frag(buf); L = []
            for ct in range(nt):
                for t in range(2):
                    acc = vACC + (ct * 2 + t) * 4
                    if isq and ct >= 4: L.append(f"v_mfma_f32_16x16x32_bf16 {vr(acc,4)}, {vr(X[t],4)}, {vr(W[ct],4)}, {vr(acc,4)}")
                    else:               L.append(f"v_mfma_f32_16x16x32_bf16 {vr(acc,4)}, {vr(W[ct],4)}, {vr(X[t],4)}, {vr(acc,4)}")
            return L
        if isq:
            a(f"""
            v_mul_u32_u24 v{vT1}, 192, v{vT1}
            v_lshl_add_u32 v{vT1}, v{vC}, 3, v{vT1}
            v_add_u32 v{vT1}, {W_BASE}, v{vT1}
            v_lshlrev_b32 v{vT2}, 5, v{vT2}
            v_add_u32 v{vWr[0]}, v{vT1}, v{vT2}
            v_sub_u32 v{vWr[1]}, v{vT1}, v{vT2}
            s_waitcnt vmcnt(0)
            """)
            for r in range(48): a(f"v_mov_b32 v{vACC+r}, 0")
        else:
            vB = vF + FSZ
            a(f"""
            s_mov_b32 s{sB1}, s34
            s_mov_b32 s{sB1+1}, s35
            s_mov_b32 s{sB1+2}, {1792*2}
            s_mov_b32 s{sB1+3}, 0x00020000
            s_mul_i32 s{sT1}, s{sJ}, 224
            v_lshlrev_b32 v{vT3}, 3, v{vG}
            s_barrier
            """)
            for ct in range(7):
                a(f"buffer_load_dwordx2 {vr(vB+2*ct,2)}, v{vT3}, s[{sB1}:{sB1+3}], s{sT1} offen offset:{ct*32}")
            a(f"""
            v_lshlrev_b32 v{vT1}, 8, v{vT1}
            v_lshl_add_u32 v{vT1}, v{vC}, 3, v{vT1}
            v_add_u32 v{vT1}, {W_BASE}, v{vT1}
            v_lshl_add_u32 v{vT2}, v{vT2}, 2, v{vR}
            """)
            for ct in range(7):
                a(f"""
                v_add_u32 v{vT3}, {ct}, v{vT2}
                v_and_b32 v{vT3}, 7, v{vT3}
                v_lshl_add_u32 v{vWr[ct]}, v{vT3}, 5, v{vT1}
                """)
            for u in range(1, 5): a("s_barrier")
            a("s_waitcnt vmcnt(0)")
            for ct in range(7):
                for t in range(2):
                    acc = vACC + (ct * 2 + t) * 4
                    a(f"""
                    v_lshlrev_b32 v{acc}, 16, v{vB+2*ct}
                    v_and_b32 v{acc+1}, 0xffff0000, v{vB+2*ct}
                    v_lshlrev_b32 v{acc+2}, 16, v{vB+2*ct+1}
                    v_and_b32 v{acc+3}, 0xffff0000, v{vB+2*ct+1}
                    """)
            a("s_barrier")
            at.setup(a, 1)
            for u in range(6, 8): a("s_barrier")
            a("s_setprio 1")
        a("s_barrier")
        pf.stamp(1)
        a("\n".join(reads(0, 0)))
        a.raw(".p2align 6")
        a.label(f"L_{name}_loop")
        start = len(a.lines)
        def chunks(R, n): return ["\n".join(R[i:i+n]) for i in range(0, len(R), n)]
        def emit(M, G):
            assert len(G) <= len(M), (len(G), len(M))
            for i, m in enumerate(M):
                a(m)
                if i < len(G): a(G[i])
        a("s_waitcnt lgkmcnt(0)")
        advs = [f"""s_add_u32 s{sSL}, s{sSL}, 1
                s_cmp_eq_u32 s{sSL}, {NS}""",
                f"""s_cselect_b32 s{sD}, s{sMX}, {XS}
                s_cselect_b32 s{sSL}, 0, s{sSL}"""] + chunks([f"v_add_u32 v{r}, s{sD}, v{r}" for r in vXr + vWr[:nwr]], 3)
        emit(mfmas(0), chunks(reads(1, 1), 2) + advs)
        a(f"""
        s_add_u32 s{sC}, s{sC}, 1
        s_cmp_eq_u32 s{sC}, 8
        s_waitcnt lgkmcnt(0)
        s_cbranch_scc1 L_{name}_last
        """)
        emit(mfmas(1), ["s_barrier"] + chunks(reads(0, 0), 2))
        a(f"s_branch L_{name}_loop")
        seam, inner = check_loop(a.lines[start:])
        assert seam == 0 and inner == 0, (seam, inner)
        a.label(f"L_{name}_last")
        a.window = []
        M = mfmas(1)
        a(M[0])
        epoch_load(a, vT1)
        if not isq: at.poll_issue(a)
        a("s_barrier")
        for m in M[1:]: a(m)
        vP = vF + 4
        vL = vT3 if isq else at.vKo
        a(f"""
        s_lshl_b32 s{sD}, s{sI}, 2
        s_add_u32 s{sD}, s{sD}, s{sW}
        """)
        if isq: a(f"v_lshlrev_b32 v{vL}, 4, v0")
        if isq:
            a(f"""
            s_lshl_b32 s{sT0}, s{sD}, 10
            s_lshl_b32 s{sT1}, s{sJ}, 18
            s_add_u32 s{sT1}, s{sT1}, s{sT0}
            s_lshl_b32 s{sN}, s{sJ}, 17
            s_add_u32 s{sN}, s{sN}, s{sT0}
            s_add_u32 s{sN}, s{sN}, {WS_V}
            s_mov_b32 s{sT2}, {hex(f32bits(QSCALE))}
            s_cmp_lt_u32 s{sJ}, 8
            s_cselect_b32 s{sK2}, s{sT2}, 1.0
            s_mov_b32 s{sK2+1}, s{sK2}
            """)
            for ct in range(6):
                p = vP + 4 * ct
                a0 = vACC + ct * 8
                if ct < 4:
                    for r in range(0, 8, 2): a(f"v_pk_mul_f32 {vr(a0+r,2)}, {vr(a0+r,2)}, s[{sK2}:{sK2+1}]")
                sw = "v_permlane32_swap_b32" if ct >= 4 else "v_permlane16_swap_b32"
                for r in range(4): a(f"v_cvt_pk_bf16_f32 v{p+r}, v{a0+2*r}, v{a0+2*r+1}")
                a(f"""
                s_add_u32 s{sT0}, s{sT1 if ct < 4 else sN}, {(ct & 3)*65536}
                {sw} v{p}, v{p+2}
                {sw} v{p+1}, v{p+3}
                buffer_store_dwordx4 {vr(p,4)}, v{vL}, {wsrd}, s{sT0} offen sc1
                """)
            at.setup(a, 0)
            a(f"""
            s_lshl_b32 s{sN}, s{sJ}, 6
            s_add_u32 s{sN}, s{sN}, s{sD}
            s_lshl_b32 s{sN}, s{sN}, 3
            s_add_u32 s{sN}, s{sN}, {WS_FQ}
            """)
            FB = int(os.environ.get('FLAGB', '9'))
            for b in range(9, FB + 1): a("s_barrier")
            a("s_waitcnt vmcnt(0)")
            epoch_check(a, at.vT0, "a")
            a(f"""
            v_mov_b32 v{at.vT0}, 0
            s_mov_b64 exec, 1
            buffer_store_dwordx2 {vr(vEP,2)}, v{at.vT0}, {wsrd}, s{sN} offen sc1
            s_mov_b64 exec, -1
            """)
            for b in range(FB + 1, 16): a("s_barrier")
            at.poll_issue(a)
            a(f"""
            s_barrier
            s_setprio 3
            L_a_try:
            s_waitcnt vmcnt(0)
            """)
            at.poll_test(a)
            a(f"s_cbranch_scc1 L_a_go")
            a(f"s_sleep {int(os.environ.get('QSLEEP', '4'))}")
            at.poll_issue(a)
            a(f"""
            s_sub_u32 s{sSP}, s{sSP}, 1
            s_cbranch_scc0 L_a_try
            s_mov_b32 s{sSP}, 0
            s_waitcnt vmcnt(0)
            L_a_go:
            """)
            at.first_loads(a, "a")
            a("s_branch L_at_body")
        else:
            a(f"""
            s_mul_i32 s{sN}, s{sD}, 112
            s_mul_i32 s{sT1}, s{sJ}, 7
            s_add_u32 s{sN}, s{sN}, s{sT1}
            s_lshl_b32 s{sN}, s{sN}, 10
            s_add_u32 s{sN}, s{sN}, {WS_A}
            s_add_u32 s{sD}, s{sN}, 4096
            s_mov_b32 s{sK2}, {hex(f32bits(LOG2E))}
            s_mov_b32 s{sK2+1}, {hex(f32bits(LOG2E))}
            s_setprio 2
            """)
            def astore(ct):
                return f"buffer_store_dwordx4 {vr(vP+4*ct,4)}, v{vL}, {wsrd}, s{sN if ct < 4 else sD} offen offset:{(ct&3)*1024} sc1"
            NPRE = 2
            for ct in range(7):
                p = vP + 4 * ct
                h = vACC + ct * 8
                e = vF + FSZ; d = e + 8
                for r in range(0, 8, 2): a(f"v_pk_mul_f32 {vr(e+r,2)}, {vr(h+r,2)}, s[{sK2}:{sK2+1}]")
                for r in range(8): a(f"v_exp_f32 v{e+r}, v{e+r}")
                for r in range(0, 8, 2): a(f"v_pk_add_f32 {vr(e+r,2)}, {vr(e+r,2)}, 1.0 op_sel_hi:[1,0]")
                for r in range(0, 8, 2): a(f"v_pk_fma_f32 {vr(d+r,2)}, {vr(e+r,2)}, {vr(e+r,2)}, 1.0 op_sel_hi:[1,1,0]")
                for r in range(8): a(f"v_rcp_f32 v{d+r}, v{d+r}")
                for r in range(0, 8, 2): a(f"v_pk_mul_f32 {vr(d+r,2)}, {vr(d+r,2)}, {vr(h+r,2)}")
                for r in range(0, 8, 2): a(f"v_pk_fma_f32 {vr(d+r,2)}, {vr(d+r,2)}, -2.0, {vr(h+r,2)} op_sel_hi:[1,0,1]")
                for r in range(4): a(f"v_cvt_pk_bf16_f32 v{p+r}, v{d+2*r}, v{d+2*r+1}")
                a(f"""
                v_permlane16_swap_b32 v{p}, v{p+2}
                v_permlane16_swap_b32 v{p+1}, v{p+3}
                """)
                if ct >= NPRE: a(astore(ct))
                if ct == NPRE - 1:
                    a("s_waitcnt vmcnt(0)")
                    epoch_check(a, at.vT0, "b")
                    a.label("L_b_try")
                    at.poll_test(a)
                    a("s_cbranch_scc1 L_b_go")
                    a("s_sleep 8")
                    at.poll_issue(a)
                    a(f"""
                    s_sub_u32 s{sSP}, s{sSP}, 1
                    s_waitcnt vmcnt(0)
                    s_cbranch_scc0 L_b_try
                    s_mov_b32 s{sSP}, 0
                    L_b_go:
                    """)
                    at.first_loads(a, "b")
                    for c2 in range(NPRE): a(astore(c2))
            a("s_nop 2")
    role("qkv", 6, True)
    a.label("L_ffn")
    a.window = []
    role("ffn", 7, False)
    at.body(a, pf)
    a.label("L_end")
    a("s_endpgm")
    NV = 160
    return a.text(), kernel_desc(NAME, NV, 80), f"; @launch grid=(256,1,1) block=(768,1,1) lds={LDS_BYTES}"
```

```python
import sys
import asmlib
if '--prof' in sys.argv:
    asmlib.PROF = True; sys.argv.remove('--prof')
aslist = '--list' in sys.argv
if aslist: sys.argv.remove('--list')
import mono
from build import build
out = sys.argv[1] if len(sys.argv) > 1 else "v4.s"
t, d, l = mono.gen()
if aslist: l = l.replace("; @launch grid", f"; @launch kernel={mono.NAME} grid")
build([(t, d, l)], out)
```

```python
from asmlib import *
import asmlib
from layout import *
import os
EXP = os.environ.get('EXP', '')
NAME = "gated_mix__softmax_full_mha__dense_activation_mish__prompt_kernel"
NS = 4
XS = 16384
W_BASE = NS * XS
LDS_BYTES = 163840
RING = 8192
AT_BASE = [131072, 0]
GM_BASE = 32768
CNT_BASE = 81920
SPIN_MAX = 1 << 18
FQ = int(os.environ.get('FQ', '1')); FST = int(os.environ.get('FST', '0'))
PSLEEP = int(os.environ.get('PSLEEP', '12'))

sWS = 8
sDB = 12
sWAVE, sW, sI, sJ = 16, 17, 18, 19
sSP = 20
sT0, sT1, sT2 = 21, 22, 23
vEP = 154
wsrd = f"s[{sWS}:{sWS+3}]"

def epoch_load(a, vz):
    a(f"""
    v_mov_b32 v{vz}, 0
    buffer_load_dwordx2 {vr(vEP,2)}, v{vz}, s[{sDB}:{sDB+3}], 0 offen sc1
    """)
def epoch_check(a, vz, tag):
    a(f"""
    L_ep{tag}:
    v_cmp_ne_u32 vcc, 0, v{vEP}
    s_cbranch_vccnz L_epok{tag}
    v_mov_b32 v{vz}, 0
    buffer_load_dwordx2 {vr(vEP,2)}, v{vz}, s[{sDB}:{sDB+3}], 0 offen sc1
    s_sub_u32 s{sSP}, s{sSP}, 1
    s_waitcnt vmcnt(0)
    s_cbranch_scc0 L_ep{tag}
    s_mov_b32 s{sSP}, 0
    L_epok{tag}:
    """)
def group_sync(a, idx, vt, vt2, tag):
    a(f"""
    v_mov_b32 v{vt}, {CNT_BASE + 4*idx}
    v_mov_b32 v{vt2}, 1
    s_mov_b64 exec, 1
    ds_add_u32 v{vt}, v{vt2}
    s_mov_b64 exec, -1
    L_gs{tag}:
    ds_read_b32 v{vt2}, v{vt}
    s_sub_u32 s{sSP}, s{sSP}, 1
    s_cselect_b32 s{sT1}, 4, 0
    s_waitcnt lgkmcnt(0)
    v_readfirstlane_b32 s{sT0}, v{vt2}
    s_add_u32 s{sT0}, s{sT0}, s{sT1}
    s_cmp_lt_u32 s{sT0}, 4
    s_cbranch_scc1 L_gs{tag}
    """)

class Attn:
    sKV = 24
    sH, sQB, sKT, sC, sM, sQ0 = 28, 29, 30, 31, 32, 34
    sRB, sPO, sD, sGB, sGI = 35, 36, 37, 38, 39
    sFI, sFA = 42, 43
    vKo, vVo = 1, 2
    vT0, vT1, vT2, vT3, vG = 3, 4, 5, 6, 7
    vQ, vK, vV, vP, vS, vO = 8, 24, 32, 48, 56, 88
    vKr, vVr = 152, 153
    vFO, vFV = 156, 158
    def setup(self, a, grp):
        s = self
        a(f"""
        s_and_b32 s{sT0}, s2, 7
        s_lshl_b32 s{s.sH}, s{sT0}, 1
        s_bfe_u32 s{sT0}, s2, 0x10003
        s_add_u32 s{s.sH}, s{s.sH}, s{sT0}
        s_add_u32 s{s.sH}, s{s.sH}, {16*grp}
        s_bfe_u32 s{s.sQB}, s2, 0x40004
        s_mov_b32 s{s.sKV}, s{sWS}
        s_mov_b32 s{s.sKV+1}, s{sWS+1}
        s_mov_b32 s{s.sKV+2}, {WS_SIZE}
        s_mov_b32 s{s.sKV+3}, 0x00020000
        s_mov_b32 s{s.sM}, 0x0000ffff
        s_mov_b32 s{s.sM+1}, 0x0000ffff
        s_lshl_b32 s{sT0}, s{s.sH}, 16
        s_lshl_b32 s{sT1}, s{s.sQB}, 12
        s_add_u32 s{s.sQ0}, s{sT0}, s{sT1}
        s_lshl_b32 s{sT1}, s{sW}, 14
        s_add_u32 s{s.sKT}, s{sT0}, s{sT1}
        s_add_u32 s{s.sKT}, s{s.sKT}, {WS_K}
        s_mov_b32 s{s.sGB}, {AT_BASE[grp]}
        s_mov_b32 s{s.sGI}, {CNT_BASE + 4*grp}
        s_mov_b32 s{s.sFI}, {0 if grp else 99}
        s_lshl_b32 s{s.sFA}, s{sI}, 2
        s_add_u32 s{s.sFA}, s{s.sFA}, s{sW}
        s_lshl_b32 s{s.sFA}, s{s.sFA}, 4
        s_add_u32 s{s.sFA}, s{s.sFA}, s{sJ}
        s_lshl_b32 s{s.sFA}, s{s.sFA}, 3
        s_add_u32 s{s.sFA}, s{s.sFA}, {WS_FA2}
        s_lshl_b32 s{s.sRB}, s{sW}, 13
        s_add_u32 s{s.sRB}, s{s.sRB}, s{s.sGB}
        v_lshlrev_b32 v{s.vKo}, 4, v0
        v_add_u32 v{s.vVo}, {WS_V - WS_K}, v{s.vKo}
        s_lshr_b32 s{sT0}, s{s.sH}, 2
        s_lshl_b32 s{sT0}, s{sT0}, 6
        s_lshl_b32 s{sT1}, s{sW}, 4
        s_add_u32 s{sT2}, s{sT0}, s{sT1}
        s_add_u32 s{sT2}, s{sT2}, 512
        v_add_u32 v{s.vFO}, s{sT2}, v0
        s_lshr_b32 s{sT2}, s{s.sH}, 1
        s_lshl_b32 s{sT2}, s{sT2}, 6
        s_add_u32 s{sT2}, s{sT2}, s{sT1}
        s_sub_u32 s{sT2}, s{sT2}, 16
        v_add_u32 v{s.vT0}, s{sT2}, v0
        v_cmp_le_u32 vcc, 16, v0
        v_cndmask_b32 v{s.vFO}, v{s.vFO}, v{s.vT0}, vcc
        s_lshl_b32 s{sT1}, s{s.sQB}, 2
        s_add_u32 s{sT2}, s{sT0}, s{sT1}
        s_sub_u32 s{sT2}, s{sT2}, 32
        v_add_u32 v{s.vT0}, s{sT2}, v0
        v_cmp_le_u32 vcc, 32, v0
        v_cndmask_b32 v{s.vFO}, v{s.vFO}, v{s.vT0}, vcc
        s_lshl_b32 s{sT2}, s{sW}, 8
        s_add_u32 s{sT2}, s{sT2}, s{sT1}
        v_and_b32 v{s.vT0}, 3, v0
        v_lshlrev_b32 v{s.vT0}, 6, v{s.vT0}
        v_add_u32 v{s.vT0}, s{sT2}, v{s.vT0}
        v_cmp_le_u32 vcc, 36, v0
        v_cndmask_b32 v{s.vFO}, v{s.vFO}, v{s.vT0}, vcc
        v_lshlrev_b32 v{s.vFO}, 3, v{s.vFO}
        v_add_u32 v{s.vFO}, {WS_FQ}, v{s.vFO}
        """)
    def poll_issue(self, a):
        a(f"buffer_load_dwordx2 {vr(self.vFV,2)}, v{self.vFO}, {wsrd}, 0 offen sc1")
    def poll_test(self, a):
        a(f"""
        v_cmp_ne_u64 vcc, {vr(self.vFV,2)}, {vr(vEP,2)}
        s_cmp_eq_u64 vcc, 0
        """)
    def first_loads(self, a, tag):
        s = self
        kv = f"s[{s.sKV}:{s.sKV+3}]"
        a(f"""
        s_lshl_b32 s{sT1}, s{sW}, 10
        v_xor_b32 v{s.vT2}, s{sT1}, v{s.vKo}
        s_mov_b32 m0, s{s.sRB}
        s_mov_b32 s{s.sC}, 0
        """)
        for q in range(4):
            if q: a(f"v_xor_b32 v{s.vT3}, {q*1024}, v{s.vT2}")
            a(f"buffer_load_dwordx4 {vr(s.vQ+4*q,4)}, v{s.vT3 if q else s.vT2}, {wsrd}, s{s.sQ0} offen sc1")
        a(f"""
        L_pre{tag}:
        buffer_load_dwordx4 v{s.vKo}, {kv}, s{s.sKT} offen sc1 lds
        s_add_u32 m0, m0, 1024
        s_add_u32 s{s.sC}, s{s.sC}, 1
        buffer_load_dwordx4 v{s.vVo}, {kv}, s{s.sKT} offen sc1 lds
        s_add_u32 m0, m0, 1024
        s_add_u32 s{s.sKT}, s{s.sKT}, 1024
        s_cmp_lt_u32 s{s.sC}, 4
        s_cbranch_scc1 L_pre{tag}
        s_lshl_b32 s{sT0}, s{s.sQB}, 2
        s_add_u32 s{sT0}, s{sT0}, s{sW}
        s_lshl_b32 s{sT0}, s{sT0}, 7
        s_add_u32 s{sT0}, s{sT0}, {WS_G}
        v_and_b32 v{s.vT0}, 31, v0
        v_lshlrev_b32 v{s.vT0}, 2, v{s.vT0}
        buffer_load_dword v{s.vG}, v{s.vT0}, {wsrd}, s{sT0} offen sc1
        """)
    def body(self, a, pf):
        s = self; P = "at"
        sKV, sH, sQB, sKT, sC, sM, sRB, sPO, sD = s.sKV, s.sH, s.sQB, s.sKT, s.sC, s.sM, s.sRB, s.sPO, s.sD
        vKo, vVo, vT0, vT1, vT2, vT3, vG = s.vKo, s.vVo, s.vT0, s.vT1, s.vT2, s.vT3, s.vG
        vQ, vK, vV, vP, vS, vO, vKr, vVr = s.vQ, s.vK, s.vV, s.vP, s.vS, s.vO, s.vKr, s.vVr
        kv = f"s[{sKV}:{sKV+3}]"
        a.label("L_at_body")
        a.window = []
        a(f"""
        v_add_u32 v{vKr}, s{sRB}, v{vKo}
        v_and_b32 v{vT0}, 15, v0
        v_lshlrev_b32 v{vT0}, 4, v{vT0}
        v_lshrrev_b32 v{vT1}, 5, v0
        v_lshl_add_u32 v{vT0}, v{vT1}, 8, v{vT0}
        v_add_u32 v{vVr}, s{sRB}, v{vT0}
        v_and_b32 v{vT1}, 27, v0
        v_cmp_eq_u32 vcc, 16, v{vT1}
        v_mov_b32 v{vT1}, 0x3f803f80
        v_cndmask_b32 v{vT1}, 0, v{vT1}, vcc
        """)
        for r in range(16): a(f"v_mov_b32 v{vV+r}, v{vT1}")
        def reads(st, off):
            return f"""ds_read_b128 {vr(vK+4*st,4)}, v{vKr} offset:{off}
            s_mov_b64 exec, s[{sM}:{sM+1}]
            ds_read_b128 {vr(vV+8*st,4)}, v{vVr} offset:{off+1024}
            ds_read_b128 {vr(vV+8*st+4,4)}, v{vVr} offset:{off+1536}
            s_mov_b64 exec, -1"""
        def dma(off):
            return f"""s_add_u32 m0, s{sPO}, {off}
            s_setprio 3
            buffer_load_dwordx4 v{vKo}, {kv}, s{sKT} offen sc1 lds
            s_add_u32 m0, s{sPO}, {off+1024}
            s_nop 0
            buffer_load_dwordx4 v{vVo}, {kv}, s{sKT} offen sc1 lds
            s_setprio 1
            s_add_u32 s{sKT}, s{sKT}, 1024"""
        for r in range(4, 8): a(f"v_mov_b32 v{vP+r}, 0")
        for t in range(4): a(f"v_mfma_f32_32x32x16_bf16 {vr(vO+16*t,16)}, {vr(vP+4,4)}, {vr(vP+4,4)}, 0")
        a(f"s_mov_b32 s{sC}, 0")
        a(f"s_mov_b32 s{sPO}, s{sRB}")
        a("s_waitcnt vmcnt(7)")
        pf.stamp(2)
        a(reads(0, 0))
        a("s_waitcnt lgkmcnt(0)")
        def mfS(sb, st, q): return f"v_mfma_f32_32x32x16_bf16 {vr(vS+16*sb,16)}, {vr(vK+4*st,4)}, {vr(vQ+4*q,4)}, 0"
        def mfPV(q, st, u): return f"v_mfma_f32_32x32x16_bf16 {vr(vO+16*q,16)}, {vr(vV+8*st+4*u,4)}, {vr(vP+4*u,4)}, {vr(vO+16*q,16)}"
        a(mfS(0, 0, 0))
        a(dma(0))
        a("s_nop 7")
        a.raw(".p2align 6")
        a.label(f"L_{P}_loop")
        start = len(a.lines)
        for st in range(2):
            off = 2048 if st == 0 else 0
            for q in range(4):
                sb = q & 1
                S = vS + 16 * sb
                ex = lambda i: f"v_exp_f32 v{S+i}, v{S+i}"
                cv = lambda i: f"v_cvt_pk_bf16_f32 v{vP+i}, v{S+2*i}, v{S+2*i+1}"
                pq, pst = (q - 1, st) if q > 0 else (3, st ^ 1)
                nq, nst = (q + 1, st) if q < 3 else (0, st ^ 1)
                a(ex(0)); a(ex(1))
                a(mfPV(pq, pst, 1))
                if q == 0 and st == 1:
                    a(f"""
                    s_xor_b32 s{sPO}, s{sPO}, 4096
                    v_xor_b32 v{vKr}, 0x1000, v{vKr}
                    v_xor_b32 v{vVr}, 0x1000, v{vVr}
                    """)
                if q == FQ and st == FST:
                    a(f"""
                    s_cmp_eq_u32 s{sC}, s{s.sFI}
                    s_cbranch_scc1 L_{P}_flag
                    L_{P}_flagret:
                    """)
                if q == 1:
                    a("s_waitcnt vmcnt(6)")
                    a(reads(st ^ 1, off))
                for i in range(2, 6): a(ex(i))
                if q == 3: a("s_waitcnt lgkmcnt(0)")
                a(mfS(sb ^ 1, nst, nq))
                if q == 3:
                    if st == 1:
                        a(f"""
                        s_cmp_ge_u32 s{sC}, 5
                        s_cselect_b32 s{sKV+2}, 0, s{sKV+2}
                        """)
                    a(dma(off))
                a(ex(6)); a(ex(7))
                for i in range(4): a(cv(i))
                a(ex(8)); a(ex(9))
                a(mfPV(q, st, 0))
                for i in range(10, 16): a(ex(i))
                for i in range(4, 8): a(cv(i))
        a(f"""
        s_add_u32 s{sC}, s{sC}, 1
        s_cmp_lt_u32 s{sC}, 8
        s_cbranch_scc1 L_{P}_loop
        """)
        seam, inner = check_loop(a.lines[start:])
        assert seam == 0 and inner == 0, (seam, inner)
        a(mfPV(3, 1, 1))
        a("s_setprio 3")
        pf.stamp(3)
        a(f"""
        v_add_u32 v{vT0}, s{sRB}, v{vKo}
        v_lshlrev_b32 v{vT1}, 2, v0
        v_add_u32 v{vT2}, s{sRB}, v{vT1}
        s_waitcnt vmcnt(0)
        """)
        for j in range(1, 4):
            o = vO + 16 * j
            a(f"""
            ds_write_b128 v{vT0}, {vr(o,4)} offset:{(j-1)*2304}
            ds_write_b128 v{vT0}, {vr(o+4,4)} offset:{(j-1)*2304+1024}
            ds_write_b32 v{vT2}, v{o+8} offset:{(j-1)*2304+2048}
            """)
        a(f"""
        v_mov_b32 v{vT2}, s{s.sGI}
        v_mov_b32 v{vT3}, 1
        s_waitcnt lgkmcnt(0)
        s_mov_b64 exec, 1
        ds_add_u32 v{vT2}, v{vT3}
        s_mov_b64 exec, -1
        L_at_gs:
        s_sleep 1
        ds_read_b32 v{vT3}, v{vT2}
        s_sub_u32 s{sSP}, s{sSP}, 1
        s_cselect_b32 s{sT1}, 4, 0
        s_waitcnt lgkmcnt(0)
        v_readfirstlane_b32 s{sT0}, v{vT3}
        s_add_u32 s{sT0}, s{sT0}, s{sT1}
        s_cmp_lt_u32 s{sT0}, 4
        s_cbranch_scc1 L_at_gs
        """)
        R = vO
        for j in range(1, 4):
            o = vO + 16 * j
            a(f"""
            s_xor_b32 s{sT0}, s{sW}, {j}
            s_lshl_b32 s{sT0}, s{sT0}, 13
            s_add_u32 s{sT0}, s{sT0}, s{s.sGB}
            v_add_u32 v{vT0}, s{sT0}, v{vKo}
            v_add_u32 v{vT2}, s{sT0}, v{vT1}
            ds_read_b128 {vr(o,4)}, v{vT0} offset:{(j-1)*2304}
            ds_read_b128 {vr(o+4,4)}, v{vT0} offset:{(j-1)*2304+1024}
            ds_read_b32 v{o+8}, v{vT2} offset:{(j-1)*2304+2048}
            """)
        a("s_waitcnt lgkmcnt(0)")
        for r in range(0, 8, 2):
            a(f"v_pk_add_f32 {vr(R+r,2)}, {vr(R+r,2)}, {vr(R+16+r,2)}")
            a(f"v_pk_add_f32 {vr(R+32+r,2)}, {vr(R+32+r,2)}, {vr(R+48+r,2)}")
        a(f"v_add_f32 v{R+8}, v{R+8}, v{R+24}")
        a(f"v_add_f32 v{R+40}, v{R+40}, v{R+56}")
        for r in range(0, 8, 2):
            a(f"v_pk_add_f32 {vr(R+r,2)}, {vr(R+r,2)}, {vr(R+32+r,2)}")
        a(f"v_add_f32 v{R+8}, v{R+8}, v{R+40}")
        a(f"v_mov_b32 v{vT2}, v{R+8}")
        for r in range(8): a(f"v_fma_f32 v{vT2}, v{R+r}, 0, v{vT2}")
        a(f"""
        s_mov_b32 s{sT0}, {hex(f32bits(2.0**-30))}
        s_mov_b32 s{sT1}, {hex(f32bits(2.0**30))}
        v_cmp_le_f32 vcc, s{sT0}, v{vT2}
        v_cmp_ge_f32 s[40:41], s{sT1}, v{vT2}
        s_and_b64 vcc, vcc, s[40:41]
        s_cmp_eq_u64 vcc, -1
        s_cbranch_scc0 L_{P}_slow
        L_{P}_fin:
        v_rcp_f32 v{vT2}, v{R+8}
        s_lshl_b32 s{sT0}, s{sQB}, 2
        s_add_u32 s{sT0}, s{sT0}, s{sW}
        s_lshl_b32 s{sT0}, s{sT0}, 5
        s_add_u32 s{sT0}, s{sT0}, s{sH}
        s_lshl_b32 s{sT0}, s{sT0}, 10
        s_add_u32 s{sT0}, s{sT0}, {WS_O}
        v_mul_f32 v{vT2}, v{vT2}, v{vG}
        """)
        for r in range(8): a(f"v_mul_f32 v{R+r}, v{R+r}, v{vT2}")
        for r in range(4): a(f"v_cvt_pk_bf16_f32 v{vP+r}, v{R+2*r}, v{R+2*r+1}")
        for r in range(4): a(f"v_min_u32 v{vP+r}, -2, v{vP+r}")
        a(f"""
        v_permlane32_swap_b32 v{vP}, v{vP+2}
        v_permlane32_swap_b32 v{vP+1}, v{vP+3}
        buffer_store_dwordx4 {vr(vP,4)}, v{vKo}, {wsrd}, s{sT0} offen sc1
        """)
        pf.stamp(4)
        if asmlib.PROF: a("s_waitcnt vmcnt(0)")
        pf.stamp(5)
        pf.dump(6, 2, sWAVE, 16, vT0, vT1)
        a("s_endpgm")
        a(f"""
        L_{P}_flag:
        s_waitcnt vmcnt({2 + 2*FST})
        v_mov_b32 v{vT0}, 0
        s_mov_b64 exec, 1
        buffer_store_dwordx2 {vr(vEP,2)}, v{vT0}, {wsrd}, s{s.sFA} offen sc1
        s_mov_b64 exec, -1
        s_branch L_{P}_flagret
        """)
        a.label(f"L_{P}_slow")
        a.window = []
        vM = vT3; S = vS
        a(f"""
        s_lshl_b32 s{sT1}, s{sH}, 16
        s_add_u32 s{sT1}, s{sT1}, {WS_K}
        s_mov_b32 s{sKT}, s{sT1}
        s_mov_b32 s{sC}, 0
        v_mov_b32 v{vM}, 0xff800000
        v_and_b32 v{vT0}, 15, v0
        v_lshlrev_b32 v{vT0}, 4, v{vT0}
        v_lshrrev_b32 v{vT1}, 5, v0
        v_lshl_add_u32 v{vT0}, v{vT1}, 8, v{vT0}
        v_add_u32 v{vVo}, {WS_V - WS_K}, v{vT0}
        L_{P}_slow1:
        buffer_load_dwordx4 {vr(vK,4)}, v{vKo}, {wsrd}, s{sKT} offen sc1
        s_add_u32 s{sKT}, s{sKT}, 1024
        s_waitcnt vmcnt(0)
        {mfS(0,0,0)}
        """)
        for r in range(0, 16, 2): a(f"v_max3_f32 v{vM}, v{vM}, v{S+r}, v{S+r+1}")
        a(f"""
        s_add_u32 s{sC}, s{sC}, 1
        s_cmp_lt_u32 s{sC}, 64
        s_cbranch_scc1 L_{P}_slow1
        v_mov_b32 v{vT0}, v{vM}
        v_mov_b32 v{vT1}, v{vM}
        v_permlane32_swap_b32 v{vT0}, v{vT1}
        v_max_f32 v{vM}, v{vT0}, v{vT1}
        s_mov_b32 s{sKT}, s{sT1}
        s_mov_b32 s{sC}, 0
        """)
        for r in range(16): a(f"v_mov_b32 v{R+r}, 0")
        a(f"""
        L_{P}_slow2:
        buffer_load_dwordx4 {vr(vK,4)}, v{vKo}, {wsrd}, s{sKT} offen sc1
        s_mov_b64 exec, s[{sM}:{sM+1}]
        buffer_load_dwordx4 {vr(vV,4)}, v{vVo}, {wsrd}, s{sKT} offen sc1
        buffer_load_dwordx4 {vr(vV+4,4)}, v{vVo}, {wsrd}, s{sKT} offen offset:512 sc1
        s_mov_b64 exec, -1
        s_add_u32 s{sKT}, s{sKT}, 1024
        s_waitcnt vmcnt(0)
        {mfS(0,0,0)}
        """)
        for r in range(16): a(f"v_sub_f32 v{S+r}, v{S+r}, v{vM}")
        for r in range(16): a(f"v_exp_f32 v{S+r}, v{S+r}")
        for i in range(8): a(f"v_cvt_pk_bf16_f32 v{vP+i}, v{S+2*i}, v{S+2*i+1}")
        a(mfPV(0, 0, 0)); a(mfPV(0, 0, 1))
        a(f"""
        s_nop 7
        s_add_u32 s{sC}, s{sC}, 1
        s_cmp_lt_u32 s{sC}, 64
        s_cbranch_scc1 L_{P}_slow2
        s_nop 15
        s_branch L_{P}_fin
        """)

def gemm_role(a, pf):
    P = "gm"
    sWT, sOUT = 24, 28
    sC, sD, sN = 32, 33, 34
    sWM, sWN = 35, 36
    sTW, sFJ, sAO, sWO, sWO2, sLB = 37, 38, 39, 40, 41, 42
    vL16 = 1
    vT0, vT1, vT2, vT3 = 2, 3, 4, 5
    vWd = 7
    vWr, vAo, vG1 = [10, 11], [12, 13], [14, 15]
    vF, vA, vACC = 16, 48, 80
    D = 4
    a(f"""
    s_setprio 0
    s_load_dwordx2 s[{sWT}:{sWT+1}], s[0:1], 48
    s_load_dwordx2 s[44:45], s[0:1], 16
    s_load_dwordx2 s[{sOUT}:{sOUT+1}], s[0:1], 64
    s_mov_b32 s{sWT+2}, {1792*512*2}
    s_mov_b32 s{sWT+3}, 0x00020000
    s_mov_b32 s{sOUT+2}, {2048*512*2}
    s_mov_b32 s{sOUT+3}, 0x00020000
    s_and_b32 s{sWM}, s{sW}, 1
    s_lshr_b32 s{sWN}, s{sW}, 1
    v_lshlrev_b32 v{vL16}, 4, v0
    s_and_b32 s{sT0}, s2, 7
    s_lshl_b32 s{sTW}, s{sT0}, 2
    s_bfe_u32 s{sT0}, s2, 0x20003
    s_add_u32 s{sTW}, s{sTW}, s{sT0}
    s_lshr_b32 s{sFJ}, s2, 5
    s_mul_i32 s{sT0}, s{sTW}, 224
    s_mul_i32 s{sT1}, s{sW}, 28
    s_add_u32 s{sT0}, s{sT0}, s{sT1}
    s_lshl_b32 s{sAO}, s{sT0}, 10
    s_add_u32 s{sAO}, s{sAO}, {WS_A}
    s_lshl_b32 s{sWO}, s{sT1}, 14
    s_lshl_b32 s{sT2}, s{sFJ}, 7
    s_add_u32 s{sWO}, s{sWO}, s{sT2}
    s_mul_i32 s{sLB}, s{sW}, 12288
    s_add_u32 s{sLB}, s{sLB}, {GM_BASE}
    s_mul_i32 s{sT0}, s{sWM}, {112*1024}
    s_sub_u32 s{sT1}, {112*1024}, s{sT0}
    v_add_u32 v{vAo[0]}, s{sT0}, v{vL16}
    v_add_u32 v{vAo[1]}, s{sT1}, v{vL16}
    v_lshrrev_b32 v{vT0}, 2, v0
    v_lshrrev_b32 v{vT1}, 4, v0
    v_xor_b32 v{vT0}, v{vT0}, v{vT1}
    v_and_b32 v{vT0}, 1, v{vT0}
    v_lshlrev_b32 v{vT0}, 6, v{vT0}
    v_and_b32 v{vT1}, 3, v0
    v_lshl_add_u32 v{vT0}, v{vT1}, 4, v{vT0}
    v_lshrrev_b32 v{vT1}, 3, v0
    v_lshl_add_u32 v{vWd}, v{vT1}, 10, v{vT0}
    v_lshrrev_b32 v{vT0}, 5, v0
    v_bfe_u32 v{vT1}, v0, 2, 2
    v_lshl_add_u32 v{vT0}, v{vT0}, 3, v{vT1}
    v_lshlrev_b32 v{vT0}, 7, v{vT0}
    v_lshrrev_b32 v{vT1}, 1, v{vT1}
    v_xor_b32 v{vT1}, s{sWN}, v{vT1}
    v_lshl_add_u32 v{vT0}, v{vT1}, 6, v{vT0}
    v_bfe_u32 v{vT1}, v0, 4, 1
    v_lshl_add_u32 v{vT0}, v{vT1}, 5, v{vT0}
    v_and_b32 v{vT1}, 3, v0
    v_lshl_add_u32 v{vT0}, v{vT1}, 3, v{vT0}
    v_add_u32 v{vWr[0]}, s{sLB}, v{vT0}
    v_xor_b32 v{vWr[1]}, 64, v{vWr[0]}
    s_lshl_b32 s{sT0}, s{sTW}, 5
    s_lshl_b32 s{sT1}, s{sW}, 2
    s_add_u32 s{sT0}, s{sT0}, s{sT1}
    v_bfe_u32 v{vT0}, v0, 2, 1
    v_lshlrev_b32 v{vT0}, 4, v{vT0}
    v_and_b32 v{vT1}, 3, v0
    v_add3_u32 v{vT0}, v{vT0}, v{vT1}, s{sT0}
    v_lshlrev_b32 v{vT0}, 3, v{vT0}
    v_add_u32 v{vT0}, {WS_FA2}, v{vT0}
    s_and_b32 s{sT0}, s{sTW}, 1
    s_lshl_b32 s{sT0}, s{sT0}, 9
    s_lshr_b32 s{sT2}, s{sTW}, 1
    s_lshl_b32 s{sN}, s{sT2}, 2
    s_add_u32 s{sT0}, s{sT0}, s{sN}
    v_and_b32 v{vT2}, 7, v0
    v_lshlrev_b32 v{vT2}, 6, v{vT2}
    v_add_u32 v{vT2}, s{sT0}, v{vT2}
    v_lshlrev_b32 v{vT2}, 3, v{vT2}
    v_add_u32 v{vT2}, {WS_FQ}, v{vT2}
    v_cmp_le_u32 vcc, 8, v0
    v_cndmask_b32 v{vT0}, v{vT0}, v{vT2}, vcc
    v_add_u32 v{vT1}, s{sT1}, v{vT1}
    v_lshrrev_b32 v{vT2}, 1, v{vT1}
    v_and_b32 v{vT1}, 1, v{vT1}
    v_lshl_add_u32 v{vT2}, v{vT1}, 3, v{vT2}
    s_lshl_b32 s{sT2}, s{sT2}, 4
    v_add_u32 v{vT2}, s{sT2}, v{vT2}
    v_and_b32 v{vT1}, 1, v{vT2}
    v_lshlrev_b32 v{vT1}, 3, v{vT1}
    v_bfe_u32 v{vT3}, v{vT2}, 3, 3
    v_add_u32 v{vT1}, v{vT1}, v{vT3}
    v_lshlrev_b32 v{vT1}, 2, v{vT1}
    v_bfe_u32 v{vT3}, v{vT2}, 1, 2
    v_lshl_add_u32 v{vT1}, v{vT3}, 8, v{vT1}
    v_lshrrev_b32 v{vT3}, 6, v{vT2}
    v_lshl_add_u32 v{vT1}, v{vT3}, 6, v{vT1}
    v_lshlrev_b32 v{vT1}, 3, v{vT1}
    v_add_u32 v{vT1}, {WS_FQ}, v{vT1}
    v_cmp_le_u32 vcc, 16, v0
    v_cndmask_b32 v{vT0}, v{vT0}, v{vT1}, vcc
    s_waitcnt vmcnt(0) lgkmcnt(0)
    """)
    epoch_check(a, vT1, "g")
    a(f"""
    s_mov_b64 exec, 0xfffff
    L_{P}_pollF:
    buffer_load_dwordx2 {vr(vT2,2)}, v{vT0}, {wsrd}, 0 offen sc1
    s_waitcnt vmcnt(0)
    v_cmp_ne_u64 vcc, {vr(vT2,2)}, {vr(vEP,2)}
    s_cbranch_vccz L_{P}_okF
    s_sleep 8
    s_sub_u32 s{sSP}, s{sSP}, 1
    s_cbranch_scc0 L_{P}_pollF
    s_mov_b32 s{sSP}, 0
    L_{P}_okF:
    s_mov_b64 exec, -1
    s_lshl_b32 s{sT0}, s{sTW}, 8
    s_add_u32 s{sT0}, s{sT0}, {WS_G}
    v_and_b32 v{vT0}, 31, v0
    v_lshlrev_b32 v{vT0}, 2, v{vT0}
    s_lshl_b32 s{sT1}, s{sWM}, 7
    v_xor_b32 v{vT0}, s{sT1}, v{vT0}
    v_xor_b32 v{vT1}, 128, v{vT0}
    buffer_load_dword v{vG1[0]}, v{vT0}, {wsrd}, s{sT0} offen sc1
    buffer_load_dword v{vG1[1]}, v{vT1}, {wsrd}, s{sT0} offen sc1
    """)
    pf.stamp(2)
    def wloads(d):
        return [f"s_add_u32 m0, s{sLB}, {d*2048}",
                f"s_add_u32 s{sWO2}, s{sWO}, 8192",
                f"buffer_load_dwordx4 v{vWd}, s[{sWT}:{sWT+3}], s{sWO} offen lds",
                f"s_add_u32 m0, s{sLB}, {d*2048+1024}",
                f"s_add_u32 s{sWO}, s{sWO}, 16384",
                f"buffer_load_dwordx4 v{vWd}, s[{sWT}:{sWT+3}], s{sWO2} offen lds"]
    def aloads(d):
        return [f"buffer_load_dwordx4 {vr(vA+8*d,4)}, v{vAo[0]}, {wsrd}, s{sAO} offen sc1",
                f"buffer_load_dwordx4 {vr(vA+8*d+4,4)}, v{vAo[1]}, {wsrd}, s{sAO} offen sc1",
                f"s_add_u32 s{sAO}, s{sAO}, 1024"]
    def wreads(d, buf):
        return [f"ds_read_b64_tr_b16 {vr(vF+8*buf+4*fi+2*t2,2)}, v{vWr[fi]} offset:{d*2048+t2*512}"
                for fi in range(2) for t2 in range(2)]
    def mfmas(d, buf):
        return [f"v_mfma_f32_32x32x16_bf16 {vr(vACC+16*(fi*2+ti),16)}, {vr(vF+8*buf+4*fi,4)}, {vr(vA+8*d+4*ti,4)}, {vr(vACC+16*(fi*2+ti),16)}"
                for fi in range(2) for ti in range(2)]
    for d in range(D): a("\n".join(wloads(d) + aloads(d)))
    for r in range(4): a(f"v_mov_b32 v{vF+8+r}, 0")
    for t in range(4): a(f"v_mfma_f32_32x32x16_bf16 {vr(vACC+16*t,16)}, {vr(vF+8,4)}, {vr(vF+8,4)}, 0")
    a(f"s_mov_b32 s{sC}, 0")
    a(f"s_waitcnt vmcnt({4*(D-1)})")
    a("\n".join(wreads(0, 0)))
    a.raw(".p2align 6")
    a.label(f"L_{P}_f2loop")
    start = len(a.lines)
    for s in range(D):
        a(f"s_waitcnt vmcnt({4*(D-2)})")
        a("\n".join(wreads((s + 1) % D, (s + 1) & 1)))
        a("s_waitcnt lgkmcnt(4)")
        a("\n".join(mfmas(s, s & 1)))
        a("\n".join(wloads(s) + aloads(s)))
    a(f"""
    s_add_u32 s{sC}, s{sC}, 1
    s_cmp_lt_u32 s{sC}, 6
    s_cbranch_scc1 L_{P}_f2loop
    """)
    seam, inner = check_loop(a.lines[start:])
    assert seam == 0 and inner == 0, (seam, inner)
    a(f"""
    s_mov_b32 s{sWT}, s44
    s_mov_b32 s{sWT+1}, s45
    s_mov_b32 s{sWT+2}, {512*512*2}
    s_lshl_b32 s{sWO}, s{sW}, 16
    s_lshl_b32 s{sT2}, s{sFJ}, 7
    s_add_u32 s{sWO}, s{sWO}, s{sT2}
    """)
    for s in range(D):
        if s < D - 1:
            a(f"s_waitcnt vmcnt({4*(D-2-s) + 2*s})")
            a("\n".join(wreads(s + 1, (s + 1) & 1)))
            a("s_waitcnt lgkmcnt(4)")
        else:
            a("s_waitcnt lgkmcnt(0)")
        a("\n".join(mfmas(s, s & 1)))
        a("\n".join(wloads(s)))
    pf.stamp(3)
    a(f"""
    s_setprio 2
    v_sub_f32 v{vG1[0]}, 1.0, v{vG1[0]}
    v_sub_f32 v{vG1[1]}, 1.0, v{vG1[1]}
    s_lshl_b32 s{sAO}, s{sTW}, 16
    s_lshl_b32 s{sT0}, s{sW}, 12
    s_add_u32 s{sAO}, s{sAO}, s{sT0}
    s_add_u32 s{sAO}, s{sAO}, {WS_O}
    s_lshl_b32 s{sT0}, s{sWM}, 15
    v_add_u32 v{vAo[0]}, s{sT0}, v{vL16}
    v_xor_b32 v{vAo[1]}, 0x8000, v{vAo[0]}
    v_and_b32 v{vT0}, 3, v0
    v_bfe_u32 v{vT1}, v0, 2, 1
    v_lshlrev_b32 v{vT0}, 10, v{vT0}
    v_lshl_add_u32 v{vT3}, v{vT1}, 15, v{vT0}
    s_add_u32 s{sWO}, s{sWO}, {(16-4)*16384}
    s_mov_b32 s{sC}, 0
    """)
    for fi in range(2):
        for ti in range(2):
            acc = vACC + 16 * (fi * 2 + ti)
            for r in range(0, 16, 2): a(f"v_pk_mul_f32 {vr(acc+r,2)}, {vr(acc+r,2)}, {vr(vG1[0],2)} op_sel:[0,{ti}] op_sel_hi:[1,{ti}]")
    a(f"""
    L_{P}_ph:
    s_mov_b64 exec, 0xff
    L_{P}_pollO:
    buffer_load_dword v{vT1}, v{vT3}, {wsrd}, s{sAO} offen offset:1020 sc1
    s_waitcnt vmcnt(0)
    v_cmp_eq_u32 vcc, -1, v{vT1}
    s_cbranch_vccz L_{P}_loadO
    s_sleep {PSLEEP}
    s_sub_u32 s{sSP}, s{sSP}, 1
    s_cbranch_scc0 L_{P}_pollO
    s_mov_b32 s{sSP}, 0
    L_{P}_loadO:
    s_mov_b64 exec, -1
    """)
    for d in range(D):
        a(f"buffer_load_dwordx4 {vr(vA+8*d,4)}, v{vAo[0]}, {wsrd}, s{sAO} offen offset:{d*1024} sc1")
        a(f"buffer_load_dwordx4 {vr(vA+8*d+4,4)}, v{vAo[1]}, {wsrd}, s{sAO} offen offset:{d*1024} sc1")
    a("\n".join(wreads(0, 0)))
    a("s_waitcnt vmcnt(0)")
    a(f"v_max3_u32 v{vT1}, v{vA}, v{vA+1}, v{vA+2}")
    for r in range(3, 31, 2): a(f"v_max3_u32 v{vT1}, v{vT1}, v{vA+r}, v{vA+r+1}")
    a(f"""
    v_max_u32 v{vT1}, v{vT1}, v{vA+31}
    v_cmp_eq_u32 vcc, -1, v{vT1}
    s_cbranch_vccz L_{P}_okO
    s_sub_u32 s{sSP}, s{sSP}, 1
    s_cbranch_scc0 L_{P}_loadO
    s_mov_b32 s{sSP}, 0
    L_{P}_okO:
    """)
    for s in range(D):
        if s < D - 1:
            a("\n".join(wreads(s + 1, (s + 1) & 1)))
            a("s_waitcnt lgkmcnt(4)")
        else:
            a("s_waitcnt lgkmcnt(0)")
        a("\n".join(mfmas(s, s & 1)))
    a(f"""
    s_cmp_eq_u32 s{sC}, 1
    s_cbranch_scc1 L_{P}_red
    """)
    for s in range(D): a("\n".join(wloads(s)))
    a(f"""
    {'s_memrealtime s[74:75]' if 'tdA' in EXP else ''}
    s_add_u32 s{sAO}, s{sAO}, 16384
    s_mov_b32 s{sC}, 1
    s_branch L_{P}_ph
    L_{P}_red:
    s_nop 7
    v_add_u32 v{vT0}, s{sLB}, v{vL16}
    s_nop 3
    """)
    pf.stamp(4)
    for j in range(1, 4):
        for q in range(4):
            a(f"ds_write_b128 v{vT0}, {vr(vACC+16*j+4*q,4)} offset:{(j-1)*4096+q*1024}")
    a("s_waitcnt lgkmcnt(0)")
    group_sync(a, 2, vT1, vT2, "gm")
    for j in range(1, 4):
        a(f"""
        s_xor_b32 s{sT0}, s{sW}, {j}
        s_mul_i32 s{sT0}, s{sT0}, 12288
        s_add_u32 s{sT0}, s{sT0}, {GM_BASE}
        v_add_u32 v{vT1}, s{sT0}, v{vL16}
        """)
        for q in range(4):
            a(f"ds_read_b128 {vr(vACC+16*j+4*q,4)}, v{vT1} offset:{(j-1)*4096+q*1024}")
    a(f"""
    s_lshl_b32 s{sT0}, s{sTW}, 1
    s_add_u32 s{sT0}, s{sT0}, s{sWM}
    s_lshl_b32 s{sT0}, s{sT0}, 15
    s_lshl_b32 s{sT1}, s{sFJ}, 7
    s_add_u32 s{sT0}, s{sT0}, s{sT1}
    s_lshl_b32 s{sT1}, s{sWN}, 6
    s_add_u32 s{sT0}, s{sT0}, s{sT1}
    v_and_b32 v{vT0}, 31, v0
    v_lshlrev_b32 v{vT0}, 10, v{vT0}
    v_lshrrev_b32 v{vT2}, 5, v0
    v_lshl_add_u32 v{vT0}, v{vT2}, 4, v{vT0}
    s_waitcnt lgkmcnt(8)
    """)
    for r in range(0, 16, 2): a(f"v_pk_add_f32 {vr(vACC+r,2)}, {vr(vACC+r,2)}, {vr(vACC+16+r,2)}")
    a("s_waitcnt lgkmcnt(0)")
    for r in range(0, 16, 2): a(f"v_pk_add_f32 {vr(vACC+32+r,2)}, {vr(vACC+32+r,2)}, {vr(vACC+48+r,2)}")
    for r in range(0, 16, 2): a(f"v_pk_add_f32 {vr(vACC+r,2)}, {vr(vACC+r,2)}, {vr(vACC+32+r,2)}")
    p = vF
    for i in range(8): a(f"v_cvt_pk_bf16_f32 v{p+i}, v{vACC+2*i}, v{vACC+2*i+1}")
    a(f"""
    v_permlane32_swap_b32 v{p}, v{p+2}
    v_permlane32_swap_b32 v{p+1}, v{p+3}
    v_permlane32_swap_b32 v{p+4}, v{p+6}
    v_permlane32_swap_b32 v{p+5}, v{p+7}
    buffer_store_dwordx4 {vr(p,4)}, v{vT0}, s[{sOUT}:{sOUT+3}], s{sT0} offen
    buffer_store_dwordx4 {vr(p+4,4)}, v{vT0}, s[{sOUT}:{sOUT+3}], s{sT0} offen offset:32
    """)
    if asmlib.PROF: a("s_waitcnt vmcnt(0)")
    pf.stamp(5)
    pf.dump(6, 2, sWAVE, 16, vT0, vT1)
    if 'td' in EXP:
        a(f"""
        s_or_b32 s{sT0}, s2, s{sW}
        s_cmp_lg_u32 s{sT0}, 0
        s_cbranch_scc1 L_td_end
        s_memrealtime s[76:77]
        s_waitcnt lgkmcnt(0)
        {'s_mov_b32 s74, s76' if 'tdE' in EXP else ''}
        s_sub_u32 s{sT1}, s74, s72
        s_min_u32 s{sT1}, s{sT1}, 10000
        s_mul_i32 s{sT1}, s{sT1}, 10
        L_td_spin:
        s_memrealtime s[78:79]
        s_waitcnt lgkmcnt(0)
        s_sub_u32 s{sT2}, s78, s76
        s_cmp_lt_u32 s{sT2}, s{sT1}
        s_cbranch_scc1 L_td_spin
        L_td_end:
        """)
    a("s_endpgm")

def gen():
    a = Asm()
    a.raw(kernel_header(NAME))
    pf = Prof(a, 0)
    pf.stamp(0)
    at = Attn()
    sX, sWQ, sW1, sB1, sGW = 44, 48, 52, 56, 56
    sSOX, sSOW, sSL, sN, sD, sC = 60, 61, 62, 63, 64, 65
    sMX, sMQ, sM1 = 66, 67, 68
    sK2 = 70
    sKX, sBX, sBQ, sB1o, sX2, sW2o = 24, 25, 26, 27, 28, 29
    vG = 3
    vT0, vT1, vT2, vT3 = 6, 7, 8, 9
    a(f"""
    s_cmp_ge_u32 s2, 256
    s_cbranch_scc1 L_end
    {'s_memrealtime s[72:73]' if 'td' in EXP else ''}
    s_getpc_b64 s[40:41]
    L_pc0:
    v_lshlrev_b32 v1, 6, v0
    v_min_u32 v1, L_code_end-L_pc0-4, v1
    global_load_dword v96, v1, s[40:41]
    s_load_dwordx4 s[4:7], s[0:1], 0
    s_load_dwordx4 s[32:35], s[0:1], 32
    s_load_dwordx2 s[36:37], s[0:1], 56
    s_load_dwordx2 s[{sDB}:{sDB+1}], s[0:1], 72
    s_load_dwordx2 s[{sWS}:{sWS+1}], s[0:1], 80
    v_lshrrev_b32 v1, 6, v0
    v_and_b32 v0, 63, v0
    v_readfirstlane_b32 s{sWAVE}, v1
    s_and_b32 s{sT0}, s2, 7
    s_lshr_b32 s{sT1}, s2, 3
    s_and_b32 s{sI}, s{sT0}, 1
    s_lshl_b32 s{sI}, s{sI}, 3
    s_and_b32 s{sT2}, s{sT1}, 7
    s_add_u32 s{sI}, s{sI}, s{sT2}
    s_lshr_b32 s{sJ}, s{sT0}, 1
    s_lshl_b32 s{sJ}, s{sJ}, 2
    s_lshr_b32 s{sT2}, s{sT1}, 3
    s_add_u32 s{sJ}, s{sJ}, s{sT2}
    s_and_b32 s{sW}, s{sWAVE}, 3
    s_mov_b32 s{sWS+2}, {WS_SIZE}
    s_mov_b32 s{sWS+3}, 0x00020000
    s_mov_b32 s{sDB+2}, 256
    s_mov_b32 s{sDB+3}, 0x00020000
    s_mov_b32 s{sSP}, {SPIN_MAX}
    v_lshrrev_b32 v{vG}, 4, v0
    s_cmp_lt_u32 s{sWAVE}, 8
    s_cbranch_scc1 L_comp
    """)
    vXd, vXd2, v1d, v1d2 = 10, 11, 12, 13
    vQd = [14, 15, 16]
    vGX, vGW, vOnes = 20, 28, 36
    a(f"""
    s_setprio 2
    s_mov_b32 s{sX+2}, {2048*512*2}
    s_mov_b32 s{sX+3}, 0x00020000
    s_mov_b32 s{sWQ+2}, {512*1536*2}
    s_mov_b32 s{sWQ+3}, 0x00020000
    v_and_b32 v{vT0}, 7, v0
    v_xor_b32 v{vT0}, v{vT0}, v{vG}
    v_lshlrev_b32 v{vT0}, 4, v{vT0}
    v_lshrrev_b32 v{vT1}, 3, v0
    v_lshl_add_u32 v{vXd}, v{vT1}, 10, v{vT0}
    v_xor_b32 v{vXd2}, 64, v{vXd}
    v_add_u32 v{vXd2}, 8192, v{vXd2}
    s_lshl_b32 s{sBX}, s{sI}, 17
    s_lshl_b32 s{sT0}, s{sW}, 15
    s_add_u32 s{sBX}, s{sBX}, s{sT0}
    s_lshl_b32 s{sMX}, s{sW}, 12
    s_mul_i32 s{sMQ}, s{sW}, 3072
    s_add_u32 s{sMQ}, s{sMQ}, {W_BASE}
    s_mul_i32 s{sBQ}, s{sW}, {16*3072}
    s_lshl_b32 s{sT0}, s{sJ}, 7
    s_add_u32 s{sBQ}, s{sBQ}, s{sT0}
    s_lshl_b32 s{sT2}, s{sJ}, 6
    s_sub_u32 s{sT2}, {2048-128}, s{sT2}
    """)
    for q in range(3):
        a(f"""
        v_lshrrev_b32 v{vT1}, 1, v0
        v_add_u32 v{vT1}, {32*q}, v{vT1}
        v_mul_u32_u24 v{vT2}, 0xaaab, v{vT1}
        v_lshrrev_b32 v{vT2}, 18, v{vT2}
        v_mul_u32_u24 v{vT3}, 6, v{vT2}
        v_sub_u32 v{vT1}, v{vT1}, v{vT3}
        v_bfe_u32 v{vT3}, v{vT2}, 3, 1
        v_xor_b32 v{vT1}, v{vT1}, v{vT3}
        v_mul_u32_u24 v{vT2}, 3072, v{vT2}
        v_lshl_add_u32 v{vT2}, v{vT1}, 5, v{vT2}
        v_lshrrev_b32 v{vT3}, 2, v{vT1}
        v_mul_u32_u24 v{vT3}, s{sT2}, v{vT3}
        v_add_u32 v{vT2}, v{vT2}, v{vT3}
        v_and_b32 v{vT3}, 1, v0
        v_lshl_add_u32 v{vQd[q]}, v{vT3}, 4, v{vT2}
        """)
    a(f"""
    s_lshr_b32 s{sKX}, s2, 3
    s_and_b32 s{sKX}, s{sKX}, 7
    s_waitcnt lgkmcnt(0)
    s_mov_b32 s{sX}, s4
    s_mov_b32 s{sX+1}, s5
    s_mov_b32 s{sWQ}, s6
    s_mov_b32 s{sWQ+1}, s7
    """)
    ops = []
    def vm(text, tag): a(text); ops.append(tag)
    def unit(u):
        p2 = u >= 8
        so = (u % NS) * XS
        xr = [f"buffer_load_dwordx4 v{vXd}, s[{sX}:{sX+3}], s{sSOX} offen lds",
              f"buffer_load_dwordx4 v{vXd2}, s[{sX}:{sX+3}], s{sSOX} offen lds",
              f"buffer_load_dwordx4 v{vXd}, s[{sX}:{sX+3}], s{sX2} offen lds",
              f"buffer_load_dwordx4 v{vXd2}, s[{sX}:{sX+3}], s{sX2} offen lds"]
        a(f"""
        s_lshl_b32 s{sT0}, s{sKX}, 7
        s_add_u32 s{sSOX}, s{sBX}, s{sT0}
        s_add_u32 m0, s{sMX}, {so}
        s_add_u32 s{sX2}, s{sSOX}, 16384
        """)
        vm(xr[0], u)
        a(f"""
        s_mul_i32 s{sT0}, s{sKX}, {64*3584 if p2 else 64*3072}
        s_add_u32 s{sSOW}, s{sB1o if p2 else sBQ}, s{sT0}
        """)
        for q in range(4 if p2 else 3):
            if p2:
                a(f"s_add_u32 m0, s{sM1}, {so + q*1024}\ns_add_u32 s{sW2o}, s{sSOW}, {q*4*3584}")
                vm(f"buffer_load_dwordx4 v{v1d2 if q >= 2 else v1d}, s[{sW1}:{sW1+3}], s{sW2o} offen lds", u)
            else:
                a(f"s_add_u32 m0, s{sMQ}, {so + q*1024}\ns_nop 0")
                vm(f"buffer_load_dwordx4 v{vQd[q]}, s[{sWQ}:{sWQ+3}], s{sSOW} offen lds", u)
            if q < 3:
                a(f"s_add_u32 m0, s{sMX}, {so + (q+1)*1024}\ns_nop 0")
                vm(xr[q + 1], u)
        a(f"""
        s_add_u32 s{sKX}, s{sKX}, 1
        s_and_b32 s{sKX}, s{sKX}, 7
        """)
    def wait_for(tag):
        last = max(i for i, t in enumerate(ops) if t == tag)
        a(f"s_waitcnt vmcnt({len(ops) - 1 - last})")
    unit(0); unit(1)
    pf.stamp(1)
    a(f"""
    s_or_b32 s{sT0}, s2, s{sW}
    s_cmp_lg_u32 s{sT0}, 0
    s_cbranch_scc1 L_noep
    s_memrealtime s[42:43]
    v_mov_b32 v{vT0}, 0
    s_waitcnt lgkmcnt(0)
    s_or_b32 s42, s42, 1
    v_mov_b32 v{vOnes}, s42
    v_mov_b32 v{vOnes+1}, s43
    s_mov_b64 exec, 1
    buffer_store_dwordx2 {vr(vOnes,2)}, v{vT0}, s[{sDB}:{sDB+3}], 0 offen sc1
    s_mov_b64 exec, -1
    s_waitcnt vmcnt(0)
    L_noep:
    ; W1 addressing
    s_mov_b32 s{sW1}, s32
    s_mov_b32 s{sW1+1}, s33
    s_mov_b32 s{sW1+2}, {512*1792*2}
    s_mov_b32 s{sW1+3}, 0x00020000
    s_add_u32 s{sM1}, s{sMX}, {W_BASE}
    s_mul_i32 s{sB1o}, s{sW}, {16*3584}
    s_mul_i32 s{sT0}, s{sJ}, 224
    s_add_u32 s{sB1o}, s{sB1o}, s{sT0}
    v_lshrrev_b32 v{vT1}, 1, v0
    v_sub_u32 v{vT1}, v{vT1}, v{vG}
    v_mul_u32_u24 v{vT2}, 3584, v{vG}
    v_and_b32 v{vT3}, 1, v0
    v_lshl_add_u32 v{vT2}, v{vT3}, 4, v{vT2}
    v_and_b32 v{vT3}, 7, v{vT1}
    v_min_u32 v{vT0}, 6, v{vT3}
    v_lshl_add_u32 v{v1d}, v{vT0}, 5, v{vT2}
    v_xor_b32 v{vT3}, 4, v{vT3}
    v_min_u32 v{vT0}, 6, v{vT3}
    v_lshl_add_u32 v{v1d2}, v{vT0}, 5, v{vT2}
    """)
    nxt = 2
    for b in range(16):
        wait_for(b)
        a("s_barrier")
        if ('td0' in EXP and b == 0) or ('td8' in EXP and b == 8): a("s_memrealtime s[74:75]")
        tgt = min(16, b + NS)
        while nxt < tgt: unit(nxt); nxt += 1
        if b == 1:
            a(f"""
            s_mov_b32 s{sGW}, s36
            s_mov_b32 s{sGW+1}, s37
            s_mov_b32 s{sGW+2}, 1024
            s_mov_b32 s{sGW+3}, 0x00020000
            s_lshl_b32 s{sT0}, s{sI}, 7
            s_lshl_b32 s{sT1}, s{sJ}, 3
            s_add_u32 s{sT0}, s{sT0}, s{sT1}
            s_lshl_b32 s{sT1}, s{sW}, 1
            s_add_u32 s{sN}, s{sT0}, s{sT1}
            s_lshl_b32 s{sT1}, s{sN}, 10
            v_and_b32 v{vT1}, 31, v0
            v_lshlrev_b32 v{vT1}, 5, v{vT1}
            v_lshrrev_b32 v{vT2}, 5, v0
            v_lshl_add_u32 v{vT2}, v{vT2}, 10, v{vT1}
            """)
            vm(f"buffer_load_dwordx4 {vr(vGX,4)}, v{vT2}, s[{sX}:{sX+3}], s{sT1} offen", 'g')
            vm(f"buffer_load_dwordx4 {vr(vGX+4,4)}, v{vT2}, s[{sX}:{sX+3}], s{sT1} offen offset:16", 'g')
            vm(f"buffer_load_dwordx4 {vr(vGW,4)}, v{vT1}, s[{sGW}:{sGW+3}], 0 offen", 'g')
            vm(f"buffer_load_dwordx4 {vr(vGW+4,4)}, v{vT1}, s[{sGW}:{sGW+3}], 0 offen offset:16", 'g')
        if b == 2:
            a(f"""
            v_mov_b32 v{vOnes}, -1
            v_mov_b32 v{vOnes+1}, -1
            v_mov_b32 v{vOnes+2}, -1
            v_mov_b32 v{vOnes+3}, -1
            v_lshlrev_b32 v{vT0}, 4, v0
            s_bfe_u32 s{sT0}, s2, 0x40004
            s_lshl_b32 s{sT0}, s{sT0}, 2
            s_add_u32 s{sT0}, s{sT0}, s{sW}
            s_lshl_b32 s{sT0}, s{sT0}, 5
            s_and_b32 s{sT1}, s2, 7
            s_lshl_b32 s{sT1}, s{sT1}, 1
            s_add_u32 s{sT0}, s{sT0}, s{sT1}
            s_bfe_u32 s{sT1}, s2, 0x10003
            s_add_u32 s{sT0}, s{sT0}, s{sT1}
            s_lshl_b32 s{sT0}, s{sT0}, 10
            s_add_u32 s{sT0}, s{sT0}, {WS_O}
            s_add_u32 s{sT1}, s{sT0}, 16384
            """)
            vm(f"buffer_store_dwordx4 {vr(vOnes,4)}, v{vT0}, {wsrd}, s{sT0} offen sc1", 's')
            vm(f"buffer_store_dwordx4 {vr(vOnes,4)}, v{vT0}, {wsrd}, s{sT1} offen sc1", 's')
        if b == 5:
            wait_for('g')
            acc = vT1
            a(f"v_mov_b32 v{acc}, 0")
            for r in range(8): a(f"v_dot2_f32_bf16 v{acc}, v{vGX+r}, v{vGW+r}, v{acc}")
            a("s_nop 3")
            for mod in ["quad_perm:[1,0,3,2]", "quad_perm:[2,3,0,1]", "row_half_mirror", "row_mirror"]:
                a(f"v_add_f32_dpp v{acc}, v{acc}, v{acc} {mod} row_mask:0xf bank_mask:0xf")
            a(f"""
            v_mov_b32 v{vT2}, v{acc}
            v_mov_b32 v{vT3}, v{acc}
            v_permlane16_swap_b32 v{vT2}, v{vT3}
            v_add_f32 v{acc}, v{vT2}, v{vT3}
            v_mul_f32 v{acc}, {hex(f32bits(-LOG2E))}, v{acc}
            v_exp_f32 v{acc}, v{acc}
            v_add_f32 v{acc}, 1.0, v{acc}
            v_rcp_f32 v{acc}, v{acc}
            s_lshl_b32 s{sT0}, s{sN}, 2
            s_add_u32 s{sT0}, s{sT0}, {WS_G}
            v_lshrrev_b32 v{vT2}, 5, v0
            v_lshlrev_b32 v{vT2}, 2, v{vT2}
            s_mov_b32 exec_lo, 1
            s_mov_b32 exec_hi, 1
            """)
            vm(f"buffer_store_dword v{acc}, v{vT2}, {wsrd}, s{sT0} offen sc1", 'gs')
            a("s_mov_b64 exec, -1")
            assert nxt == 9
        if b == 13: epoch_load(a, vT0); ops.append('e')
        if b == 14:
            a(f"""
            v_lshlrev_b32 v{vT0}, 2, v0
            v_add_u32 v{vT0}, {CNT_BASE}, v{vT0}
            v_mov_b32 v{vT1}, 0
            ds_write_b32 v{vT0}, v{vT1}
            s_waitcnt lgkmcnt(0)
            """)
    a("s_barrier")
    if 'td1' in EXP: a("s_memrealtime s[74:75]")
    gemm_role(a, pf)
    a.label("L_comp")
    a.window = []
    vN16, vR, vC = 2, 4, 5
    vXr = [10, 11]
    vWr = list(range(12, 19))
    vF = 20
    FSZ = 36
    vACC = 96
    a(f"""
    v_and_b32 v{vN16}, 15, v0
    v_bfe_u32 v{vR}, v0, 2, 2
    v_and_b32 v{vC}, 3, v0
    v_lshrrev_b32 v{vT0}, 1, v{vN16}
    v_xor_b32 v{vT0}, v{vG}, v{vT0}
    v_lshlrev_b32 v{vT0}, 4, v{vT0}
    v_lshl_add_u32 v{vT0}, v{vN16}, 7, v{vT0}
    s_lshl_b32 s{sT0}, s{sW}, 12
    v_add_u32 v{vXr[0]}, s{sT0}, v{vT0}
    v_xor_b32 v{vXr[1]}, 64, v{vXr[0]}
    s_mov_b32 s{sSL}, 0
    s_mov_b32 s{sC}, 0
    s_mov_b32 s{sMX}, {-(NS-1)*XS}
    v_lshl_add_u32 v{vT1}, v{vG}, 3, v{vR}
    v_and_b32 v{vT2}, 1, v{vG}
    s_waitcnt lgkmcnt(0)
    s_cmp_ge_u32 s{sWAVE}, 4
    s_cbranch_scc1 L_ffn
    """)
    def frag(buf):
        b = vF + buf * FSZ
        return [b, b + 4], [b + 8 + 4 * i for i in range(7)]
    def role(name, nt, isq):
        nwr = 2 if isq else 7
        def reads(buf, s2):
            X, W = frag(buf); L = []
            for t in range(2): L.append(f"ds_read_b128 {vr(X[t],4)}, v{vXr[s2]} offset:{t*2048}")
            for ct in range(nt):
                for t2 in range(2):
                    if isq: va, off = vWr[ct & 1], (32 * s2 + 4 * t2) * 192 + ct * 32
                    else:   va, off = vWr[ct], (32 * s2 + 4 * t2) * 256
                    L.append(f"ds_read_b64_tr_b16 {vr(W[ct]+2*t2,2)}, v{va} offset:{off}")
            return L
        def mfmas(buf):
            X, W = frag(buf); L = []
            for ct in range(nt):
                for t in range(2):
                    acc = vACC + (ct * 2 + t) * 4
                    if isq and ct >= 4: L.append(f"v_mfma_f32_16x16x32_bf16 {vr(acc,4)}, {vr(X[t],4)}, {vr(W[ct],4)}, {vr(acc,4)}")
                    else:               L.append(f"v_mfma_f32_16x16x32_bf16 {vr(acc,4)}, {vr(W[ct],4)}, {vr(X[t],4)}, {vr(acc,4)}")
            return L
        if isq:
            a(f"""
            v_mul_u32_u24 v{vT1}, 192, v{vT1}
            v_lshl_add_u32 v{vT1}, v{vC}, 3, v{vT1}
            v_add_u32 v{vT1}, {W_BASE}, v{vT1}
            v_lshlrev_b32 v{vT2}, 5, v{vT2}
            v_add_u32 v{vWr[0]}, v{vT1}, v{vT2}
            v_sub_u32 v{vWr[1]}, v{vT1}, v{vT2}
            s_waitcnt vmcnt(0)
            """)
            for r in range(48): a(f"v_mov_b32 v{vACC+r}, 0")
        else:
            vB = vF + FSZ
            a(f"""
            s_mov_b32 s{sB1}, s34
            s_mov_b32 s{sB1+1}, s35
            s_mov_b32 s{sB1+2}, {1792*2}
            s_mov_b32 s{sB1+3}, 0x00020000
            s_mul_i32 s{sT1}, s{sJ}, 224
            v_lshlrev_b32 v{vT3}, 3, v{vG}
            s_barrier
            """)
            for ct in range(7):
                a(f"buffer_load_dwordx2 {vr(vB+2*ct,2)}, v{vT3}, s[{sB1}:{sB1+3}], s{sT1} offen offset:{ct*32}")
            a(f"""
            v_lshlrev_b32 v{vT1}, 8, v{vT1}
            v_lshl_add_u32 v{vT1}, v{vC}, 3, v{vT1}
            v_add_u32 v{vT1}, {W_BASE}, v{vT1}
            v_lshl_add_u32 v{vT2}, v{vT2}, 2, v{vR}
            """)
            for ct in range(7):
                a(f"""
                v_add_u32 v{vT3}, {ct}, v{vT2}
                v_and_b32 v{vT3}, 7, v{vT3}
                v_lshl_add_u32 v{vWr[ct]}, v{vT3}, 5, v{vT1}
                """)
            for u in range(1, 5): a("s_barrier")
            a("s_waitcnt vmcnt(0)")
            for ct in range(7):
                for t in range(2):
                    acc = vACC + (ct * 2 + t) * 4
                    a(f"""
                    v_lshlrev_b32 v{acc}, 16, v{vB+2*ct}
                    v_and_b32 v{acc+1}, 0xffff0000, v{vB+2*ct}
                    v_lshlrev_b32 v{acc+2}, 16, v{vB+2*ct+1}
                    v_and_b32 v{acc+3}, 0xffff0000, v{vB+2*ct+1}
                    """)
            a("s_barrier")
            at.setup(a, 1)
            for u in range(6, 8): a("s_barrier")
            a("s_setprio 1")
        a("s_barrier")
        pf.stamp(1)
        a("\n".join(reads(0, 0)))
        a.raw(".p2align 6")
        a.label(f"L_{name}_loop")
        start = len(a.lines)
        def chunks(R, n): return ["\n".join(R[i:i+n]) for i in range(0, len(R), n)]
        def emit(M, G):
            assert len(G) <= len(M), (len(G), len(M))
            for i, m in enumerate(M):
                a(m)
                if i < len(G): a(G[i])
        a("s_waitcnt lgkmcnt(0)")
        advs = [f"""s_add_u32 s{sSL}, s{sSL}, 1
                s_cmp_eq_u32 s{sSL}, {NS}""",
                f"""s_cselect_b32 s{sD}, s{sMX}, {XS}
                s_cselect_b32 s{sSL}, 0, s{sSL}"""] + chunks([f"v_add_u32 v{r}, s{sD}, v{r}" for r in vXr + vWr[:nwr]], 3)
        emit(mfmas(0), chunks(reads(1, 1), 2) + advs)
        a(f"""
        s_add_u32 s{sC}, s{sC}, 1
        s_cmp_eq_u32 s{sC}, 8
        s_waitcnt lgkmcnt(0)
        s_cbranch_scc1 L_{name}_last
        """)
        emit(mfmas(1), ["s_barrier"] + chunks(reads(0, 0), 2))
        a(f"s_branch L_{name}_loop")
        seam, inner = check_loop(a.lines[start:])
        assert seam == 0 and inner == 0, (seam, inner)
        a.label(f"L_{name}_last")
        a.window = []
        M = mfmas(1)
        a(M[0])
        epoch_load(a, vT1)
        if not isq: at.poll_issue(a)
        a("s_barrier")
        for m in M[1:]: a(m)
        vP = vF + 4
        vL = vT3 if isq else at.vKo
        a(f"""
        s_lshl_b32 s{sD}, s{sI}, 2
        s_add_u32 s{sD}, s{sD}, s{sW}
        """)
        if isq: a(f"v_lshlrev_b32 v{vL}, 4, v0")
        if isq:
            a(f"""
            s_lshl_b32 s{sT0}, s{sD}, 10
            s_lshl_b32 s{sT1}, s{sJ}, 18
            s_add_u32 s{sT1}, s{sT1}, s{sT0}
            s_lshl_b32 s{sN}, s{sJ}, 17
            s_add_u32 s{sN}, s{sN}, s{sT0}
            s_add_u32 s{sN}, s{sN}, {WS_V}
            s_mov_b32 s{sT2}, {hex(f32bits(QSCALE))}
            s_cmp_lt_u32 s{sJ}, 8
            s_cselect_b32 s{sK2}, s{sT2}, 1.0
            s_mov_b32 s{sK2+1}, s{sK2}
            """)
            for ct in range(6):
                p = vP + 4 * ct
                a0 = vACC + ct * 8
                if ct < 4:
                    for r in range(0, 8, 2): a(f"v_pk_mul_f32 {vr(a0+r,2)}, {vr(a0+r,2)}, s[{sK2}:{sK2+1}]")
                sw = "v_permlane32_swap_b32" if ct >= 4 else "v_permlane16_swap_b32"
                for r in range(4): a(f"v_cvt_pk_bf16_f32 v{p+r}, v{a0+2*r}, v{a0+2*r+1}")
                a(f"""
                s_add_u32 s{sT0}, s{sT1 if ct < 4 else sN}, {(ct & 3)*65536}
                {sw} v{p}, v{p+2}
                {sw} v{p+1}, v{p+3}
                buffer_store_dwordx4 {vr(p,4)}, v{vL}, {wsrd}, s{sT0} offen sc1
                """)
            at.setup(a, 0)
            a(f"""
            s_lshl_b32 s{sN}, s{sJ}, 6
            s_add_u32 s{sN}, s{sN}, s{sD}
            s_lshl_b32 s{sN}, s{sN}, 3
            s_add_u32 s{sN}, s{sN}, {WS_FQ}
            """)
            FB = int(os.environ.get('FLAGB', '9'))
            for b in range(9, FB + 1): a("s_barrier")
            a("s_waitcnt vmcnt(0)")
            epoch_check(a, at.vT0, "a")
            a(f"""
            v_mov_b32 v{at.vT0}, 0
            s_mov_b64 exec, 1
            buffer_store_dwordx2 {vr(vEP,2)}, v{at.vT0}, {wsrd}, s{sN} offen sc1
            s_mov_b64 exec, -1
            """)
            for b in range(FB + 1, 16): a("s_barrier")
            at.poll_issue(a)
            a(f"""
            s_barrier
            s_setprio 3
            L_a_try:
            s_waitcnt vmcnt(0)
            """)
            at.poll_test(a)
            a(f"s_cbranch_scc1 L_a_go")
            a(f"s_sleep {int(os.environ.get('QSLEEP', '4'))}")
            at.poll_issue(a)
            a(f"""
            s_sub_u32 s{sSP}, s{sSP}, 1
            s_cbranch_scc0 L_a_try
            s_mov_b32 s{sSP}, 0
            s_waitcnt vmcnt(0)
            L_a_go:
            """)
            at.first_loads(a, "a")
            a("s_branch L_at_body")
        else:
            a(f"""
            s_mul_i32 s{sN}, s{sD}, 112
            s_mul_i32 s{sT1}, s{sJ}, 7
            s_add_u32 s{sN}, s{sN}, s{sT1}
            s_lshl_b32 s{sN}, s{sN}, 10
            s_add_u32 s{sN}, s{sN}, {WS_A}
            s_add_u32 s{sD}, s{sN}, 4096
            s_mov_b32 s{sK2}, {hex(f32bits(LOG2E))}
            s_mov_b32 s{sK2+1}, {hex(f32bits(LOG2E))}
            s_setprio 2
            """)
            def astore(ct):
                return f"buffer_store_dwordx4 {vr(vP+4*ct,4)}, v{vL}, {wsrd}, s{sN if ct < 4 else sD} offen offset:{(ct&3)*1024} sc1"
            NPRE = 2
            for ct in range(7):
                p = vP + 4 * ct
                h = vACC + ct * 8
                e = vF + FSZ; d = e + 8
                for r in range(0, 8, 2): a(f"v_pk_mul_f32 {vr(e+r,2)}, {vr(h+r,2)}, s[{sK2}:{sK2+1}]")
                for r in range(8): a(f"v_exp_f32 v{e+r}, v{e+r}")
                for r in range(0, 8, 2): a(f"v_pk_add_f32 {vr(e+r,2)}, {vr(e+r,2)}, 1.0 op_sel_hi:[1,0]")
                for r in range(0, 8, 2): a(f"v_pk_fma_f32 {vr(d+r,2)}, {vr(e+r,2)}, {vr(e+r,2)}, 1.0 op_sel_hi:[1,1,0]")
                for r in range(8): a(f"v_rcp_f32 v{d+r}, v{d+r}")
                for r in range(0, 8, 2): a(f"v_pk_mul_f32 {vr(d+r,2)}, {vr(d+r,2)}, {vr(h+r,2)}")
                for r in range(0, 8, 2): a(f"v_pk_fma_f32 {vr(d+r,2)}, {vr(d+r,2)}, -2.0, {vr(h+r,2)} op_sel_hi:[1,0,1]")
                for r in range(4): a(f"v_cvt_pk_bf16_f32 v{p+r}, v{d+2*r}, v{d+2*r+1}")
                a(f"""
                v_permlane16_swap_b32 v{p}, v{p+2}
                v_permlane16_swap_b32 v{p+1}, v{p+3}
                """)
                if ct >= NPRE: a(astore(ct))
                if ct == NPRE - 1:
                    a("s_waitcnt vmcnt(0)")
                    epoch_check(a, at.vT0, "b")
                    a.label("L_b_try")
                    at.poll_test(a)
                    a("s_cbranch_scc1 L_b_go")
                    a("s_sleep 8")
                    at.poll_issue(a)
                    a(f"""
                    s_sub_u32 s{sSP}, s{sSP}, 1
                    s_waitcnt vmcnt(0)
                    s_cbranch_scc0 L_b_try
                    s_mov_b32 s{sSP}, 0
                    L_b_go:
                    """)
                    at.first_loads(a, "b")
                    for c2 in range(NPRE): a(astore(c2))
            a("s_nop 2")
    role("qkv", 6, True)
    a.label("L_ffn")
    a.window = []
    role("ffn", 7, False)
    at.body(a, pf)
    a.label("L_end")
    a("s_endpgm")
    NV = 160
    return a.text(), kernel_desc(NAME, NV, 88), f"; @launch grid=(256,1,1) block=(768,1,1) lds={LDS_BYTES}"
```

```python
import sys, os
import asmlib
from asmlib import *
import mono
from build import build
N = "k9_nop_kernel"
nop = (kernel_header(N) + "    s_endpgm\n", kernel_desc(N, 8, 16), f"; @launch kernel={N} grid=(1,1,1) block=(64,1,1) lds=0")
t, d, l = mono.gen()
l = l.replace("; @launch grid", f"; @launch kernel={mono.NAME} grid")
M = (t, d, l)
build([M], "n_m.s")
def build2(order, path):
    build(order, path)
build([nop, M], "n_nm.s"); build([M, nop], "n_mn.s"); build([M, M], "n_mm.s")
```

```python
from asmlib import *
import asmlib
from layout import *
import os
EXP = os.environ.get('EXP', '')
NAME = "gated_mix__softmax_full_mha__dense_activation_mish__prompt_kernel"
NS = int(os.environ.get('NS', '4'))
FIRST = int(os.environ.get('FIRST', '2'))
XS = 16384
W_BASE = NS * XS
RING = 12288
AT_BASE = [0, 49152]
GM_BASE = 98304
CNT_BASE = 147456
LDS_BYTES = max(CNT_BASE + 256, 2 * NS * XS)
SPIN_MAX = 1 << 18
FSH = int(os.environ.get('FSH', '7'))
WS_FQ = 10 * MB
WS_FA2 = 10 * MB + (1 << 18)
FQ = int(os.environ.get('FQ', '3')); FST = int(os.environ.get('FST', '0'))
PSLEEP = int(os.environ.get('PSLEEP', '12'))

sWS = 8
sDB = 12
sWAVE, sW, sI, sJ = 16, 17, 18, 19
sSP = 20
sT0, sT1, sT2 = 21, 22, 23
vEP = 154
wsrd = f"s[{sWS}:{sWS+3}]"

def epoch_load(a, vz):
    a(f"""
    v_mov_b32 v{vz}, 0
    buffer_load_dwordx2 {vr(vEP,2)}, v{vz}, s[{sDB}:{sDB+3}], 0 offen sc1
    """)
def epoch_check(a, vz, tag):
    a(f"""
    L_ep{tag}:
    v_cmp_ne_u32 vcc, 0, v{vEP}
    s_cbranch_vccnz L_epok{tag}
    v_mov_b32 v{vz}, 0
    buffer_load_dwordx2 {vr(vEP,2)}, v{vz}, s[{sDB}:{sDB+3}], 0 offen sc1
    s_sub_u32 s{sSP}, s{sSP}, 1
    s_waitcnt vmcnt(0)
    s_cbranch_scc0 L_ep{tag}
    s_mov_b32 s{sSP}, 0
    L_epok{tag}:
    """)
def group_sync(a, idx, vt, vt2, tag):
    a(f"""
    v_mov_b32 v{vt}, {CNT_BASE + 4*idx}
    v_mov_b32 v{vt2}, 1
    s_mov_b64 exec, 1
    ds_add_u32 v{vt}, v{vt2}
    s_mov_b64 exec, -1
    L_gs{tag}:
    ds_read_b32 v{vt2}, v{vt}
    s_sub_u32 s{sSP}, s{sSP}, 1
    s_cselect_b32 s{sT1}, 4, 0
    s_waitcnt lgkmcnt(0)
    v_readfirstlane_b32 s{sT0}, v{vt2}
    s_add_u32 s{sT0}, s{sT0}, s{sT1}
    s_cmp_lt_u32 s{sT0}, 4
    s_cbranch_scc1 L_gs{tag}
    """)

class Attn:
    sKV = 24
    sH, sQB, sKT, sC, sM, sQ0 = 28, 29, 30, 31, 32, 34
    sRB, sPO, sD, sGB, sGI = 35, 36, 37, 38, 39
    sFI, sFA = 42, 43
    vKo, vVo = 1, 2
    vT0, vT1, vT2, vT3, vG = 3, 4, 5, 6, 7
    vQ, vK, vV, vP, vS, vO = 8, 24, 32, 48, 56, 88
    vKr, vVr = 152, 153
    vFO, vFV = 156, 158
    def setup(self, a, grp):
        s = self
        a(f"""
        s_and_b32 s{sT0}, s2, 7
        s_lshl_b32 s{s.sH}, s{sT0}, 1
        s_bfe_u32 s{sT0}, s2, 0x10003
        s_add_u32 s{s.sH}, s{s.sH}, s{sT0}
        s_add_u32 s{s.sH}, s{s.sH}, {16*grp}
        s_bfe_u32 s{s.sQB}, s2, 0x40004
        s_mov_b32 s{s.sKV}, s{sWS}
        s_mov_b32 s{s.sKV+1}, s{sWS+1}
        s_mov_b32 s{s.sKV+2}, {WS_SIZE}
        s_mov_b32 s{s.sKV+3}, 0x00020000
        s_mov_b32 s{s.sM}, 0x0000ffff
        s_mov_b32 s{s.sM+1}, 0x0000ffff
        s_lshl_b32 s{sT0}, s{s.sH}, 16
        s_lshl_b32 s{sT1}, s{s.sQB}, 12
        s_add_u32 s{s.sQ0}, s{sT0}, s{sT1}
        s_lshl_b32 s{sT1}, s{sW}, 14
        s_add_u32 s{s.sKT}, s{sT0}, s{sT1}
        s_add_u32 s{s.sKT}, s{s.sKT}, {WS_K}
        s_mov_b32 s{s.sGB}, {AT_BASE[grp]}
        s_mov_b32 s{s.sGI}, {CNT_BASE + 4*grp}
        s_mov_b32 s{s.sFI}, {0 if grp else 99}
        s_lshl_b32 s{s.sFA}, s{sI}, 2
        s_add_u32 s{s.sFA}, s{s.sFA}, s{sW}
        s_lshl_b32 s{s.sFA}, s{s.sFA}, 4
        s_add_u32 s{s.sFA}, s{s.sFA}, s{sJ}
        s_lshl_b32 s{s.sFA}, s{s.sFA}, {FSH}
        s_add_u32 s{s.sFA}, s{s.sFA}, {WS_FA2}
        s_mul_i32 s{s.sRB}, s{sW}, {RING}
        s_add_u32 s{s.sRB}, s{s.sRB}, s{s.sGB}
        v_lshlrev_b32 v{s.vKo}, 4, v0
        v_add_u32 v{s.vVo}, {WS_V - WS_K}, v{s.vKo}
        s_lshr_b32 s{sT0}, s{s.sH}, 2
        s_lshl_b32 s{sT0}, s{sT0}, 6
        s_lshl_b32 s{sT1}, s{sW}, 4
        s_add_u32 s{sT2}, s{sT0}, s{sT1}
        s_add_u32 s{sT2}, s{sT2}, 512
        v_add_u32 v{s.vFO}, s{sT2}, v0
        s_lshr_b32 s{sT2}, s{s.sH}, 1
        s_lshl_b32 s{sT2}, s{sT2}, 6
        s_add_u32 s{sT2}, s{sT2}, s{sT1}
        s_sub_u32 s{sT2}, s{sT2}, 16
        v_add_u32 v{s.vT0}, s{sT2}, v0
        v_cmp_le_u32 vcc, 16, v0
        v_cndmask_b32 v{s.vFO}, v{s.vFO}, v{s.vT0}, vcc
        s_lshl_b32 s{sT1}, s{s.sQB}, 2
        s_add_u32 s{sT2}, s{sT0}, s{sT1}
        s_sub_u32 s{sT2}, s{sT2}, 32
        v_add_u32 v{s.vT0}, s{sT2}, v0
        v_cmp_le_u32 vcc, 32, v0
        v_cndmask_b32 v{s.vFO}, v{s.vFO}, v{s.vT0}, vcc
        s_lshl_b32 s{sT2}, s{sW}, 8
        s_add_u32 s{sT2}, s{sT2}, s{sT1}
        v_and_b32 v{s.vT0}, 3, v0
        v_lshlrev_b32 v{s.vT0}, 6, v{s.vT0}
        v_add_u32 v{s.vT0}, s{sT2}, v{s.vT0}
        v_cmp_le_u32 vcc, 36, v0
        v_cndmask_b32 v{s.vFO}, v{s.vFO}, v{s.vT0}, vcc
        v_lshlrev_b32 v{s.vFO}, {FSH}, v{s.vFO}
        v_add_u32 v{s.vFO}, {WS_FQ}, v{s.vFO}
        """)
    def poll_issue(self, a):
        a(f"buffer_load_dwordx2 {vr(self.vFV,2)}, v{self.vFO}, {wsrd}, 0 offen sc1")
    def poll_test(self, a):
        a(f"""
        v_cmp_ne_u64 vcc, {vr(self.vFV,2)}, {vr(vEP,2)}
        s_cmp_eq_u64 vcc, 0
        """)
    def first_loads(self, a, tag):
        s = self
        kv = f"s[{s.sKV}:{s.sKV+3}]"
        a(f"""
        s_lshl_b32 s{sT1}, s{sW}, 10
        v_xor_b32 v{s.vT2}, s{sT1}, v{s.vKo}
        s_mov_b32 m0, s{s.sRB}
        s_mov_b32 s{s.sC}, 0
        """)
        for q in range(4):
            if q: a(f"v_xor_b32 v{s.vT3}, {q*1024}, v{s.vT2}")
            a(f"buffer_load_dwordx4 {vr(s.vQ+4*q,4)}, v{s.vT3 if q else s.vT2}, {wsrd}, s{s.sQ0} offen sc1")
        a(f"""
        L_pre{tag}:
        buffer_load_dwordx4 v{s.vKo}, {kv}, s{s.sKT} offen sc1 lds
        s_add_u32 m0, m0, 1024
        s_add_u32 s{s.sC}, s{s.sC}, 1
        buffer_load_dwordx4 v{s.vVo}, {kv}, s{s.sKT} offen sc1 lds
        s_add_u32 m0, m0, 1024
        s_add_u32 s{s.sKT}, s{s.sKT}, 1024
        s_cmp_lt_u32 s{s.sC}, 6
        s_cbranch_scc1 L_pre{tag}
        s_lshl_b32 s{sT0}, s{s.sQB}, 2
        s_add_u32 s{sT0}, s{sT0}, s{sW}
        s_lshl_b32 s{sT0}, s{sT0}, 7
        s_add_u32 s{sT0}, s{sT0}, {WS_G}
        v_and_b32 v{s.vT0}, 31, v0
        v_lshlrev_b32 v{s.vT0}, 2, v{s.vT0}
        buffer_load_dword v{s.vG}, v{s.vT0}, {wsrd}, s{sT0} offen sc1
        """)
    def body(self, a, pf):
        s = self; P = "at"
        sKV, sH, sQB, sKT, sC, sM, sRB, sPO, sD = s.sKV, s.sH, s.sQB, s.sKT, s.sC, s.sM, s.sRB, s.sPO, s.sD
        vKo, vVo, vT0, vT1, vT2, vT3, vG = s.vKo, s.vVo, s.vT0, s.vT1, s.vT2, s.vT3, s.vG
        vQ, vK, vV, vP, vS, vO, vKr, vVr = s.vQ, s.vK, s.vV, s.vP, s.vS, s.vO, s.vKr, s.vVr
        kv = f"s[{sKV}:{sKV+3}]"
        a.label("L_at_body")
        a.window = []
        a(f"""
        v_add_u32 v{vKr}, s{sRB}, v{vKo}
        v_and_b32 v{vT0}, 15, v0
        v_lshlrev_b32 v{vT0}, 4, v{vT0}
        v_lshrrev_b32 v{vT1}, 5, v0
        v_lshl_add_u32 v{vT0}, v{vT1}, 8, v{vT0}
        v_add_u32 v{vVr}, s{sRB}, v{vT0}
        v_and_b32 v{vT1}, 27, v0
        v_cmp_eq_u32 vcc, 16, v{vT1}
        v_mov_b32 v{vT1}, 0x3f803f80
        v_cndmask_b32 v{vT1}, 0, v{vT1}, vcc
        """)
        for r in range(16): a(f"v_mov_b32 v{vV+r}, v{vT1}")
        def reads(st, off):
            return f"""ds_read_b128 {vr(vK+4*st,4)}, v{vKr} offset:{off}
            s_mov_b64 exec, s[{sM}:{sM+1}]
            ds_read_b128 {vr(vV+8*st,4)}, v{vVr} offset:{off+1024}
            ds_read_b128 {vr(vV+8*st+4,4)}, v{vVr} offset:{off+1536}
            s_mov_b64 exec, -1"""
        def dma(off):
            return f"""s_add_u32 m0, s{sPO}, {off}
            s_setprio 3
            buffer_load_dwordx4 v{vKo}, {kv}, s{sKT} offen sc1 lds
            s_add_u32 m0, s{sPO}, {off+1024}
            s_nop 0
            buffer_load_dwordx4 v{vVo}, {kv}, s{sKT} offen sc1 lds
            s_setprio 1
            s_add_u32 s{sKT}, s{sKT}, 1024"""
        for r in range(4, 8): a(f"v_mov_b32 v{vP+r}, 0")
        for t in range(4): a(f"v_mfma_f32_32x32x16_bf16 {vr(vO+16*t,16)}, {vr(vP+4,4)}, {vr(vP+4,4)}, 0")
        a(f"s_mov_b32 s{sC}, 0")
        a(f"s_mov_b32 s{sPO}, s{sRB}")
        a("s_waitcnt vmcnt(11)")
        pf.stamp(2)
        a(reads(0, 0))
        a("s_waitcnt lgkmcnt(0)")
        def mfS(sb, st, q): return f"v_mfma_f32_32x32x16_bf16 {vr(vS+16*sb,16)}, {vr(vK+4*st,4)}, {vr(vQ+4*q,4)}, 0"
        def mfPV(q, st, u): return f"v_mfma_f32_32x32x16_bf16 {vr(vO+16*q,16)}, {vr(vV+8*st+4*u,4)}, {vr(vP+4*u,4)}, {vr(vO+16*q,16)}"
        a(mfS(0, 0, 0))
        a(dma(0))
        a("s_nop 7")
        a.raw(".p2align 6")
        a.label(f"L_{P}_loop")
        start = len(a.lines)
        for st in range(2):
            off = 2048 if st == 0 else 0
            for q in range(4):
                sb = q & 1
                S = vS + 16 * sb
                ex = lambda i: f"v_exp_f32 v{S+i}, v{S+i}"
                cv = lambda i: f"v_cvt_pk_bf16_f32 v{vP+i}, v{S+2*i}, v{S+2*i+1}"
                pq, pst = (q - 1, st) if q > 0 else (3, st ^ 1)
                nq, nst = (q + 1, st) if q < 3 else (0, st ^ 1)
                a(ex(0)); a(ex(1))
                a(mfPV(pq, pst, 1))
                if q == 0 and st == 1:
                    a(f"""
                    s_add_u32 s{sT0}, s{sPO}, 4096
                    s_add_u32 s{sT1}, s{sRB}, {RING}
                    s_cmp_eq_u32 s{sT0}, s{sT1}
                    s_cselect_b32 s{sT0}, s{sRB}, s{sT0}
                    s_sub_u32 s{sD}, s{sT0}, s{sPO}
                    s_mov_b32 s{sPO}, s{sT0}
                    v_add_u32 v{vKr}, s{sD}, v{vKr}
                    v_add_u32 v{vVr}, s{sD}, v{vVr}
                    """)
                if q == FQ and st == FST:
                    a(f"""
                    s_cmp_eq_u32 s{sC}, s{s.sFI}
                    s_cbranch_scc1 L_{P}_flag
                    L_{P}_flagret:
                    """)
                if q == 1:
                    a("s_waitcnt vmcnt(10)")
                    a(reads(st ^ 1, off))
                for i in range(2, 6): a(ex(i))
                if q == 3: a("s_waitcnt lgkmcnt(0)")
                a(mfS(sb ^ 1, nst, nq))
                if q == 3:
                    if st == 1:
                        a(f"""
                        s_cmp_ge_u32 s{sC}, 4
                        s_cselect_b32 s{sKV+2}, 0, s{sKV+2}
                        """)
                    a(dma(off))
                a(ex(6)); a(ex(7))
                for i in range(4): a(cv(i))
                a(ex(8)); a(ex(9))
                a(mfPV(q, st, 0))
                for i in range(10, 16): a(ex(i))
                for i in range(4, 8): a(cv(i))
        a(f"""
        s_add_u32 s{sC}, s{sC}, 1
        s_cmp_lt_u32 s{sC}, 8
        s_cbranch_scc1 L_{P}_loop
        """)
        seam, inner = check_loop(a.lines[start:])
        assert seam == 0 and inner == 0, (seam, inner)
        a(mfPV(3, 1, 1))
        a("s_setprio 3")
        pf.stamp(3)
        a(f"""
        v_add_u32 v{vT0}, s{sRB}, v{vKo}
        v_lshlrev_b32 v{vT1}, 2, v0
        v_add_u32 v{vT2}, s{sRB}, v{vT1}
        s_waitcnt vmcnt(0)
        """)
        for j in range(1, 4):
            o = vO + 16 * j
            a(f"""
            ds_write_b128 v{vT0}, {vr(o,4)} offset:{(j-1)*2304}
            ds_write_b128 v{vT0}, {vr(o+4,4)} offset:{(j-1)*2304+1024}
            ds_write_b32 v{vT2}, v{o+8} offset:{(j-1)*2304+2048}
            """)
        a(f"""
        v_mov_b32 v{vT2}, s{s.sGI}
        v_mov_b32 v{vT3}, 1
        s_waitcnt lgkmcnt(0)
        s_mov_b64 exec, 1
        ds_add_u32 v{vT2}, v{vT3}
        s_mov_b64 exec, -1
        L_at_gs:
        s_sleep 1
        ds_read_b32 v{vT3}, v{vT2}
        s_sub_u32 s{sSP}, s{sSP}, 1
        s_cselect_b32 s{sT1}, 4, 0
        s_waitcnt lgkmcnt(0)
        v_readfirstlane_b32 s{sT0}, v{vT3}
        s_add_u32 s{sT0}, s{sT0}, s{sT1}
        s_cmp_lt_u32 s{sT0}, 4
        s_cbranch_scc1 L_at_gs
        """)
        R = vO
        for j in range(1, 4):
            o = vO + 16 * j
            a(f"""
            s_xor_b32 s{sT0}, s{sW}, {j}
            s_mul_i32 s{sT0}, s{sT0}, {RING}
            s_add_u32 s{sT0}, s{sT0}, s{s.sGB}
            v_add_u32 v{vT0}, s{sT0}, v{vKo}
            v_add_u32 v{vT2}, s{sT0}, v{vT1}
            ds_read_b128 {vr(o,4)}, v{vT0} offset:{(j-1)*2304}
            ds_read_b128 {vr(o+4,4)}, v{vT0} offset:{(j-1)*2304+1024}
            ds_read_b32 v{o+8}, v{vT2} offset:{(j-1)*2304+2048}
            """)
        a("s_waitcnt lgkmcnt(0)")
        for r in range(0, 8, 2):
            a(f"v_pk_add_f32 {vr(R+r,2)}, {vr(R+r,2)}, {vr(R+16+r,2)}")
            a(f"v_pk_add_f32 {vr(R+32+r,2)}, {vr(R+32+r,2)}, {vr(R+48+r,2)}")
        a(f"v_add_f32 v{R+8}, v{R+8}, v{R+24}")
        a(f"v_add_f32 v{R+40}, v{R+40}, v{R+56}")
        for r in range(0, 8, 2):
            a(f"v_pk_add_f32 {vr(R+r,2)}, {vr(R+r,2)}, {vr(R+32+r,2)}")
        a(f"v_add_f32 v{R+8}, v{R+8}, v{R+40}")
        a(f"v_mov_b32 v{vT2}, v{R+8}")
        for r in range(8): a(f"v_fma_f32 v{vT2}, v{R+r}, 0, v{vT2}")
        a(f"""
        s_mov_b32 s{sT0}, {hex(f32bits(2.0**-30))}
        s_mov_b32 s{sT1}, {hex(f32bits(2.0**30))}
        v_cmp_le_f32 vcc, s{sT0}, v{vT2}
        v_cmp_ge_f32 s[40:41], s{sT1}, v{vT2}
        s_and_b64 vcc, vcc, s[40:41]
        s_cmp_eq_u64 vcc, -1
        s_cbranch_scc0 L_{P}_slow
        L_{P}_fin:
        v_rcp_f32 v{vT2}, v{R+8}
        s_lshl_b32 s{sT0}, s{sQB}, 2
        s_add_u32 s{sT0}, s{sT0}, s{sW}
        s_lshl_b32 s{sT0}, s{sT0}, 5
        s_add_u32 s{sT0}, s{sT0}, s{sH}
        s_lshl_b32 s{sT0}, s{sT0}, 10
        s_add_u32 s{sT0}, s{sT0}, {WS_O}
        v_mul_f32 v{vT2}, v{vT2}, v{vG}
        """)
        for r in range(8): a(f"v_mul_f32 v{R+r}, v{R+r}, v{vT2}")
        for r in range(4): a(f"v_cvt_pk_bf16_f32 v{vP+r}, v{R+2*r}, v{R+2*r+1}")
        for r in range(4): a(f"v_min_u32 v{vP+r}, -2, v{vP+r}")
        a(f"""
        v_permlane32_swap_b32 v{vP}, v{vP+2}
        v_permlane32_swap_b32 v{vP+1}, v{vP+3}
        buffer_store_dwordx4 {vr(vP,4)}, v{vKo}, {wsrd}, s{sT0} offen sc1
        """)
        pf.stamp(4)
        if asmlib.PROF: a("s_waitcnt vmcnt(0)")
        pf.stamp(5)
        pf.dump(6, 2, sWAVE, 16, vT0, vT1)
        a("s_endpgm")
        a(f"""
        L_{P}_flag:
        s_waitcnt vmcnt({2 + 2*FST})
        v_mov_b32 v{vT0}, 0
        s_mov_b64 exec, 1
        buffer_store_dwordx2 {vr(vEP,2)}, v{vT0}, {wsrd}, s{s.sFA} offen sc1
        s_mov_b64 exec, -1
        s_branch L_{P}_flagret
        """)
        a.label(f"L_{P}_slow")
        a.window = []
        vM = vT3; S = vS
        a(f"""
        s_lshl_b32 s{sT1}, s{sH}, 16
        s_add_u32 s{sT1}, s{sT1}, {WS_K}
        s_mov_b32 s{sKT}, s{sT1}
        s_mov_b32 s{sC}, 0
        v_mov_b32 v{vM}, 0xff800000
        v_and_b32 v{vT0}, 15, v0
        v_lshlrev_b32 v{vT0}, 4, v{vT0}
        v_lshrrev_b32 v{vT1}, 5, v0
        v_lshl_add_u32 v{vT0}, v{vT1}, 8, v{vT0}
        v_add_u32 v{vVo}, {WS_V - WS_K}, v{vT0}
        L_{P}_slow1:
        buffer_load_dwordx4 {vr(vK,4)}, v{vKo}, {wsrd}, s{sKT} offen sc1
        s_add_u32 s{sKT}, s{sKT}, 1024
        s_waitcnt vmcnt(0)
        {mfS(0,0,0)}
        """)
        for r in range(0, 16, 2): a(f"v_max3_f32 v{vM}, v{vM}, v{S+r}, v{S+r+1}")
        a(f"""
        s_add_u32 s{sC}, s{sC}, 1
        s_cmp_lt_u32 s{sC}, 64
        s_cbranch_scc1 L_{P}_slow1
        v_mov_b32 v{vT0}, v{vM}
        v_mov_b32 v{vT1}, v{vM}
        v_permlane32_swap_b32 v{vT0}, v{vT1}
        v_max_f32 v{vM}, v{vT0}, v{vT1}
        s_mov_b32 s{sKT}, s{sT1}
        s_mov_b32 s{sC}, 0
        """)
        for r in range(16): a(f"v_mov_b32 v{R+r}, 0")
        a(f"""
        L_{P}_slow2:
        buffer_load_dwordx4 {vr(vK,4)}, v{vKo}, {wsrd}, s{sKT} offen sc1
        s_mov_b64 exec, s[{sM}:{sM+1}]
        buffer_load_dwordx4 {vr(vV,4)}, v{vVo}, {wsrd}, s{sKT} offen sc1
        buffer_load_dwordx4 {vr(vV+4,4)}, v{vVo}, {wsrd}, s{sKT} offen offset:512 sc1
        s_mov_b64 exec, -1
        s_add_u32 s{sKT}, s{sKT}, 1024
        s_waitcnt vmcnt(0)
        {mfS(0,0,0)}
        """)
        for r in range(16): a(f"v_sub_f32 v{S+r}, v{S+r}, v{vM}")
        for r in range(16): a(f"v_exp_f32 v{S+r}, v{S+r}")
        for i in range(8): a(f"v_cvt_pk_bf16_f32 v{vP+i}, v{S+2*i}, v{S+2*i+1}")
        a(mfPV(0, 0, 0)); a(mfPV(0, 0, 1))
        a(f"""
        s_nop 7
        s_add_u32 s{sC}, s{sC}, 1
        s_cmp_lt_u32 s{sC}, 64
        s_cbranch_scc1 L_{P}_slow2
        s_nop 15
        s_branch L_{P}_fin
        """)

def gemm_role(a, pf):
    P = "gm"
    sWT, sOUT = 24, 28
    sC, sD, sN = 32, 33, 34
    sWM, sWN = 35, 36
    sTW, sFJ, sAO, sWO, sWO2, sLB = 37, 38, 39, 40, 41, 42
    vL16 = 1
    vT0, vT1, vT2, vT3 = 2, 3, 4, 5
    vWd = 7
    vWr, vAo, vG1 = [10, 11], [12, 13], [14, 15]
    vF, vA, vACC = 16, 48, 80
    D = 4
    a(f"""
    s_setprio {int(os.environ.get('GPRIO', '0'))}
    s_load_dwordx2 s[{sWT}:{sWT+1}], s[0:1], 48
    s_load_dwordx2 s[44:45], s[0:1], 16
    s_load_dwordx2 s[{sOUT}:{sOUT+1}], s[0:1], 64
    s_mov_b32 s{sWT+2}, {1792*512*2}
    s_mov_b32 s{sWT+3}, 0x00020000
    s_mov_b32 s{sOUT+2}, {2048*512*2}
    s_mov_b32 s{sOUT+3}, 0x00020000
    s_and_b32 s{sWM}, s{sW}, 1
    s_lshr_b32 s{sWN}, s{sW}, 1
    v_lshlrev_b32 v{vL16}, 4, v0
    s_and_b32 s{sT0}, s2, 7
    s_lshl_b32 s{sTW}, s{sT0}, 2
    s_bfe_u32 s{sT0}, s2, 0x20003
    s_add_u32 s{sTW}, s{sTW}, s{sT0}
    s_lshr_b32 s{sFJ}, s2, 5
    s_mul_i32 s{sT0}, s{sTW}, 224
    s_mul_i32 s{sT1}, s{sW}, 28
    s_add_u32 s{sT0}, s{sT0}, s{sT1}
    s_lshl_b32 s{sAO}, s{sT0}, 10
    s_add_u32 s{sAO}, s{sAO}, {WS_A}
    s_lshl_b32 s{sWO}, s{sT1}, 14
    s_lshl_b32 s{sT2}, s{sFJ}, 7
    s_add_u32 s{sWO}, s{sWO}, s{sT2}
    s_mul_i32 s{sLB}, s{sW}, 12288
    s_add_u32 s{sLB}, s{sLB}, {GM_BASE}
    s_mul_i32 s{sT0}, s{sWM}, {112*1024}
    s_sub_u32 s{sT1}, {112*1024}, s{sT0}
    v_add_u32 v{vAo[0]}, s{sT0}, v{vL16}
    v_add_u32 v{vAo[1]}, s{sT1}, v{vL16}
    v_lshrrev_b32 v{vT0}, 2, v0
    v_lshrrev_b32 v{vT1}, 4, v0
    v_xor_b32 v{vT0}, v{vT0}, v{vT1}
    v_and_b32 v{vT0}, 1, v{vT0}
    v_lshlrev_b32 v{vT0}, 6, v{vT0}
    v_and_b32 v{vT1}, 3, v0
    v_lshl_add_u32 v{vT0}, v{vT1}, 4, v{vT0}
    v_lshrrev_b32 v{vT1}, 3, v0
    v_lshl_add_u32 v{vWd}, v{vT1}, 10, v{vT0}
    v_lshrrev_b32 v{vT0}, 5, v0
    v_bfe_u32 v{vT1}, v0, 2, 2
    v_lshl_add_u32 v{vT0}, v{vT0}, 3, v{vT1}
    v_lshlrev_b32 v{vT0}, 7, v{vT0}
    v_lshrrev_b32 v{vT1}, 1, v{vT1}
    v_xor_b32 v{vT1}, s{sWN}, v{vT1}
    v_lshl_add_u32 v{vT0}, v{vT1}, 6, v{vT0}
    v_bfe_u32 v{vT1}, v0, 4, 1
    v_lshl_add_u32 v{vT0}, v{vT1}, 5, v{vT0}
    v_and_b32 v{vT1}, 3, v0
    v_lshl_add_u32 v{vT0}, v{vT1}, 3, v{vT0}
    v_add_u32 v{vWr[0]}, s{sLB}, v{vT0}
    v_xor_b32 v{vWr[1]}, 64, v{vWr[0]}
    s_lshl_b32 s{sT0}, s{sTW}, 5
    s_lshl_b32 s{sT1}, s{sW}, 2
    s_add_u32 s{sT0}, s{sT0}, s{sT1}
    v_bfe_u32 v{vT0}, v0, 2, 1
    v_lshlrev_b32 v{vT0}, 4, v{vT0}
    v_and_b32 v{vT1}, 3, v0
    v_add3_u32 v{vT0}, v{vT0}, v{vT1}, s{sT0}
    v_lshlrev_b32 v{vT0}, {FSH}, v{vT0}
    v_add_u32 v{vT0}, {WS_FA2}, v{vT0}
    s_and_b32 s{sT0}, s{sTW}, 1
    s_lshl_b32 s{sT0}, s{sT0}, 9
    s_lshr_b32 s{sT2}, s{sTW}, 1
    s_lshl_b32 s{sN}, s{sT2}, 2
    s_add_u32 s{sT0}, s{sT0}, s{sN}
    v_and_b32 v{vT2}, 7, v0
    v_lshlrev_b32 v{vT2}, 6, v{vT2}
    v_add_u32 v{vT2}, s{sT0}, v{vT2}
    v_lshlrev_b32 v{vT2}, {FSH}, v{vT2}
    v_add_u32 v{vT2}, {WS_FQ}, v{vT2}
    v_cmp_le_u32 vcc, 8, v0
    v_cndmask_b32 v{vT0}, v{vT0}, v{vT2}, vcc
    v_add_u32 v{vT1}, s{sT1}, v{vT1}
    v_lshrrev_b32 v{vT2}, 1, v{vT1}
    v_and_b32 v{vT1}, 1, v{vT1}
    v_lshl_add_u32 v{vT2}, v{vT1}, 3, v{vT2}
    s_lshl_b32 s{sT2}, s{sT2}, 4
    v_add_u32 v{vT2}, s{sT2}, v{vT2}
    v_and_b32 v{vT1}, 1, v{vT2}
    v_lshlrev_b32 v{vT1}, 3, v{vT1}
    v_bfe_u32 v{vT3}, v{vT2}, 3, 3
    v_add_u32 v{vT1}, v{vT1}, v{vT3}
    v_lshlrev_b32 v{vT1}, 2, v{vT1}
    v_bfe_u32 v{vT3}, v{vT2}, 1, 2
    v_lshl_add_u32 v{vT1}, v{vT3}, 8, v{vT1}
    v_lshrrev_b32 v{vT3}, 6, v{vT2}
    v_lshl_add_u32 v{vT1}, v{vT3}, 6, v{vT1}
    v_lshlrev_b32 v{vT1}, {FSH}, v{vT1}
    v_add_u32 v{vT1}, {WS_FQ}, v{vT1}
    v_cmp_le_u32 vcc, 16, v0
    v_cndmask_b32 v{vT0}, v{vT0}, v{vT1}, vcc
    s_waitcnt vmcnt(0) lgkmcnt(0)
    """)
    epoch_check(a, vT1, "g")
    a(f"""
    s_mov_b64 exec, 0xfffff
    L_{P}_pollF:
    buffer_load_dwordx2 {vr(vT2,2)}, v{vT0}, {wsrd}, 0 offen sc1
    s_waitcnt vmcnt(0)
    v_cmp_ne_u64 vcc, {vr(vT2,2)}, {vr(vEP,2)}
    s_cbranch_vccz L_{P}_okF
    s_sleep 8
    s_sub_u32 s{sSP}, s{sSP}, 1
    s_cbranch_scc0 L_{P}_pollF
    s_mov_b32 s{sSP}, 0
    L_{P}_okF:
    s_mov_b64 exec, -1
    s_lshl_b32 s{sT0}, s{sTW}, 8
    s_add_u32 s{sT0}, s{sT0}, {WS_G}
    v_and_b32 v{vT0}, 31, v0
    v_lshlrev_b32 v{vT0}, 2, v{vT0}
    s_lshl_b32 s{sT1}, s{sWM}, 7
    v_xor_b32 v{vT0}, s{sT1}, v{vT0}
    v_xor_b32 v{vT1}, 128, v{vT0}
    buffer_load_dword v{vG1[0]}, v{vT0}, {wsrd}, s{sT0} offen sc1
    buffer_load_dword v{vG1[1]}, v{vT1}, {wsrd}, s{sT0} offen sc1
    """)
    pf.stamp(2)
    def wloads(d):
        return [f"s_add_u32 m0, s{sLB}, {d*2048}",
                f"s_add_u32 s{sWO2}, s{sWO}, 8192",
                f"buffer_load_dwordx4 v{vWd}, s[{sWT}:{sWT+3}], s{sWO} offen lds",
                f"s_add_u32 m0, s{sLB}, {d*2048+1024}",
                f"s_add_u32 s{sWO}, s{sWO}, 16384",
                f"buffer_load_dwordx4 v{vWd}, s[{sWT}:{sWT+3}], s{sWO2} offen lds"]
    def aloads(d):
        return [f"buffer_load_dwordx4 {vr(vA+8*d,4)}, v{vAo[0]}, {wsrd}, s{sAO} offen sc1",
                f"buffer_load_dwordx4 {vr(vA+8*d+4,4)}, v{vAo[1]}, {wsrd}, s{sAO} offen sc1",
                f"s_add_u32 s{sAO}, s{sAO}, 1024"]
    def wreads(d, buf):
        return [f"ds_read_b64_tr_b16 {vr(vF+8*buf+4*fi+2*t2,2)}, v{vWr[fi]} offset:{d*2048+t2*512}"
                for fi in range(2) for t2 in range(2)]
    def mfmas(d, buf):
        return [f"v_mfma_f32_32x32x16_bf16 {vr(vACC+16*(fi*2+ti),16)}, {vr(vF+8*buf+4*fi,4)}, {vr(vA+8*d+4*ti,4)}, {vr(vACC+16*(fi*2+ti),16)}"
                for fi in range(2) for ti in range(2)]
    for d in range(D): a("\n".join(wloads(d) + aloads(d)))
    for r in range(4): a(f"v_mov_b32 v{vF+8+r}, 0")
    for t in range(4): a(f"v_mfma_f32_32x32x16_bf16 {vr(vACC+16*t,16)}, {vr(vF+8,4)}, {vr(vF+8,4)}, 0")
    a(f"s_mov_b32 s{sC}, 0")
    a(f"s_waitcnt vmcnt({4*(D-1)})")
    a("\n".join(wreads(0, 0)))
    a.raw(".p2align 6")
    a.label(f"L_{P}_f2loop")
    start = len(a.lines)
    for s in range(D):
        a(f"s_waitcnt vmcnt({4*(D-2)})")
        a("\n".join(wreads((s + 1) % D, (s + 1) & 1)))
        a("s_waitcnt lgkmcnt(4)")
        a("\n".join(mfmas(s, s & 1)))
        a("\n".join(wloads(s) + aloads(s)))
    a(f"""
    s_add_u32 s{sC}, s{sC}, 1
    s_cmp_lt_u32 s{sC}, 6
    s_cbranch_scc1 L_{P}_f2loop
    """)
    seam, inner = check_loop(a.lines[start:])
    assert seam == 0 and inner == 0, (seam, inner)
    a(f"""
    s_mov_b32 s{sWT}, s44
    s_mov_b32 s{sWT+1}, s45
    s_mov_b32 s{sWT+2}, {512*512*2}
    s_lshl_b32 s{sWO}, s{sW}, 16
    s_lshl_b32 s{sT2}, s{sFJ}, 7
    s_add_u32 s{sWO}, s{sWO}, s{sT2}
    """)
    for s in range(D):
        if s < D - 1:
            a(f"s_waitcnt vmcnt({4*(D-2-s) + 2*s})")
            a("\n".join(wreads(s + 1, (s + 1) & 1)))
            a("s_waitcnt lgkmcnt(4)")
        else:
            a("s_waitcnt lgkmcnt(0)")
        a("\n".join(mfmas(s, s & 1)))
        a("\n".join(wloads(s)))
    pf.stamp(3)
    a(f"""
    s_setprio 2
    v_sub_f32 v{vG1[0]}, 1.0, v{vG1[0]}
    v_sub_f32 v{vG1[1]}, 1.0, v{vG1[1]}
    s_lshl_b32 s{sAO}, s{sTW}, 16
    s_lshl_b32 s{sT0}, s{sW}, 12
    s_add_u32 s{sAO}, s{sAO}, s{sT0}
    s_add_u32 s{sAO}, s{sAO}, {WS_O}
    s_lshl_b32 s{sT0}, s{sWM}, 15
    v_add_u32 v{vAo[0]}, s{sT0}, v{vL16}
    v_xor_b32 v{vAo[1]}, 0x8000, v{vAo[0]}
    v_and_b32 v{vT0}, 3, v0
    v_bfe_u32 v{vT1}, v0, 2, 1
    v_lshlrev_b32 v{vT0}, 10, v{vT0}
    v_lshl_add_u32 v{vT3}, v{vT1}, 15, v{vT0}
    s_add_u32 s{sWO}, s{sWO}, {(16-4)*16384}
    s_mov_b32 s{sC}, 0
    """)
    for fi in range(2):
        for ti in range(2):
            acc = vACC + 16 * (fi * 2 + ti)
            for r in range(0, 16, 2): a(f"v_pk_mul_f32 {vr(acc+r,2)}, {vr(acc+r,2)}, {vr(vG1[0],2)} op_sel:[0,{ti}] op_sel_hi:[1,{ti}]")
    a(f"""
    L_{P}_ph:
    s_mov_b64 exec, 0xff
    L_{P}_pollO:
    buffer_load_dword v{vT1}, v{vT3}, {wsrd}, s{sAO} offen offset:1020 sc1
    s_waitcnt vmcnt(0)
    v_cmp_eq_u32 vcc, -1, v{vT1}
    s_cbranch_vccz L_{P}_loadO
    s_sleep {PSLEEP}
    s_sub_u32 s{sSP}, s{sSP}, 1
    s_cbranch_scc0 L_{P}_pollO
    s_mov_b32 s{sSP}, 0
    L_{P}_loadO:
    s_mov_b64 exec, -1
    """)
    for d in range(D):
        a(f"buffer_load_dwordx4 {vr(vA+8*d,4)}, v{vAo[0]}, {wsrd}, s{sAO} offen offset:{d*1024} sc1")
        a(f"buffer_load_dwordx4 {vr(vA+8*d+4,4)}, v{vAo[1]}, {wsrd}, s{sAO} offen offset:{d*1024} sc1")
    a("\n".join(wreads(0, 0)))
    a("s_waitcnt vmcnt(0)")
    a(f"v_max3_u32 v{vT1}, v{vA}, v{vA+1}, v{vA+2}")
    for r in range(3, 31, 2): a(f"v_max3_u32 v{vT1}, v{vT1}, v{vA+r}, v{vA+r+1}")
    a(f"""
    v_max_u32 v{vT1}, v{vT1}, v{vA+31}
    v_cmp_eq_u32 vcc, -1, v{vT1}
    s_cbranch_vccz L_{P}_okO
    s_sub_u32 s{sSP}, s{sSP}, 1
    s_cbranch_scc0 L_{P}_loadO
    s_mov_b32 s{sSP}, 0
    L_{P}_okO:
    """)
    for s in range(D):
        if s < D - 1:
            a("\n".join(wreads(s + 1, (s + 1) & 1)))
            a("s_waitcnt lgkmcnt(4)")
        else:
            a("s_waitcnt lgkmcnt(0)")
        a("\n".join(mfmas(s, s & 1)))
    a(f"""
    s_cmp_eq_u32 s{sC}, 1
    s_cbranch_scc1 L_{P}_red
    """)
    for s in range(D): a("\n".join(wloads(s)))
    a(f"""
    {'s_memrealtime s[74:75]' if 'tdA' in EXP else ''}
    s_add_u32 s{sAO}, s{sAO}, 16384
    s_mov_b32 s{sC}, 1
    s_branch L_{P}_ph
    L_{P}_red:
    s_nop 7
    v_add_u32 v{vT0}, s{sLB}, v{vL16}
    s_nop 3
    """)
    pf.stamp(4)
    for j in range(1, 4):
        for q in range(4):
            a(f"ds_write_b128 v{vT0}, {vr(vACC+16*j+4*q,4)} offset:{(j-1)*4096+q*1024}")
    a("s_waitcnt lgkmcnt(0)")
    group_sync(a, 2, vT1, vT2, "gm")
    for j in range(1, 4):
        a(f"""
        s_xor_b32 s{sT0}, s{sW}, {j}
        s_mul_i32 s{sT0}, s{sT0}, 12288
        s_add_u32 s{sT0}, s{sT0}, {GM_BASE}
        v_add_u32 v{vT1}, s{sT0}, v{vL16}
        """)
        for q in range(4):
            a(f"ds_read_b128 {vr(vACC+16*j+4*q,4)}, v{vT1} offset:{(j-1)*4096+q*1024}")
    a(f"""
    s_lshl_b32 s{sT0}, s{sTW}, 1
    s_add_u32 s{sT0}, s{sT0}, s{sWM}
    s_lshl_b32 s{sT0}, s{sT0}, 15
    s_lshl_b32 s{sT1}, s{sFJ}, 7
    s_add_u32 s{sT0}, s{sT0}, s{sT1}
    s_lshl_b32 s{sT1}, s{sWN}, 6
    s_add_u32 s{sT0}, s{sT0}, s{sT1}
    v_and_b32 v{vT0}, 31, v0
    v_lshlrev_b32 v{vT0}, 10, v{vT0}
    v_lshrrev_b32 v{vT2}, 5, v0
    v_lshl_add_u32 v{vT0}, v{vT2}, 4, v{vT0}
    s_waitcnt lgkmcnt(8)
    """)
    for r in range(0, 16, 2): a(f"v_pk_add_f32 {vr(vACC+r,2)}, {vr(vACC+r,2)}, {vr(vACC+16+r,2)}")
    a("s_waitcnt lgkmcnt(0)")
    for r in range(0, 16, 2): a(f"v_pk_add_f32 {vr(vACC+32+r,2)}, {vr(vACC+32+r,2)}, {vr(vACC+48+r,2)}")
    for r in range(0, 16, 2): a(f"v_pk_add_f32 {vr(vACC+r,2)}, {vr(vACC+r,2)}, {vr(vACC+32+r,2)}")
    p = vF
    for i in range(8): a(f"v_cvt_pk_bf16_f32 v{p+i}, v{vACC+2*i}, v{vACC+2*i+1}")
    a(f"""
    v_permlane32_swap_b32 v{p}, v{p+2}
    v_permlane32_swap_b32 v{p+1}, v{p+3}
    v_permlane32_swap_b32 v{p+4}, v{p+6}
    v_permlane32_swap_b32 v{p+5}, v{p+7}
    buffer_store_dwordx4 {vr(p,4)}, v{vT0}, s[{sOUT}:{sOUT+3}], s{sT0} offen
    buffer_store_dwordx4 {vr(p+4,4)}, v{vT0}, s[{sOUT}:{sOUT+3}], s{sT0} offen offset:32
    """)
    if asmlib.PROF: a("s_waitcnt vmcnt(0)")
    pf.stamp(5)
    pf.dump(6, 2, sWAVE, 16, vT0, vT1)
    if 'td' in EXP:
        a(f"""
        s_or_b32 s{sT0}, s2, s{sW}
        s_cmp_lg_u32 s{sT0}, 0
        s_cbranch_scc1 L_td_end
        s_memrealtime s[76:77]
        s_waitcnt lgkmcnt(0)
        {'s_mov_b32 s74, s76' if 'tdE' in EXP else ''}
        s_sub_u32 s{sT1}, s74, s72
        s_min_u32 s{sT1}, s{sT1}, 10000
        s_mul_i32 s{sT1}, s{sT1}, 10
        L_td_spin:
        s_memrealtime s[78:79]
        s_waitcnt lgkmcnt(0)
        s_sub_u32 s{sT2}, s78, s76
        s_cmp_lt_u32 s{sT2}, s{sT1}
        s_cbranch_scc1 L_td_spin
        L_td_end:
        """)
    a("s_endpgm")

def gen():
    a = Asm()
    a.raw(kernel_header(NAME))
    pf = Prof(a, 0)
    pf.stamp(0)
    at = Attn()
    sX, sWQ, sW1, sB1, sGW = 44, 48, 52, 56, 56
    sSOX, sSOW, sSL, sN, sD, sC = 60, 61, 62, 63, 64, 65
    sMX, sMQ, sM1 = 66, 67, 68
    sK2 = 70
    sKX, sBX, sBQ, sB1o, sX2, sW2o = 24, 25, 26, 27, 28, 29
    vG = 3
    vT0, vT1, vT2, vT3 = 6, 7, 8, 9
    a(f"""
    s_cmp_ge_u32 s2, 256
    s_cbranch_scc1 L_end
    {'s_memrealtime s[72:73]' if 'td' in EXP else ''}
    s_getpc_b64 s[40:41]
    L_pc0:
    v_lshlrev_b32 v1, 6, v0
    v_min_u32 v1, L_code_end-L_pc0-4, v1
    global_load_dword v96, v1, s[40:41]
    s_load_dwordx4 s[4:7], s[0:1], 0
    s_load_dwordx4 s[32:35], s[0:1], 32
    s_load_dwordx2 s[36:37], s[0:1], 56
    s_load_dwordx2 s[{sDB}:{sDB+1}], s[0:1], 72
    s_load_dwordx2 s[{sWS}:{sWS+1}], s[0:1], 80
    v_lshrrev_b32 v1, 6, v0
    v_and_b32 v0, 63, v0
    v_readfirstlane_b32 s{sWAVE}, v1
    s_and_b32 s{sT0}, s2, 7
    s_lshr_b32 s{sT1}, s2, 3
    s_and_b32 s{sI}, s{sT0}, 1
    s_lshl_b32 s{sI}, s{sI}, 3
    s_and_b32 s{sT2}, s{sT1}, 7
    s_add_u32 s{sI}, s{sI}, s{sT2}
    s_lshr_b32 s{sJ}, s{sT0}, 1
    s_lshl_b32 s{sJ}, s{sJ}, 2
    s_lshr_b32 s{sT2}, s{sT1}, 3
    s_add_u32 s{sJ}, s{sJ}, s{sT2}
    s_and_b32 s{sW}, s{sWAVE}, 3
    s_mov_b32 s{sWS+2}, {WS_SIZE}
    s_mov_b32 s{sWS+3}, 0x00020000
    s_mov_b32 s{sDB+2}, 256
    s_mov_b32 s{sDB+3}, 0x00020000
    s_mov_b32 s{sSP}, {SPIN_MAX}
    v_lshrrev_b32 v{vG}, 4, v0
    s_cmp_lt_u32 s{sWAVE}, 8
    s_cbranch_scc1 L_comp
    """)
    vXd, vXd2, v1d, v1d2 = 10, 11, 12, 13
    vQd = [14, 15, 16]
    vGX, vGW, vOnes = 20, 28, 36
    a(f"""
    s_setprio 2
    s_mov_b32 s{sX+2}, {2048*512*2}
    s_mov_b32 s{sX+3}, 0x00020000
    s_mov_b32 s{sWQ+2}, {512*1536*2}
    s_mov_b32 s{sWQ+3}, 0x00020000
    v_and_b32 v{vT0}, 7, v0
    v_xor_b32 v{vT0}, v{vT0}, v{vG}
    v_lshlrev_b32 v{vT0}, 4, v{vT0}
    v_lshrrev_b32 v{vT1}, 3, v0
    v_lshl_add_u32 v{vXd}, v{vT1}, 10, v{vT0}
    v_xor_b32 v{vXd2}, 64, v{vXd}
    v_add_u32 v{vXd2}, 8192, v{vXd2}
    s_lshl_b32 s{sBX}, s{sI}, 17
    s_lshl_b32 s{sT0}, s{sW}, 15
    s_add_u32 s{sBX}, s{sBX}, s{sT0}
    s_lshl_b32 s{sMX}, s{sW}, 12
    s_mul_i32 s{sMQ}, s{sW}, 3072
    s_add_u32 s{sMQ}, s{sMQ}, {W_BASE}
    s_mul_i32 s{sBQ}, s{sW}, {16*3072}
    s_lshl_b32 s{sT0}, s{sJ}, 7
    s_add_u32 s{sBQ}, s{sBQ}, s{sT0}
    s_lshl_b32 s{sT2}, s{sJ}, 6
    s_sub_u32 s{sT2}, {2048-128}, s{sT2}
    """)
    for q in range(3):
        a(f"""
        v_lshrrev_b32 v{vT1}, 1, v0
        v_add_u32 v{vT1}, {32*q}, v{vT1}
        v_mul_u32_u24 v{vT2}, 0xaaab, v{vT1}
        v_lshrrev_b32 v{vT2}, 18, v{vT2}
        v_mul_u32_u24 v{vT3}, 6, v{vT2}
        v_sub_u32 v{vT1}, v{vT1}, v{vT3}
        v_bfe_u32 v{vT3}, v{vT2}, 3, 1
        v_xor_b32 v{vT1}, v{vT1}, v{vT3}
        v_mul_u32_u24 v{vT2}, 3072, v{vT2}
        v_lshl_add_u32 v{vT2}, v{vT1}, 5, v{vT2}
        v_lshrrev_b32 v{vT3}, 2, v{vT1}
        v_mul_u32_u24 v{vT3}, s{sT2}, v{vT3}
        v_add_u32 v{vT2}, v{vT2}, v{vT3}
        v_and_b32 v{vT3}, 1, v0
        v_lshl_add_u32 v{vQd[q]}, v{vT3}, 4, v{vT2}
        """)
    a(f"""
    s_lshr_b32 s{sKX}, s2, 3
    s_and_b32 s{sKX}, s{sKX}, 7
    s_waitcnt lgkmcnt(0)
    s_mov_b32 s{sX}, s4
    s_mov_b32 s{sX+1}, s5
    s_mov_b32 s{sWQ}, s6
    s_mov_b32 s{sWQ+1}, s7
    """)
    ops = []
    def vm(text, tag): a(text); ops.append(tag)
    def unit(u):
        p2 = u >= 8
        so = (u % NS) * XS
        xr = [f"buffer_load_dwordx4 v{vXd}, s[{sX}:{sX+3}], s{sSOX} offen lds",
              f"buffer_load_dwordx4 v{vXd2}, s[{sX}:{sX+3}], s{sSOX} offen lds",
              f"buffer_load_dwordx4 v{vXd}, s[{sX}:{sX+3}], s{sX2} offen lds",
              f"buffer_load_dwordx4 v{vXd2}, s[{sX}:{sX+3}], s{sX2} offen lds"]
        a(f"""
        s_lshl_b32 s{sT0}, s{sKX}, 7
        s_add_u32 s{sSOX}, s{sBX}, s{sT0}
        s_add_u32 m0, s{sMX}, {so}
        s_add_u32 s{sX2}, s{sSOX}, 16384
        """)
        vm(xr[0], u)
        a(f"""
        s_mul_i32 s{sT0}, s{sKX}, {64*3584 if p2 else 64*3072}
        s_add_u32 s{sSOW}, s{sB1o if p2 else sBQ}, s{sT0}
        """)
        for q in range(4 if p2 else 3):
            if p2:
                a(f"s_add_u32 m0, s{sM1}, {so + q*1024}\ns_add_u32 s{sW2o}, s{sSOW}, {q*4*3584}")
                vm(f"buffer_load_dwordx4 v{v1d2 if q >= 2 else v1d}, s[{sW1}:{sW1+3}], s{sW2o} offen lds", u)
            else:
                a(f"s_add_u32 m0, s{sMQ}, {so + q*1024}\ns_nop 0")
                vm(f"buffer_load_dwordx4 v{vQd[q]}, s[{sWQ}:{sWQ+3}], s{sSOW} offen lds", u)
            if q < 3:
                a(f"s_add_u32 m0, s{sMX}, {so + (q+1)*1024}\ns_nop 0")
                vm(xr[q + 1], u)
        a(f"""
        s_add_u32 s{sKX}, s{sKX}, 1
        s_and_b32 s{sKX}, s{sKX}, 7
        """)
    def wait_for(tag):
        last = max(i for i, t in enumerate(ops) if t == tag)
        a(f"s_waitcnt vmcnt({len(ops) - 1 - last})")
    for u in range(FIRST): unit(u)
    pf.stamp(1)
    a(f"""
    s_or_b32 s{sT0}, s2, s{sW}
    s_cmp_lg_u32 s{sT0}, 0
    s_cbranch_scc1 L_noep
    s_memrealtime s[42:43]
    v_mov_b32 v{vT0}, 0
    s_waitcnt lgkmcnt(0)
    s_or_b32 s42, s42, 1
    v_mov_b32 v{vOnes}, s42
    v_mov_b32 v{vOnes+1}, s43
    s_mov_b64 exec, 1
    buffer_store_dwordx2 {vr(vOnes,2)}, v{vT0}, s[{sDB}:{sDB+3}], 0 offen sc1
    s_mov_b64 exec, -1
    s_waitcnt vmcnt(0)
    L_noep:
    ; W1 addressing
    s_mov_b32 s{sW1}, s32
    s_mov_b32 s{sW1+1}, s33
    s_mov_b32 s{sW1+2}, {512*1792*2}
    s_mov_b32 s{sW1+3}, 0x00020000
    s_add_u32 s{sM1}, s{sMX}, {W_BASE}
    s_mul_i32 s{sB1o}, s{sW}, {16*3584}
    s_mul_i32 s{sT0}, s{sJ}, 224
    s_add_u32 s{sB1o}, s{sB1o}, s{sT0}
    v_lshrrev_b32 v{vT1}, 1, v0
    v_sub_u32 v{vT1}, v{vT1}, v{vG}
    v_mul_u32_u24 v{vT2}, 3584, v{vG}
    v_and_b32 v{vT3}, 1, v0
    v_lshl_add_u32 v{vT2}, v{vT3}, 4, v{vT2}
    v_and_b32 v{vT3}, 7, v{vT1}
    v_min_u32 v{vT0}, 6, v{vT3}
    v_lshl_add_u32 v{v1d}, v{vT0}, 5, v{vT2}
    v_xor_b32 v{vT3}, 4, v{vT3}
    v_min_u32 v{vT0}, 6, v{vT3}
    v_lshl_add_u32 v{v1d2}, v{vT0}, 5, v{vT2}
    """)
    nxt = FIRST
    for b in range(16):
        wait_for(b)
        a("s_barrier")
        if ('td0' in EXP and b == 0) or ('td8' in EXP and b == 8): a("s_memrealtime s[74:75]")
        tgt = min(16, b + NS, nxt + 2)
        while nxt < tgt: unit(nxt); nxt += 1
        if b == 0:
            a(f"""
            s_mov_b32 s{sGW}, s36
            s_mov_b32 s{sGW+1}, s37
            s_mov_b32 s{sGW+2}, 1024
            s_mov_b32 s{sGW+3}, 0x00020000
            s_lshl_b32 s{sT0}, s{sI}, 7
            s_lshl_b32 s{sT1}, s{sJ}, 3
            s_add_u32 s{sT0}, s{sT0}, s{sT1}
            s_lshl_b32 s{sT1}, s{sW}, 1
            s_add_u32 s{sN}, s{sT0}, s{sT1}
            s_lshl_b32 s{sT1}, s{sN}, 10
            v_and_b32 v{vT1}, 31, v0
            v_lshlrev_b32 v{vT1}, 5, v{vT1}
            v_lshrrev_b32 v{vT2}, 5, v0
            v_lshl_add_u32 v{vT2}, v{vT2}, 10, v{vT1}
            """)
            vm(f"buffer_load_dwordx4 {vr(vGX,4)}, v{vT2}, s[{sX}:{sX+3}], s{sT1} offen", 'g')
            vm(f"buffer_load_dwordx4 {vr(vGX+4,4)}, v{vT2}, s[{sX}:{sX+3}], s{sT1} offen offset:16", 'g')
            vm(f"buffer_load_dwordx4 {vr(vGW,4)}, v{vT1}, s[{sGW}:{sGW+3}], 0 offen", 'g')
            vm(f"buffer_load_dwordx4 {vr(vGW+4,4)}, v{vT1}, s[{sGW}:{sGW+3}], 0 offen offset:16", 'g')
        if b == 2:
            a(f"""
            v_mov_b32 v{vOnes}, -1
            v_mov_b32 v{vOnes+1}, -1
            v_mov_b32 v{vOnes+2}, -1
            v_mov_b32 v{vOnes+3}, -1
            v_lshlrev_b32 v{vT0}, 4, v0
            s_bfe_u32 s{sT0}, s2, 0x40004
            s_lshl_b32 s{sT0}, s{sT0}, 2
            s_add_u32 s{sT0}, s{sT0}, s{sW}
            s_lshl_b32 s{sT0}, s{sT0}, 5
            s_and_b32 s{sT1}, s2, 7
            s_lshl_b32 s{sT1}, s{sT1}, 1
            s_add_u32 s{sT0}, s{sT0}, s{sT1}
            s_bfe_u32 s{sT1}, s2, 0x10003
            s_add_u32 s{sT0}, s{sT0}, s{sT1}
            s_lshl_b32 s{sT0}, s{sT0}, 10
            s_add_u32 s{sT0}, s{sT0}, {WS_O}
            s_add_u32 s{sT1}, s{sT0}, 16384
            """)
            vm(f"buffer_store_dwordx4 {vr(vOnes,4)}, v{vT0}, {wsrd}, s{sT0} offen sc1", 's')
            vm(f"buffer_store_dwordx4 {vr(vOnes,4)}, v{vT0}, {wsrd}, s{sT1} offen sc1", 's')
        if b == 9 - NS:
            wait_for('g')
            acc = vT1
            a(f"v_mov_b32 v{acc}, 0")
            for r in range(8): a(f"v_dot2_f32_bf16 v{acc}, v{vGX+r}, v{vGW+r}, v{acc}")
            a("s_nop 3")
            for mod in ["quad_perm:[1,0,3,2]", "quad_perm:[2,3,0,1]", "row_half_mirror", "row_mirror"]:
                a(f"v_add_f32_dpp v{acc}, v{acc}, v{acc} {mod} row_mask:0xf bank_mask:0xf")
            a(f"""
            v_mov_b32 v{vT2}, v{acc}
            v_mov_b32 v{vT3}, v{acc}
            v_permlane16_swap_b32 v{vT2}, v{vT3}
            v_add_f32 v{acc}, v{vT2}, v{vT3}
            v_mul_f32 v{acc}, {hex(f32bits(-LOG2E))}, v{acc}
            v_exp_f32 v{acc}, v{acc}
            v_add_f32 v{acc}, 1.0, v{acc}
            v_rcp_f32 v{acc}, v{acc}
            s_lshl_b32 s{sT0}, s{sN}, 2
            s_add_u32 s{sT0}, s{sT0}, {WS_G}
            v_lshrrev_b32 v{vT2}, 5, v0
            v_lshlrev_b32 v{vT2}, 2, v{vT2}
            s_mov_b32 exec_lo, 1
            s_mov_b32 exec_hi, 1
            """)
            vm(f"buffer_store_dword v{acc}, v{vT2}, {wsrd}, s{sT0} offen sc1", 'gs')
            a("s_mov_b64 exec, -1")
            assert nxt == 9
        if b == 13: epoch_load(a, vT0); ops.append('e')
        if b == 15:
            a(f"""
            v_lshlrev_b32 v{vT0}, 2, v0
            v_add_u32 v{vT0}, {CNT_BASE}, v{vT0}
            v_mov_b32 v{vT1}, 0
            ds_write_b32 v{vT0}, v{vT1}
            s_waitcnt lgkmcnt(0)
            """)
    a("s_barrier")
    if 'td1' in EXP: a("s_memrealtime s[74:75]")
    gemm_role(a, pf)
    a.label("L_comp")
    a.window = []
    vN16, vR, vC = 2, 4, 5
    vXr = [10, 11]
    vWr = list(range(12, 19))
    vF = 20
    FSZ = 36
    vACC = 96
    a(f"""
    v_and_b32 v{vN16}, 15, v0
    v_bfe_u32 v{vR}, v0, 2, 2
    v_and_b32 v{vC}, 3, v0
    v_lshrrev_b32 v{vT0}, 1, v{vN16}
    v_xor_b32 v{vT0}, v{vG}, v{vT0}
    v_lshlrev_b32 v{vT0}, 4, v{vT0}
    v_lshl_add_u32 v{vT0}, v{vN16}, 7, v{vT0}
    s_lshl_b32 s{sT0}, s{sW}, 12
    v_add_u32 v{vXr[0]}, s{sT0}, v{vT0}
    v_xor_b32 v{vXr[1]}, 64, v{vXr[0]}
    s_mov_b32 s{sSL}, 0
    s_mov_b32 s{sC}, 0
    s_mov_b32 s{sMX}, {-(NS-1)*XS}
    v_lshl_add_u32 v{vT1}, v{vG}, 3, v{vR}
    v_and_b32 v{vT2}, 1, v{vG}
    s_waitcnt lgkmcnt(0)
    s_cmp_ge_u32 s{sWAVE}, 4
    s_cbranch_scc1 L_ffn
    """)
    def frag(buf):
        b = vF + buf * FSZ
        return [b, b + 4], [b + 8 + 4 * i for i in range(7)]
    def role(name, nt, isq):
        nwr = 2 if isq else 7
        def reads(buf, s2):
            X, W = frag(buf); L = []
            for t in range(2): L.append(f"ds_read_b128 {vr(X[t],4)}, v{vXr[s2]} offset:{t*2048}")
            for ct in range(nt):
                for t2 in range(2):
                    if isq: va, off = vWr[ct & 1], (32 * s2 + 4 * t2) * 192 + ct * 32
                    else:   va, off = vWr[ct], (32 * s2 + 4 * t2) * 256
                    L.append(f"ds_read_b64_tr_b16 {vr(W[ct]+2*t2,2)}, v{va} offset:{off}")
            return L
        def mfmas(buf):
            X, W = frag(buf); L = []
            for ct in range(nt):
                for t in range(2):
                    acc = vACC + (ct * 2 + t) * 4
                    if isq and ct >= 4: L.append(f"v_mfma_f32_16x16x32_bf16 {vr(acc,4)}, {vr(X[t],4)}, {vr(W[ct],4)}, {vr(acc,4)}")
                    else:               L.append(f"v_mfma_f32_16x16x32_bf16 {vr(acc,4)}, {vr(W[ct],4)}, {vr(X[t],4)}, {vr(acc,4)}")
            return L
        if isq:
            a(f"""
            v_mul_u32_u24 v{vT1}, 192, v{vT1}
            v_lshl_add_u32 v{vT1}, v{vC}, 3, v{vT1}
            v_add_u32 v{vT1}, {W_BASE}, v{vT1}
            v_lshlrev_b32 v{vT2}, 5, v{vT2}
            v_add_u32 v{vWr[0]}, v{vT1}, v{vT2}
            v_sub_u32 v{vWr[1]}, v{vT1}, v{vT2}
            s_waitcnt vmcnt(0)
            """)
            for r in range(48): a(f"v_mov_b32 v{vACC+r}, 0")
        else:
            vB = vF + FSZ
            a(f"""
            s_mov_b32 s{sB1}, s34
            s_mov_b32 s{sB1+1}, s35
            s_mov_b32 s{sB1+2}, {1792*2}
            s_mov_b32 s{sB1+3}, 0x00020000
            s_mul_i32 s{sT1}, s{sJ}, 224
            v_lshlrev_b32 v{vT3}, 3, v{vG}
            s_barrier
            """)
            for ct in range(7):
                a(f"buffer_load_dwordx2 {vr(vB+2*ct,2)}, v{vT3}, s[{sB1}:{sB1+3}], s{sT1} offen offset:{ct*32}")
            a(f"""
            v_lshlrev_b32 v{vT1}, 8, v{vT1}
            v_lshl_add_u32 v{vT1}, v{vC}, 3, v{vT1}
            v_add_u32 v{vT1}, {W_BASE}, v{vT1}
            v_lshl_add_u32 v{vT2}, v{vT2}, 2, v{vR}
            """)
            for ct in range(7):
                a(f"""
                v_add_u32 v{vT3}, {ct}, v{vT2}
                v_and_b32 v{vT3}, 7, v{vT3}
                v_lshl_add_u32 v{vWr[ct]}, v{vT3}, 5, v{vT1}
                """)
            for u in range(1, 5): a("s_barrier")
            a("s_waitcnt vmcnt(0)")
            for ct in range(7):
                for t in range(2):
                    acc = vACC + (ct * 2 + t) * 4
                    a(f"""
                    v_lshlrev_b32 v{acc}, 16, v{vB+2*ct}
                    v_and_b32 v{acc+1}, 0xffff0000, v{vB+2*ct}
                    v_lshlrev_b32 v{acc+2}, 16, v{vB+2*ct+1}
                    v_and_b32 v{acc+3}, 0xffff0000, v{vB+2*ct+1}
                    """)
            a("s_barrier")
            at.setup(a, 1)
            for u in range(6, 8): a("s_barrier")
            a("s_setprio 1")
            if 8 % NS:
                a(f"s_mov_b32 s{sSL}, {8 % NS}")
                for r in vXr + vWr[:nwr]: a(f"v_add_u32 v{r}, {(8 % NS) * XS}, v{r}")
        a("s_barrier")
        pf.stamp(1)
        a("\n".join(reads(0, 0)))
        a.raw(".p2align 6")
        a.label(f"L_{name}_loop")
        start = len(a.lines)
        def chunks(R, n): return ["\n".join(R[i:i+n]) for i in range(0, len(R), n)]
        def emit(M, G):
            assert len(G) <= len(M), (len(G), len(M))
            for i, m in enumerate(M):
                a(m)
                if i < len(G): a(G[i])
        a("s_waitcnt lgkmcnt(0)")
        advs = [f"""s_add_u32 s{sSL}, s{sSL}, 1
                s_cmp_eq_u32 s{sSL}, {NS}""",
                f"""s_cselect_b32 s{sD}, s{sMX}, {XS}
                s_cselect_b32 s{sSL}, 0, s{sSL}"""] + chunks([f"v_add_u32 v{r}, s{sD}, v{r}" for r in vXr + vWr[:nwr]], 3)
        emit(mfmas(0), chunks(reads(1, 1), 2) + advs)
        a(f"""
        s_add_u32 s{sC}, s{sC}, 1
        s_cmp_eq_u32 s{sC}, 8
        s_waitcnt lgkmcnt(0)
        s_cbranch_scc1 L_{name}_last
        """)
        emit(mfmas(1), ["s_barrier"] + chunks(reads(0, 0), 2))
        a(f"s_branch L_{name}_loop")
        seam, inner = check_loop(a.lines[start:])
        assert seam == 0 and inner == 0, (seam, inner)
        a.label(f"L_{name}_last")
        a.window = []
        M = mfmas(1)
        a(M[0])
        epoch_load(a, vT1)
        if not isq: at.poll_issue(a)
        a("s_barrier")
        for m in M[1:]: a(m)
        vP = vF + 4
        vL = vT3 if isq else at.vKo
        a(f"""
        s_lshl_b32 s{sD}, s{sI}, 2
        s_add_u32 s{sD}, s{sD}, s{sW}
        """)
        if isq: a(f"v_lshlrev_b32 v{vL}, 4, v0")
        if isq:
            a(f"""
            s_lshl_b32 s{sT0}, s{sD}, 10
            s_lshl_b32 s{sT1}, s{sJ}, 18
            s_add_u32 s{sT1}, s{sT1}, s{sT0}
            s_lshl_b32 s{sN}, s{sJ}, 17
            s_add_u32 s{sN}, s{sN}, s{sT0}
            s_add_u32 s{sN}, s{sN}, {WS_V}
            s_mov_b32 s{sT2}, {hex(f32bits(QSCALE))}
            s_cmp_lt_u32 s{sJ}, 8
            s_cselect_b32 s{sK2}, s{sT2}, 1.0
            s_mov_b32 s{sK2+1}, s{sK2}
            """)
            for ct in range(6):
                p = vP + 4 * ct
                a0 = vACC + ct * 8
                if ct < 4:
                    for r in range(0, 8, 2): a(f"v_pk_mul_f32 {vr(a0+r,2)}, {vr(a0+r,2)}, s[{sK2}:{sK2+1}]")
                sw = "v_permlane32_swap_b32" if ct >= 4 else "v_permlane16_swap_b32"
                for r in range(4): a(f"v_cvt_pk_bf16_f32 v{p+r}, v{a0+2*r}, v{a0+2*r+1}")
                a(f"""
                s_add_u32 s{sT0}, s{sT1 if ct < 4 else sN}, {(ct & 3)*65536}
                {sw} v{p}, v{p+2}
                {sw} v{p+1}, v{p+3}
                buffer_store_dwordx4 {vr(p,4)}, v{vL}, {wsrd}, s{sT0} offen sc1
                """)
            at.setup(a, 0)
            a(f"""
            s_lshl_b32 s{sN}, s{sJ}, 6
            s_add_u32 s{sN}, s{sN}, s{sD}
            s_lshl_b32 s{sN}, s{sN}, {FSH}
            s_add_u32 s{sN}, s{sN}, {WS_FQ}
            """)
            FB = int(os.environ.get('FLAGB', '9'))
            for b in range(9, FB + 1): a("s_barrier")
            a("s_waitcnt vmcnt(0)")
            epoch_check(a, at.vT0, "a")
            a(f"""
            v_mov_b32 v{at.vT0}, 0
            s_mov_b64 exec, 1
            buffer_store_dwordx2 {vr(vEP,2)}, v{at.vT0}, {wsrd}, s{sN} offen sc1
            s_mov_b64 exec, -1
            """)
            for b in range(FB + 1, 16): a("s_barrier")
            at.poll_issue(a)
            a(f"""
            s_barrier
            s_setprio 3
            L_a_try:
            s_waitcnt vmcnt(0)
            """)
            at.poll_test(a)
            a(f"s_cbranch_scc1 L_a_go")
            a(f"s_sleep {int(os.environ.get('QSLEEP', '4'))}")
            at.poll_issue(a)
            a(f"""
            s_sub_u32 s{sSP}, s{sSP}, 1
            s_cbranch_scc0 L_a_try
            s_mov_b32 s{sSP}, 0
            s_waitcnt vmcnt(0)
            L_a_go:
            """)
            at.first_loads(a, "a")
            a("s_branch L_at_body")
        else:
            a(f"""
            s_mul_i32 s{sN}, s{sD}, 112
            s_mul_i32 s{sT1}, s{sJ}, 7
            s_add_u32 s{sN}, s{sN}, s{sT1}
            s_lshl_b32 s{sN}, s{sN}, 10
            s_add_u32 s{sN}, s{sN}, {WS_A}
            s_add_u32 s{sD}, s{sN}, 4096
            s_mov_b32 s{sK2}, {hex(f32bits(LOG2E))}
            s_mov_b32 s{sK2+1}, {hex(f32bits(LOG2E))}
            s_setprio 2
            """)
            def astore(ct):
                return f"buffer_store_dwordx4 {vr(vP+4*ct,4)}, v{vL}, {wsrd}, s{sN if ct < 4 else sD} offen offset:{(ct&3)*1024} sc1"
            NPRE = 2
            for ct in range(7):
                p = vP + 4 * ct
                h = vACC + ct * 8
                e = vF + FSZ; d = e + 8
                for r in range(0, 8, 2): a(f"v_pk_mul_f32 {vr(e+r,2)}, {vr(h+r,2)}, s[{sK2}:{sK2+1}]")
                for r in range(8): a(f"v_exp_f32 v{e+r}, v{e+r}")
                for r in range(0, 8, 2): a(f"v_pk_add_f32 {vr(e+r,2)}, {vr(e+r,2)}, 1.0 op_sel_hi:[1,0]")
                for r in range(0, 8, 2): a(f"v_pk_fma_f32 {vr(d+r,2)}, {vr(e+r,2)}, {vr(e+r,2)}, 1.0 op_sel_hi:[1,1,0]")
                for r in range(8): a(f"v_rcp_f32 v{d+r}, v{d+r}")
                for r in range(0, 8, 2): a(f"v_pk_mul_f32 {vr(d+r,2)}, {vr(d+r,2)}, {vr(h+r,2)}")
                for r in range(0, 8, 2): a(f"v_pk_fma_f32 {vr(d+r,2)}, {vr(d+r,2)}, -2.0, {vr(h+r,2)} op_sel_hi:[1,0,1]")
                for r in range(4): a(f"v_cvt_pk_bf16_f32 v{p+r}, v{d+2*r}, v{d+2*r+1}")
                a(f"""
                v_permlane16_swap_b32 v{p}, v{p+2}
                v_permlane16_swap_b32 v{p+1}, v{p+3}
                """)
                if ct >= NPRE: a(astore(ct))
                if ct == NPRE - 1:
                    a("s_waitcnt vmcnt(0)")
                    epoch_check(a, at.vT0, "b")
                    a.label("L_b_try")
                    at.poll_test(a)
                    a("s_cbranch_scc1 L_b_go")
                    a("s_sleep 8")
                    at.poll_issue(a)
                    a(f"""
                    s_sub_u32 s{sSP}, s{sSP}, 1
                    s_waitcnt vmcnt(0)
                    s_cbranch_scc0 L_b_try
                    s_mov_b32 s{sSP}, 0
                    L_b_go:
                    """)
                    at.first_loads(a, "b")
                    for c2 in range(NPRE): a(astore(c2))
            a("s_nop 2")
    role("qkv", 6, True)
    a.label("L_ffn")
    a.window = []
    role("ffn", 7, False)
    at.body(a, pf)
    a.label("L_end")
    a("s_endpgm")
    NV = 160
    return a.text(), kernel_desc(NAME, NV, 88), f"; @launch grid=(256,1,1) block=(768,1,1) lds={LDS_BYTES}"
```

```python
from asmlib import *
import asmlib
from layout import *
import os
EXP = os.environ.get('EXP', '')
NAME = "gated_mix__softmax_full_mha__dense_activation_mish__prompt_kernel"
NS = int(os.environ.get('NS', '4'))
FIRST = int(os.environ.get('FIRST', '2'))
XS = 16384
W_BASE = NS * XS
RING = 12288
AT_BASE = [0, 49152]
GM_BASE = 98304
CNT_BASE = 147456
LDS_BYTES = 163840
SPIN_MAX = 1 << 18
FSH = int(os.environ.get('FSH', '7'))
WS_FQ = 10 * MB
WS_FA2 = 10 * MB + (1 << 18)
FQ = int(os.environ.get('FQ', '3')); FST = int(os.environ.get('FST', '0'))
PSLEEP = int(os.environ.get('PSLEEP', '12'))

sWS = 8
sDB = 12
sWAVE, sW, sI, sJ = 16, 17, 18, 19
sSP = 20
sT0, sT1, sT2 = 21, 22, 23
vEP = 154
wsrd = f"s[{sWS}:{sWS+3}]"

def epoch_load(a, vz):
    a(f"""
    v_mov_b32 v{vz}, 0
    buffer_load_dwordx2 {vr(vEP,2)}, v{vz}, s[{sDB}:{sDB+3}], 0 offen sc1
    """)
def epoch_check(a, vz, tag):
    a(f"""
    L_ep{tag}:
    v_cmp_ne_u32 vcc, 0, v{vEP}
    s_cbranch_vccnz L_epok{tag}
    v_mov_b32 v{vz}, 0
    buffer_load_dwordx2 {vr(vEP,2)}, v{vz}, s[{sDB}:{sDB+3}], 0 offen sc1
    s_sub_u32 s{sSP}, s{sSP}, 1
    s_waitcnt vmcnt(0)
    s_cbranch_scc0 L_ep{tag}
    s_mov_b32 s{sSP}, 0
    L_epok{tag}:
    """)
def group_sync(a, idx, vt, vt2, tag):
    a(f"""
    v_mov_b32 v{vt}, {CNT_BASE + 4*idx}
    v_mov_b32 v{vt2}, 1
    s_mov_b64 exec, 1
    ds_add_u32 v{vt}, v{vt2}
    s_mov_b64 exec, -1
    L_gs{tag}:
    ds_read_b32 v{vt2}, v{vt}
    s_sub_u32 s{sSP}, s{sSP}, 1
    s_cselect_b32 s{sT1}, 4, 0
    s_waitcnt lgkmcnt(0)
    v_readfirstlane_b32 s{sT0}, v{vt2}
    s_add_u32 s{sT0}, s{sT0}, s{sT1}
    s_cmp_lt_u32 s{sT0}, 4
    s_cbranch_scc1 L_gs{tag}
    """)

class Attn:
    sKV = 24
    sH, sQB, sKT, sC, sM, sQ0 = 28, 29, 30, 31, 32, 34
    sRB, sPO, sD, sGB, sGI = 35, 36, 37, 38, 39
    sFI, sFA = 42, 43
    vKo, vVo = 1, 2
    vT0, vT1, vT2, vT3, vG = 3, 4, 5, 6, 7
    vQ, vK, vV, vP, vS, vO = 8, 24, 32, 48, 56, 88
    vKr, vVr = 152, 153
    vFO, vFV = 156, 158
    def setup(self, a, grp):
        s = self
        a(f"""
        s_and_b32 s{sT0}, s2, 7
        s_lshl_b32 s{s.sH}, s{sT0}, 1
        s_bfe_u32 s{sT0}, s2, 0x10003
        s_add_u32 s{s.sH}, s{s.sH}, s{sT0}
        s_add_u32 s{s.sH}, s{s.sH}, {16*grp}
        s_bfe_u32 s{s.sQB}, s2, 0x40004
        s_mov_b32 s{s.sKV}, s{sWS}
        s_mov_b32 s{s.sKV+1}, s{sWS+1}
        s_mov_b32 s{s.sKV+2}, {WS_SIZE}
        s_mov_b32 s{s.sKV+3}, 0x00020000
        s_mov_b32 s{s.sM}, 0x0000ffff
        s_mov_b32 s{s.sM+1}, 0x0000ffff
        s_lshl_b32 s{sT0}, s{s.sH}, 16
        s_lshl_b32 s{sT1}, s{s.sQB}, 12
        s_add_u32 s{s.sQ0}, s{sT0}, s{sT1}
        s_lshl_b32 s{sT1}, s{sW}, 14
        s_add_u32 s{s.sKT}, s{sT0}, s{sT1}
        s_add_u32 s{s.sKT}, s{s.sKT}, {WS_K}
        s_mov_b32 s{s.sGB}, {AT_BASE[grp]}
        s_mov_b32 s{s.sGI}, {CNT_BASE + 4*grp}
        s_mov_b32 s{s.sFI}, {0 if grp else 99}
        s_lshl_b32 s{s.sFA}, s{sI}, 2
        s_add_u32 s{s.sFA}, s{s.sFA}, s{sW}
        s_lshl_b32 s{s.sFA}, s{s.sFA}, 4
        s_add_u32 s{s.sFA}, s{s.sFA}, s{sJ}
        s_lshl_b32 s{s.sFA}, s{s.sFA}, {FSH}
        s_add_u32 s{s.sFA}, s{s.sFA}, {WS_FA2}
        s_mul_i32 s{s.sRB}, s{sW}, {RING}
        s_add_u32 s{s.sRB}, s{s.sRB}, s{s.sGB}
        v_lshlrev_b32 v{s.vKo}, 4, v0
        v_add_u32 v{s.vVo}, {WS_V - WS_K}, v{s.vKo}
        s_lshr_b32 s{sT0}, s{s.sH}, 2
        s_lshl_b32 s{sT0}, s{sT0}, 6
        s_lshl_b32 s{sT1}, s{sW}, 4
        s_add_u32 s{sT2}, s{sT0}, s{sT1}
        s_add_u32 s{sT2}, s{sT2}, 512
        v_add_u32 v{s.vFO}, s{sT2}, v0
        s_lshr_b32 s{sT2}, s{s.sH}, 1
        s_lshl_b32 s{sT2}, s{sT2}, 6
        s_add_u32 s{sT2}, s{sT2}, s{sT1}
        s_sub_u32 s{sT2}, s{sT2}, 16
        v_add_u32 v{s.vT0}, s{sT2}, v0
        v_cmp_le_u32 vcc, 16, v0
        v_cndmask_b32 v{s.vFO}, v{s.vFO}, v{s.vT0}, vcc
        s_lshl_b32 s{sT1}, s{s.sQB}, 2
        s_add_u32 s{sT2}, s{sT0}, s{sT1}
        s_sub_u32 s{sT2}, s{sT2}, 32
        v_add_u32 v{s.vT0}, s{sT2}, v0
        v_cmp_le_u32 vcc, 32, v0
        v_cndmask_b32 v{s.vFO}, v{s.vFO}, v{s.vT0}, vcc
        s_lshl_b32 s{sT2}, s{sW}, 8
        s_add_u32 s{sT2}, s{sT2}, s{sT1}
        v_and_b32 v{s.vT0}, 3, v0
        v_lshlrev_b32 v{s.vT0}, 6, v{s.vT0}
        v_add_u32 v{s.vT0}, s{sT2}, v{s.vT0}
        v_cmp_le_u32 vcc, 36, v0
        v_cndmask_b32 v{s.vFO}, v{s.vFO}, v{s.vT0}, vcc
        v_lshlrev_b32 v{s.vFO}, {FSH}, v{s.vFO}
        v_add_u32 v{s.vFO}, {WS_FQ}, v{s.vFO}
        """)
    def poll_issue(self, a):
        a(f"buffer_load_dwordx2 {vr(self.vFV,2)}, v{self.vFO}, {wsrd}, 0 offen sc1")
    def poll_test(self, a):
        a(f"""
        v_cmp_ne_u64 vcc, {vr(self.vFV,2)}, {vr(vEP,2)}
        s_cmp_eq_u64 vcc, 0
        """)
    def first_loads(self, a, tag):
        s = self
        kv = f"s[{s.sKV}:{s.sKV+3}]"
        a(f"""
        s_lshl_b32 s{sT1}, s{sW}, 10
        v_xor_b32 v{s.vT2}, s{sT1}, v{s.vKo}
        s_mov_b32 m0, s{s.sRB}
        s_mov_b32 s{s.sC}, 0
        """)
        for q in range(4):
            if q: a(f"v_xor_b32 v{s.vT3}, {q*1024}, v{s.vT2}")
            a(f"buffer_load_dwordx4 {vr(s.vQ+4*q,4)}, v{s.vT3 if q else s.vT2}, {wsrd}, s{s.sQ0} offen sc1")
        a(f"""
        L_pre{tag}:
        buffer_load_dwordx4 v{s.vKo}, {kv}, s{s.sKT} offen sc1 lds
        s_add_u32 m0, m0, 1024
        s_add_u32 s{s.sC}, s{s.sC}, 1
        buffer_load_dwordx4 v{s.vVo}, {kv}, s{s.sKT} offen sc1 lds
        s_add_u32 m0, m0, 1024
        s_add_u32 s{s.sKT}, s{s.sKT}, 1024
        s_cmp_lt_u32 s{s.sC}, 6
        s_cbranch_scc1 L_pre{tag}
        s_lshl_b32 s{sT0}, s{s.sQB}, 2
        s_add_u32 s{sT0}, s{sT0}, s{sW}
        s_lshl_b32 s{sT0}, s{sT0}, 7
        s_add_u32 s{sT0}, s{sT0}, {WS_G}
        v_and_b32 v{s.vT0}, 31, v0
        v_lshlrev_b32 v{s.vT0}, 2, v{s.vT0}
        buffer_load_dword v{s.vG}, v{s.vT0}, {wsrd}, s{sT0} offen sc1
        """)
    def body(self, a, pf):
        s = self; P = "at"
        sKV, sH, sQB, sKT, sC, sM, sRB, sPO, sD = s.sKV, s.sH, s.sQB, s.sKT, s.sC, s.sM, s.sRB, s.sPO, s.sD
        vKo, vVo, vT0, vT1, vT2, vT3, vG = s.vKo, s.vVo, s.vT0, s.vT1, s.vT2, s.vT3, s.vG
        vQ, vK, vV, vP, vS, vO, vKr, vVr = s.vQ, s.vK, s.vV, s.vP, s.vS, s.vO, s.vKr, s.vVr
        kv = f"s[{sKV}:{sKV+3}]"
        a.label("L_at_body")
        a.window = []
        a(f"""
        v_add_u32 v{vKr}, s{sRB}, v{vKo}
        v_and_b32 v{vT0}, 15, v0
        v_lshlrev_b32 v{vT0}, 4, v{vT0}
        v_lshrrev_b32 v{vT1}, 5, v0
        v_lshl_add_u32 v{vT0}, v{vT1}, 8, v{vT0}
        v_add_u32 v{vVr}, s{sRB}, v{vT0}
        v_and_b32 v{vT1}, 27, v0
        v_cmp_eq_u32 vcc, 16, v{vT1}
        v_mov_b32 v{vT1}, 0x3f803f80
        v_cndmask_b32 v{vT1}, 0, v{vT1}, vcc
        """)
        for r in range(16): a(f"v_mov_b32 v{vV+r}, v{vT1}")
        def reads(st, off):
            return f"""ds_read_b128 {vr(vK+4*st,4)}, v{vKr} offset:{off}
            s_mov_b64 exec, s[{sM}:{sM+1}]
            ds_read_b128 {vr(vV+8*st,4)}, v{vVr} offset:{off+1024}
            ds_read_b128 {vr(vV+8*st+4,4)}, v{vVr} offset:{off+1536}
            s_mov_b64 exec, -1"""
        def dma(off):
            return f"""s_add_u32 m0, s{sPO}, {off}
            s_setprio 3
            buffer_load_dwordx4 v{vKo}, {kv}, s{sKT} offen sc1 lds
            s_add_u32 m0, s{sPO}, {off+1024}
            s_nop 0
            buffer_load_dwordx4 v{vVo}, {kv}, s{sKT} offen sc1 lds
            s_setprio 1
            s_add_u32 s{sKT}, s{sKT}, 1024"""
        for r in range(4, 8): a(f"v_mov_b32 v{vP+r}, 0")
        for t in range(4): a(f"v_mfma_f32_32x32x16_bf16 {vr(vO+16*t,16)}, {vr(vP+4,4)}, {vr(vP+4,4)}, 0")
        a(f"s_mov_b32 s{sC}, 0")
        a(f"s_mov_b32 s{sPO}, s{sRB}")
        a("s_waitcnt vmcnt(11)")
        pf.stamp(2)
        a(reads(0, 0))
        a("s_waitcnt lgkmcnt(0)")
        def mfS(sb, st, q): return f"v_mfma_f32_32x32x16_bf16 {vr(vS+16*sb,16)}, {vr(vK+4*st,4)}, {vr(vQ+4*q,4)}, 0"
        def mfPV(q, st, u): return f"v_mfma_f32_32x32x16_bf16 {vr(vO+16*q,16)}, {vr(vV+8*st+4*u,4)}, {vr(vP+4*u,4)}, {vr(vO+16*q,16)}"
        a(mfS(0, 0, 0))
        a(dma(0))
        a("s_nop 7")
        a.raw(".p2align 6")
        a.label(f"L_{P}_loop")
        start = len(a.lines)
        for st in range(2):
            off = 2048 if st == 0 else 0
            for q in range(4):
                sb = q & 1
                S = vS + 16 * sb
                ex = lambda i: f"v_exp_f32 v{S+i}, v{S+i}"
                cv = lambda i: f"v_cvt_pk_bf16_f32 v{vP+i}, v{S+2*i}, v{S+2*i+1}"
                pq, pst = (q - 1, st) if q > 0 else (3, st ^ 1)
                nq, nst = (q + 1, st) if q < 3 else (0, st ^ 1)
                a(ex(0)); a(ex(1))
                a(mfPV(pq, pst, 1))
                if q == 0 and st == 1:
                    a(f"""
                    s_add_u32 s{sT0}, s{sPO}, 4096
                    s_add_u32 s{sT1}, s{sRB}, {RING}
                    s_cmp_eq_u32 s{sT0}, s{sT1}
                    s_cselect_b32 s{sT0}, s{sRB}, s{sT0}
                    s_sub_u32 s{sD}, s{sT0}, s{sPO}
                    s_mov_b32 s{sPO}, s{sT0}
                    v_add_u32 v{vKr}, s{sD}, v{vKr}
                    v_add_u32 v{vVr}, s{sD}, v{vVr}
                    """)
                if q == FQ and st == FST:
                    a(f"""
                    s_cmp_eq_u32 s{sC}, s{s.sFI}
                    s_cbranch_scc1 L_{P}_flag
                    L_{P}_flagret:
                    """)
                if q == 1:
                    a("s_waitcnt vmcnt(10)")
                    a(reads(st ^ 1, off))
                for i in range(2, 6): a(ex(i))
                if q == 3: a("s_waitcnt lgkmcnt(0)")
                a(mfS(sb ^ 1, nst, nq))
                if q == 3:
                    if st == 1:
                        a(f"""
                        s_cmp_ge_u32 s{sC}, 4
                        s_cselect_b32 s{sKV+2}, 0, s{sKV+2}
                        """)
                    a(dma(off))
                a(ex(6)); a(ex(7))
                for i in range(4): a(cv(i))
                a(ex(8)); a(ex(9))
                a(mfPV(q, st, 0))
                for i in range(10, 16): a(ex(i))
                for i in range(4, 8): a(cv(i))
        a(f"""
        s_add_u32 s{sC}, s{sC}, 1
        s_cmp_lt_u32 s{sC}, 8
        s_cbranch_scc1 L_{P}_loop
        """)
        seam, inner = check_loop(a.lines[start:])
        assert seam == 0 and inner == 0, (seam, inner)
        a(mfPV(3, 1, 1))
        a("s_setprio 3")
        pf.stamp(3)
        a(f"""
        v_add_u32 v{vT0}, s{sRB}, v{vKo}
        v_lshlrev_b32 v{vT1}, 2, v0
        v_add_u32 v{vT2}, s{sRB}, v{vT1}
        s_waitcnt vmcnt(0)
        """)
        for j in range(1, 4):
            o = vO + 16 * j
            a(f"""
            ds_write_b128 v{vT0}, {vr(o,4)} offset:{(j-1)*2304}
            ds_write_b128 v{vT0}, {vr(o+4,4)} offset:{(j-1)*2304+1024}
            ds_write_b32 v{vT2}, v{o+8} offset:{(j-1)*2304+2048}
            """)
        a(f"""
        v_mov_b32 v{vT2}, s{s.sGI}
        v_mov_b32 v{vT3}, 1
        s_waitcnt lgkmcnt(0)
        s_mov_b64 exec, 1
        ds_add_u32 v{vT2}, v{vT3}
        s_mov_b64 exec, -1
        L_at_gs:
        s_sleep 1
        ds_read_b32 v{vT3}, v{vT2}
        s_sub_u32 s{sSP}, s{sSP}, 1
        s_cselect_b32 s{sT1}, 4, 0
        s_waitcnt lgkmcnt(0)
        v_readfirstlane_b32 s{sT0}, v{vT3}
        s_add_u32 s{sT0}, s{sT0}, s{sT1}
        s_cmp_lt_u32 s{sT0}, 4
        s_cbranch_scc1 L_at_gs
        """)
        R = vO
        for j in range(1, 4):
            o = vO + 16 * j
            a(f"""
            s_xor_b32 s{sT0}, s{sW}, {j}
            s_mul_i32 s{sT0}, s{sT0}, {RING}
            s_add_u32 s{sT0}, s{sT0}, s{s.sGB}
            v_add_u32 v{vT0}, s{sT0}, v{vKo}
            v_add_u32 v{vT2}, s{sT0}, v{vT1}
            ds_read_b128 {vr(o,4)}, v{vT0} offset:{(j-1)*2304}
            ds_read_b128 {vr(o+4,4)}, v{vT0} offset:{(j-1)*2304+1024}
            ds_read_b32 v{o+8}, v{vT2} offset:{(j-1)*2304+2048}
            """)
        a("s_waitcnt lgkmcnt(0)")
        for r in range(0, 8, 2):
            a(f"v_pk_add_f32 {vr(R+r,2)}, {vr(R+r,2)}, {vr(R+16+r,2)}")
            a(f"v_pk_add_f32 {vr(R+32+r,2)}, {vr(R+32+r,2)}, {vr(R+48+r,2)}")
        a(f"v_add_f32 v{R+8}, v{R+8}, v{R+24}")
        a(f"v_add_f32 v{R+40}, v{R+40}, v{R+56}")
        for r in range(0, 8, 2):
            a(f"v_pk_add_f32 {vr(R+r,2)}, {vr(R+r,2)}, {vr(R+32+r,2)}")
        a(f"v_add_f32 v{R+8}, v{R+8}, v{R+40}")
        a(f"v_mov_b32 v{vT2}, v{R+8}")
        for r in range(8): a(f"v_fma_f32 v{vT2}, v{R+r}, 0, v{vT2}")
        a(f"""
        s_mov_b32 s{sT0}, {hex(f32bits(2.0**-30))}
        s_mov_b32 s{sT1}, {hex(f32bits(2.0**30))}
        v_cmp_le_f32 vcc, s{sT0}, v{vT2}
        v_cmp_ge_f32 s[40:41], s{sT1}, v{vT2}
        s_and_b64 vcc, vcc, s[40:41]
        s_cmp_eq_u64 vcc, -1
        s_cbranch_scc0 L_{P}_slow
        L_{P}_fin:
        v_rcp_f32 v{vT2}, v{R+8}
        s_lshl_b32 s{sT0}, s{sQB}, 2
        s_add_u32 s{sT0}, s{sT0}, s{sW}
        s_lshl_b32 s{sT0}, s{sT0}, 5
        s_add_u32 s{sT0}, s{sT0}, s{sH}
        s_lshl_b32 s{sT0}, s{sT0}, 10
        s_add_u32 s{sT0}, s{sT0}, {WS_O}
        v_mul_f32 v{vT2}, v{vT2}, v{vG}
        """)
        for r in range(8): a(f"v_mul_f32 v{R+r}, v{R+r}, v{vT2}")
        for r in range(4): a(f"v_cvt_pk_bf16_f32 v{vP+r}, v{R+2*r}, v{R+2*r+1}")
        for r in range(4): a(f"v_min_u32 v{vP+r}, -2, v{vP+r}")
        a(f"""
        v_permlane32_swap_b32 v{vP}, v{vP+2}
        v_permlane32_swap_b32 v{vP+1}, v{vP+3}
        buffer_store_dwordx4 {vr(vP,4)}, v{vKo}, {wsrd}, s{sT0} offen sc1
        """)
        pf.stamp(4)
        if asmlib.PROF: a("s_waitcnt vmcnt(0)")
        pf.stamp(5)
        pf.dump(6, 2, sWAVE, 16, vT0, vT1)
        a("s_endpgm")
        a(f"""
        L_{P}_flag:
        s_waitcnt vmcnt({2 + 2*FST})
        v_mov_b32 v{vT0}, 0
        s_mov_b64 exec, 1
        buffer_store_dwordx2 {vr(vEP,2)}, v{vT0}, {wsrd}, s{s.sFA} offen sc1
        s_mov_b64 exec, -1
        s_branch L_{P}_flagret
        """)
        a.label(f"L_{P}_slow")
        a.window = []
        vM = vT3; S = vS
        a(f"""
        s_lshl_b32 s{sT1}, s{sH}, 16
        s_add_u32 s{sT1}, s{sT1}, {WS_K}
        s_mov_b32 s{sKT}, s{sT1}
        s_mov_b32 s{sC}, 0
        v_mov_b32 v{vM}, 0xff800000
        v_and_b32 v{vT0}, 15, v0
        v_lshlrev_b32 v{vT0}, 4, v{vT0}
        v_lshrrev_b32 v{vT1}, 5, v0
        v_lshl_add_u32 v{vT0}, v{vT1}, 8, v{vT0}
        v_add_u32 v{vVo}, {WS_V - WS_K}, v{vT0}
        L_{P}_slow1:
        buffer_load_dwordx4 {vr(vK,4)}, v{vKo}, {wsrd}, s{sKT} offen sc1
        s_add_u32 s{sKT}, s{sKT}, 1024
        s_waitcnt vmcnt(0)
        {mfS(0,0,0)}
        """)
        for r in range(0, 16, 2): a(f"v_max3_f32 v{vM}, v{vM}, v{S+r}, v{S+r+1}")
        a(f"""
        s_add_u32 s{sC}, s{sC}, 1
        s_cmp_lt_u32 s{sC}, 64
        s_cbranch_scc1 L_{P}_slow1
        v_mov_b32 v{vT0}, v{vM}
        v_mov_b32 v{vT1}, v{vM}
        v_permlane32_swap_b32 v{vT0}, v{vT1}
        v_max_f32 v{vM}, v{vT0}, v{vT1}
        s_mov_b32 s{sKT}, s{sT1}
        s_mov_b32 s{sC}, 0
        """)
        for r in range(16): a(f"v_mov_b32 v{R+r}, 0")
        a(f"""
        L_{P}_slow2:
        buffer_load_dwordx4 {vr(vK,4)}, v{vKo}, {wsrd}, s{sKT} offen sc1
        s_mov_b64 exec, s[{sM}:{sM+1}]
        buffer_load_dwordx4 {vr(vV,4)}, v{vVo}, {wsrd}, s{sKT} offen sc1
        buffer_load_dwordx4 {vr(vV+4,4)}, v{vVo}, {wsrd}, s{sKT} offen offset:512 sc1
        s_mov_b64 exec, -1
        s_add_u32 s{sKT}, s{sKT}, 1024
        s_waitcnt vmcnt(0)
        {mfS(0,0,0)}
        """)
        for r in range(16): a(f"v_sub_f32 v{S+r}, v{S+r}, v{vM}")
        for r in range(16): a(f"v_exp_f32 v{S+r}, v{S+r}")
        for i in range(8): a(f"v_cvt_pk_bf16_f32 v{vP+i}, v{S+2*i}, v{S+2*i+1}")
        a(mfPV(0, 0, 0)); a(mfPV(0, 0, 1))
        a(f"""
        s_nop 7
        s_add_u32 s{sC}, s{sC}, 1
        s_cmp_lt_u32 s{sC}, 64
        s_cbranch_scc1 L_{P}_slow2
        s_nop 15
        s_branch L_{P}_fin
        """)

def gemm_role(a, pf):
    P = "gm"
    sWT, sOUT = 24, 28
    sC, sD, sN = 32, 33, 34
    sWM, sWN = 35, 36
    sTW, sFJ, sAO, sWO, sWO2, sLB = 37, 38, 39, 40, 41, 42
    vL16 = 1
    vT0, vT1, vT2, vT3 = 2, 3, 4, 5
    vWd = 7
    vWr, vAo, vG1 = [10, 11], [12, 13], [14, 15]
    vF, vA, vACC = 16, 48, 80
    D = 4
    a(f"""
    s_setprio {int(os.environ.get('GPRIO', '0'))}
    s_load_dwordx2 s[{sWT}:{sWT+1}], s[0:1], 48
    s_load_dwordx2 s[44:45], s[0:1], 16
    s_load_dwordx2 s[{sOUT}:{sOUT+1}], s[0:1], 64
    s_mov_b32 s{sWT+2}, {1792*512*2}
    s_mov_b32 s{sWT+3}, 0x00020000
    s_mov_b32 s{sOUT+2}, {2048*512*2}
    s_mov_b32 s{sOUT+3}, 0x00020000
    s_and_b32 s{sWM}, s{sW}, 1
    s_lshr_b32 s{sWN}, s{sW}, 1
    v_lshlrev_b32 v{vL16}, 4, v0
    s_and_b32 s{sT0}, s2, 7
    s_lshl_b32 s{sTW}, s{sT0}, 2
    s_bfe_u32 s{sT0}, s2, 0x20003
    s_add_u32 s{sTW}, s{sTW}, s{sT0}
    s_lshr_b32 s{sFJ}, s2, 5
    s_mul_i32 s{sT0}, s{sTW}, 224
    s_mul_i32 s{sT1}, s{sW}, 28
    s_add_u32 s{sT0}, s{sT0}, s{sT1}
    s_lshl_b32 s{sAO}, s{sT0}, 10
    s_add_u32 s{sAO}, s{sAO}, {WS_A}
    s_lshl_b32 s{sWO}, s{sT1}, 14
    s_lshl_b32 s{sT2}, s{sFJ}, 7
    s_add_u32 s{sWO}, s{sWO}, s{sT2}
    s_mul_i32 s{sLB}, s{sW}, 12288
    s_add_u32 s{sLB}, s{sLB}, {GM_BASE}
    s_mul_i32 s{sT0}, s{sWM}, {112*1024}
    s_sub_u32 s{sT1}, {112*1024}, s{sT0}
    v_add_u32 v{vAo[0]}, s{sT0}, v{vL16}
    v_add_u32 v{vAo[1]}, s{sT1}, v{vL16}
    v_lshrrev_b32 v{vT0}, 2, v0
    v_lshrrev_b32 v{vT1}, 4, v0
    v_xor_b32 v{vT0}, v{vT0}, v{vT1}
    v_and_b32 v{vT0}, 1, v{vT0}
    v_lshlrev_b32 v{vT0}, 6, v{vT0}
    v_and_b32 v{vT1}, 3, v0
    v_lshl_add_u32 v{vT0}, v{vT1}, 4, v{vT0}
    v_lshrrev_b32 v{vT1}, 3, v0
    v_lshl_add_u32 v{vWd}, v{vT1}, 10, v{vT0}
    v_lshrrev_b32 v{vT0}, 5, v0
    v_bfe_u32 v{vT1}, v0, 2, 2
    v_lshl_add_u32 v{vT0}, v{vT0}, 3, v{vT1}
    v_lshlrev_b32 v{vT0}, 7, v{vT0}
    v_lshrrev_b32 v{vT1}, 1, v{vT1}
    v_xor_b32 v{vT1}, s{sWN}, v{vT1}
    v_lshl_add_u32 v{vT0}, v{vT1}, 6, v{vT0}
    v_bfe_u32 v{vT1}, v0, 4, 1
    v_lshl_add_u32 v{vT0}, v{vT1}, 5, v{vT0}
    v_and_b32 v{vT1}, 3, v0
    v_lshl_add_u32 v{vT0}, v{vT1}, 3, v{vT0}
    v_add_u32 v{vWr[0]}, s{sLB}, v{vT0}
    v_xor_b32 v{vWr[1]}, 64, v{vWr[0]}
    s_lshl_b32 s{sT0}, s{sTW}, 5
    s_lshl_b32 s{sT1}, s{sW}, 2
    s_add_u32 s{sT0}, s{sT0}, s{sT1}
    v_bfe_u32 v{vT0}, v0, 2, 1
    v_lshlrev_b32 v{vT0}, 4, v{vT0}
    v_and_b32 v{vT1}, 3, v0
    v_add3_u32 v{vT0}, v{vT0}, v{vT1}, s{sT0}
    v_lshlrev_b32 v{vT0}, {FSH}, v{vT0}
    v_add_u32 v{vT0}, {WS_FA2}, v{vT0}
    s_and_b32 s{sT0}, s{sTW}, 1
    s_lshl_b32 s{sT0}, s{sT0}, 9
    s_lshr_b32 s{sT2}, s{sTW}, 1
    s_lshl_b32 s{sN}, s{sT2}, 2
    s_add_u32 s{sT0}, s{sT0}, s{sN}
    v_and_b32 v{vT2}, 7, v0
    v_lshlrev_b32 v{vT2}, 6, v{vT2}
    v_add_u32 v{vT2}, s{sT0}, v{vT2}
    v_lshlrev_b32 v{vT2}, {FSH}, v{vT2}
    v_add_u32 v{vT2}, {WS_FQ}, v{vT2}
    v_cmp_le_u32 vcc, 8, v0
    v_cndmask_b32 v{vT0}, v{vT0}, v{vT2}, vcc
    v_add_u32 v{vT1}, s{sT1}, v{vT1}
    v_lshrrev_b32 v{vT2}, 1, v{vT1}
    v_and_b32 v{vT1}, 1, v{vT1}
    v_lshl_add_u32 v{vT2}, v{vT1}, 3, v{vT2}
    s_lshl_b32 s{sT2}, s{sT2}, 4
    v_add_u32 v{vT2}, s{sT2}, v{vT2}
    v_and_b32 v{vT1}, 1, v{vT2}
    v_lshlrev_b32 v{vT1}, 3, v{vT1}
    v_bfe_u32 v{vT3}, v{vT2}, 3, 3
    v_add_u32 v{vT1}, v{vT1}, v{vT3}
    v_lshlrev_b32 v{vT1}, 2, v{vT1}
    v_bfe_u32 v{vT3}, v{vT2}, 1, 2
    v_lshl_add_u32 v{vT1}, v{vT3}, 8, v{vT1}
    v_lshrrev_b32 v{vT3}, 6, v{vT2}
    v_lshl_add_u32 v{vT1}, v{vT3}, 6, v{vT1}
    v_lshlrev_b32 v{vT1}, {FSH}, v{vT1}
    v_add_u32 v{vT1}, {WS_FQ}, v{vT1}
    v_cmp_le_u32 vcc, 16, v0
    v_cndmask_b32 v{vT0}, v{vT0}, v{vT1}, vcc
    s_waitcnt vmcnt(0) lgkmcnt(0)
    """)
    epoch_check(a, vT1, "g")
    a(f"""
    s_mov_b64 exec, 0xfffff
    L_{P}_pollF:
    buffer_load_dwordx2 {vr(vT2,2)}, v{vT0}, {wsrd}, 0 offen sc1
    s_waitcnt vmcnt(0)
    v_cmp_ne_u64 vcc, {vr(vT2,2)}, {vr(vEP,2)}
    s_cbranch_vccz L_{P}_okF
    s_sleep 8
    s_sub_u32 s{sSP}, s{sSP}, 1
    s_cbranch_scc0 L_{P}_pollF
    s_mov_b32 s{sSP}, 0
    L_{P}_okF:
    s_mov_b64 exec, -1
    s_lshl_b32 s{sT0}, s{sTW}, 8
    s_add_u32 s{sT0}, s{sT0}, {WS_G}
    v_and_b32 v{vT0}, 31, v0
    v_lshlrev_b32 v{vT0}, 2, v{vT0}
    s_lshl_b32 s{sT1}, s{sWM}, 7
    v_xor_b32 v{vT0}, s{sT1}, v{vT0}
    v_xor_b32 v{vT1}, 128, v{vT0}
    buffer_load_dword v{vG1[0]}, v{vT0}, {wsrd}, s{sT0} offen sc1
    buffer_load_dword v{vG1[1]}, v{vT1}, {wsrd}, s{sT0} offen sc1
    """)
    pf.stamp(2)
    def wloads(d):
        return [f"s_add_u32 m0, s{sLB}, {d*2048}",
                f"s_add_u32 s{sWO2}, s{sWO}, 8192",
                f"buffer_load_dwordx4 v{vWd}, s[{sWT}:{sWT+3}], s{sWO} offen lds",
                f"s_add_u32 m0, s{sLB}, {d*2048+1024}",
                f"s_add_u32 s{sWO}, s{sWO}, 16384",
                f"buffer_load_dwordx4 v{vWd}, s[{sWT}:{sWT+3}], s{sWO2} offen lds"]
    def aloads(d):
        return [f"buffer_load_dwordx4 {vr(vA+8*d,4)}, v{vAo[0]}, {wsrd}, s{sAO} offen sc1",
                f"buffer_load_dwordx4 {vr(vA+8*d+4,4)}, v{vAo[1]}, {wsrd}, s{sAO} offen sc1",
                f"s_add_u32 s{sAO}, s{sAO}, 1024"]
    def wreads(d, buf):
        return [f"ds_read_b64_tr_b16 {vr(vF+8*buf+4*fi+2*t2,2)}, v{vWr[fi]} offset:{d*2048+t2*512}"
                for fi in range(2) for t2 in range(2)]
    def mfmas(d, buf):
        return [f"v_mfma_f32_32x32x16_bf16 {vr(vACC+16*(fi*2+ti),16)}, {vr(vF+8*buf+4*fi,4)}, {vr(vA+8*d+4*ti,4)}, {vr(vACC+16*(fi*2+ti),16)}"
                for fi in range(2) for ti in range(2)]
    for d in range(D): a("\n".join(wloads(d) + aloads(d)))
    for r in range(4): a(f"v_mov_b32 v{vF+8+r}, 0")
    for t in range(4): a(f"v_mfma_f32_32x32x16_bf16 {vr(vACC+16*t,16)}, {vr(vF+8,4)}, {vr(vF+8,4)}, 0")
    a(f"s_mov_b32 s{sC}, 0")
    a(f"s_waitcnt vmcnt({4*(D-1)})")
    a("\n".join(wreads(0, 0)))
    a.raw(".p2align 6")
    a.label(f"L_{P}_f2loop")
    start = len(a.lines)
    for s in range(D):
        a(f"s_waitcnt vmcnt({4*(D-2)})")
        a("\n".join(wreads((s + 1) % D, (s + 1) & 1)))
        a("s_waitcnt lgkmcnt(4)")
        a("\n".join(mfmas(s, s & 1)))
        a("\n".join(wloads(s) + aloads(s)))
    a(f"""
    s_add_u32 s{sC}, s{sC}, 1
    s_cmp_lt_u32 s{sC}, 6
    s_cbranch_scc1 L_{P}_f2loop
    """)
    seam, inner = check_loop(a.lines[start:])
    assert seam == 0 and inner == 0, (seam, inner)
    a(f"""
    s_mov_b32 s{sWT}, s44
    s_mov_b32 s{sWT+1}, s45
    s_mov_b32 s{sWT+2}, {512*512*2}
    s_lshl_b32 s{sWO}, s{sW}, 16
    s_lshl_b32 s{sT2}, s{sFJ}, 7
    s_add_u32 s{sWO}, s{sWO}, s{sT2}
    """)
    for s in range(D):
        if s < D - 1:
            a(f"s_waitcnt vmcnt({4*(D-2-s) + 2*s})")
            a("\n".join(wreads(s + 1, (s + 1) & 1)))
            a("s_waitcnt lgkmcnt(4)")
        else:
            a("s_waitcnt lgkmcnt(0)")
        a("\n".join(mfmas(s, s & 1)))
        a("\n".join(wloads(s)))
    pf.stamp(3)
    a(f"""
    s_setprio 2
    v_sub_f32 v{vG1[0]}, 1.0, v{vG1[0]}
    v_sub_f32 v{vG1[1]}, 1.0, v{vG1[1]}
    s_lshl_b32 s{sAO}, s{sTW}, 16
    s_lshl_b32 s{sT0}, s{sW}, 12
    s_add_u32 s{sAO}, s{sAO}, s{sT0}
    s_add_u32 s{sAO}, s{sAO}, {WS_O}
    s_lshl_b32 s{sT0}, s{sWM}, 15
    v_add_u32 v{vAo[0]}, s{sT0}, v{vL16}
    v_xor_b32 v{vAo[1]}, 0x8000, v{vAo[0]}
    v_and_b32 v{vT0}, 3, v0
    v_bfe_u32 v{vT1}, v0, 2, 1
    v_lshlrev_b32 v{vT0}, 10, v{vT0}
    v_lshl_add_u32 v{vT3}, v{vT1}, 15, v{vT0}
    s_add_u32 s{sWO}, s{sWO}, {(16-4)*16384}
    s_mov_b32 s{sC}, 0
    """)
    for fi in range(2):
        for ti in range(2):
            acc = vACC + 16 * (fi * 2 + ti)
            for r in range(0, 16, 2): a(f"v_pk_mul_f32 {vr(acc+r,2)}, {vr(acc+r,2)}, {vr(vG1[0],2)} op_sel:[0,{ti}] op_sel_hi:[1,{ti}]")
    a(f"""
    L_{P}_ph:
    s_mov_b64 exec, 0xff
    L_{P}_pollO:
    buffer_load_dword v{vT1}, v{vT3}, {wsrd}, s{sAO} offen offset:1020 sc1
    s_waitcnt vmcnt(0)
    v_cmp_eq_u32 vcc, -1, v{vT1}
    s_cbranch_vccz L_{P}_loadO
    s_sleep {PSLEEP}
    s_sub_u32 s{sSP}, s{sSP}, 1
    s_cbranch_scc0 L_{P}_pollO
    s_mov_b32 s{sSP}, 0
    L_{P}_loadO:
    s_mov_b64 exec, -1
    """)
    for d in range(D):
        a(f"buffer_load_dwordx4 {vr(vA+8*d,4)}, v{vAo[0]}, {wsrd}, s{sAO} offen offset:{d*1024} sc1")
        a(f"buffer_load_dwordx4 {vr(vA+8*d+4,4)}, v{vAo[1]}, {wsrd}, s{sAO} offen offset:{d*1024} sc1")
    a("\n".join(wreads(0, 0)))
    a("s_waitcnt vmcnt(0)")
    a(f"v_max3_u32 v{vT1}, v{vA}, v{vA+1}, v{vA+2}")
    for r in range(3, 31, 2): a(f"v_max3_u32 v{vT1}, v{vT1}, v{vA+r}, v{vA+r+1}")
    a(f"""
    v_max_u32 v{vT1}, v{vT1}, v{vA+31}
    v_cmp_eq_u32 vcc, -1, v{vT1}
    s_cbranch_vccz L_{P}_okO
    s_sub_u32 s{sSP}, s{sSP}, 1
    s_cbranch_scc0 L_{P}_loadO
    s_mov_b32 s{sSP}, 0
    L_{P}_okO:
    """)
    for s in range(D):
        if s < D - 1:
            a("\n".join(wreads(s + 1, (s + 1) & 1)))
            a("s_waitcnt lgkmcnt(4)")
        else:
            a("s_waitcnt lgkmcnt(0)")
        a("\n".join(mfmas(s, s & 1)))
    a(f"""
    s_cmp_eq_u32 s{sC}, 1
    s_cbranch_scc1 L_{P}_red
    """)
    for s in range(D): a("\n".join(wloads(s)))
    a(f"""
    {'s_memrealtime s[74:75]' if 'tdA' in EXP else ''}
    s_add_u32 s{sAO}, s{sAO}, 16384
    s_mov_b32 s{sC}, 1
    s_branch L_{P}_ph
    L_{P}_red:
    s_nop 7
    v_add_u32 v{vT0}, s{sLB}, v{vL16}
    s_nop 3
    """)
    pf.stamp(4)
    for j in range(1, 4):
        for q in range(4):
            a(f"ds_write_b128 v{vT0}, {vr(vACC+16*j+4*q,4)} offset:{(j-1)*4096+q*1024}")
    a("s_waitcnt lgkmcnt(0)")
    group_sync(a, 2, vT1, vT2, "gm")
    for j in range(1, 4):
        a(f"""
        s_xor_b32 s{sT0}, s{sW}, {j}
        s_mul_i32 s{sT0}, s{sT0}, 12288
        s_add_u32 s{sT0}, s{sT0}, {GM_BASE}
        v_add_u32 v{vT1}, s{sT0}, v{vL16}
        """)
        for q in range(4):
            a(f"ds_read_b128 {vr(vACC+16*j+4*q,4)}, v{vT1} offset:{(j-1)*4096+q*1024}")
    a(f"""
    s_lshl_b32 s{sT0}, s{sTW}, 1
    s_add_u32 s{sT0}, s{sT0}, s{sWM}
    s_lshl_b32 s{sT0}, s{sT0}, 15
    s_lshl_b32 s{sT1}, s{sFJ}, 7
    s_add_u32 s{sT0}, s{sT0}, s{sT1}
    s_lshl_b32 s{sT1}, s{sWN}, 6
    s_add_u32 s{sT0}, s{sT0}, s{sT1}
    v_and_b32 v{vT0}, 31, v0
    v_lshlrev_b32 v{vT0}, 10, v{vT0}
    v_lshrrev_b32 v{vT2}, 5, v0
    v_lshl_add_u32 v{vT0}, v{vT2}, 4, v{vT0}
    s_waitcnt lgkmcnt(8)
    """)
    for r in range(0, 16, 2): a(f"v_pk_add_f32 {vr(vACC+r,2)}, {vr(vACC+r,2)}, {vr(vACC+16+r,2)}")
    a("s_waitcnt lgkmcnt(0)")
    for r in range(0, 16, 2): a(f"v_pk_add_f32 {vr(vACC+32+r,2)}, {vr(vACC+32+r,2)}, {vr(vACC+48+r,2)}")
    for r in range(0, 16, 2): a(f"v_pk_add_f32 {vr(vACC+r,2)}, {vr(vACC+r,2)}, {vr(vACC+32+r,2)}")
    p = vF
    for i in range(8): a(f"v_cvt_pk_bf16_f32 v{p+i}, v{vACC+2*i}, v{vACC+2*i+1}")
    a(f"""
    v_permlane32_swap_b32 v{p}, v{p+2}
    v_permlane32_swap_b32 v{p+1}, v{p+3}
    v_permlane32_swap_b32 v{p+4}, v{p+6}
    v_permlane32_swap_b32 v{p+5}, v{p+7}
    buffer_store_dwordx4 {vr(p,4)}, v{vT0}, s[{sOUT}:{sOUT+3}], s{sT0} offen
    buffer_store_dwordx4 {vr(p+4,4)}, v{vT0}, s[{sOUT}:{sOUT+3}], s{sT0} offen offset:32
    """)
    if asmlib.PROF: a("s_waitcnt vmcnt(0)")
    pf.stamp(5)
    pf.dump(6, 2, sWAVE, 16, vT0, vT1)
    if 'td' in EXP:
        a(f"""
        s_or_b32 s{sT0}, s2, s{sW}
        s_cmp_lg_u32 s{sT0}, 0
        s_cbranch_scc1 L_td_end
        s_memrealtime s[76:77]
        s_waitcnt lgkmcnt(0)
        {'s_mov_b32 s74, s76' if 'tdE' in EXP else ''}
        s_sub_u32 s{sT1}, s74, s72
        s_min_u32 s{sT1}, s{sT1}, 10000
        s_mul_i32 s{sT1}, s{sT1}, 10
        L_td_spin:
        s_memrealtime s[78:79]
        s_waitcnt lgkmcnt(0)
        s_sub_u32 s{sT2}, s78, s76
        s_cmp_lt_u32 s{sT2}, s{sT1}
        s_cbranch_scc1 L_td_spin
        L_td_end:
        """)
    a("s_endpgm")

def gen():
    WB, WSL, NWS = 131072, 8192, 4
    a = Asm()
    a.raw(kernel_header(NAME))
    pf = Prof(a, 0)
    pf.stamp(0)
    at = Attn()
    sX, sWQ, sW1, sB1, sGW = 44, 48, 52, 56, 56
    sSOX, sSOW, sSL, sN, sD, sC = 60, 61, 62, 63, 64, 65
    sMX, sMQ, sM1 = 66, 67, 68
    sK2 = 70
    sKX, sBX, sBQ, sB1o, sX2, sKC = 24, 25, 26, 27, 28, 29
    vG = 3
    vT0, vT1, vT2, vT3 = 6, 7, 8, 9
    a(f"""
    s_cmp_ge_u32 s2, 256
    s_cbranch_scc1 L_end
    s_getpc_b64 s[40:41]
    L_pc0:
    v_lshlrev_b32 v1, 6, v0
    v_min_u32 v1, L_code_end-L_pc0-4, v1
    global_load_dword v96, v1, s[40:41]
    s_load_dwordx4 s[4:7], s[0:1], 0
    s_load_dwordx4 s[32:35], s[0:1], 32
    s_load_dwordx2 s[36:37], s[0:1], 56
    s_load_dwordx2 s[{sDB}:{sDB+1}], s[0:1], 72
    s_load_dwordx2 s[{sWS}:{sWS+1}], s[0:1], 80
    v_lshrrev_b32 v1, 6, v0
    v_and_b32 v0, 63, v0
    v_readfirstlane_b32 s{sWAVE}, v1
    s_and_b32 s{sT0}, s2, 7
    s_lshr_b32 s{sT1}, s2, 3
    s_and_b32 s{sI}, s{sT0}, 1
    s_lshl_b32 s{sI}, s{sI}, 3
    s_and_b32 s{sT2}, s{sT1}, 7
    s_add_u32 s{sI}, s{sI}, s{sT2}
    s_lshr_b32 s{sJ}, s{sT0}, 1
    s_lshl_b32 s{sJ}, s{sJ}, 2
    s_lshr_b32 s{sT2}, s{sT1}, 3
    s_add_u32 s{sJ}, s{sJ}, s{sT2}
    s_and_b32 s{sW}, s{sWAVE}, 3
    s_mov_b32 s{sWS+2}, {WS_SIZE}
    s_mov_b32 s{sWS+3}, 0x00020000
    s_mov_b32 s{sDB+2}, 256
    s_mov_b32 s{sDB+3}, 0x00020000
    s_mov_b32 s{sSP}, {SPIN_MAX}
    v_lshrrev_b32 v{vG}, 4, v0
    s_cmp_lt_u32 s{sWAVE}, 8
    s_cbranch_scc1 L_comp
    """)
    vXd, vXd2, v1d, v1d2, vQd, vQd2 = 10, 11, 12, 13, 14, 15
    vGX, vGW, vOnes = 20, 28, 36
    a(f"""
    s_setprio 2
    s_mov_b32 s{sX+2}, {2048*512*2}
    s_mov_b32 s{sX+3}, 0x00020000
    s_mov_b32 s{sWQ+2}, {512*1536*2}
    s_mov_b32 s{sWQ+3}, 0x00020000
    v_and_b32 v{vT0}, 7, v0
    v_xor_b32 v{vT0}, v{vT0}, v{vG}
    v_lshlrev_b32 v{vT0}, 4, v{vT0}
    v_lshrrev_b32 v{vT1}, 3, v0
    v_lshl_add_u32 v{vXd}, v{vT1}, 10, v{vT0}
    v_xor_b32 v{vXd2}, 64, v{vXd}
    v_add_u32 v{vXd2}, 8192, v{vXd2}
    s_lshl_b32 s{sBX}, s{sI}, 17
    s_lshl_b32 s{sT0}, s{sW}, 14
    s_add_u32 s{sBX}, s{sBX}, s{sT0}
    s_lshl_b32 s{sMX}, s{sW}, 11
    ; Wq: rows 8w..8w+7 of the step: pieces p = l (+64): pos = p>>1, k = pos/6, ct = (pos%6) ^ (w&1)
    s_mul_i32 s{sMQ}, s{sW}, 1536
    s_add_u32 s{sMQ}, s{sMQ}, {WB}
    s_mul_i32 s{sBQ}, s{sW}, {8*3072}
    s_lshl_b32 s{sT0}, s{sJ}, 7
    s_add_u32 s{sBQ}, s{sBQ}, s{sT0}
    s_and_b32 s{sT1}, s{sW}, 1
    s_lshl_b32 s{sT2}, s{sJ}, 6
    s_sub_u32 s{sT2}, {2048-128}, s{sT2}
    """)
    for q, dst in ((0, vQd), (1, vQd2)):
        a(f"""
        v_lshrrev_b32 v{vT1}, 1, v0
        v_add_u32 v{vT1}, {32*q}, v{vT1}
        v_mul_u32_u24 v{vT2}, 0xaaab, v{vT1}
        v_lshrrev_b32 v{vT2}, 18, v{vT2}
        v_mul_u32_u24 v{vT3}, 6, v{vT2}
        v_sub_u32 v{vT1}, v{vT1}, v{vT3}
        v_xor_b32 v{vT1}, s{sT1}, v{vT1}
        v_mul_u32_u24 v{vT2}, 3072, v{vT2}
        v_lshl_add_u32 v{vT2}, v{vT1}, 5, v{vT2}
        v_lshrrev_b32 v{vT3}, 2, v{vT1}
        v_mul_u32_u24 v{vT3}, s{sT2}, v{vT3}
        v_add_u32 v{vT2}, v{vT2}, v{vT3}
        v_and_b32 v{vT3}, 1, v0
        v_lshl_add_u32 v{dst}, v{vT3}, 4, v{vT2}
        """)
    a(f"""
    s_lshr_b32 s{sKX}, s2, 3
    s_and_b32 s{sKX}, s{sKX}, 7
    s_lshl_b32 s{sKC}, s{sKX}, 1
    s_waitcnt lgkmcnt(0)
    s_mov_b32 s{sX}, s4
    s_mov_b32 s{sX+1}, s5
    s_mov_b32 s{sWQ}, s6
    s_mov_b32 s{sWQ+1}, s7
    """)
    ops = []
    def vm(text, tag): a(text); ops.append(tag)
    def xhalf(hx):
        m, half = hx >> 1, hx & 1
        a(f"""
        s_lshl_b32 s{sT0}, s{sKX}, 7
        s_add_u32 s{sSOX}, s{sBX}, s{sT0}
        s_add_u32 m0, s{sMX}, {m*XS + half*8192}
        {f's_add_u32 s{sSOX}, s{sSOX}, 65536' if half else 's_nop 0'}
        """)
        vm(f"buffer_load_dwordx4 v{vXd}, s[{sX}:{sX+3}], s{sSOX} offen lds", ('x', m))
        a(f"s_add_u32 m0, s{sMX}, {m*XS + half*8192 + 1024}")
        a(f"s_add_u32 s{sKX}, s{sKX}, 1" if half else "s_nop 0")
        vm(f"buffer_load_dwordx4 v{vXd2}, s[{sX}:{sX+3}], s{sSOX} offen lds", ('x', m))
        if half: a(f"s_and_b32 s{sKX}, s{sKX}, 7")
    def wstep(h):
        so = (h % NWS) * WSL
        if h < 16:
            a(f"""
            s_mul_i32 s{sT0}, s{sKC}, {32*3072}
            s_add_u32 s{sSOW}, s{sBQ}, s{sT0}
            s_add_u32 m0, s{sMQ}, {so}
            s_add_u32 s{sKC}, s{sKC}, 1
            """)
            vm(f"buffer_load_dwordx4 v{vQd}, s[{sWQ}:{sWQ+3}], s{sSOW} offen lds", ('w', h))
            a(f"s_add_u32 m0, s{sMQ}, {so + 1024}\ns_mov_b32 exec_hi, 0")
            vm(f"buffer_load_dwordx4 v{vQd2}, s[{sWQ}:{sWQ+3}], s{sSOW} offen lds", ('w', h))
            a("s_mov_b32 exec_hi, -1")
        else:
            a(f"""
            s_mul_i32 s{sT0}, s{sKC}, {32*3584}
            s_add_u32 s{sSOW}, s{sB1o}, s{sT0}
            s_add_u32 m0, s{sM1}, {so}
            s_add_u32 s{sKC}, s{sKC}, 1
            """)
            vm(f"buffer_load_dwordx4 v{v1d}, s[{sW1}:{sW1+3}], s{sSOW} offen lds", ('w', h))
            a(f"s_add_u32 m0, s{sM1}, {so + 1024}\ns_nop 0")
            vm(f"buffer_load_dwordx4 v{v1d2}, s[{sW1}:{sW1+3}], s{sSOW} offen lds", ('w', h))
        a(f"s_and_b32 s{sKC}, s{sKC}, 15")
    def wait_for(tags):
        last = max(i for i, t in enumerate(ops) if t in tags)
        a(f"s_waitcnt vmcnt({len(ops) - 1 - last})")
    XLEAD = int(os.environ.get('XLEAD', '3'))
    xhalf(0); wstep(0); xhalf(1); wstep(1); xhalf(2); wstep(2); xhalf(3); wstep(3)
    nx, nw = 4, 4
    a(f"""
    s_or_b32 s{sT0}, s2, s{sW}
    s_cmp_lg_u32 s{sT0}, 0
    s_cbranch_scc1 L_noep
    s_memrealtime s[42:43]
    v_mov_b32 v{vT0}, 0
    s_waitcnt lgkmcnt(0)
    s_or_b32 s42, s42, 1
    v_mov_b32 v{vOnes}, s42
    v_mov_b32 v{vOnes+1}, s43
    s_mov_b64 exec, 1
    buffer_store_dwordx2 {vr(vOnes,2)}, v{vT0}, s[{sDB}:{sDB+3}], 0 offen sc1
    s_mov_b64 exec, -1
    s_waitcnt vmcnt(0)
    L_noep:
    s_mov_b32 s{sW1}, s32
    s_mov_b32 s{sW1+1}, s33
    s_mov_b32 s{sW1+2}, {512*1792*2}
    s_mov_b32 s{sW1+3}, 0x00020000
    s_add_u32 s{sM1}, s{sMX}, {WB}
    s_mul_i32 s{sB1o}, s{sW}, {8*3584}
    s_mul_i32 s{sT0}, s{sJ}, 224
    s_add_u32 s{sB1o}, s{sB1o}, s{sT0}
    s_and_b32 s{sT1}, s{sW}, 1
    s_lshl_b32 s{sT1}, s{sT1}, 2
    v_lshrrev_b32 v{vT1}, 1, v0
    v_sub_u32 v{vT1}, v{vT1}, v{vG}
    v_subrev_u32 v{vT1}, s{sT1}, v{vT1}
    v_and_b32 v{vT1}, 7, v{vT1}
    v_min_u32 v{vT1}, 6, v{vT1}
    v_mul_u32_u24 v{vT2}, 3584, v{vG}
    v_lshl_add_u32 v{vT2}, v{vT1}, 5, v{vT2}
    v_and_b32 v{vT3}, 1, v0
    v_lshl_add_u32 v{v1d}, v{vT3}, 4, v{vT2}
    v_add_u32 v{v1d2}, {4*3584}, v{v1d}
    """)
    GB = 17
    for b in range(32):
        tags = [('w', b)] + ([('x', b >> 1)] if b < 16 else []) + (['gs'] if b == GB else [])
        wait_for(tags)
        a("s_barrier")
        if nw < 32 and nw < b + NWS: wstep(nw); nw += 1
        k = 0
        while nx < 16 and nx < b + 2 + XLEAD and k < 2: xhalf(nx); nx += 1; k += 1
        if b == 6:
            a(f"""
            s_mov_b32 s{sGW}, s36
            s_mov_b32 s{sGW+1}, s37
            s_mov_b32 s{sGW+2}, 1024
            s_mov_b32 s{sGW+3}, 0x00020000
            s_lshl_b32 s{sT0}, s{sI}, 7
            s_lshl_b32 s{sT1}, s{sJ}, 3
            s_add_u32 s{sT0}, s{sT0}, s{sT1}
            s_lshl_b32 s{sT1}, s{sW}, 1
            s_add_u32 s{sN}, s{sT0}, s{sT1}
            s_lshl_b32 s{sT1}, s{sN}, 10
            v_and_b32 v{vT1}, 31, v0
            v_lshlrev_b32 v{vT1}, 5, v{vT1}
            v_lshrrev_b32 v{vT2}, 5, v0
            v_lshl_add_u32 v{vT2}, v{vT2}, 10, v{vT1}
            """)
            vm(f"buffer_load_dwordx4 {vr(vGX,4)}, v{vT2}, s[{sX}:{sX+3}], s{sT1} offen", 'g')
            vm(f"buffer_load_dwordx4 {vr(vGX+4,4)}, v{vT2}, s[{sX}:{sX+3}], s{sT1} offen offset:16", 'g')
            vm(f"buffer_load_dwordx4 {vr(vGW,4)}, v{vT1}, s[{sGW}:{sGW+3}], 0 offen", 'g')
            vm(f"buffer_load_dwordx4 {vr(vGW+4,4)}, v{vT1}, s[{sGW}:{sGW+3}], 0 offen offset:16", 'g')
        if b == 11:
            wait_for(['g'])
            acc = vT1
            a(f"v_mov_b32 v{acc}, 0")
            for r in range(8): a(f"v_dot2_f32_bf16 v{acc}, v{vGX+r}, v{vGW+r}, v{acc}")
            a("s_nop 3")
            for mod in ["quad_perm:[1,0,3,2]", "quad_perm:[2,3,0,1]", "row_half_mirror", "row_mirror"]:
                a(f"v_add_f32_dpp v{acc}, v{acc}, v{acc} {mod} row_mask:0xf bank_mask:0xf")
            a(f"""
            v_mov_b32 v{vT2}, v{acc}
            v_mov_b32 v{vT3}, v{acc}
            v_permlane16_swap_b32 v{vT2}, v{vT3}
            v_add_f32 v{acc}, v{vT2}, v{vT3}
            v_mul_f32 v{acc}, {hex(f32bits(-LOG2E))}, v{acc}
            v_exp_f32 v{acc}, v{acc}
            v_add_f32 v{acc}, 1.0, v{acc}
            v_rcp_f32 v{acc}, v{acc}
            s_lshl_b32 s{sT0}, s{sN}, 2
            s_add_u32 s{sT0}, s{sT0}, {WS_G}
            v_lshrrev_b32 v{vT2}, 5, v0
            v_lshlrev_b32 v{vT2}, 2, v{vT2}
            s_mov_b32 exec_lo, 1
            s_mov_b32 exec_hi, 1
            """)
            vm(f"buffer_store_dword v{acc}, v{vT2}, {wsrd}, s{sT0} offen sc1", 'gs')
            a("s_mov_b64 exec, -1")
        if b == 28: epoch_load(a, vT0); ops.append('e')
        if b == 31:
            a(f"""
            v_lshlrev_b32 v{vT0}, 2, v0
            v_add_u32 v{vT0}, {CNT_BASE}, v{vT0}
            v_mov_b32 v{vT1}, 0
            ds_write_b32 v{vT0}, v{vT1}
            s_waitcnt lgkmcnt(0)
            """)
    assert CNT_BASE == WB + 2 * WSL
    a("s_barrier")
    pf.stamp(1)
    gemm_role(a, pf)
    a.label("L_comp")
    a.window = []
    vN16, vR, vC = 2, 4, 5
    vXr = [10, 11]
    vWr = list(range(12, 19))
    vF = 20
    FSZ = 36
    vACC = 96
    a(f"""
    v_and_b32 v{vN16}, 15, v0
    v_bfe_u32 v{vR}, v0, 2, 2
    v_and_b32 v{vC}, 3, v0
    v_lshrrev_b32 v{vT0}, 1, v{vN16}
    v_xor_b32 v{vT0}, v{vG}, v{vT0}
    v_lshlrev_b32 v{vT0}, 4, v{vT0}
    v_lshl_add_u32 v{vT0}, v{vN16}, 7, v{vT0}
    s_lshl_b32 s{sT0}, s{sW}, 12
    v_add_u32 v{vXr[0]}, s{sT0}, v{vT0}
    v_xor_b32 v{vXr[1]}, 64, v{vXr[0]}
    s_mov_b32 s{sC}, 0
    v_lshl_add_u32 v{vT1}, v{vG}, 3, v{vR}
    v_and_b32 v{vT2}, 1, v{vG}
    s_waitcnt lgkmcnt(0)
    s_cmp_ge_u32 s{sWAVE}, 4
    s_cbranch_scc1 L_ffn
    """)
    def frag(buf):
        b = vF + buf * FSZ
        return [b, b + 4], [b + 8 + 4 * i for i in range(7)]
    def role(name, nt, isq):
        def reads(s4):
            buf = s4 & 1
            X, W = frag(buf); L = []
            for t in range(2): L.append(f"ds_read_b128 {vr(X[t],4)}, v{vXr[s4 & 1]} offset:{(s4 >> 1)*XS + t*2048}")
            for ct in range(nt):
                for t2 in range(2):
                    if isq: va, off = vWr[ct & 1], 4 * t2 * 192 + ct * 32
                    else:   va, off = vWr[ct], 4 * t2 * 256
                    L.append(f"ds_read_b64_tr_b16 {vr(W[ct]+2*t2,2)}, v{va} offset:{s4*WSL + off}")
            return L
        def mfmas(buf):
            X, W = frag(buf); L = []
            for ct in range(nt):
                for t in range(2):
                    acc = vACC + (ct * 2 + t) * 4
                    if isq and ct >= 4: L.append(f"v_mfma_f32_16x16x32_bf16 {vr(acc,4)}, {vr(X[t],4)}, {vr(W[ct],4)}, {vr(acc,4)}")
                    else:               L.append(f"v_mfma_f32_16x16x32_bf16 {vr(acc,4)}, {vr(W[ct],4)}, {vr(X[t],4)}, {vr(acc,4)}")
            return L
        if isq:
            a(f"""
            v_mul_u32_u24 v{vT1}, 192, v{vT1}
            v_lshl_add_u32 v{vT1}, v{vC}, 3, v{vT1}
            v_add_u32 v{vT1}, {WB}, v{vT1}
            v_lshlrev_b32 v{vT2}, 5, v{vT2}
            v_add_u32 v{vWr[0]}, v{vT1}, v{vT2}
            v_sub_u32 v{vWr[1]}, v{vT1}, v{vT2}
            """)
            at.setup(a, 0)
            a("s_waitcnt vmcnt(0)")
            for r in range(48): a(f"v_mov_b32 v{vACC+r}, 0")
        else:
            vB = vF + FSZ
            a(f"""
            s_mov_b32 s{sB1}, s34
            s_mov_b32 s{sB1+1}, s35
            s_mov_b32 s{sB1+2}, {1792*2}
            s_mov_b32 s{sB1+3}, 0x00020000
            s_mov_b32 s{sW1}, s32
            s_mov_b32 s{sW1+1}, s33
            s_mov_b32 s{sW1+2}, {512*1792*2}
            s_mov_b32 s{sW1+3}, 0x00020000
            s_mul_i32 s{sT1}, s{sJ}, 224
            v_lshlrev_b32 v{vT3}, 3, v{vG}
            s_barrier
            s_barrier
            """)
            for ct in range(7):
                a(f"buffer_load_dwordx2 {vr(vB+2*ct,2)}, v{vT3}, s[{sB1}:{sB1+3}], s{sT1} offen offset:{ct*32}")
            a(f"""
            ; warm L2 with this column group's W1 strip: the 8 workgroups sharing it (i & 7) x 4 waves take 16 rows each
            s_and_b32 s{sT0}, s{sI}, 7
            s_lshl_b32 s{sT0}, s{sT0}, 2
            s_add_u32 s{sT0}, s{sT0}, s{sW}
            s_mul_i32 s{sT0}, s{sT0}, {16*3584}
            s_add_u32 s{sT0}, s{sT0}, s{sT1}
            v_mul_u32_u24 v{vT0}, 3584, v{vN16}
            v_mul_u32_u24 v{vT3}, 72, v{vG}
            v_add_u32 v{vT0}, v{vT0}, v{vT3}
            {'' if 'warm' not in EXP else f'buffer_load_dword v{vF}, v{vT0}, s[{sW1}:{sW1+3}], s{sT0} offen'}
            v_lshlrev_b32 v{vT1}, 8, v{vT1}
            v_lshl_add_u32 v{vT1}, v{vC}, 3, v{vT1}
            v_add_u32 v{vT1}, {WB}, v{vT1}
            v_lshl_add_u32 v{vT2}, v{vT2}, 2, v{vR}
            """)
            for ct in range(7):
                a(f"""
                v_add_u32 v{vT3}, {ct}, v{vT2}
                v_and_b32 v{vT3}, 7, v{vT3}
                v_lshl_add_u32 v{vWr[ct]}, v{vT3}, 5, v{vT1}
                """)
            a("s_barrier\ns_barrier")
            at.setup(a, 1)
            a(f"""
            s_barrier
            s_barrier
            v_mov_b32 v{vF+4}, -1
            v_mov_b32 v{vF+5}, -1
            v_mov_b32 v{vF+6}, -1
            v_mov_b32 v{vF+7}, -1
            s_lshl_b32 s{sT0}, s{at.sQB}, 2
            s_add_u32 s{sT0}, s{sT0}, s{sW}
            s_lshl_b32 s{sT0}, s{sT0}, 5
            s_add_u32 s{sT0}, s{sT0}, s{at.sH}
            s_lshl_b32 s{sT0}, s{sT0}, 10
            s_add_u32 s{sT0}, s{sT0}, {WS_O}
            s_sub_u32 s{sT1}, s{sT0}, 16384
            buffer_store_dwordx4 {vr(vF+4,4)}, v{at.vKo}, {wsrd}, s{sT0} offen sc1
            buffer_store_dwordx4 {vr(vF+4,4)}, v{at.vKo}, {wsrd}, s{sT1} offen sc1
            """)
            for u in range(6, 13): a("s_barrier")
            a("s_waitcnt vmcnt(0)")
            for ct in range(7):
                for t in range(2):
                    acc = vACC + (ct * 2 + t) * 4
                    a(f"""
                    v_lshlrev_b32 v{acc}, 16, v{vB+2*ct}
                    v_and_b32 v{acc+1}, 0xffff0000, v{vB+2*ct}
                    v_lshlrev_b32 v{acc+2}, 16, v{vB+2*ct+1}
                    v_and_b32 v{acc+3}, 0xffff0000, v{vB+2*ct+1}
                    """)
                if ct in (2, 5): a("s_barrier")
            a("s_barrier")
            a("s_setprio 1")
        a("s_barrier")
        pf.stamp(1)
        a("\n".join(reads(0)))
        a.raw(".p2align 6")
        a.label(f"L_{name}_loop")
        start = len(a.lines)
        def chunks(R, n): return ["\n".join(R[i:i+n]) for i in range(0, len(R), n)]
        for s4 in range(4):
            M = mfmas(s4 & 1)
            if s4 == 3:
                a(f"""
                s_add_u32 s{sC}, s{sC}, 1
                s_cmp_eq_u32 s{sC}, 4
                s_waitcnt lgkmcnt(0)
                s_cbranch_scc1 L_{name}_last
                """)
            else:
                a("s_waitcnt lgkmcnt(0)")
            G = ["s_barrier"] + chunks(reads((s4 + 1) & 3), int(os.environ.get("RPG", "2")))
            if s4 == 2: G.append("\n".join(f"v_add_u32 v{r}, {2*XS}, v{r}" for r in vXr))
            assert len(G) <= len(M)
            for i, m in enumerate(M):
                a(m)
                if i < len(G): a(G[i])
        a(f"s_branch L_{name}_loop")
        seam, inner = check_loop(a.lines[start:])
        assert seam == 0 and inner == 0, (seam, inner)
        a.label(f"L_{name}_last")
        a.window = []
        M = mfmas(1)
        a(M[0])
        epoch_load(a, vT1)
        a("s_barrier")
        for m in M[1:]: a(m)
        vP = vF + 4
        vL = at.vKo
        a(f"""
        s_lshl_b32 s{sD}, s{sI}, 2
        s_add_u32 s{sD}, s{sD}, s{sW}
        """)
        if isq:
            a(f"""
            s_lshl_b32 s{sT0}, s{sD}, 10
            s_lshl_b32 s{sT1}, s{sJ}, 18
            s_add_u32 s{sT1}, s{sT1}, s{sT0}
            s_lshl_b32 s{sN}, s{sJ}, 17
            s_add_u32 s{sN}, s{sN}, s{sT0}
            s_add_u32 s{sN}, s{sN}, {WS_V}
            s_mov_b32 s{sT2}, {hex(f32bits(QSCALE))}
            s_cmp_lt_u32 s{sJ}, 8
            s_cselect_b32 s{sK2}, s{sT2}, 1.0
            s_mov_b32 s{sK2+1}, s{sK2}
            s_barrier
            """)
            nb = 18
            for ct in range(6):
                p = vP + 4 * ct
                a0 = vACC + ct * 8
                if ct < 4:
                    for r in range(0, 8, 2): a(f"v_pk_mul_f32 {vr(a0+r,2)}, {vr(a0+r,2)}, s[{sK2}:{sK2+1}]")
                sw = "v_permlane32_swap_b32" if ct >= 4 else "v_permlane16_swap_b32"
                for r in range(4): a(f"v_cvt_pk_bf16_f32 v{p+r}, v{a0+2*r}, v{a0+2*r+1}")
                a(f"""
                s_add_u32 s{sT0}, s{sT1 if ct < 4 else sN}, {(ct & 3)*65536}
                {sw} v{p}, v{p+2}
                {sw} v{p+1}, v{p+3}
                buffer_store_dwordx4 {vr(p,4)}, v{vL}, {wsrd}, s{sT0} offen sc1
                """)
                if ct == 2: a("s_barrier"); nb += 1
            a(f"""
            s_lshl_b32 s{sN}, s{sJ}, 6
            s_add_u32 s{sN}, s{sN}, s{sD}
            s_lshl_b32 s{sN}, s{sN}, {FSH}
            s_add_u32 s{sN}, s{sN}, {WS_FQ}
            """)
            FB = int(os.environ.get('FLAGB', '22'))
            for b in range(nb, FB + 1): a("s_barrier")
            a("s_waitcnt vmcnt(0)")
            epoch_check(a, at.vT0, "a")
            a(f"""
            v_mov_b32 v{at.vT0}, 0
            s_mov_b64 exec, 1
            buffer_store_dwordx2 {vr(vEP,2)}, v{at.vT0}, {wsrd}, s{sN} offen sc1
            s_mov_b64 exec, -1
            """)
            for b in range(FB + 1, 31): a("s_barrier")
            at.poll_issue(a)
            a(f"""
            s_barrier
            s_barrier
            s_setprio 3
            L_a_try:
            s_waitcnt vmcnt(0)
            """)
            at.poll_test(a)
            a(f"s_cbranch_scc1 L_a_go")
            a(f"s_sleep {int(os.environ.get('QSLEEP', '4'))}")
            at.poll_issue(a)
            a(f"""
            s_sub_u32 s{sSP}, s{sSP}, 1
            s_cbranch_scc0 L_a_try
            s_mov_b32 s{sSP}, 0
            s_waitcnt vmcnt(0)
            L_a_go:
            """)
            at.first_loads(a, "a")
            a("s_branch L_at_body")
        else:
            a(f"""
            s_mul_i32 s{sN}, s{sD}, 112
            s_mul_i32 s{sT1}, s{sJ}, 7
            s_add_u32 s{sN}, s{sN}, s{sT1}
            s_lshl_b32 s{sN}, s{sN}, 10
            s_add_u32 s{sN}, s{sN}, {WS_A}
            s_add_u32 s{sD}, s{sN}, 4096
            s_mov_b32 s{sK2}, {hex(f32bits(LOG2E))}
            s_mov_b32 s{sK2+1}, {hex(f32bits(LOG2E))}
            s_setprio 2
            """)
            def astore(ct):
                return f"buffer_store_dwordx4 {vr(vP+4*ct,4)}, v{vL}, {wsrd}, s{sN if ct < 4 else sD} offen offset:{(ct&3)*1024} sc1"
            NPRE = int(os.environ.get('NPRE', '5'))
            for ct in range(7):
                p = vP + 4 * ct
                h = vACC + ct * 8
                e = vF + FSZ; d = e + 8
                if ct == NPRE - 2: at.poll_issue(a)
                for r in range(0, 8, 2): a(f"v_pk_mul_f32 {vr(e+r,2)}, {vr(h+r,2)}, s[{sK2}:{sK2+1}]")
                for r in range(8): a(f"v_exp_f32 v{e+r}, v{e+r}")
                for r in range(0, 8, 2): a(f"v_pk_add_f32 {vr(e+r,2)}, {vr(e+r,2)}, 1.0 op_sel_hi:[1,0]")
                for r in range(0, 8, 2): a(f"v_pk_fma_f32 {vr(d+r,2)}, {vr(e+r,2)}, {vr(e+r,2)}, 1.0 op_sel_hi:[1,1,0]")
                for r in range(8): a(f"v_rcp_f32 v{d+r}, v{d+r}")
                for r in range(0, 8, 2): a(f"v_pk_mul_f32 {vr(d+r,2)}, {vr(d+r,2)}, {vr(h+r,2)}")
                for r in range(0, 8, 2): a(f"v_pk_fma_f32 {vr(d+r,2)}, {vr(d+r,2)}, -2.0, {vr(h+r,2)} op_sel_hi:[1,0,1]")
                for r in range(4): a(f"v_cvt_pk_bf16_f32 v{p+r}, v{d+2*r}, v{d+2*r+1}")
                a(f"""
                v_permlane16_swap_b32 v{p}, v{p+2}
                v_permlane16_swap_b32 v{p+1}, v{p+3}
                """)
                if ct >= NPRE: a(astore(ct))
                if ct == NPRE - 1:
                    a("s_waitcnt vmcnt(0)")
                    epoch_check(a, at.vT0, "b")
                    a.label("L_b_try")
                    at.poll_test(a)
                    a("s_cbranch_scc1 L_b_go")
                    a("s_sleep 8")
                    at.poll_issue(a)
                    a(f"""
                    s_sub_u32 s{sSP}, s{sSP}, 1
                    s_waitcnt vmcnt(0)
                    s_cbranch_scc0 L_b_try
                    s_mov_b32 s{sSP}, 0
                    L_b_go:
                    """)
                    at.first_loads(a, "b")
                    for c2 in range(NPRE): a(astore(c2))
            a("s_nop 2")
    role("qkv", 6, True)
    a.label("L_ffn")
    a.window = []
    role("ffn", 7, False)
    at.body(a, pf)
    a.label("L_end")
    a("s_endpgm")
    NV = 160
    return a.text(), kernel_desc(NAME, NV, 88), f"; @launch grid=(256,1,1) block=(768,1,1) lds={LDS_BYTES}"
```

```python
import sys
import asmlib
if '--prof' in sys.argv:
    asmlib.PROF = True; sys.argv.remove('--prof')
aslist = '--list' in sys.argv
if aslist: sys.argv.remove('--list')
import mono4
from build import build
out = sys.argv[1] if len(sys.argv) > 1 else "v4.s"
t, d, l = mono4.gen()
if aslist: l = l.replace("; @launch grid", f"; @launch kernel={mono4.NAME} grid")
DOC = '''
; ---------------------------------------------------------------------------------------------------------------
; ---------------------------------------------------------------------------------------------------------------
'''
t = DOC + t
build([(t, d, l)], out)
```

```python
from asmlib import *
import asmlib
from layout import *
import os
EXP = os.environ.get('EXP', '')
NAME = "gated_mix__softmax_full_mha__dense_activation_mish__prompt_kernel"
NS = int(os.environ.get('NS', '4'))
FIRST = int(os.environ.get('FIRST', '2'))
XS = 16384
W_BASE = NS * XS
RING = 12288
AT_BASE = [0, 49152]
GM_BASE = 98304
CNT_BASE = 147456
LDS_BYTES = 163840
SPIN_MAX = 1 << 18
FSH = int(os.environ.get('FSH', '7'))
WS_FQ = 10 * MB
WS_FA2 = 10 * MB + (1 << 18)
FQ = int(os.environ.get('FQ', '3')); FST = int(os.environ.get('FST', '0'))
PSLEEP = int(os.environ.get('PSLEEP', '12'))

sWS = 8
sDB = 12
sWAVE, sW, sI, sJ = 16, 17, 18, 19
sSP = 20
sT0, sT1, sT2 = 21, 22, 23
vEP = 154
wsrd = f"s[{sWS}:{sWS+3}]"

def epoch_load(a, vz):
    a(f"""
    v_mov_b32 v{vz}, 0
    buffer_load_dwordx2 {vr(vEP,2)}, v{vz}, s[{sDB}:{sDB+3}], 0 offen sc1
    """)
def epoch_check(a, vz, tag):
    a(f"""
    L_ep{tag}:
    v_cmp_ne_u32 vcc, 0, v{vEP}
    s_cbranch_vccnz L_epok{tag}
    v_mov_b32 v{vz}, 0
    buffer_load_dwordx2 {vr(vEP,2)}, v{vz}, s[{sDB}:{sDB+3}], 0 offen sc1
    s_sub_u32 s{sSP}, s{sSP}, 1
    s_waitcnt vmcnt(0)
    s_cbranch_scc0 L_ep{tag}
    s_mov_b32 s{sSP}, 0
    L_epok{tag}:
    """)
def group_sync(a, idx, vt, vt2, tag):
    a(f"""
    v_mov_b32 v{vt}, {CNT_BASE + 4*idx}
    v_mov_b32 v{vt2}, 1
    s_mov_b64 exec, 1
    ds_add_u32 v{vt}, v{vt2}
    s_mov_b64 exec, -1
    L_gs{tag}:
    ds_read_b32 v{vt2}, v{vt}
    s_sub_u32 s{sSP}, s{sSP}, 1
    s_cselect_b32 s{sT1}, 4, 0
    s_waitcnt lgkmcnt(0)
    v_readfirstlane_b32 s{sT0}, v{vt2}
    s_add_u32 s{sT0}, s{sT0}, s{sT1}
    s_cmp_lt_u32 s{sT0}, 4
    s_cbranch_scc1 L_gs{tag}
    """)

class Attn:
    sKV = 24
    sH, sQB, sKT, sC, sM, sQ0 = 28, 29, 30, 31, 32, 34
    sRB, sPO, sD, sGB, sGI = 35, 36, 37, 38, 39
    sFI, sFA = 42, 43
    vKo, vVo = 1, 2
    vT0, vT1, vT2, vT3, vG = 3, 4, 5, 6, 7
    vQ, vK, vV, vP, vS, vO = 8, 24, 32, 48, 56, 88
    vKr, vVr = 152, 153
    vFO, vFV = 156, 158
    def setup(self, a, grp):
        s = self
        a(f"""
        s_and_b32 s{sT0}, s2, 7
        s_lshl_b32 s{s.sH}, s{sT0}, 1
        s_bfe_u32 s{sT0}, s2, 0x10003
        s_add_u32 s{s.sH}, s{s.sH}, s{sT0}
        s_add_u32 s{s.sH}, s{s.sH}, {16*grp}
        s_bfe_u32 s{s.sQB}, s2, 0x40004
        s_mov_b32 s{s.sKV}, s{sWS}
        s_mov_b32 s{s.sKV+1}, s{sWS+1}
        s_mov_b32 s{s.sKV+2}, {WS_SIZE}
        s_mov_b32 s{s.sKV+3}, 0x00020000
        s_mov_b32 s{s.sM}, 0x0000ffff
        s_mov_b32 s{s.sM+1}, 0x0000ffff
        s_lshl_b32 s{sT0}, s{s.sH}, 16
        s_lshl_b32 s{sT1}, s{s.sQB}, 12
        s_add_u32 s{s.sQ0}, s{sT0}, s{sT1}
        s_lshl_b32 s{sT1}, s{sW}, 14
        s_add_u32 s{s.sKT}, s{sT0}, s{sT1}
        s_add_u32 s{s.sKT}, s{s.sKT}, {WS_K}
        s_mov_b32 s{s.sGB}, {AT_BASE[grp]}
        s_mov_b32 s{s.sGI}, {CNT_BASE + 4*grp}
        s_mov_b32 s{s.sFI}, {0 if grp else 99}
        s_lshl_b32 s{s.sFA}, s{sI}, 2
        s_add_u32 s{s.sFA}, s{s.sFA}, s{sW}
        s_lshl_b32 s{s.sFA}, s{s.sFA}, 4
        s_add_u32 s{s.sFA}, s{s.sFA}, s{sJ}
        s_lshl_b32 s{s.sFA}, s{s.sFA}, {FSH}
        s_add_u32 s{s.sFA}, s{s.sFA}, {WS_FA2}
        s_mul_i32 s{s.sRB}, s{sW}, {RING}
        s_add_u32 s{s.sRB}, s{s.sRB}, s{s.sGB}
        v_lshlrev_b32 v{s.vKo}, 4, v0
        v_add_u32 v{s.vVo}, {WS_V - WS_K}, v{s.vKo}
        s_lshr_b32 s{sT0}, s{s.sH}, 2
        s_lshl_b32 s{sT0}, s{sT0}, 6
        s_lshl_b32 s{sT1}, s{sW}, 4
        s_add_u32 s{sT2}, s{sT0}, s{sT1}
        s_add_u32 s{sT2}, s{sT2}, 512
        v_add_u32 v{s.vFO}, s{sT2}, v0
        s_lshr_b32 s{sT2}, s{s.sH}, 1
        s_lshl_b32 s{sT2}, s{sT2}, 6
        s_add_u32 s{sT2}, s{sT2}, s{sT1}
        s_sub_u32 s{sT2}, s{sT2}, 16
        v_add_u32 v{s.vT0}, s{sT2}, v0
        v_cmp_le_u32 vcc, 16, v0
        v_cndmask_b32 v{s.vFO}, v{s.vFO}, v{s.vT0}, vcc
        s_lshl_b32 s{sT1}, s{s.sQB}, 2
        s_add_u32 s{sT2}, s{sT0}, s{sT1}
        s_sub_u32 s{sT2}, s{sT2}, 32
        v_add_u32 v{s.vT0}, s{sT2}, v0
        v_cmp_le_u32 vcc, 32, v0
        v_cndmask_b32 v{s.vFO}, v{s.vFO}, v{s.vT0}, vcc
        s_lshl_b32 s{sT2}, s{sW}, 8
        s_add_u32 s{sT2}, s{sT2}, s{sT1}
        v_and_b32 v{s.vT0}, 3, v0
        v_lshlrev_b32 v{s.vT0}, 6, v{s.vT0}
        v_add_u32 v{s.vT0}, s{sT2}, v{s.vT0}
        v_cmp_le_u32 vcc, 36, v0
        v_cndmask_b32 v{s.vFO}, v{s.vFO}, v{s.vT0}, vcc
        v_lshlrev_b32 v{s.vFO}, {FSH}, v{s.vFO}
        v_add_u32 v{s.vFO}, {WS_FQ}, v{s.vFO}
        """)
    def poll_issue(self, a):
        a(f"buffer_load_dwordx2 {vr(self.vFV,2)}, v{self.vFO}, {wsrd}, 0 offen sc1")
    def poll_test(self, a):
        a(f"""
        v_cmp_ne_u64 vcc, {vr(self.vFV,2)}, {vr(vEP,2)}
        s_cmp_eq_u64 vcc, 0
        """)
    def first_loads(self, a, tag):
        s = self
        kv = f"s[{s.sKV}:{s.sKV+3}]"
        a(f"""
        s_lshl_b32 s{sT1}, s{sW}, 10
        v_xor_b32 v{s.vT2}, s{sT1}, v{s.vKo}
        s_mov_b32 m0, s{s.sRB}
        s_mov_b32 s{s.sC}, 0
        """)
        for q in range(4):
            if q: a(f"v_xor_b32 v{s.vT3}, {q*1024}, v{s.vT2}")
            a(f"buffer_load_dwordx4 {vr(s.vQ+4*q,4)}, v{s.vT3 if q else s.vT2}, {wsrd}, s{s.sQ0} offen sc1")
        a(f"""
        L_pre{tag}:
        buffer_load_dwordx4 v{s.vKo}, {kv}, s{s.sKT} offen sc1 lds
        s_add_u32 m0, m0, 1024
        s_add_u32 s{s.sC}, s{s.sC}, 1
        buffer_load_dwordx4 v{s.vVo}, {kv}, s{s.sKT} offen sc1 lds
        s_add_u32 m0, m0, 1024
        s_add_u32 s{s.sKT}, s{s.sKT}, 1024
        s_cmp_lt_u32 s{s.sC}, 6
        s_cbranch_scc1 L_pre{tag}
        s_lshl_b32 s{sT0}, s{s.sQB}, 2
        s_add_u32 s{sT0}, s{sT0}, s{sW}
        s_lshl_b32 s{sT0}, s{sT0}, 7
        s_add_u32 s{sT0}, s{sT0}, {WS_G}
        v_and_b32 v{s.vT0}, 31, v0
        v_lshlrev_b32 v{s.vT0}, 2, v{s.vT0}
        buffer_load_dword v{s.vG}, v{s.vT0}, {wsrd}, s{sT0} offen sc1
        """)
    def body(self, a, pf):
        s = self; P = "at"
        sKV, sH, sQB, sKT, sC, sM, sRB, sPO, sD = s.sKV, s.sH, s.sQB, s.sKT, s.sC, s.sM, s.sRB, s.sPO, s.sD
        vKo, vVo, vT0, vT1, vT2, vT3, vG = s.vKo, s.vVo, s.vT0, s.vT1, s.vT2, s.vT3, s.vG
        vQ, vK, vV, vP, vS, vO, vKr, vVr = s.vQ, s.vK, s.vV, s.vP, s.vS, s.vO, s.vKr, s.vVr
        kv = f"s[{sKV}:{sKV+3}]"
        a.label("L_at_body")
        a.window = []
        a(f"""
        v_add_u32 v{vKr}, s{sRB}, v{vKo}
        v_and_b32 v{vT0}, 15, v0
        v_lshlrev_b32 v{vT0}, 4, v{vT0}
        v_lshrrev_b32 v{vT1}, 5, v0
        v_lshl_add_u32 v{vT0}, v{vT1}, 8, v{vT0}
        v_add_u32 v{vVr}, s{sRB}, v{vT0}
        v_and_b32 v{vT1}, 27, v0
        v_cmp_eq_u32 vcc, 16, v{vT1}
        v_mov_b32 v{vT1}, 0x3f803f80
        v_cndmask_b32 v{vT1}, 0, v{vT1}, vcc
        """)
        for r in range(16): a(f"v_mov_b32 v{vV+r}, v{vT1}")
        def reads(st, off):
            return f"""ds_read_b128 {vr(vK+4*st,4)}, v{vKr} offset:{off}
            s_mov_b64 exec, s[{sM}:{sM+1}]
            ds_read_b128 {vr(vV+8*st,4)}, v{vVr} offset:{off+1024}
            ds_read_b128 {vr(vV+8*st+4,4)}, v{vVr} offset:{off+1536}
            s_mov_b64 exec, -1"""
        def dma(off):
            return f"""s_add_u32 m0, s{sPO}, {off}
            s_setprio 3
            buffer_load_dwordx4 v{vKo}, {kv}, s{sKT} offen sc1 lds
            s_add_u32 m0, s{sPO}, {off+1024}
            s_nop 0
            buffer_load_dwordx4 v{vVo}, {kv}, s{sKT} offen sc1 lds
            s_setprio 1
            s_add_u32 s{sKT}, s{sKT}, 1024"""
        for r in range(4, 8): a(f"v_mov_b32 v{vP+r}, 0")
        for t in range(4): a(f"v_mfma_f32_32x32x16_bf16 {vr(vO+16*t,16)}, {vr(vP+4,4)}, {vr(vP+4,4)}, 0")
        a(f"s_mov_b32 s{sC}, 0")
        a(f"s_mov_b32 s{sPO}, s{sRB}")
        a("s_waitcnt vmcnt(11)")
        pf.stamp(2)
        a(reads(0, 0))
        a("s_waitcnt lgkmcnt(0)")
        def mfS(sb, st, q): return f"v_mfma_f32_32x32x16_bf16 {vr(vS+16*sb,16)}, {vr(vK+4*st,4)}, {vr(vQ+4*q,4)}, 0"
        def mfPV(q, st, u): return f"v_mfma_f32_32x32x16_bf16 {vr(vO+16*q,16)}, {vr(vV+8*st+4*u,4)}, {vr(vP+4*u,4)}, {vr(vO+16*q,16)}"
        a(mfS(0, 0, 0))
        a(dma(0))
        a("s_nop 7")
        a.raw(".p2align 6")
        a.label(f"L_{P}_loop")
        start = len(a.lines)
        for st in range(2):
            off = 2048 if st == 0 else 0
            for q in range(4):
                sb = q & 1
                S = vS + 16 * sb
                ex = lambda i: f"v_exp_f32 v{S+i}, v{S+i}"
                cv = lambda i: f"v_cvt_pk_bf16_f32 v{vP+i}, v{S+2*i}, v{S+2*i+1}"
                pq, pst = (q - 1, st) if q > 0 else (3, st ^ 1)
                nq, nst = (q + 1, st) if q < 3 else (0, st ^ 1)
                a(ex(0)); a(ex(1))
                a(mfPV(pq, pst, 1))
                if q == 0 and st == 1:
                    a(f"""
                    s_add_u32 s{sT0}, s{sPO}, 4096
                    s_add_u32 s{sT1}, s{sRB}, {RING}
                    s_cmp_eq_u32 s{sT0}, s{sT1}
                    s_cselect_b32 s{sT0}, s{sRB}, s{sT0}
                    s_sub_u32 s{sD}, s{sT0}, s{sPO}
                    s_mov_b32 s{sPO}, s{sT0}
                    v_add_u32 v{vKr}, s{sD}, v{vKr}
                    v_add_u32 v{vVr}, s{sD}, v{vVr}
                    """)
                if q == FQ and st == FST:
                    a(f"""
                    s_cmp_eq_u32 s{sC}, s{s.sFI}
                    s_cbranch_scc1 L_{P}_flag
                    L_{P}_flagret:
                    """)
                if q == 1:
                    a("s_waitcnt vmcnt(10)")
                    a(reads(st ^ 1, off))
                for i in range(2, 6): a(ex(i))
                if q == 3: a("s_waitcnt lgkmcnt(0)")
                a(mfS(sb ^ 1, nst, nq))
                if q == 3:
                    if st == 1:
                        a(f"""
                        s_cmp_ge_u32 s{sC}, 4
                        s_cselect_b32 s{sKV+2}, 0, s{sKV+2}
                        """)
                    a(dma(off))
                a(ex(6)); a(ex(7))
                for i in range(4): a(cv(i))
                a(ex(8)); a(ex(9))
                a(mfPV(q, st, 0))
                for i in range(10, 16): a(ex(i))
                for i in range(4, 8): a(cv(i))
        a(f"""
        s_add_u32 s{sC}, s{sC}, 1
        s_cmp_lt_u32 s{sC}, 8
        s_cbranch_scc1 L_{P}_loop
        """)
        seam, inner = check_loop(a.lines[start:])
        assert seam == 0 and inner == 0, (seam, inner)
        a(mfPV(3, 1, 1))
        a("s_setprio 3")
        pf.stamp(3)
        a(f"""
        v_add_u32 v{vT0}, s{sRB}, v{vKo}
        v_lshlrev_b32 v{vT1}, 2, v0
        v_add_u32 v{vT2}, s{sRB}, v{vT1}
        s_waitcnt vmcnt(0)
        """)
        for j in range(1, 4):
            o = vO + 16 * j
            a(f"""
            ds_write_b128 v{vT0}, {vr(o,4)} offset:{(j-1)*2304}
            ds_write_b128 v{vT0}, {vr(o+4,4)} offset:{(j-1)*2304+1024}
            ds_write_b32 v{vT2}, v{o+8} offset:{(j-1)*2304+2048}
            """)
        a(f"""
        v_mov_b32 v{vT2}, s{s.sGI}
        v_mov_b32 v{vT3}, 1
        s_waitcnt lgkmcnt(0)
        s_mov_b64 exec, 1
        ds_add_u32 v{vT2}, v{vT3}
        s_mov_b64 exec, -1
        L_at_gs:
        s_sleep 1
        ds_read_b32 v{vT3}, v{vT2}
        s_sub_u32 s{sSP}, s{sSP}, 1
        s_cselect_b32 s{sT1}, 4, 0
        s_waitcnt lgkmcnt(0)
        v_readfirstlane_b32 s{sT0}, v{vT3}
        s_add_u32 s{sT0}, s{sT0}, s{sT1}
        s_cmp_lt_u32 s{sT0}, 4
        s_cbranch_scc1 L_at_gs
        """)
        R = vO
        for j in range(1, 4):
            o = vO + 16 * j
            a(f"""
            s_xor_b32 s{sT0}, s{sW}, {j}
            s_mul_i32 s{sT0}, s{sT0}, {RING}
            s_add_u32 s{sT0}, s{sT0}, s{s.sGB}
            v_add_u32 v{vT0}, s{sT0}, v{vKo}
            v_add_u32 v{vT2}, s{sT0}, v{vT1}
            ds_read_b128 {vr(o,4)}, v{vT0} offset:{(j-1)*2304}
            ds_read_b128 {vr(o+4,4)}, v{vT0} offset:{(j-1)*2304+1024}
            ds_read_b32 v{o+8}, v{vT2} offset:{(j-1)*2304+2048}
            """)
        a("s_waitcnt lgkmcnt(0)")
        for r in range(0, 8, 2):
            a(f"v_pk_add_f32 {vr(R+r,2)}, {vr(R+r,2)}, {vr(R+16+r,2)}")
            a(f"v_pk_add_f32 {vr(R+32+r,2)}, {vr(R+32+r,2)}, {vr(R+48+r,2)}")
        a(f"v_add_f32 v{R+8}, v{R+8}, v{R+24}")
        a(f"v_add_f32 v{R+40}, v{R+40}, v{R+56}")
        for r in range(0, 8, 2):
            a(f"v_pk_add_f32 {vr(R+r,2)}, {vr(R+r,2)}, {vr(R+32+r,2)}")
        a(f"v_add_f32 v{R+8}, v{R+8}, v{R+40}")
        a(f"v_mov_b32 v{vT2}, v{R+8}")
        for r in range(8): a(f"v_fma_f32 v{vT2}, v{R+r}, 0, v{vT2}")
        a(f"""
        s_mov_b32 s{sT0}, {hex(f32bits(2.0**-30))}
        s_mov_b32 s{sT1}, {hex(f32bits(2.0**30))}
        v_cmp_le_f32 vcc, s{sT0}, v{vT2}
        v_cmp_ge_f32 s[40:41], s{sT1}, v{vT2}
        s_and_b64 vcc, vcc, s[40:41]
        s_cmp_eq_u64 vcc, -1
        s_cbranch_scc0 L_{P}_slow
        L_{P}_fin:
        v_rcp_f32 v{vT2}, v{R+8}
        s_lshl_b32 s{sT0}, s{sQB}, 2
        s_add_u32 s{sT0}, s{sT0}, s{sW}
        s_lshl_b32 s{sT0}, s{sT0}, 5
        s_add_u32 s{sT0}, s{sT0}, s{sH}
        s_lshl_b32 s{sT0}, s{sT0}, 10
        s_add_u32 s{sT0}, s{sT0}, {WS_O}
        v_mul_f32 v{vT2}, v{vT2}, v{vG}
        """)
        for r in range(8): a(f"v_mul_f32 v{R+r}, v{R+r}, v{vT2}")
        for r in range(4): a(f"v_cvt_pk_bf16_f32 v{vP+r}, v{R+2*r}, v{R+2*r+1}")
        for r in range(4): a(f"v_min_u32 v{vP+r}, -2, v{vP+r}")
        a(f"""
        v_permlane32_swap_b32 v{vP}, v{vP+2}
        v_permlane32_swap_b32 v{vP+1}, v{vP+3}
        buffer_store_dwordx4 {vr(vP,4)}, v{vKo}, {wsrd}, s{sT0} offen sc1
        """)
        pf.stamp(4)
        if asmlib.PROF: a("s_waitcnt vmcnt(0)")
        pf.stamp(5)
        pf.dump(6, 2, sWAVE, 16, vT0, vT1)
        a("s_endpgm")
        a(f"""
        L_{P}_flag:
        s_waitcnt vmcnt({2 + 2*FST})
        v_mov_b32 v{vT0}, 0
        s_mov_b64 exec, 1
        buffer_store_dwordx2 {vr(vEP,2)}, v{vT0}, {wsrd}, s{s.sFA} offen sc1
        s_mov_b64 exec, -1
        s_branch L_{P}_flagret
        """)
        a.label(f"L_{P}_slow")
        a.window = []
        vM = vT3; S = vS
        a(f"""
        s_lshl_b32 s{sT1}, s{sH}, 16
        s_add_u32 s{sT1}, s{sT1}, {WS_K}
        s_mov_b32 s{sKT}, s{sT1}
        s_mov_b32 s{sC}, 0
        v_mov_b32 v{vM}, 0xff800000
        v_and_b32 v{vT0}, 15, v0
        v_lshlrev_b32 v{vT0}, 4, v{vT0}
        v_lshrrev_b32 v{vT1}, 5, v0
        v_lshl_add_u32 v{vT0}, v{vT1}, 8, v{vT0}
        v_add_u32 v{vVo}, {WS_V - WS_K}, v{vT0}
        L_{P}_slow1:
        buffer_load_dwordx4 {vr(vK,4)}, v{vKo}, {wsrd}, s{sKT} offen sc1
        s_add_u32 s{sKT}, s{sKT}, 1024
        s_waitcnt vmcnt(0)
        {mfS(0,0,0)}
        """)
        for r in range(0, 16, 2): a(f"v_max3_f32 v{vM}, v{vM}, v{S+r}, v{S+r+1}")
        a(f"""
        s_add_u32 s{sC}, s{sC}, 1
        s_cmp_lt_u32 s{sC}, 64
        s_cbranch_scc1 L_{P}_slow1
        v_mov_b32 v{vT0}, v{vM}
        v_mov_b32 v{vT1}, v{vM}
        v_permlane32_swap_b32 v{vT0}, v{vT1}
        v_max_f32 v{vM}, v{vT0}, v{vT1}
        s_mov_b32 s{sKT}, s{sT1}
        s_mov_b32 s{sC}, 0
        """)
        for r in range(16): a(f"v_mov_b32 v{R+r}, 0")
        a(f"""
        L_{P}_slow2:
        buffer_load_dwordx4 {vr(vK,4)}, v{vKo}, {wsrd}, s{sKT} offen sc1
        s_mov_b64 exec, s[{sM}:{sM+1}]
        buffer_load_dwordx4 {vr(vV,4)}, v{vVo}, {wsrd}, s{sKT} offen sc1
        buffer_load_dwordx4 {vr(vV+4,4)}, v{vVo}, {wsrd}, s{sKT} offen offset:512 sc1
        s_mov_b64 exec, -1
        s_add_u32 s{sKT}, s{sKT}, 1024
        s_waitcnt vmcnt(0)
        {mfS(0,0,0)}
        """)
        for r in range(16): a(f"v_sub_f32 v{S+r}, v{S+r}, v{vM}")
        for r in range(16): a(f"v_exp_f32 v{S+r}, v{S+r}")
        for i in range(8): a(f"v_cvt_pk_bf16_f32 v{vP+i}, v{S+2*i}, v{S+2*i+1}")
        a(mfPV(0, 0, 0)); a(mfPV(0, 0, 1))
        a(f"""
        s_nop 7
        s_add_u32 s{sC}, s{sC}, 1
        s_cmp_lt_u32 s{sC}, 64
        s_cbranch_scc1 L_{P}_slow2
        s_nop 15
        s_branch L_{P}_fin
        """)

def gemm_role(a, pf):
    P = "gm"
    sWT, sOUT = 24, 28
    sC, sD, sN = 32, 33, 34
    sWM, sWN = 35, 36
    sTW, sFJ, sAO, sWO, sWO2, sLB = 37, 38, 39, 40, 41, 42
    vL16 = 1
    vT0, vT1, vT2, vT3 = 2, 3, 4, 5
    vWd = 7
    vWr, vAo, vG1 = [10, 11], [12, 13], [14, 15]
    vF, vA, vACC = 16, 48, 80
    D = 4
    a(f"""
    s_setprio {int(os.environ.get('GPRIO', '0'))}
    s_load_dwordx2 s[{sWT}:{sWT+1}], s[0:1], 48
    s_load_dwordx2 s[44:45], s[0:1], 16
    s_load_dwordx2 s[{sOUT}:{sOUT+1}], s[0:1], 64
    s_mov_b32 s{sWT+2}, {1792*512*2}
    s_mov_b32 s{sWT+3}, 0x00020000
    s_mov_b32 s{sOUT+2}, {2048*512*2}
    s_mov_b32 s{sOUT+3}, 0x00020000
    s_and_b32 s{sWM}, s{sW}, 1
    s_lshr_b32 s{sWN}, s{sW}, 1
    v_lshlrev_b32 v{vL16}, 4, v0
    s_and_b32 s{sT0}, s2, 7
    s_lshl_b32 s{sTW}, s{sT0}, 2
    s_bfe_u32 s{sT0}, s2, 0x20003
    s_add_u32 s{sTW}, s{sTW}, s{sT0}
    s_lshr_b32 s{sFJ}, s2, 5
    s_mul_i32 s{sT0}, s{sTW}, 224
    s_mul_i32 s{sT1}, s{sW}, 28
    s_add_u32 s{sT0}, s{sT0}, s{sT1}
    s_lshl_b32 s{sAO}, s{sT0}, 10
    s_add_u32 s{sAO}, s{sAO}, {WS_A}
    s_lshl_b32 s{sWO}, s{sT1}, 14
    s_lshl_b32 s{sT2}, s{sFJ}, 7
    s_add_u32 s{sWO}, s{sWO}, s{sT2}
    s_mul_i32 s{sLB}, s{sW}, 12288
    s_add_u32 s{sLB}, s{sLB}, {GM_BASE}
    s_mul_i32 s{sT0}, s{sWM}, {112*1024}
    s_sub_u32 s{sT1}, {112*1024}, s{sT0}
    v_add_u32 v{vAo[0]}, s{sT0}, v{vL16}
    v_add_u32 v{vAo[1]}, s{sT1}, v{vL16}
    v_lshrrev_b32 v{vT0}, 2, v0
    v_lshrrev_b32 v{vT1}, 4, v0
    v_xor_b32 v{vT0}, v{vT0}, v{vT1}
    v_and_b32 v{vT0}, 1, v{vT0}
    v_lshlrev_b32 v{vT0}, 6, v{vT0}
    v_and_b32 v{vT1}, 3, v0
    v_lshl_add_u32 v{vT0}, v{vT1}, 4, v{vT0}
    v_lshrrev_b32 v{vT1}, 3, v0
    v_lshl_add_u32 v{vWd}, v{vT1}, 10, v{vT0}
    v_lshrrev_b32 v{vT0}, 5, v0
    v_bfe_u32 v{vT1}, v0, 2, 2
    v_lshl_add_u32 v{vT0}, v{vT0}, 3, v{vT1}
    v_lshlrev_b32 v{vT0}, 7, v{vT0}
    v_lshrrev_b32 v{vT1}, 1, v{vT1}
    v_xor_b32 v{vT1}, s{sWN}, v{vT1}
    v_lshl_add_u32 v{vT0}, v{vT1}, 6, v{vT0}
    v_bfe_u32 v{vT1}, v0, 4, 1
    v_lshl_add_u32 v{vT0}, v{vT1}, 5, v{vT0}
    v_and_b32 v{vT1}, 3, v0
    v_lshl_add_u32 v{vT0}, v{vT1}, 3, v{vT0}
    v_add_u32 v{vWr[0]}, s{sLB}, v{vT0}
    v_xor_b32 v{vWr[1]}, 64, v{vWr[0]}
    s_lshl_b32 s{sT0}, s{sTW}, 5
    s_lshl_b32 s{sT1}, s{sW}, 2
    s_add_u32 s{sT0}, s{sT0}, s{sT1}
    v_bfe_u32 v{vT0}, v0, 2, 1
    v_lshlrev_b32 v{vT0}, 4, v{vT0}
    v_and_b32 v{vT1}, 3, v0
    v_add3_u32 v{vT0}, v{vT0}, v{vT1}, s{sT0}
    v_lshlrev_b32 v{vT0}, {FSH}, v{vT0}
    v_add_u32 v{vT0}, {WS_FA2}, v{vT0}
    s_and_b32 s{sT0}, s{sTW}, 1
    s_lshl_b32 s{sT0}, s{sT0}, 9
    s_lshr_b32 s{sT2}, s{sTW}, 1
    s_lshl_b32 s{sN}, s{sT2}, 2
    s_add_u32 s{sT0}, s{sT0}, s{sN}
    v_and_b32 v{vT2}, 7, v0
    v_lshlrev_b32 v{vT2}, 6, v{vT2}
    v_add_u32 v{vT2}, s{sT0}, v{vT2}
    v_lshlrev_b32 v{vT2}, {FSH}, v{vT2}
    v_add_u32 v{vT2}, {WS_FQ}, v{vT2}
    v_cmp_le_u32 vcc, 8, v0
    v_cndmask_b32 v{vT0}, v{vT0}, v{vT2}, vcc
    v_add_u32 v{vT1}, s{sT1}, v{vT1}
    v_lshrrev_b32 v{vT2}, 1, v{vT1}
    v_and_b32 v{vT1}, 1, v{vT1}
    v_lshl_add_u32 v{vT2}, v{vT1}, 3, v{vT2}
    s_lshl_b32 s{sT2}, s{sT2}, 4
    v_add_u32 v{vT2}, s{sT2}, v{vT2}
    v_and_b32 v{vT1}, 1, v{vT2}
    v_lshlrev_b32 v{vT1}, 3, v{vT1}
    v_bfe_u32 v{vT3}, v{vT2}, 3, 3
    v_add_u32 v{vT1}, v{vT1}, v{vT3}
    v_lshlrev_b32 v{vT1}, 2, v{vT1}
    v_bfe_u32 v{vT3}, v{vT2}, 1, 2
    v_lshl_add_u32 v{vT1}, v{vT3}, 8, v{vT1}
    v_lshrrev_b32 v{vT3}, 6, v{vT2}
    v_lshl_add_u32 v{vT1}, v{vT3}, 6, v{vT1}
    v_lshlrev_b32 v{vT1}, {FSH}, v{vT1}
    v_add_u32 v{vT1}, {WS_FQ}, v{vT1}
    v_cmp_le_u32 vcc, 16, v0
    v_cndmask_b32 v{vT0}, v{vT0}, v{vT1}, vcc
    s_waitcnt vmcnt(0) lgkmcnt(0)
    """)
    epoch_check(a, vT1, "g")
    a(f"""
    s_mov_b64 exec, 0xfffff
    L_{P}_pollF:
    buffer_load_dwordx2 {vr(vT2,2)}, v{vT0}, {wsrd}, 0 offen sc1
    s_waitcnt vmcnt(0)
    v_cmp_ne_u64 vcc, {vr(vT2,2)}, {vr(vEP,2)}
    s_cbranch_vccz L_{P}_okF
    s_sleep 8
    s_sub_u32 s{sSP}, s{sSP}, 1
    s_cbranch_scc0 L_{P}_pollF
    s_mov_b32 s{sSP}, 0
    L_{P}_okF:
    s_mov_b64 exec, -1
    s_lshl_b32 s{sT0}, s{sTW}, 8
    s_add_u32 s{sT0}, s{sT0}, {WS_G}
    v_and_b32 v{vT0}, 31, v0
    v_lshlrev_b32 v{vT0}, 2, v{vT0}
    s_lshl_b32 s{sT1}, s{sWM}, 7
    v_xor_b32 v{vT0}, s{sT1}, v{vT0}
    v_xor_b32 v{vT1}, 128, v{vT0}
    buffer_load_dword v{vG1[0]}, v{vT0}, {wsrd}, s{sT0} offen sc1
    buffer_load_dword v{vG1[1]}, v{vT1}, {wsrd}, s{sT0} offen sc1
    """)
    pf.stamp(2)
    def wloads(d):
        return [f"s_add_u32 m0, s{sLB}, {d*2048}",
                f"s_add_u32 s{sWO2}, s{sWO}, 8192",
                f"buffer_load_dwordx4 v{vWd}, s[{sWT}:{sWT+3}], s{sWO} offen lds",
                f"s_add_u32 m0, s{sLB}, {d*2048+1024}",
                f"s_add_u32 s{sWO}, s{sWO}, 16384",
                f"buffer_load_dwordx4 v{vWd}, s[{sWT}:{sWT+3}], s{sWO2} offen lds"]
    def aloads(d):
        return [f"buffer_load_dwordx4 {vr(vA+8*d,4)}, v{vAo[0]}, {wsrd}, s{sAO} offen sc1",
                f"buffer_load_dwordx4 {vr(vA+8*d+4,4)}, v{vAo[1]}, {wsrd}, s{sAO} offen sc1",
                f"s_add_u32 s{sAO}, s{sAO}, 1024"]
    def wreads(d, buf):
        return [f"ds_read_b64_tr_b16 {vr(vF+8*buf+4*fi+2*t2,2)}, v{vWr[fi]} offset:{d*2048+t2*512}"
                for fi in range(2) for t2 in range(2)]
    def mfmas(d, buf):
        return [f"v_mfma_f32_32x32x16_bf16 {vr(vACC+16*(fi*2+ti),16)}, {vr(vF+8*buf+4*fi,4)}, {vr(vA+8*d+4*ti,4)}, {vr(vACC+16*(fi*2+ti),16)}"
                for fi in range(2) for ti in range(2)]
    for d in range(D): a("\n".join(wloads(d) + aloads(d)))
    for r in range(4): a(f"v_mov_b32 v{vF+8+r}, 0")
    for t in range(4): a(f"v_mfma_f32_32x32x16_bf16 {vr(vACC+16*t,16)}, {vr(vF+8,4)}, {vr(vF+8,4)}, 0")
    a(f"s_mov_b32 s{sC}, 0")
    a(f"s_waitcnt vmcnt({4*(D-1)})")
    a("\n".join(wreads(0, 0)))
    a.raw(".p2align 6")
    a.label(f"L_{P}_f2loop")
    start = len(a.lines)
    for s in range(D):
        a(f"s_waitcnt vmcnt({4*(D-2)})")
        a("\n".join(wreads((s + 1) % D, (s + 1) & 1)))
        a("s_waitcnt lgkmcnt(4)")
        a("\n".join(mfmas(s, s & 1)))
        a("\n".join(wloads(s) + aloads(s)))
    a(f"""
    s_add_u32 s{sC}, s{sC}, 1
    s_cmp_lt_u32 s{sC}, 6
    s_cbranch_scc1 L_{P}_f2loop
    """)
    seam, inner = check_loop(a.lines[start:])
    assert seam == 0 and inner == 0, (seam, inner)
    a(f"""
    s_mov_b32 s{sWT}, s44
    s_mov_b32 s{sWT+1}, s45
    s_mov_b32 s{sWT+2}, {512*512*2}
    s_lshl_b32 s{sWO}, s{sW}, 16
    s_lshl_b32 s{sT2}, s{sFJ}, 7
    s_add_u32 s{sWO}, s{sWO}, s{sT2}
    """)
    for s in range(D):
        if s < D - 1:
            a(f"s_waitcnt vmcnt({4*(D-2-s) + 2*s})")
            a("\n".join(wreads(s + 1, (s + 1) & 1)))
            a("s_waitcnt lgkmcnt(4)")
        else:
            a("s_waitcnt lgkmcnt(0)")
        a("\n".join(mfmas(s, s & 1)))
        a("\n".join(wloads(s)))
    pf.stamp(3)
    a(f"""
    s_setprio 2
    v_sub_f32 v{vG1[0]}, 1.0, v{vG1[0]}
    v_sub_f32 v{vG1[1]}, 1.0, v{vG1[1]}
    s_lshl_b32 s{sAO}, s{sTW}, 16
    s_lshl_b32 s{sT0}, s{sW}, 12
    s_add_u32 s{sAO}, s{sAO}, s{sT0}
    s_add_u32 s{sAO}, s{sAO}, {WS_O}
    s_lshl_b32 s{sT0}, s{sWM}, 15
    v_add_u32 v{vAo[0]}, s{sT0}, v{vL16}
    v_xor_b32 v{vAo[1]}, 0x8000, v{vAo[0]}
    v_and_b32 v{vT0}, 3, v0
    v_bfe_u32 v{vT1}, v0, 2, 1
    v_lshlrev_b32 v{vT0}, 10, v{vT0}
    v_lshl_add_u32 v{vT3}, v{vT1}, 15, v{vT0}
    s_add_u32 s{sWO}, s{sWO}, {(16-4)*16384}
    s_mov_b32 s{sC}, 0
    """)
    for fi in range(2):
        for ti in range(2):
            acc = vACC + 16 * (fi * 2 + ti)
            for r in range(0, 16, 2): a(f"v_pk_mul_f32 {vr(acc+r,2)}, {vr(acc+r,2)}, {vr(vG1[0],2)} op_sel:[0,{ti}] op_sel_hi:[1,{ti}]")
    a(f"""
    L_{P}_ph:
    s_mov_b64 exec, 0xff
    L_{P}_pollO:
    buffer_load_dword v{vT1}, v{vT3}, {wsrd}, s{sAO} offen offset:1020 sc1
    s_waitcnt vmcnt(0)
    v_cmp_eq_u32 vcc, -1, v{vT1}
    s_cbranch_vccz L_{P}_loadO
    s_sleep {PSLEEP}
    s_sub_u32 s{sSP}, s{sSP}, 1
    s_cbranch_scc0 L_{P}_pollO
    s_mov_b32 s{sSP}, 0
    L_{P}_loadO:
    s_mov_b64 exec, -1
    """)
    for d in range(D):
        a(f"buffer_load_dwordx4 {vr(vA+8*d,4)}, v{vAo[0]}, {wsrd}, s{sAO} offen offset:{d*1024} sc1")
        a(f"buffer_load_dwordx4 {vr(vA+8*d+4,4)}, v{vAo[1]}, {wsrd}, s{sAO} offen offset:{d*1024} sc1")
    a("\n".join(wreads(0, 0)))
    a("s_waitcnt vmcnt(0)")
    a(f"v_max3_u32 v{vT1}, v{vA}, v{vA+1}, v{vA+2}")
    for r in range(3, 31, 2): a(f"v_max3_u32 v{vT1}, v{vT1}, v{vA+r}, v{vA+r+1}")
    a(f"""
    v_max_u32 v{vT1}, v{vT1}, v{vA+31}
    v_cmp_eq_u32 vcc, -1, v{vT1}
    s_cbranch_vccz L_{P}_okO
    s_sub_u32 s{sSP}, s{sSP}, 1
    s_cbranch_scc0 L_{P}_loadO
    s_mov_b32 s{sSP}, 0
    L_{P}_okO:
    """)
    for s in range(D):
        if s < D - 1:
            a("\n".join(wreads(s + 1, (s + 1) & 1)))
            a("s_waitcnt lgkmcnt(4)")
        else:
            a("s_waitcnt lgkmcnt(0)")
        a("\n".join(mfmas(s, s & 1)))
    a(f"""
    s_cmp_eq_u32 s{sC}, 1
    s_cbranch_scc1 L_{P}_red
    """)
    for s in range(D): a("\n".join(wloads(s)))
    a(f"""
    {'s_memrealtime s[74:75]' if 'tdA' in EXP else ''}
    s_add_u32 s{sAO}, s{sAO}, 16384
    s_mov_b32 s{sC}, 1
    s_branch L_{P}_ph
    L_{P}_red:
    s_nop 7
    v_add_u32 v{vT0}, s{sLB}, v{vL16}
    s_nop 3
    """)
    pf.stamp(4)
    for j in range(1, 4):
        for q in range(4):
            a(f"ds_write_b128 v{vT0}, {vr(vACC+16*j+4*q,4)} offset:{(j-1)*4096+q*1024}")
    a("s_waitcnt lgkmcnt(0)")
    group_sync(a, 2, vT1, vT2, "gm")
    for j in range(1, 4):
        a(f"""
        s_xor_b32 s{sT0}, s{sW}, {j}
        s_mul_i32 s{sT0}, s{sT0}, 12288
        s_add_u32 s{sT0}, s{sT0}, {GM_BASE}
        v_add_u32 v{vT1}, s{sT0}, v{vL16}
        """)
        for q in range(4):
            a(f"ds_read_b128 {vr(vACC+16*j+4*q,4)}, v{vT1} offset:{(j-1)*4096+q*1024}")
    a(f"""
    s_lshl_b32 s{sT0}, s{sTW}, 1
    s_add_u32 s{sT0}, s{sT0}, s{sWM}
    s_lshl_b32 s{sT0}, s{sT0}, 15
    s_lshl_b32 s{sT1}, s{sFJ}, 7
    s_add_u32 s{sT0}, s{sT0}, s{sT1}
    s_lshl_b32 s{sT1}, s{sWN}, 6
    s_add_u32 s{sT0}, s{sT0}, s{sT1}
    v_and_b32 v{vT0}, 31, v0
    v_lshlrev_b32 v{vT0}, 10, v{vT0}
    v_lshrrev_b32 v{vT2}, 5, v0
    v_lshl_add_u32 v{vT0}, v{vT2}, 4, v{vT0}
    s_waitcnt lgkmcnt(8)
    """)
    for r in range(0, 16, 2): a(f"v_pk_add_f32 {vr(vACC+r,2)}, {vr(vACC+r,2)}, {vr(vACC+16+r,2)}")
    a("s_waitcnt lgkmcnt(0)")
    for r in range(0, 16, 2): a(f"v_pk_add_f32 {vr(vACC+32+r,2)}, {vr(vACC+32+r,2)}, {vr(vACC+48+r,2)}")
    for r in range(0, 16, 2): a(f"v_pk_add_f32 {vr(vACC+r,2)}, {vr(vACC+r,2)}, {vr(vACC+32+r,2)}")
    p = vF
    for i in range(8): a(f"v_cvt_pk_bf16_f32 v{p+i}, v{vACC+2*i}, v{vACC+2*i+1}")
    a(f"""
    v_permlane32_swap_b32 v{p}, v{p+2}
    v_permlane32_swap_b32 v{p+1}, v{p+3}
    v_permlane32_swap_b32 v{p+4}, v{p+6}
    v_permlane32_swap_b32 v{p+5}, v{p+7}
    buffer_store_dwordx4 {vr(p,4)}, v{vT0}, s[{sOUT}:{sOUT+3}], s{sT0} offen
    buffer_store_dwordx4 {vr(p+4,4)}, v{vT0}, s[{sOUT}:{sOUT+3}], s{sT0} offen offset:32
    """)
    if asmlib.PROF: a("s_waitcnt vmcnt(0)")
    pf.stamp(5)
    pf.dump(6, 2, sWAVE, 16, vT0, vT1)
    if 'td' in EXP:
        a(f"""
        s_or_b32 s{sT0}, s2, s{sW}
        s_cmp_lg_u32 s{sT0}, 0
        s_cbranch_scc1 L_td_end
        s_memrealtime s[76:77]
        s_waitcnt lgkmcnt(0)
        {'s_mov_b32 s74, s76' if 'tdE' in EXP else ''}
        s_sub_u32 s{sT1}, s74, s72
        s_min_u32 s{sT1}, s{sT1}, 10000
        s_mul_i32 s{sT1}, s{sT1}, 10
        L_td_spin:
        s_memrealtime s[78:79]
        s_waitcnt lgkmcnt(0)
        s_sub_u32 s{sT2}, s78, s76
        s_cmp_lt_u32 s{sT2}, s{sT1}
        s_cbranch_scc1 L_td_spin
        L_td_end:
        """)
    a("s_endpgm")

def gen():
    WB, WSL, NWS = 131072, 8192, 4
    a = Asm()
    a.raw(kernel_header(NAME))
    pf = Prof(a, 0)
    pf.stamp(0)
    at = Attn()
    sX, sWQ, sW1, sB1, sGW = 44, 48, 52, 56, 56
    sSOX, sSOW, sSL, sN, sD, sC = 60, 61, 62, 63, 64, 65
    sMX, sMQ, sM1 = 66, 67, 68
    sK2 = 70
    sKX, sBX, sBQ, sB1o, sX2, sKC = 24, 25, 26, 27, 28, 29
    vG = 3
    vT0, vT1, vT2, vT3 = 6, 7, 8, 9
    a(f"""
    s_cmp_ge_u32 s2, 256
    s_cbranch_scc1 L_end
    s_getpc_b64 s[40:41]
    L_pc0:
    v_lshlrev_b32 v1, 6, v0
    v_min_u32 v1, L_code_end-L_pc0-4, v1
    global_load_dword v96, v1, s[40:41]
    s_load_dwordx4 s[4:7], s[0:1], 0
    s_load_dwordx4 s[32:35], s[0:1], 32
    s_load_dwordx2 s[36:37], s[0:1], 56
    s_load_dwordx2 s[{sDB}:{sDB+1}], s[0:1], 72
    s_load_dwordx2 s[{sWS}:{sWS+1}], s[0:1], 80
    v_lshrrev_b32 v1, 6, v0
    v_and_b32 v0, 63, v0
    v_readfirstlane_b32 s{sWAVE}, v1
    s_and_b32 s{sT0}, s2, 7
    s_lshr_b32 s{sT1}, s2, 3
    s_and_b32 s{sI}, s{sT0}, 1
    s_lshl_b32 s{sI}, s{sI}, 3
    s_and_b32 s{sT2}, s{sT1}, 7
    s_add_u32 s{sI}, s{sI}, s{sT2}
    s_lshr_b32 s{sJ}, s{sT0}, 1
    s_lshl_b32 s{sJ}, s{sJ}, 2
    s_lshr_b32 s{sT2}, s{sT1}, 3
    s_add_u32 s{sJ}, s{sJ}, s{sT2}
    s_and_b32 s{sW}, s{sWAVE}, 3
    s_mov_b32 s{sWS+2}, {WS_SIZE}
    s_mov_b32 s{sWS+3}, 0x00020000
    s_mov_b32 s{sDB+2}, 256
    s_mov_b32 s{sDB+3}, 0x00020000
    s_mov_b32 s{sSP}, {SPIN_MAX}
    v_lshrrev_b32 v{vG}, 4, v0
    s_cmp_lt_u32 s{sWAVE}, 8
    s_cbranch_scc1 L_comp
    """)
    vXd, vXd2, v1d, v1d2, vQd, vQd2 = 10, 11, 12, 13, 14, 15
    vGX, vGW, vOnes = 20, 28, 36
    a(f"""
    s_setprio 2
    s_mov_b32 s{sX+2}, {2048*512*2}
    s_mov_b32 s{sX+3}, 0x00020000
    s_mov_b32 s{sWQ+2}, {512*1536*2}
    s_mov_b32 s{sWQ+3}, 0x00020000
    v_and_b32 v{vT0}, 7, v0
    v_xor_b32 v{vT0}, v{vT0}, v{vG}
    v_lshlrev_b32 v{vT0}, 4, v{vT0}
    v_lshrrev_b32 v{vT1}, 3, v0
    v_lshl_add_u32 v{vXd}, v{vT1}, 10, v{vT0}
    v_xor_b32 v{vXd2}, 64, v{vXd}
    v_add_u32 v{vXd2}, 8192, v{vXd2}
    s_lshl_b32 s{sBX}, s{sI}, 17
    s_lshl_b32 s{sT0}, s{sW}, 14
    s_add_u32 s{sBX}, s{sBX}, s{sT0}
    s_lshl_b32 s{sMX}, s{sW}, 11
    """)
    a(f"""
    s_lshr_b32 s{sKX}, s2, 3
    s_and_b32 s{sKX}, s{sKX}, 7
    s_lshl_b32 s{sKC}, s{sKX}, 1
    s_waitcnt lgkmcnt(0)
    s_mov_b32 s{sX}, s4
    s_mov_b32 s{sX+1}, s5
    s_mov_b32 s{sWQ}, s6
    s_mov_b32 s{sWQ+1}, s7
    """)
    def wq_setup():
        a(f"""
        ; Wq: rows 8w..8w+7 of the step: pieces p = l (+64): pos = p>>1, k = pos/6, ct = (pos%6) ^ (w&1)
        s_mul_i32 s{sMQ}, s{sW}, 1536
        s_add_u32 s{sMQ}, s{sMQ}, {WB}
        s_mul_i32 s{sBQ}, s{sW}, {8*3072}
        s_lshl_b32 s{sT0}, s{sJ}, 7
        s_add_u32 s{sBQ}, s{sBQ}, s{sT0}
        s_and_b32 s{sT1}, s{sW}, 1
        s_lshl_b32 s{sT2}, s{sJ}, 6
        s_sub_u32 s{sT2}, {2048-128}, s{sT2}
        """)
        for q, dst in ((0, vQd), (1, vQd2)):
            a(f"""
            v_lshrrev_b32 v{vT1}, 1, v0
            v_add_u32 v{vT1}, {32*q}, v{vT1}
            v_mul_u32_u24 v{vT2}, 0xaaab, v{vT1}
            v_lshrrev_b32 v{vT2}, 18, v{vT2}
            v_mul_u32_u24 v{vT3}, 6, v{vT2}
            v_sub_u32 v{vT1}, v{vT1}, v{vT3}
            v_xor_b32 v{vT1}, s{sT1}, v{vT1}
            v_mul_u32_u24 v{vT2}, 3072, v{vT2}
            v_lshl_add_u32 v{vT2}, v{vT1}, 5, v{vT2}
            v_lshrrev_b32 v{vT3}, 2, v{vT1}
            v_mul_u32_u24 v{vT3}, s{sT2}, v{vT3}
            v_add_u32 v{vT2}, v{vT2}, v{vT3}
            v_and_b32 v{vT3}, 1, v0
            v_lshl_add_u32 v{dst}, v{vT3}, 4, v{vT2}
            """)

    ops = []
    def vm(text, tag): a(text); ops.append(tag)
    def xhalf(hx):
        m, half = hx >> 1, hx & 1
        a(f"""
        s_lshl_b32 s{sT0}, s{sKX}, 7
        s_add_u32 s{sSOX}, s{sBX}, s{sT0}
        s_add_u32 m0, s{sMX}, {m*XS + half*8192}
        {f's_add_u32 s{sSOX}, s{sSOX}, 65536' if half else 's_nop 0'}
        """)
        vm(f"buffer_load_dwordx4 v{vXd}, s[{sX}:{sX+3}], s{sSOX} offen lds", ('x', m))
        a(f"s_add_u32 m0, s{sMX}, {m*XS + half*8192 + 1024}")
        a(f"s_add_u32 s{sKX}, s{sKX}, 1" if half else "s_nop 0")
        vm(f"buffer_load_dwordx4 v{vXd2}, s[{sX}:{sX+3}], s{sSOX} offen lds", ('x', m))
        if half: a(f"s_and_b32 s{sKX}, s{sKX}, 7")
    def wstep(h):
        so = (h % NWS) * WSL
        if h < 16:
            a(f"""
            s_mul_i32 s{sT0}, s{sKC}, {32*3072}
            s_add_u32 s{sSOW}, s{sBQ}, s{sT0}
            s_add_u32 m0, s{sMQ}, {so}
            s_add_u32 s{sKC}, s{sKC}, 1
            """)
            vm(f"buffer_load_dwordx4 v{vQd}, s[{sWQ}:{sWQ+3}], s{sSOW} offen lds", ('w', h))
            a(f"s_add_u32 m0, s{sMQ}, {so + 1024}\ns_mov_b32 exec_hi, 0")
            vm(f"buffer_load_dwordx4 v{vQd2}, s[{sWQ}:{sWQ+3}], s{sSOW} offen lds", ('w', h))
            a("s_mov_b32 exec_hi, -1")
        else:
            a(f"""
            s_mul_i32 s{sT0}, s{sKC}, {32*3584}
            s_add_u32 s{sSOW}, s{sB1o}, s{sT0}
            s_add_u32 m0, s{sM1}, {so}
            s_add_u32 s{sKC}, s{sKC}, 1
            """)
            vm(f"buffer_load_dwordx4 v{v1d}, s[{sW1}:{sW1+3}], s{sSOW} offen lds", ('w', h))
            a(f"s_add_u32 m0, s{sM1}, {so + 1024}\ns_nop 0")
            vm(f"buffer_load_dwordx4 v{v1d2}, s[{sW1}:{sW1+3}], s{sSOW} offen lds", ('w', h))
        a(f"s_and_b32 s{sKC}, s{sKC}, 15")
    def wait_for(tags):
        last = max(i for i, t in enumerate(ops) if t in tags)
        a(f"s_waitcnt vmcnt({len(ops) - 1 - last})")
    XLEAD = int(os.environ.get('XLEAD', '3'))
    xhalf(0); xhalf(1); wq_setup(); wstep(0); wstep(1); xhalf(2); wstep(2); xhalf(3); wstep(3)
    nx, nw = 4, 4
    a(f"""
    s_or_b32 s{sT0}, s2, s{sW}
    s_cmp_lg_u32 s{sT0}, 0
    s_cbranch_scc1 L_noep
    s_memrealtime s[42:43]
    v_mov_b32 v{vT0}, 0
    s_waitcnt lgkmcnt(0)
    s_or_b32 s42, s42, 1
    v_mov_b32 v{vOnes}, s42
    v_mov_b32 v{vOnes+1}, s43
    s_mov_b64 exec, 1
    buffer_store_dwordx2 {vr(vOnes,2)}, v{vT0}, s[{sDB}:{sDB+3}], 0 offen sc1
    s_mov_b64 exec, -1
    s_waitcnt vmcnt(0)
    L_noep:
    s_mov_b32 s{sW1}, s32
    s_mov_b32 s{sW1+1}, s33
    s_mov_b32 s{sW1+2}, {512*1792*2}
    s_mov_b32 s{sW1+3}, 0x00020000
    s_add_u32 s{sM1}, s{sMX}, {WB}
    s_mul_i32 s{sB1o}, s{sW}, {8*3584}
    s_mul_i32 s{sT0}, s{sJ}, 224
    s_add_u32 s{sB1o}, s{sB1o}, s{sT0}
    s_and_b32 s{sT1}, s{sW}, 1
    s_lshl_b32 s{sT1}, s{sT1}, 2
    v_lshrrev_b32 v{vT1}, 1, v0
    v_sub_u32 v{vT1}, v{vT1}, v{vG}
    v_subrev_u32 v{vT1}, s{sT1}, v{vT1}
    v_and_b32 v{vT1}, 7, v{vT1}
    v_min_u32 v{vT1}, 6, v{vT1}
    v_mul_u32_u24 v{vT2}, 3584, v{vG}
    v_lshl_add_u32 v{vT2}, v{vT1}, 5, v{vT2}
    v_and_b32 v{vT3}, 1, v0
    v_lshl_add_u32 v{v1d}, v{vT3}, 4, v{vT2}
    v_add_u32 v{v1d2}, {4*3584}, v{v1d}
    """)
    GB = 17
    for b in range(32):
        tags = [('w', b)] + ([('x', b >> 1)] if b < 16 else []) + (['gs'] if b == GB else [])
        wait_for(tags)
        a("s_barrier")
        if nw < 32 and nw < b + NWS: wstep(nw); nw += 1
        k = 0
        while nx < 16 and nx < b + 2 + XLEAD and k < 2: xhalf(nx); nx += 1; k += 1
        if b == 6:
            a(f"""
            s_mov_b32 s{sGW}, s36
            s_mov_b32 s{sGW+1}, s37
            s_mov_b32 s{sGW+2}, 1024
            s_mov_b32 s{sGW+3}, 0x00020000
            s_lshl_b32 s{sT0}, s{sI}, 7
            s_lshl_b32 s{sT1}, s{sJ}, 3
            s_add_u32 s{sT0}, s{sT0}, s{sT1}
            s_lshl_b32 s{sT1}, s{sW}, 1
            s_add_u32 s{sN}, s{sT0}, s{sT1}
            s_lshl_b32 s{sT1}, s{sN}, 10
            v_and_b32 v{vT1}, 31, v0
            v_lshlrev_b32 v{vT1}, 5, v{vT1}
            v_lshrrev_b32 v{vT2}, 5, v0
            v_lshl_add_u32 v{vT2}, v{vT2}, 10, v{vT1}
            """)
            vm(f"buffer_load_dwordx4 {vr(vGX,4)}, v{vT2}, s[{sX}:{sX+3}], s{sT1} offen", 'g')
            vm(f"buffer_load_dwordx4 {vr(vGX+4,4)}, v{vT2}, s[{sX}:{sX+3}], s{sT1} offen offset:16", 'g')
            vm(f"buffer_load_dwordx4 {vr(vGW,4)}, v{vT1}, s[{sGW}:{sGW+3}], 0 offen", 'g')
            vm(f"buffer_load_dwordx4 {vr(vGW+4,4)}, v{vT1}, s[{sGW}:{sGW+3}], 0 offen offset:16", 'g')
        if b == 11:
            wait_for(['g'])
            acc = vT1
            a(f"v_mov_b32 v{acc}, 0")
            for r in range(8): a(f"v_dot2_f32_bf16 v{acc}, v{vGX+r}, v{vGW+r}, v{acc}")
            a("s_nop 3")
            for mod in ["quad_perm:[1,0,3,2]", "quad_perm:[2,3,0,1]", "row_half_mirror", "row_mirror"]:
                a(f"v_add_f32_dpp v{acc}, v{acc}, v{acc} {mod} row_mask:0xf bank_mask:0xf")
            a(f"""
            v_mov_b32 v{vT2}, v{acc}
            v_mov_b32 v{vT3}, v{acc}
            v_permlane16_swap_b32 v{vT2}, v{vT3}
            v_add_f32 v{acc}, v{vT2}, v{vT3}
            v_mul_f32 v{acc}, {hex(f32bits(-LOG2E))}, v{acc}
            v_exp_f32 v{acc}, v{acc}
            v_add_f32 v{acc}, 1.0, v{acc}
            v_rcp_f32 v{acc}, v{acc}
            s_lshl_b32 s{sT0}, s{sN}, 2
            s_add_u32 s{sT0}, s{sT0}, {WS_G}
            v_lshrrev_b32 v{vT2}, 5, v0
            v_lshlrev_b32 v{vT2}, 2, v{vT2}
            s_mov_b32 exec_lo, 1
            s_mov_b32 exec_hi, 1
            """)
            vm(f"buffer_store_dword v{acc}, v{vT2}, {wsrd}, s{sT0} offen sc1", 'gs')
            a("s_mov_b64 exec, -1")
        if b == 28: epoch_load(a, vT0); ops.append('e')
        if b == 31:
            a(f"""
            v_lshlrev_b32 v{vT0}, 2, v0
            v_add_u32 v{vT0}, {CNT_BASE}, v{vT0}
            v_mov_b32 v{vT1}, 0
            ds_write_b32 v{vT0}, v{vT1}
            s_waitcnt lgkmcnt(0)
            """)
    assert CNT_BASE == WB + 2 * WSL
    a("s_barrier")
    pf.stamp(1)
    gemm_role(a, pf)
    a.label("L_comp")
    a.window = []
    vN16, vR, vC = 2, 4, 5
    vXr = [10, 11]
    vWr = list(range(12, 19))
    vF = 20
    FSZ = 36
    vACC = 96
    a(f"""
    v_and_b32 v{vN16}, 15, v0
    v_bfe_u32 v{vR}, v0, 2, 2
    v_and_b32 v{vC}, 3, v0
    v_lshrrev_b32 v{vT0}, 1, v{vN16}
    v_xor_b32 v{vT0}, v{vG}, v{vT0}
    v_lshlrev_b32 v{vT0}, 4, v{vT0}
    v_lshl_add_u32 v{vT0}, v{vN16}, 7, v{vT0}
    s_lshl_b32 s{sT0}, s{sW}, 12
    v_add_u32 v{vXr[0]}, s{sT0}, v{vT0}
    v_xor_b32 v{vXr[1]}, 64, v{vXr[0]}
    s_mov_b32 s{sC}, 0
    v_lshl_add_u32 v{vT1}, v{vG}, 3, v{vR}
    v_and_b32 v{vT2}, 1, v{vG}
    s_waitcnt lgkmcnt(0)
    s_cmp_ge_u32 s{sWAVE}, 4
    s_cbranch_scc1 L_ffn
    """)
    def frag(buf):
        b = vF + buf * FSZ
        return [b, b + 4], [b + 8 + 4 * i for i in range(7)]
    def role(name, nt, isq):
        def reads(s4):
            buf = s4 & 1
            X, W = frag(buf); L = []
            for t in range(2): L.append(f"ds_read_b128 {vr(X[t],4)}, v{vXr[s4 & 1]} offset:{(s4 >> 1)*XS + t*2048}")
            for ct in range(nt):
                for t2 in range(2):
                    if isq: va, off = vWr[ct & 1], 4 * t2 * 192 + ct * 32
                    else:   va, off = vWr[ct], 4 * t2 * 256
                    L.append(f"ds_read_b64_tr_b16 {vr(W[ct]+2*t2,2)}, v{va} offset:{s4*WSL + off}")
            return L
        def mfmas(buf):
            X, W = frag(buf); L = []
            for ct in range(nt):
                for t in range(2):
                    acc = vACC + (ct * 2 + t) * 4
                    if isq and ct >= 4: L.append(f"v_mfma_f32_16x16x32_bf16 {vr(acc,4)}, {vr(X[t],4)}, {vr(W[ct],4)}, {vr(acc,4)}")
                    else:               L.append(f"v_mfma_f32_16x16x32_bf16 {vr(acc,4)}, {vr(W[ct],4)}, {vr(X[t],4)}, {vr(acc,4)}")
            return L
        if isq:
            a(f"""
            v_mul_u32_u24 v{vT1}, 192, v{vT1}
            v_lshl_add_u32 v{vT1}, v{vC}, 3, v{vT1}
            v_add_u32 v{vT1}, {WB}, v{vT1}
            v_lshlrev_b32 v{vT2}, 5, v{vT2}
            v_add_u32 v{vWr[0]}, v{vT1}, v{vT2}
            v_sub_u32 v{vWr[1]}, v{vT1}, v{vT2}
            """)
            at.setup(a, 0)
            a("s_waitcnt vmcnt(0)")
            for r in range(48): a(f"v_mov_b32 v{vACC+r}, 0")
        else:
            vB = vF + FSZ
            a(f"""
            s_mov_b32 s{sB1}, s34
            s_mov_b32 s{sB1+1}, s35
            s_mov_b32 s{sB1+2}, {1792*2}
            s_mov_b32 s{sB1+3}, 0x00020000
            s_mov_b32 s{sW1}, s32
            s_mov_b32 s{sW1+1}, s33
            s_mov_b32 s{sW1+2}, {512*1792*2}
            s_mov_b32 s{sW1+3}, 0x00020000
            s_mul_i32 s{sT1}, s{sJ}, 224
            v_lshlrev_b32 v{vT3}, 3, v{vG}
            s_barrier
            s_barrier
            """)
            for ct in range(7):
                a(f"buffer_load_dwordx2 {vr(vB+2*ct,2)}, v{vT3}, s[{sB1}:{sB1+3}], s{sT1} offen offset:{ct*32}")
            a(f"""
            ; warm L2 with this column group's W1 strip: the 8 workgroups sharing it (i & 7) x 4 waves take 16 rows each
            s_and_b32 s{sT0}, s{sI}, 7
            s_lshl_b32 s{sT0}, s{sT0}, 2
            s_add_u32 s{sT0}, s{sT0}, s{sW}
            s_mul_i32 s{sT0}, s{sT0}, {16*3584}
            s_add_u32 s{sT0}, s{sT0}, s{sT1}
            v_mul_u32_u24 v{vT0}, 3584, v{vN16}
            v_mul_u32_u24 v{vT3}, 72, v{vG}
            v_add_u32 v{vT0}, v{vT0}, v{vT3}
            {'' if 'warm' not in EXP else f'buffer_load_dword v{vF}, v{vT0}, s[{sW1}:{sW1+3}], s{sT0} offen'}
            v_lshlrev_b32 v{vT1}, 8, v{vT1}
            v_lshl_add_u32 v{vT1}, v{vC}, 3, v{vT1}
            v_add_u32 v{vT1}, {WB}, v{vT1}
            v_lshl_add_u32 v{vT2}, v{vT2}, 2, v{vR}
            """)
            for ct in range(7):
                a(f"""
                v_add_u32 v{vT3}, {ct}, v{vT2}
                v_and_b32 v{vT3}, 7, v{vT3}
                v_lshl_add_u32 v{vWr[ct]}, v{vT3}, 5, v{vT1}
                """)
            a("s_barrier\ns_barrier")
            at.setup(a, 1)
            a(f"""
            s_barrier
            s_barrier
            v_mov_b32 v{vF+4}, -1
            v_mov_b32 v{vF+5}, -1
            v_mov_b32 v{vF+6}, -1
            v_mov_b32 v{vF+7}, -1
            s_lshl_b32 s{sT0}, s{at.sQB}, 2
            s_add_u32 s{sT0}, s{sT0}, s{sW}
            s_lshl_b32 s{sT0}, s{sT0}, 5
            s_add_u32 s{sT0}, s{sT0}, s{at.sH}
            s_lshl_b32 s{sT0}, s{sT0}, 10
            s_add_u32 s{sT0}, s{sT0}, {WS_O}
            s_sub_u32 s{sT1}, s{sT0}, 16384
            buffer_store_dwordx4 {vr(vF+4,4)}, v{at.vKo}, {wsrd}, s{sT0} offen sc1
            buffer_store_dwordx4 {vr(vF+4,4)}, v{at.vKo}, {wsrd}, s{sT1} offen sc1
            """)
            for u in range(6, 13): a("s_barrier")
            a("s_waitcnt vmcnt(0)")
            for ct in range(7):
                for t in range(2):
                    acc = vACC + (ct * 2 + t) * 4
                    a(f"""
                    v_lshlrev_b32 v{acc}, 16, v{vB+2*ct}
                    v_and_b32 v{acc+1}, 0xffff0000, v{vB+2*ct}
                    v_lshlrev_b32 v{acc+2}, 16, v{vB+2*ct+1}
                    v_and_b32 v{acc+3}, 0xffff0000, v{vB+2*ct+1}
                    """)
                if ct in (2, 5): a("s_barrier")
            a("s_barrier")
            a("s_setprio 1")
        a("s_barrier")
        pf.stamp(1)
        a("\n".join(reads(0)))
        a.raw(".p2align 6")
        a.label(f"L_{name}_loop")
        start = len(a.lines)
        def chunks(R, n): return ["\n".join(R[i:i+n]) for i in range(0, len(R), n)]
        for s4 in range(4):
            M = mfmas(s4 & 1)
            if s4 == 3:
                a(f"""
                s_add_u32 s{sC}, s{sC}, 1
                s_cmp_eq_u32 s{sC}, 4
                s_waitcnt lgkmcnt(0)
                s_cbranch_scc1 L_{name}_last
                """)
            else:
                a("s_waitcnt lgkmcnt(0)")
            G = ["s_barrier"] + chunks(reads((s4 + 1) & 3), int(os.environ.get("RPG", "2")))
            if s4 == 2: G.append("\n".join(f"v_add_u32 v{r}, {2*XS}, v{r}" for r in vXr))
            assert len(G) <= len(M)
            for i, m in enumerate(M):
                a(m)
                if i < len(G): a(G[i])
        a(f"s_branch L_{name}_loop")
        seam, inner = check_loop(a.lines[start:])
        assert seam == 0 and inner == 0, (seam, inner)
        a.label(f"L_{name}_last")
        a.window = []
        M = mfmas(1)
        a(M[0])
        epoch_load(a, vT1)
        a("s_barrier")
        for m in M[1:]: a(m)
        vP = vF + 4
        vL = at.vKo
        a(f"""
        s_lshl_b32 s{sD}, s{sI}, 2
        s_add_u32 s{sD}, s{sD}, s{sW}
        """)
        if isq:
            a(f"""
            s_lshl_b32 s{sT0}, s{sD}, 10
            s_lshl_b32 s{sT1}, s{sJ}, 18
            s_add_u32 s{sT1}, s{sT1}, s{sT0}
            s_lshl_b32 s{sN}, s{sJ}, 17
            s_add_u32 s{sN}, s{sN}, s{sT0}
            s_add_u32 s{sN}, s{sN}, {WS_V}
            s_mov_b32 s{sT2}, {hex(f32bits(QSCALE))}
            s_cmp_lt_u32 s{sJ}, 8
            s_cselect_b32 s{sK2}, s{sT2}, 1.0
            s_mov_b32 s{sK2+1}, s{sK2}
            s_barrier
            """)
            nb = 18
            for ct in range(6):
                p = vP + 4 * ct
                a0 = vACC + ct * 8
                if ct < 4:
                    for r in range(0, 8, 2): a(f"v_pk_mul_f32 {vr(a0+r,2)}, {vr(a0+r,2)}, s[{sK2}:{sK2+1}]")
                sw = "v_permlane32_swap_b32" if ct >= 4 else "v_permlane16_swap_b32"
                for r in range(4): a(f"v_cvt_pk_bf16_f32 v{p+r}, v{a0+2*r}, v{a0+2*r+1}")
                a(f"""
                s_add_u32 s{sT0}, s{sT1 if ct < 4 else sN}, {(ct & 3)*65536}
                {sw} v{p}, v{p+2}
                {sw} v{p+1}, v{p+3}
                buffer_store_dwordx4 {vr(p,4)}, v{vL}, {wsrd}, s{sT0} offen sc1
                """)
                if ct == 2: a("s_barrier"); nb += 1
            a(f"""
            s_lshl_b32 s{sN}, s{sJ}, 6
            s_add_u32 s{sN}, s{sN}, s{sD}
            s_lshl_b32 s{sN}, s{sN}, {FSH}
            s_add_u32 s{sN}, s{sN}, {WS_FQ}
            """)
            FB = int(os.environ.get('FLAGB', '22'))
            for b in range(nb, FB + 1): a("s_barrier")
            a("s_waitcnt vmcnt(0)")
            epoch_check(a, at.vT0, "a")
            a(f"""
            v_mov_b32 v{at.vT0}, 0
            s_mov_b64 exec, 1
            buffer_store_dwordx2 {vr(vEP,2)}, v{at.vT0}, {wsrd}, s{sN} offen sc1
            s_mov_b64 exec, -1
            """)
            for b in range(FB + 1, 31): a("s_barrier")
            at.poll_issue(a)
            a(f"""
            s_barrier
            s_barrier
            s_setprio 3
            L_a_try:
            s_waitcnt vmcnt(0)
            """)
            at.poll_test(a)
            a(f"s_cbranch_scc1 L_a_go")
            a(f"s_sleep {int(os.environ.get('QSLEEP', '4'))}")
            at.poll_issue(a)
            a(f"""
            s_sub_u32 s{sSP}, s{sSP}, 1
            s_cbranch_scc0 L_a_try
            s_mov_b32 s{sSP}, 0
            s_waitcnt vmcnt(0)
            L_a_go:
            """)
            at.first_loads(a, "a")
            a("s_branch L_at_body")
        else:
            a(f"""
            s_mul_i32 s{sN}, s{sD}, 112
            s_mul_i32 s{sT1}, s{sJ}, 7
            s_add_u32 s{sN}, s{sN}, s{sT1}
            s_lshl_b32 s{sN}, s{sN}, 10
            s_add_u32 s{sN}, s{sN}, {WS_A}
            s_add_u32 s{sD}, s{sN}, 4096
            s_mov_b32 s{sK2}, {hex(f32bits(LOG2E))}
            s_mov_b32 s{sK2+1}, {hex(f32bits(LOG2E))}
            s_setprio 2
            """)
            def astore(ct):
                return f"buffer_store_dwordx4 {vr(vP+4*ct,4)}, v{vL}, {wsrd}, s{sN if ct < 4 else sD} offen offset:{(ct&3)*1024} sc1"
            NPRE = int(os.environ.get('NPRE', '5'))
            for ct in range(7):
                p = vP + 4 * ct
                h = vACC + ct * 8
                e = vF + FSZ; d = e + 8
                if ct == NPRE - 2: at.poll_issue(a)
                for r in range(0, 8, 2): a(f"v_pk_mul_f32 {vr(e+r,2)}, {vr(h+r,2)}, s[{sK2}:{sK2+1}]")
                for r in range(8): a(f"v_exp_f32 v{e+r}, v{e+r}")
                for r in range(0, 8, 2): a(f"v_pk_add_f32 {vr(e+r,2)}, {vr(e+r,2)}, 1.0 op_sel_hi:[1,0]")
                for r in range(0, 8, 2): a(f"v_pk_fma_f32 {vr(d+r,2)}, {vr(e+r,2)}, {vr(e+r,2)}, 1.0 op_sel_hi:[1,1,0]")
                for r in range(8): a(f"v_rcp_f32 v{d+r}, v{d+r}")
                for r in range(0, 8, 2): a(f"v_pk_mul_f32 {vr(d+r,2)}, {vr(d+r,2)}, {vr(h+r,2)}")
                for r in range(0, 8, 2): a(f"v_pk_fma_f32 {vr(d+r,2)}, {vr(d+r,2)}, -2.0, {vr(h+r,2)} op_sel_hi:[1,0,1]")
                for r in range(4): a(f"v_cvt_pk_bf16_f32 v{p+r}, v{d+2*r}, v{d+2*r+1}")
                a(f"""
                v_permlane16_swap_b32 v{p}, v{p+2}
                v_permlane16_swap_b32 v{p+1}, v{p+3}
                """)
                if ct >= NPRE: a(astore(ct))
                if ct == NPRE - 1:
                    a("s_waitcnt vmcnt(0)")
                    epoch_check(a, at.vT0, "b")
                    a.label("L_b_try")
                    at.poll_test(a)
                    a("s_cbranch_scc1 L_b_go")
                    a("s_sleep 8")
                    at.poll_issue(a)
                    a(f"""
                    s_sub_u32 s{sSP}, s{sSP}, 1
                    s_waitcnt vmcnt(0)
                    s_cbranch_scc0 L_b_try
                    s_mov_b32 s{sSP}, 0
                    L_b_go:
                    """)
                    at.first_loads(a, "b")
                    for c2 in range(NPRE): a(astore(c2))
            a("s_nop 2")
    role("qkv", 6, True)
    a.label("L_ffn")
    a.window = []
    role("ffn", 7, False)
    at.body(a, pf)
    a.label("L_end")
    a("s_endpgm")
    NV = 160
    return a.text(), kernel_desc(NAME, NV, 88), f"; @launch grid=(256,1,1) block=(768,1,1) lds={LDS_BYTES}"
```

```python
import sys
import asmlib
if '--prof' in sys.argv:
    asmlib.PROF = True; sys.argv.remove('--prof')
aslist = '--list' in sys.argv
if aslist: sys.argv.remove('--list')
import mono6
from build import build
out = sys.argv[1] if len(sys.argv) > 1 else "v4.s"
t, d, l = mono6.gen()
if aslist: l = l.replace("; @launch grid", f"; @launch kernel={mono6.NAME} grid")
DOC = '''
; ---------------------------------------------------------------------------------------------------------------
; ---------------------------------------------------------------------------------------------------------------
'''
t = DOC + t
build([(t, d, l)], out)
```

```python
from asmlib import *
import asmlib
from layout import *
import os
EXP = os.environ.get('EXP', '')
NAME = "gated_mix__softmax_full_mha__dense_activation_mish__prompt_kernel"
NS = int(os.environ.get('NS', '4'))
FIRST = int(os.environ.get('FIRST', '2'))
XS = 16384
W_BASE = NS * XS
RING = 12288
AT_BASE = [0, 49152]
GM_BASE = 98304
CNT_BASE = 147456
LDS_BYTES = 163840
SPIN_MAX = 1 << 18
FSH = int(os.environ.get('FSH', '7'))
WS_FQ = 10 * MB
WS_FA2 = 10 * MB + (1 << 18)
FQ = int(os.environ.get('FQ', '3')); FST = int(os.environ.get('FST', '0'))
PSLEEP = int(os.environ.get('PSLEEP', '12'))

sWS = 8
sDB = 12
sWAVE, sW, sI, sJ = 16, 17, 18, 19
sSP = 20
sT0, sT1, sT2 = 21, 22, 23
vEP = 154
wsrd = f"s[{sWS}:{sWS+3}]"

def epoch_load(a, vz):
    a(f"""
    v_mov_b32 v{vz}, 0
    buffer_load_dwordx2 {vr(vEP,2)}, v{vz}, s[{sDB}:{sDB+3}], 0 offen sc1
    """)
def epoch_check(a, vz, tag):
    a(f"""
    L_ep{tag}:
    v_cmp_ne_u32 vcc, 0, v{vEP}
    s_cbranch_vccnz L_epok{tag}
    v_mov_b32 v{vz}, 0
    buffer_load_dwordx2 {vr(vEP,2)}, v{vz}, s[{sDB}:{sDB+3}], 0 offen sc1
    s_sub_u32 s{sSP}, s{sSP}, 1
    s_waitcnt vmcnt(0)
    s_cbranch_scc0 L_ep{tag}
    s_mov_b32 s{sSP}, 0
    L_epok{tag}:
    """)
def group_sync(a, idx, vt, vt2, tag):
    a(f"""
    v_mov_b32 v{vt}, {CNT_BASE + 4*idx}
    v_mov_b32 v{vt2}, 1
    s_mov_b64 exec, 1
    ds_add_u32 v{vt}, v{vt2}
    s_mov_b64 exec, -1
    L_gs{tag}:
    ds_read_b32 v{vt2}, v{vt}
    s_sub_u32 s{sSP}, s{sSP}, 1
    s_cselect_b32 s{sT1}, 4, 0
    s_waitcnt lgkmcnt(0)
    v_readfirstlane_b32 s{sT0}, v{vt2}
    s_add_u32 s{sT0}, s{sT0}, s{sT1}
    s_cmp_lt_u32 s{sT0}, 4
    s_cbranch_scc1 L_gs{tag}
    """)

class Attn:
    sKV = 24
    sH, sQB, sKT, sC, sM, sQ0 = 28, 29, 30, 31, 32, 34
    sRB, sPO, sD, sGB, sGI = 35, 36, 37, 38, 39
    sFI, sFA = 42, 43
    vKo, vVo = 1, 2
    vT0, vT1, vT2, vT3, vG = 3, 4, 5, 6, 7
    vQ, vK, vV, vP, vS, vO = 8, 24, 32, 48, 56, 88
    vKr, vVr = 152, 153
    vFO, vFV = 156, 158
    def setup(self, a, grp):
        s = self
        a(f"""
        s_and_b32 s{sT0}, s2, 7
        s_lshl_b32 s{s.sH}, s{sT0}, 1
        s_bfe_u32 s{sT0}, s2, 0x10003
        s_add_u32 s{s.sH}, s{s.sH}, s{sT0}
        s_add_u32 s{s.sH}, s{s.sH}, {16*grp}
        s_bfe_u32 s{s.sQB}, s2, 0x40004
        s_mov_b32 s{s.sKV}, s{sWS}
        s_mov_b32 s{s.sKV+1}, s{sWS+1}
        s_mov_b32 s{s.sKV+2}, {WS_SIZE}
        s_mov_b32 s{s.sKV+3}, 0x00020000
        s_mov_b32 s{s.sM}, 0x0000ffff
        s_mov_b32 s{s.sM+1}, 0x0000ffff
        s_lshl_b32 s{sT0}, s{s.sH}, 16
        s_lshl_b32 s{sT1}, s{s.sQB}, 12
        s_add_u32 s{s.sQ0}, s{sT0}, s{sT1}
        s_lshl_b32 s{sT1}, s{sW}, 14
        s_add_u32 s{s.sKT}, s{sT0}, s{sT1}
        s_add_u32 s{s.sKT}, s{s.sKT}, {WS_K}
        s_mov_b32 s{s.sGB}, {AT_BASE[grp]}
        s_mov_b32 s{s.sGI}, {CNT_BASE + 4*grp}
        s_mov_b32 s{s.sFI}, {0 if grp else 99}
        s_lshl_b32 s{s.sFA}, s{sI}, 2
        s_add_u32 s{s.sFA}, s{s.sFA}, s{sW}
        s_lshl_b32 s{s.sFA}, s{s.sFA}, 4
        s_add_u32 s{s.sFA}, s{s.sFA}, s{sJ}
        s_lshl_b32 s{s.sFA}, s{s.sFA}, {FSH}
        s_add_u32 s{s.sFA}, s{s.sFA}, {WS_FA2}
        s_mul_i32 s{s.sRB}, s{sW}, {RING}
        s_add_u32 s{s.sRB}, s{s.sRB}, s{s.sGB}
        v_lshlrev_b32 v{s.vKo}, 4, v0
        v_add_u32 v{s.vVo}, {WS_V - WS_K}, v{s.vKo}
        s_lshr_b32 s{sT0}, s{s.sH}, 2
        s_lshl_b32 s{sT0}, s{sT0}, 6
        s_lshl_b32 s{sT1}, s{sW}, 4
        s_add_u32 s{sT2}, s{sT0}, s{sT1}
        s_add_u32 s{sT2}, s{sT2}, 512
        v_add_u32 v{s.vFO}, s{sT2}, v0
        s_lshr_b32 s{sT2}, s{s.sH}, 1
        s_lshl_b32 s{sT2}, s{sT2}, 6
        s_add_u32 s{sT2}, s{sT2}, s{sT1}
        s_sub_u32 s{sT2}, s{sT2}, 16
        v_add_u32 v{s.vT0}, s{sT2}, v0
        v_cmp_le_u32 vcc, 16, v0
        v_cndmask_b32 v{s.vFO}, v{s.vFO}, v{s.vT0}, vcc
        s_lshl_b32 s{sT1}, s{s.sQB}, 2
        s_add_u32 s{sT2}, s{sT0}, s{sT1}
        s_sub_u32 s{sT2}, s{sT2}, 32
        v_add_u32 v{s.vT0}, s{sT2}, v0
        v_cmp_le_u32 vcc, 32, v0
        v_cndmask_b32 v{s.vFO}, v{s.vFO}, v{s.vT0}, vcc
        s_lshl_b32 s{sT2}, s{sW}, 8
        s_add_u32 s{sT2}, s{sT2}, s{sT1}
        v_and_b32 v{s.vT0}, 3, v0
        v_lshlrev_b32 v{s.vT0}, 6, v{s.vT0}
        v_add_u32 v{s.vT0}, s{sT2}, v{s.vT0}
        v_cmp_le_u32 vcc, 36, v0
        v_cndmask_b32 v{s.vFO}, v{s.vFO}, v{s.vT0}, vcc
        v_lshlrev_b32 v{s.vFO}, {FSH}, v{s.vFO}
        v_add_u32 v{s.vFO}, {WS_FQ}, v{s.vFO}
        """)
    def poll_issue(self, a):
        a(f"buffer_load_dwordx2 {vr(self.vFV,2)}, v{self.vFO}, {wsrd}, 0 offen sc1")
    def poll_test(self, a):
        a(f"""
        v_cmp_ne_u64 vcc, {vr(self.vFV,2)}, {vr(vEP,2)}
        s_cmp_eq_u64 vcc, 0
        """)
    def first_loads(self, a, tag):
        s = self
        kv = f"s[{s.sKV}:{s.sKV+3}]"
        a(f"""
        s_lshl_b32 s{sT1}, s{sW}, 10
        v_xor_b32 v{s.vT2}, s{sT1}, v{s.vKo}
        s_mov_b32 m0, s{s.sRB}
        s_mov_b32 s{s.sC}, 0
        """)
        for q in range(4):
            if q: a(f"v_xor_b32 v{s.vT3}, {q*1024}, v{s.vT2}")
            a(f"buffer_load_dwordx4 {vr(s.vQ+4*q,4)}, v{s.vT3 if q else s.vT2}, {wsrd}, s{s.sQ0} offen sc1")
        a(f"""
        L_pre{tag}:
        buffer_load_dwordx4 v{s.vKo}, {kv}, s{s.sKT} offen sc1 lds
        s_add_u32 m0, m0, 1024
        s_add_u32 s{s.sC}, s{s.sC}, 1
        buffer_load_dwordx4 v{s.vVo}, {kv}, s{s.sKT} offen sc1 lds
        s_add_u32 m0, m0, 1024
        s_add_u32 s{s.sKT}, s{s.sKT}, 1024
        s_cmp_lt_u32 s{s.sC}, 6
        s_cbranch_scc1 L_pre{tag}
        s_lshl_b32 s{sT0}, s{s.sQB}, 2
        s_add_u32 s{sT0}, s{sT0}, s{sW}
        s_lshl_b32 s{sT0}, s{sT0}, 7
        s_add_u32 s{sT0}, s{sT0}, {WS_G}
        v_and_b32 v{s.vT0}, 31, v0
        v_lshlrev_b32 v{s.vT0}, 2, v{s.vT0}
        buffer_load_dword v{s.vG}, v{s.vT0}, {wsrd}, s{sT0} offen sc1
        """)
    def body(self, a, pf):
        s = self; P = "at"
        sKV, sH, sQB, sKT, sC, sM, sRB, sPO, sD = s.sKV, s.sH, s.sQB, s.sKT, s.sC, s.sM, s.sRB, s.sPO, s.sD
        vKo, vVo, vT0, vT1, vT2, vT3, vG = s.vKo, s.vVo, s.vT0, s.vT1, s.vT2, s.vT3, s.vG
        vQ, vK, vV, vP, vS, vO, vKr, vVr = s.vQ, s.vK, s.vV, s.vP, s.vS, s.vO, s.vKr, s.vVr
        kv = f"s[{sKV}:{sKV+3}]"
        a.label("L_at_body")
        a.window = []
        a(f"""
        v_add_u32 v{vKr}, s{sRB}, v{vKo}
        v_and_b32 v{vT0}, 15, v0
        v_lshlrev_b32 v{vT0}, 4, v{vT0}
        v_lshrrev_b32 v{vT1}, 5, v0
        v_lshl_add_u32 v{vT0}, v{vT1}, 8, v{vT0}
        v_add_u32 v{vVr}, s{sRB}, v{vT0}
        v_and_b32 v{vT1}, 27, v0
        v_cmp_eq_u32 vcc, 16, v{vT1}
        v_mov_b32 v{vT1}, 0x3f803f80
        v_cndmask_b32 v{vT1}, 0, v{vT1}, vcc
        """)
        for r in range(16): a(f"v_mov_b32 v{vV+r}, v{vT1}")
        def reads(st, off):
            return f"""ds_read_b128 {vr(vK+4*st,4)}, v{vKr} offset:{off}
            s_mov_b64 exec, s[{sM}:{sM+1}]
            ds_read_b128 {vr(vV+8*st,4)}, v{vVr} offset:{off+1024}
            ds_read_b128 {vr(vV+8*st+4,4)}, v{vVr} offset:{off+1536}
            s_mov_b64 exec, -1"""
        def dma(off):
            return f"""s_add_u32 m0, s{sPO}, {off}
            s_setprio 3
            buffer_load_dwordx4 v{vKo}, {kv}, s{sKT} offen sc1 lds
            s_add_u32 m0, s{sPO}, {off+1024}
            s_nop 0
            buffer_load_dwordx4 v{vVo}, {kv}, s{sKT} offen sc1 lds
            s_setprio 1
            s_add_u32 s{sKT}, s{sKT}, 1024"""
        for r in range(4, 8): a(f"v_mov_b32 v{vP+r}, 0")
        for t in range(4): a(f"v_mfma_f32_32x32x16_bf16 {vr(vO+16*t,16)}, {vr(vP+4,4)}, {vr(vP+4,4)}, 0")
        a(f"s_mov_b32 s{sC}, 0")
        a(f"s_mov_b32 s{sPO}, s{sRB}")
        a("s_waitcnt vmcnt(11)")
        pf.stamp(2)
        a(reads(0, 0))
        a("s_waitcnt lgkmcnt(0)")
        def mfS(sb, st, q): return f"v_mfma_f32_32x32x16_bf16 {vr(vS+16*sb,16)}, {vr(vK+4*st,4)}, {vr(vQ+4*q,4)}, 0"
        def mfPV(q, st, u): return f"v_mfma_f32_32x32x16_bf16 {vr(vO+16*q,16)}, {vr(vV+8*st+4*u,4)}, {vr(vP+4*u,4)}, {vr(vO+16*q,16)}"
        a(mfS(0, 0, 0))
        a(dma(0))
        a("s_nop 7")
        a.raw(".p2align 6")
        a.label(f"L_{P}_loop")
        start = len(a.lines)
        for st in range(2):
            off = 2048 if st == 0 else 0
            for q in range(4):
                sb = q & 1
                S = vS + 16 * sb
                ex = lambda i: f"v_exp_f32 v{S+i}, v{S+i}"
                cv = lambda i: f"v_cvt_pk_bf16_f32 v{vP+i}, v{S+2*i}, v{S+2*i+1}"
                pq, pst = (q - 1, st) if q > 0 else (3, st ^ 1)
                nq, nst = (q + 1, st) if q < 3 else (0, st ^ 1)
                a(ex(0)); a(ex(1))
                a(mfPV(pq, pst, 1))
                if q == 0 and st == 1:
                    a(f"""
                    s_add_u32 s{sT0}, s{sPO}, 4096
                    s_add_u32 s{sT1}, s{sRB}, {RING}
                    s_cmp_eq_u32 s{sT0}, s{sT1}
                    s_cselect_b32 s{sT0}, s{sRB}, s{sT0}
                    s_sub_u32 s{sD}, s{sT0}, s{sPO}
                    s_mov_b32 s{sPO}, s{sT0}
                    v_add_u32 v{vKr}, s{sD}, v{vKr}
                    v_add_u32 v{vVr}, s{sD}, v{vVr}
                    """)
                if q == FQ and st == FST:
                    a(f"""
                    s_cmp_eq_u32 s{sC}, s{s.sFI}
                    s_cbranch_scc1 L_{P}_flag
                    L_{P}_flagret:
                    """)
                if q == 1:
                    a("s_waitcnt vmcnt(10)")
                    a(reads(st ^ 1, off))
                for i in range(2, 6): a(ex(i))
                if q == 3: a("s_waitcnt lgkmcnt(0)")
                a(mfS(sb ^ 1, nst, nq))
                if q == 3:
                    if st == 1:
                        a(f"""
                        s_cmp_ge_u32 s{sC}, 4
                        s_cselect_b32 s{sKV+2}, 0, s{sKV+2}
                        """)
                    a(dma(off))
                a(ex(6)); a(ex(7))
                for i in range(4): a(cv(i))
                a(ex(8)); a(ex(9))
                a(mfPV(q, st, 0))
                for i in range(10, 16): a(ex(i))
                for i in range(4, 8): a(cv(i))
        a(f"""
        s_add_u32 s{sC}, s{sC}, 1
        s_cmp_lt_u32 s{sC}, 8
        s_cbranch_scc1 L_{P}_loop
        """)
        seam, inner = check_loop(a.lines[start:])
        assert seam == 0 and inner == 0, (seam, inner)
        a(mfPV(3, 1, 1))
        a("s_setprio 3")
        pf.stamp(3)
        a(f"""
        v_add_u32 v{vT0}, s{sRB}, v{vKo}
        v_lshlrev_b32 v{vT1}, 2, v0
        v_add_u32 v{vT2}, s{sRB}, v{vT1}
        s_waitcnt vmcnt(0)
        """)
        for j in range(1, 4):
            o = vO + 16 * j
            a(f"""
            ds_write_b128 v{vT0}, {vr(o,4)} offset:{(j-1)*2304}
            ds_write_b128 v{vT0}, {vr(o+4,4)} offset:{(j-1)*2304+1024}
            ds_write_b32 v{vT2}, v{o+8} offset:{(j-1)*2304+2048}
            """)
        a(f"""
        v_mov_b32 v{vT2}, s{s.sGI}
        v_mov_b32 v{vT3}, 1
        s_waitcnt lgkmcnt(0)
        s_mov_b64 exec, 1
        ds_add_u32 v{vT2}, v{vT3}
        s_mov_b64 exec, -1
        L_at_gs:
        s_sleep 1
        ds_read_b32 v{vT3}, v{vT2}
        s_sub_u32 s{sSP}, s{sSP}, 1
        s_cselect_b32 s{sT1}, 4, 0
        s_waitcnt lgkmcnt(0)
        v_readfirstlane_b32 s{sT0}, v{vT3}
        s_add_u32 s{sT0}, s{sT0}, s{sT1}
        s_cmp_lt_u32 s{sT0}, 4
        s_cbranch_scc1 L_at_gs
        """)
        R = vO
        for j in range(1, 4):
            o = vO + 16 * j
            a(f"""
            s_xor_b32 s{sT0}, s{sW}, {j}
            s_mul_i32 s{sT0}, s{sT0}, {RING}
            s_add_u32 s{sT0}, s{sT0}, s{s.sGB}
            v_add_u32 v{vT0}, s{sT0}, v{vKo}
            v_add_u32 v{vT2}, s{sT0}, v{vT1}
            ds_read_b128 {vr(o,4)}, v{vT0} offset:{(j-1)*2304}
            ds_read_b128 {vr(o+4,4)}, v{vT0} offset:{(j-1)*2304+1024}
            ds_read_b32 v{o+8}, v{vT2} offset:{(j-1)*2304+2048}
            """)
        a("s_waitcnt lgkmcnt(0)")
        for r in range(0, 8, 2):
            a(f"v_pk_add_f32 {vr(R+r,2)}, {vr(R+r,2)}, {vr(R+16+r,2)}")
            a(f"v_pk_add_f32 {vr(R+32+r,2)}, {vr(R+32+r,2)}, {vr(R+48+r,2)}")
        a(f"v_add_f32 v{R+8}, v{R+8}, v{R+24}")
        a(f"v_add_f32 v{R+40}, v{R+40}, v{R+56}")
        for r in range(0, 8, 2):
            a(f"v_pk_add_f32 {vr(R+r,2)}, {vr(R+r,2)}, {vr(R+32+r,2)}")
        a(f"v_add_f32 v{R+8}, v{R+8}, v{R+40}")
        a(f"v_mov_b32 v{vT2}, v{R+8}")
        for r in range(8): a(f"v_fma_f32 v{vT2}, v{R+r}, 0, v{vT2}")
        a(f"""
        s_mov_b32 s{sT0}, {hex(f32bits(2.0**-30))}
        s_mov_b32 s{sT1}, {hex(f32bits(2.0**30))}
        v_cmp_le_f32 vcc, s{sT0}, v{vT2}
        v_cmp_ge_f32 s[40:41], s{sT1}, v{vT2}
        s_and_b64 vcc, vcc, s[40:41]
        s_cmp_eq_u64 vcc, -1
        s_cbranch_scc0 L_{P}_slow
        L_{P}_fin:
        v_rcp_f32 v{vT2}, v{R+8}
        s_lshl_b32 s{sT0}, s{sQB}, 2
        s_add_u32 s{sT0}, s{sT0}, s{sW}
        s_lshl_b32 s{sT0}, s{sT0}, 5
        s_add_u32 s{sT0}, s{sT0}, s{sH}
        s_lshl_b32 s{sT0}, s{sT0}, 10
        s_add_u32 s{sT0}, s{sT0}, {WS_O}
        v_mul_f32 v{vT2}, v{vT2}, v{vG}
        """)
        for r in range(8): a(f"v_mul_f32 v{R+r}, v{R+r}, v{vT2}")
        for r in range(4): a(f"v_cvt_pk_bf16_f32 v{vP+r}, v{R+2*r}, v{R+2*r+1}")
        for r in range(4): a(f"v_min_u32 v{vP+r}, -2, v{vP+r}")
        a(f"""
        v_permlane32_swap_b32 v{vP}, v{vP+2}
        v_permlane32_swap_b32 v{vP+1}, v{vP+3}
        buffer_store_dwordx4 {vr(vP,4)}, v{vKo}, {wsrd}, s{sT0} offen sc1
        """)
        pf.stamp(4)
        if asmlib.PROF: a("s_waitcnt vmcnt(0)")
        pf.stamp(5)
        pf.dump(6, 2, sWAVE, 16, vT0, vT1)
        a("s_endpgm")
        a(f"""
        L_{P}_flag:
        s_waitcnt vmcnt({2 + 2*FST})
        v_mov_b32 v{vT0}, 0
        s_mov_b64 exec, 1
        buffer_store_dwordx2 {vr(vEP,2)}, v{vT0}, {wsrd}, s{s.sFA} offen sc1
        s_mov_b64 exec, -1
        s_branch L_{P}_flagret
        """)
        a.label(f"L_{P}_slow")
        a.window = []
        vM = vT3; S = vS
        a(f"""
        s_lshl_b32 s{sT1}, s{sH}, 16
        s_add_u32 s{sT1}, s{sT1}, {WS_K}
        s_mov_b32 s{sKT}, s{sT1}
        s_mov_b32 s{sC}, 0
        v_mov_b32 v{vM}, 0xff800000
        v_and_b32 v{vT0}, 15, v0
        v_lshlrev_b32 v{vT0}, 4, v{vT0}
        v_lshrrev_b32 v{vT1}, 5, v0
        v_lshl_add_u32 v{vT0}, v{vT1}, 8, v{vT0}
        v_add_u32 v{vVo}, {WS_V - WS_K}, v{vT0}
        L_{P}_slow1:
        buffer_load_dwordx4 {vr(vK,4)}, v{vKo}, {wsrd}, s{sKT} offen sc1
        s_add_u32 s{sKT}, s{sKT}, 1024
        s_waitcnt vmcnt(0)
        {mfS(0,0,0)}
        """)
        for r in range(0, 16, 2): a(f"v_max3_f32 v{vM}, v{vM}, v{S+r}, v{S+r+1}")
        a(f"""
        s_add_u32 s{sC}, s{sC}, 1
        s_cmp_lt_u32 s{sC}, 64
        s_cbranch_scc1 L_{P}_slow1
        v_mov_b32 v{vT0}, v{vM}
        v_mov_b32 v{vT1}, v{vM}
        v_permlane32_swap_b32 v{vT0}, v{vT1}
        v_max_f32 v{vM}, v{vT0}, v{vT1}
        s_mov_b32 s{sKT}, s{sT1}
        s_mov_b32 s{sC}, 0
        """)
        for r in range(16): a(f"v_mov_b32 v{R+r}, 0")
        a(f"""
        L_{P}_slow2:
        buffer_load_dwordx4 {vr(vK,4)}, v{vKo}, {wsrd}, s{sKT} offen sc1
        s_mov_b64 exec, s[{sM}:{sM+1}]
        buffer_load_dwordx4 {vr(vV,4)}, v{vVo}, {wsrd}, s{sKT} offen sc1
        buffer_load_dwordx4 {vr(vV+4,4)}, v{vVo}, {wsrd}, s{sKT} offen offset:512 sc1
        s_mov_b64 exec, -1
        s_add_u32 s{sKT}, s{sKT}, 1024
        s_waitcnt vmcnt(0)
        {mfS(0,0,0)}
        """)
        for r in range(16): a(f"v_sub_f32 v{S+r}, v{S+r}, v{vM}")
        for r in range(16): a(f"v_exp_f32 v{S+r}, v{S+r}")
        for i in range(8): a(f"v_cvt_pk_bf16_f32 v{vP+i}, v{S+2*i}, v{S+2*i+1}")
        a(mfPV(0, 0, 0)); a(mfPV(0, 0, 1))
        a(f"""
        s_nop 7
        s_add_u32 s{sC}, s{sC}, 1
        s_cmp_lt_u32 s{sC}, 64
        s_cbranch_scc1 L_{P}_slow2
        s_nop 15
        s_branch L_{P}_fin
        """)

def gemm_role(a, pf):
    P = "gm"
    sWT, sOUT = 24, 28
    sC, sD, sN = 32, 33, 34
    sWM, sWN = 35, 36
    sTW, sFJ, sAO, sWO, sWO2, sLB = 37, 38, 39, 40, 41, 42
    vL16 = 1
    vT0, vT1, vT2, vT3 = 2, 3, 4, 5
    vWd = 7
    vWr, vAo, vG1 = [10, 11], [12, 13], [14, 15]
    vF, vA, vACC = 16, 48, 80
    D = 4
    a(f"""
    s_setprio {int(os.environ.get('GPRIO', '0'))}
    s_load_dwordx2 s[{sWT}:{sWT+1}], s[0:1], 48
    s_load_dwordx2 s[44:45], s[0:1], 16
    s_load_dwordx2 s[{sOUT}:{sOUT+1}], s[0:1], 64
    s_mov_b32 s{sWT+2}, {1792*512*2}
    s_mov_b32 s{sWT+3}, 0x00020000
    s_mov_b32 s{sOUT+2}, {2048*512*2}
    s_mov_b32 s{sOUT+3}, 0x00020000
    s_and_b32 s{sWM}, s{sW}, 1
    s_lshr_b32 s{sWN}, s{sW}, 1
    v_lshlrev_b32 v{vL16}, 4, v0
    s_and_b32 s{sT0}, s2, 7
    s_lshl_b32 s{sTW}, s{sT0}, 2
    s_bfe_u32 s{sT0}, s2, 0x20003
    s_add_u32 s{sTW}, s{sTW}, s{sT0}
    s_lshr_b32 s{sFJ}, s2, 5
    s_mul_i32 s{sT0}, s{sTW}, 224
    s_mul_i32 s{sT1}, s{sW}, 28
    s_add_u32 s{sT0}, s{sT0}, s{sT1}
    s_lshl_b32 s{sAO}, s{sT0}, 10
    s_add_u32 s{sAO}, s{sAO}, {WS_A}
    s_lshl_b32 s{sWO}, s{sT1}, 14
    s_lshl_b32 s{sT2}, s{sFJ}, 7
    s_add_u32 s{sWO}, s{sWO}, s{sT2}
    s_mul_i32 s{sLB}, s{sW}, 12288
    s_add_u32 s{sLB}, s{sLB}, {GM_BASE}
    s_mul_i32 s{sT0}, s{sWM}, {112*1024}
    s_sub_u32 s{sT1}, {112*1024}, s{sT0}
    v_add_u32 v{vAo[0]}, s{sT0}, v{vL16}
    v_add_u32 v{vAo[1]}, s{sT1}, v{vL16}
    v_lshrrev_b32 v{vT0}, 2, v0
    v_lshrrev_b32 v{vT1}, 4, v0
    v_xor_b32 v{vT0}, v{vT0}, v{vT1}
    v_and_b32 v{vT0}, 1, v{vT0}
    v_lshlrev_b32 v{vT0}, 6, v{vT0}
    v_and_b32 v{vT1}, 3, v0
    v_lshl_add_u32 v{vT0}, v{vT1}, 4, v{vT0}
    v_lshrrev_b32 v{vT1}, 3, v0
    v_lshl_add_u32 v{vWd}, v{vT1}, 10, v{vT0}
    v_lshrrev_b32 v{vT0}, 5, v0
    v_bfe_u32 v{vT1}, v0, 2, 2
    v_lshl_add_u32 v{vT0}, v{vT0}, 3, v{vT1}
    v_lshlrev_b32 v{vT0}, 7, v{vT0}
    v_lshrrev_b32 v{vT1}, 1, v{vT1}
    v_xor_b32 v{vT1}, s{sWN}, v{vT1}
    v_lshl_add_u32 v{vT0}, v{vT1}, 6, v{vT0}
    v_bfe_u32 v{vT1}, v0, 4, 1
    v_lshl_add_u32 v{vT0}, v{vT1}, 5, v{vT0}
    v_and_b32 v{vT1}, 3, v0
    v_lshl_add_u32 v{vT0}, v{vT1}, 3, v{vT0}
    v_add_u32 v{vWr[0]}, s{sLB}, v{vT0}
    v_xor_b32 v{vWr[1]}, 64, v{vWr[0]}
    s_lshl_b32 s{sT0}, s{sTW}, 5
    s_lshl_b32 s{sT1}, s{sW}, 2
    s_add_u32 s{sT0}, s{sT0}, s{sT1}
    v_bfe_u32 v{vT0}, v0, 2, 1
    v_lshlrev_b32 v{vT0}, 4, v{vT0}
    v_and_b32 v{vT1}, 3, v0
    v_add3_u32 v{vT0}, v{vT0}, v{vT1}, s{sT0}
    v_lshlrev_b32 v{vT0}, {FSH}, v{vT0}
    v_add_u32 v{vT0}, {WS_FA2}, v{vT0}
    s_and_b32 s{sT0}, s{sTW}, 1
    s_lshl_b32 s{sT0}, s{sT0}, 9
    s_lshr_b32 s{sT2}, s{sTW}, 1
    s_lshl_b32 s{sN}, s{sT2}, 2
    s_add_u32 s{sT0}, s{sT0}, s{sN}
    v_and_b32 v{vT2}, 7, v0
    v_lshlrev_b32 v{vT2}, 6, v{vT2}
    v_add_u32 v{vT2}, s{sT0}, v{vT2}
    v_lshlrev_b32 v{vT2}, {FSH}, v{vT2}
    v_add_u32 v{vT2}, {WS_FQ}, v{vT2}
    v_cmp_le_u32 vcc, 8, v0
    v_cndmask_b32 v{vT0}, v{vT0}, v{vT2}, vcc
    v_add_u32 v{vT1}, s{sT1}, v{vT1}
    v_lshrrev_b32 v{vT2}, 1, v{vT1}
    v_and_b32 v{vT1}, 1, v{vT1}
    v_lshl_add_u32 v{vT2}, v{vT1}, 3, v{vT2}
    s_lshl_b32 s{sT2}, s{sT2}, 4
    v_add_u32 v{vT2}, s{sT2}, v{vT2}
    v_and_b32 v{vT1}, 1, v{vT2}
    v_lshlrev_b32 v{vT1}, 3, v{vT1}
    v_bfe_u32 v{vT3}, v{vT2}, 3, 3
    v_add_u32 v{vT1}, v{vT1}, v{vT3}
    v_lshlrev_b32 v{vT1}, 2, v{vT1}
    v_bfe_u32 v{vT3}, v{vT2}, 1, 2
    v_lshl_add_u32 v{vT1}, v{vT3}, 8, v{vT1}
    v_lshrrev_b32 v{vT3}, 6, v{vT2}
    v_lshl_add_u32 v{vT1}, v{vT3}, 6, v{vT1}
    v_lshlrev_b32 v{vT1}, {FSH}, v{vT1}
    v_add_u32 v{vT1}, {WS_FQ}, v{vT1}
    v_cmp_le_u32 vcc, 16, v0
    v_cndmask_b32 v{vT0}, v{vT0}, v{vT1}, vcc
    s_waitcnt vmcnt(0) lgkmcnt(0)
    """)
    epoch_check(a, vT1, "g")
    a(f"""
    s_mov_b64 exec, 0xfffff
    L_{P}_pollF:
    buffer_load_dwordx2 {vr(vT2,2)}, v{vT0}, {wsrd}, 0 offen sc1
    s_waitcnt vmcnt(0)
    v_cmp_ne_u64 vcc, {vr(vT2,2)}, {vr(vEP,2)}
    s_cbranch_vccz L_{P}_okF
    s_sleep 8
    s_sub_u32 s{sSP}, s{sSP}, 1
    s_cbranch_scc0 L_{P}_pollF
    s_mov_b32 s{sSP}, 0
    L_{P}_okF:
    s_mov_b64 exec, -1
    s_lshl_b32 s{sT0}, s{sTW}, 8
    s_add_u32 s{sT0}, s{sT0}, {WS_G}
    v_and_b32 v{vT0}, 31, v0
    v_lshlrev_b32 v{vT0}, 2, v{vT0}
    s_lshl_b32 s{sT1}, s{sWM}, 7
    v_xor_b32 v{vT0}, s{sT1}, v{vT0}
    v_xor_b32 v{vT1}, 128, v{vT0}
    buffer_load_dword v{vG1[0]}, v{vT0}, {wsrd}, s{sT0} offen sc1
    buffer_load_dword v{vG1[1]}, v{vT1}, {wsrd}, s{sT0} offen sc1
    """)
    pf.stamp(2)
    def wloads(d):
        return [f"s_add_u32 m0, s{sLB}, {d*2048}",
                f"s_add_u32 s{sWO2}, s{sWO}, 8192",
                f"buffer_load_dwordx4 v{vWd}, s[{sWT}:{sWT+3}], s{sWO} offen lds",
                f"s_add_u32 m0, s{sLB}, {d*2048+1024}",
                f"s_add_u32 s{sWO}, s{sWO}, 16384",
                f"buffer_load_dwordx4 v{vWd}, s[{sWT}:{sWT+3}], s{sWO2} offen lds"]
    def aloads(d):
        return [f"buffer_load_dwordx4 {vr(vA+8*d,4)}, v{vAo[0]}, {wsrd}, s{sAO} offen sc1",
                f"buffer_load_dwordx4 {vr(vA+8*d+4,4)}, v{vAo[1]}, {wsrd}, s{sAO} offen sc1",
                f"s_add_u32 s{sAO}, s{sAO}, 1024"]
    def wreads(d, buf):
        return [f"ds_read_b64_tr_b16 {vr(vF+8*buf+4*fi+2*t2,2)}, v{vWr[fi]} offset:{d*2048+t2*512}"
                for fi in range(2) for t2 in range(2)]
    def mfmas(d, buf):
        return [f"v_mfma_f32_32x32x16_bf16 {vr(vACC+16*(fi*2+ti),16)}, {vr(vF+8*buf+4*fi,4)}, {vr(vA+8*d+4*ti,4)}, {vr(vACC+16*(fi*2+ti),16)}"
                for fi in range(2) for ti in range(2)]
    for d in range(D): a("\n".join(wloads(d) + aloads(d)))
    for r in range(4): a(f"v_mov_b32 v{vF+8+r}, 0")
    for t in range(4): a(f"v_mfma_f32_32x32x16_bf16 {vr(vACC+16*t,16)}, {vr(vF+8,4)}, {vr(vF+8,4)}, 0")
    a(f"s_mov_b32 s{sC}, 0")
    a(f"s_waitcnt vmcnt({4*(D-1)})")
    a("\n".join(wreads(0, 0)))
    a.raw(".p2align 6")
    a.label(f"L_{P}_f2loop")
    start = len(a.lines)
    for s in range(D):
        a(f"s_waitcnt vmcnt({4*(D-2)})")
        a("\n".join(wreads((s + 1) % D, (s + 1) & 1)))
        a("s_waitcnt lgkmcnt(4)")
        a("\n".join(mfmas(s, s & 1)))
        a("\n".join(wloads(s) + aloads(s)))
    a(f"""
    s_add_u32 s{sC}, s{sC}, 1
    s_cmp_lt_u32 s{sC}, 6
    s_cbranch_scc1 L_{P}_f2loop
    """)
    seam, inner = check_loop(a.lines[start:])
    assert seam == 0 and inner == 0, (seam, inner)
    a(f"""
    s_mov_b32 s{sWT}, s44
    s_mov_b32 s{sWT+1}, s45
    s_mov_b32 s{sWT+2}, {512*512*2}
    s_lshl_b32 s{sWO}, s{sW}, 16
    s_lshl_b32 s{sT2}, s{sFJ}, 7
    s_add_u32 s{sWO}, s{sWO}, s{sT2}
    """)
    for s in range(D):
        if s < D - 1:
            a(f"s_waitcnt vmcnt({4*(D-2-s) + 2*s})")
            a("\n".join(wreads(s + 1, (s + 1) & 1)))
            a("s_waitcnt lgkmcnt(4)")
        else:
            a("s_waitcnt lgkmcnt(0)")
        a("\n".join(mfmas(s, s & 1)))
        a("\n".join(wloads(s)))
    pf.stamp(3)
    a(f"""
    s_setprio 2
    v_sub_f32 v{vG1[0]}, 1.0, v{vG1[0]}
    v_sub_f32 v{vG1[1]}, 1.0, v{vG1[1]}
    s_lshl_b32 s{sAO}, s{sTW}, 16
    s_lshl_b32 s{sT0}, s{sW}, 12
    s_add_u32 s{sAO}, s{sAO}, s{sT0}
    s_add_u32 s{sAO}, s{sAO}, {WS_O}
    s_lshl_b32 s{sT0}, s{sWM}, 15
    v_add_u32 v{vAo[0]}, s{sT0}, v{vL16}
    v_xor_b32 v{vAo[1]}, 0x8000, v{vAo[0]}
    v_and_b32 v{vT0}, 3, v0
    v_bfe_u32 v{vT1}, v0, 2, 1
    v_lshlrev_b32 v{vT0}, 10, v{vT0}
    v_lshl_add_u32 v{vT3}, v{vT1}, 15, v{vT0}
    s_add_u32 s{sWO}, s{sWO}, {(16-4)*16384}
    s_mov_b32 s{sC}, 0
    """)
    for fi in range(2):
        for ti in range(2):
            acc = vACC + 16 * (fi * 2 + ti)
            for r in range(0, 16, 2): a(f"v_pk_mul_f32 {vr(acc+r,2)}, {vr(acc+r,2)}, {vr(vG1[0],2)} op_sel:[0,{ti}] op_sel_hi:[1,{ti}]")
    a(f"""
    L_{P}_ph:
    s_mov_b64 exec, 0xff
    L_{P}_pollO:
    buffer_load_dword v{vT1}, v{vT3}, {wsrd}, s{sAO} offen offset:1020 sc1
    s_waitcnt vmcnt(0)
    v_cmp_eq_u32 vcc, -1, v{vT1}
    s_cbranch_vccz L_{P}_loadO
    s_sleep {PSLEEP}
    s_sub_u32 s{sSP}, s{sSP}, 1
    s_cbranch_scc0 L_{P}_pollO
    s_mov_b32 s{sSP}, 0
    L_{P}_loadO:
    s_mov_b64 exec, -1
    """)
    for d in range(D):
        a(f"buffer_load_dwordx4 {vr(vA+8*d,4)}, v{vAo[0]}, {wsrd}, s{sAO} offen offset:{d*1024} sc1")
        a(f"buffer_load_dwordx4 {vr(vA+8*d+4,4)}, v{vAo[1]}, {wsrd}, s{sAO} offen offset:{d*1024} sc1")
    a("\n".join(wreads(0, 0)))
    a("s_waitcnt vmcnt(0)")
    a(f"v_max3_u32 v{vT1}, v{vA}, v{vA+1}, v{vA+2}")
    for r in range(3, 31, 2): a(f"v_max3_u32 v{vT1}, v{vT1}, v{vA+r}, v{vA+r+1}")
    a(f"""
    v_max_u32 v{vT1}, v{vT1}, v{vA+31}
    v_cmp_eq_u32 vcc, -1, v{vT1}
    s_cbranch_vccz L_{P}_okO
    s_sub_u32 s{sSP}, s{sSP}, 1
    s_cbranch_scc0 L_{P}_loadO
    s_mov_b32 s{sSP}, 0
    L_{P}_okO:
    """)
    for s in range(D):
        if s < D - 1:
            a("\n".join(wreads(s + 1, (s + 1) & 1)))
            a("s_waitcnt lgkmcnt(4)")
        else:
            a("s_waitcnt lgkmcnt(0)")
        a("\n".join(mfmas(s, s & 1)))
    a(f"""
    s_cmp_eq_u32 s{sC}, 1
    s_cbranch_scc1 L_{P}_red
    """)
    for s in range(D): a("\n".join(wloads(s)))
    a(f"""
    {'s_memrealtime s[74:75]' if 'tdA' in EXP else ''}
    s_add_u32 s{sAO}, s{sAO}, 16384
    s_mov_b32 s{sC}, 1
    s_branch L_{P}_ph
    L_{P}_red:
    s_nop 7
    v_add_u32 v{vT0}, s{sLB}, v{vL16}
    s_nop 3
    """)
    pf.stamp(4)
    for j in range(1, 4):
        for q in range(4):
            a(f"ds_write_b128 v{vT0}, {vr(vACC+16*j+4*q,4)} offset:{(j-1)*4096+q*1024}")
    a("s_waitcnt lgkmcnt(0)")
    group_sync(a, 2, vT1, vT2, "gm")
    for j in range(1, 4):
        a(f"""
        s_xor_b32 s{sT0}, s{sW}, {j}
        s_mul_i32 s{sT0}, s{sT0}, 12288
        s_add_u32 s{sT0}, s{sT0}, {GM_BASE}
        v_add_u32 v{vT1}, s{sT0}, v{vL16}
        """)
        for q in range(4):
            a(f"ds_read_b128 {vr(vACC+16*j+4*q,4)}, v{vT1} offset:{(j-1)*4096+q*1024}")
    a(f"""
    s_lshl_b32 s{sT0}, s{sTW}, 1
    s_add_u32 s{sT0}, s{sT0}, s{sWM}
    s_lshl_b32 s{sT0}, s{sT0}, 15
    s_lshl_b32 s{sT1}, s{sFJ}, 7
    s_add_u32 s{sT0}, s{sT0}, s{sT1}
    s_lshl_b32 s{sT1}, s{sWN}, 6
    s_add_u32 s{sT0}, s{sT0}, s{sT1}
    v_and_b32 v{vT0}, 31, v0
    v_lshlrev_b32 v{vT0}, 10, v{vT0}
    v_lshrrev_b32 v{vT2}, 5, v0
    v_lshl_add_u32 v{vT0}, v{vT2}, 4, v{vT0}
    s_waitcnt lgkmcnt(8)
    """)
    for r in range(0, 16, 2): a(f"v_pk_add_f32 {vr(vACC+r,2)}, {vr(vACC+r,2)}, {vr(vACC+16+r,2)}")
    a("s_waitcnt lgkmcnt(0)")
    for r in range(0, 16, 2): a(f"v_pk_add_f32 {vr(vACC+32+r,2)}, {vr(vACC+32+r,2)}, {vr(vACC+48+r,2)}")
    for r in range(0, 16, 2): a(f"v_pk_add_f32 {vr(vACC+r,2)}, {vr(vACC+r,2)}, {vr(vACC+32+r,2)}")
    p = vF
    for i in range(8): a(f"v_cvt_pk_bf16_f32 v{p+i}, v{vACC+2*i}, v{vACC+2*i+1}")
    a(f"""
    v_permlane32_swap_b32 v{p}, v{p+2}
    v_permlane32_swap_b32 v{p+1}, v{p+3}
    v_permlane32_swap_b32 v{p+4}, v{p+6}
    v_permlane32_swap_b32 v{p+5}, v{p+7}
    buffer_store_dwordx4 {vr(p,4)}, v{vT0}, s[{sOUT}:{sOUT+3}], s{sT0} offen
    buffer_store_dwordx4 {vr(p+4,4)}, v{vT0}, s[{sOUT}:{sOUT+3}], s{sT0} offen offset:32
    """)
    if asmlib.PROF: a("s_waitcnt vmcnt(0)")
    pf.stamp(5)
    pf.dump(6, 2, sWAVE, 16, vT0, vT1)
    if 'td' in EXP:
        a(f"""
        s_or_b32 s{sT0}, s2, s{sW}
        s_cmp_lg_u32 s{sT0}, 0
        s_cbranch_scc1 L_td_end
        s_memrealtime s[76:77]
        s_waitcnt lgkmcnt(0)
        {'s_mov_b32 s74, s76' if 'tdE' in EXP else ''}
        s_sub_u32 s{sT1}, s74, s72
        s_min_u32 s{sT1}, s{sT1}, 10000
        s_mul_i32 s{sT1}, s{sT1}, 10
        L_td_spin:
        s_memrealtime s[78:79]
        s_waitcnt lgkmcnt(0)
        s_sub_u32 s{sT2}, s78, s76
        s_cmp_lt_u32 s{sT2}, s{sT1}
        s_cbranch_scc1 L_td_spin
        L_td_end:
        """)
    a("s_endpgm")

def gen():
    WB, WSL, NWS = 131072, 8192, 4
    a = Asm()
    a.raw(kernel_header(NAME))
    pf = Prof(a, 0)
    pf.stamp(0)
    at = Attn()
    sX, sWQ, sW1, sB1, sGW = 44, 48, 52, 56, 56
    sSOX, sSOW, sSL, sN, sD, sC = 60, 61, 62, 63, 64, 65
    sMX, sMQ, sM1 = 66, 67, 68
    sK2 = 70
    sKX, sBX, sBQ, sB1o, sX2, sKC = 24, 25, 26, 27, 28, 29
    vG = 3
    vT0, vT1, vT2, vT3 = 6, 7, 8, 9
    a(f"""
    s_cmp_ge_u32 s2, 256
    s_cbranch_scc1 L_end
    s_getpc_b64 s[40:41]
    L_pc0:
    v_lshlrev_b32 v1, 6, v0
    v_min_u32 v1, L_code_end-L_pc0-4, v1
    global_load_dword v96, v1, s[40:41]
    s_load_dwordx4 s[4:7], s[0:1], 0
    s_load_dwordx4 s[32:35], s[0:1], 32
    s_load_dwordx2 s[36:37], s[0:1], 56
    s_load_dwordx2 s[{sDB}:{sDB+1}], s[0:1], 72
    s_load_dwordx2 s[{sWS}:{sWS+1}], s[0:1], 80
    v_lshrrev_b32 v1, 6, v0
    v_and_b32 v0, 63, v0
    v_readfirstlane_b32 s{sWAVE}, v1
    s_and_b32 s{sT0}, s2, 7
    s_lshr_b32 s{sT1}, s2, 3
    s_and_b32 s{sI}, s{sT0}, 1
    s_lshl_b32 s{sI}, s{sI}, 3
    s_and_b32 s{sT2}, s{sT1}, 7
    s_add_u32 s{sI}, s{sI}, s{sT2}
    s_lshr_b32 s{sJ}, s{sT0}, 1
    s_lshl_b32 s{sJ}, s{sJ}, 2
    s_lshr_b32 s{sT2}, s{sT1}, 3
    s_add_u32 s{sJ}, s{sJ}, s{sT2}
    s_and_b32 s{sW}, s{sWAVE}, 3
    s_mov_b32 s{sWS+2}, {WS_SIZE}
    s_mov_b32 s{sWS+3}, 0x00020000
    s_mov_b32 s{sDB+2}, 256
    s_mov_b32 s{sDB+3}, 0x00020000
    s_mov_b32 s{sSP}, {SPIN_MAX}
    v_lshrrev_b32 v{vG}, 4, v0
    s_cmp_lt_u32 s{sWAVE}, 8
    s_cbranch_scc1 L_comp
    """)
    vXd, vXd2, v1d, v1d2, vQd, vQd2 = 10, 11, 12, 13, 14, 15
    vGX, vGW, vOnes = 20, 28, 36
    a(f"""
    s_setprio 2
    s_mov_b32 s{sX+2}, {2048*512*2}
    s_mov_b32 s{sX+3}, 0x00020000
    s_mov_b32 s{sWQ+2}, {512*1536*2}
    s_mov_b32 s{sWQ+3}, 0x00020000
    v_and_b32 v{vT0}, 7, v0
    v_xor_b32 v{vT0}, v{vT0}, v{vG}
    v_lshlrev_b32 v{vT0}, 4, v{vT0}
    v_lshrrev_b32 v{vT1}, 3, v0
    v_lshl_add_u32 v{vXd}, v{vT1}, 10, v{vT0}
    v_xor_b32 v{vXd2}, 64, v{vXd}
    v_add_u32 v{vXd2}, 8192, v{vXd2}
    s_lshl_b32 s{sBX}, s{sI}, 17
    s_lshl_b32 s{sT0}, s{sW}, 14
    s_add_u32 s{sBX}, s{sBX}, s{sT0}
    s_lshl_b32 s{sMX}, s{sW}, 11
    ; Wq: rows 8w..8w+7 of the step: pieces p = l (+64): pos = p>>1, k = pos/6, ct = (pos%6) ^ (w&1)
    s_mul_i32 s{sMQ}, s{sW}, 1536
    s_add_u32 s{sMQ}, s{sMQ}, {WB}
    s_mul_i32 s{sBQ}, s{sW}, {8*3072}
    s_lshl_b32 s{sT0}, s{sJ}, 7
    s_add_u32 s{sBQ}, s{sBQ}, s{sT0}
    s_and_b32 s{sT1}, s{sW}, 1
    s_lshl_b32 s{sT2}, s{sJ}, 6
    s_sub_u32 s{sT2}, {2048-128}, s{sT2}
    """)
    for q, dst in ((0, vQd), (1, vQd2)):
        a(f"""
        v_lshrrev_b32 v{vT1}, 1, v0
        v_add_u32 v{vT1}, {32*q}, v{vT1}
        v_mul_u32_u24 v{vT2}, 0xaaab, v{vT1}
        v_lshrrev_b32 v{vT2}, 18, v{vT2}
        v_mul_u32_u24 v{vT3}, 6, v{vT2}
        v_sub_u32 v{vT1}, v{vT1}, v{vT3}
        v_xor_b32 v{vT1}, s{sT1}, v{vT1}
        v_mul_u32_u24 v{vT2}, 3072, v{vT2}
        v_lshl_add_u32 v{vT2}, v{vT1}, 5, v{vT2}
        v_lshrrev_b32 v{vT3}, 2, v{vT1}
        v_mul_u32_u24 v{vT3}, s{sT2}, v{vT3}
        v_add_u32 v{vT2}, v{vT2}, v{vT3}
        v_and_b32 v{vT3}, 1, v0
        v_lshl_add_u32 v{dst}, v{vT3}, 4, v{vT2}
        """)
    a(f"""
    s_lshr_b32 s{sKX}, s2, 3
    s_and_b32 s{sKX}, s{sKX}, 7
    s_lshl_b32 s{sKC}, s{sKX}, 1
    s_waitcnt lgkmcnt(0)
    s_mov_b32 s{sX}, s4
    s_mov_b32 s{sX+1}, s5
    s_mov_b32 s{sWQ}, s6
    s_mov_b32 s{sWQ+1}, s7
    """)
    ops = []
    def vm(text, tag): a(text); ops.append(tag)
    def xhalf(hx):
        m, half = hx >> 1, hx & 1
        a(f"""
        s_lshl_b32 s{sT0}, s{sKX}, 7
        s_add_u32 s{sSOX}, s{sBX}, s{sT0}
        s_add_u32 m0, s{sMX}, {m*XS + half*8192}
        {f's_add_u32 s{sSOX}, s{sSOX}, 65536' if half else 's_nop 0'}
        """)
        vm(f"buffer_load_dwordx4 v{vXd}, s[{sX}:{sX+3}], s{sSOX} offen lds", ('x', m))
        a(f"s_add_u32 m0, s{sMX}, {m*XS + half*8192 + 1024}")
        a(f"s_add_u32 s{sKX}, s{sKX}, 1" if half else "s_nop 0")
        vm(f"buffer_load_dwordx4 v{vXd2}, s[{sX}:{sX+3}], s{sSOX} offen lds", ('x', m))
        if half: a(f"s_and_b32 s{sKX}, s{sKX}, 7")
    def wstep(h):
        so = (h % NWS) * WSL
        if h < 16:
            a(f"""
            s_mul_i32 s{sT0}, s{sKC}, {32*3072}
            s_add_u32 s{sSOW}, s{sBQ}, s{sT0}
            s_add_u32 m0, s{sMQ}, {so}
            s_add_u32 s{sKC}, s{sKC}, 1
            """)
            vm(f"buffer_load_dwordx4 v{vQd}, s[{sWQ}:{sWQ+3}], s{sSOW} offen lds", ('w', h))
            a(f"s_add_u32 m0, s{sMQ}, {so + 1024}\ns_mov_b32 exec_hi, 0")
            vm(f"buffer_load_dwordx4 v{vQd2}, s[{sWQ}:{sWQ+3}], s{sSOW} offen lds", ('w', h))
            a("s_mov_b32 exec_hi, -1")
        else:
            a(f"""
            s_mul_i32 s{sT0}, s{sKC}, {32*3584}
            s_add_u32 s{sSOW}, s{sB1o}, s{sT0}
            s_add_u32 m0, s{sM1}, {so}
            s_add_u32 s{sKC}, s{sKC}, 1
            """)
            vm(f"buffer_load_dwordx4 v{v1d}, s[{sW1}:{sW1+3}], s{sSOW} offen lds", ('w', h))
            a(f"s_add_u32 m0, s{sM1}, {so + 1024}\ns_nop 0")
            vm(f"buffer_load_dwordx4 v{v1d2}, s[{sW1}:{sW1+3}], s{sSOW} offen lds", ('w', h))
        a(f"s_and_b32 s{sKC}, s{sKC}, 15")
    def wait_for(tags):
        last = max(i for i, t in enumerate(ops) if t in tags)
        a(f"s_waitcnt vmcnt({len(ops) - 1 - last})")
    XLEAD = int(os.environ.get('XLEAD', '3'))
    xhalf(0); wstep(0); xhalf(1); wstep(1); xhalf(2); wstep(2); xhalf(3); wstep(3)
    nx, nw = 4, 4
    a(f"""
    s_or_b32 s{sT0}, s2, s{sW}
    s_cmp_lg_u32 s{sT0}, 0
    s_cbranch_scc1 L_noep
    s_memrealtime s[42:43]
    v_mov_b32 v{vT0}, 0
    s_waitcnt lgkmcnt(0)
    s_or_b32 s42, s42, 1
    v_mov_b32 v{vOnes}, s42
    v_mov_b32 v{vOnes+1}, s43
    s_mov_b64 exec, 1
    buffer_store_dwordx2 {vr(vOnes,2)}, v{vT0}, s[{sDB}:{sDB+3}], 0 offen sc1
    s_mov_b64 exec, -1
    s_waitcnt vmcnt(0)
    L_noep:
    s_mov_b32 s{sW1}, s32
    s_mov_b32 s{sW1+1}, s33
    s_mov_b32 s{sW1+2}, {512*1792*2}
    s_mov_b32 s{sW1+3}, 0x00020000
    s_add_u32 s{sM1}, s{sMX}, {WB}
    s_mul_i32 s{sB1o}, s{sW}, {8*3584}
    s_mul_i32 s{sT0}, s{sJ}, 224
    s_add_u32 s{sB1o}, s{sB1o}, s{sT0}
    s_and_b32 s{sT1}, s{sW}, 1
    s_lshl_b32 s{sT1}, s{sT1}, 2
    v_lshrrev_b32 v{vT1}, 1, v0
    v_sub_u32 v{vT1}, v{vT1}, v{vG}
    v_subrev_u32 v{vT1}, s{sT1}, v{vT1}
    v_and_b32 v{vT1}, 7, v{vT1}
    v_min_u32 v{vT1}, 6, v{vT1}
    v_mul_u32_u24 v{vT2}, 3584, v{vG}
    v_lshl_add_u32 v{vT2}, v{vT1}, 5, v{vT2}
    v_and_b32 v{vT3}, 1, v0
    v_lshl_add_u32 v{v1d}, v{vT3}, 4, v{vT2}
    v_add_u32 v{v1d2}, {4*3584}, v{v1d}
    """)
    GB = 17
    for b in range(32):
        tags = [('w', b)] + ([('x', b >> 1)] if b < 16 else []) + (['gs'] if b == GB else [])
        wait_for(tags)
        a("s_barrier")
        if nw < 32 and nw < b + NWS: wstep(nw); nw += 1
        k = 0
        while nx < 16 and nx < b + 2 + XLEAD and k < 2: xhalf(nx); nx += 1; k += 1
        if b == 6:
            a(f"""
            s_mov_b32 s{sGW}, s36
            s_mov_b32 s{sGW+1}, s37
            s_mov_b32 s{sGW+2}, 1024
            s_mov_b32 s{sGW+3}, 0x00020000
            s_lshl_b32 s{sT0}, s{sI}, 7
            s_lshl_b32 s{sT1}, s{sJ}, 3
            s_add_u32 s{sT0}, s{sT0}, s{sT1}
            s_lshl_b32 s{sT1}, s{sW}, 1
            s_add_u32 s{sN}, s{sT0}, s{sT1}
            s_lshl_b32 s{sT1}, s{sN}, 10
            v_and_b32 v{vT1}, 31, v0
            v_lshlrev_b32 v{vT1}, 5, v{vT1}
            v_lshrrev_b32 v{vT2}, 5, v0
            v_lshl_add_u32 v{vT2}, v{vT2}, 10, v{vT1}
            """)
            vm(f"buffer_load_dwordx4 {vr(vGX,4)}, v{vT2}, s[{sX}:{sX+3}], s{sT1} offen", 'g')
            vm(f"buffer_load_dwordx4 {vr(vGX+4,4)}, v{vT2}, s[{sX}:{sX+3}], s{sT1} offen offset:16", 'g')
            vm(f"buffer_load_dwordx4 {vr(vGW,4)}, v{vT1}, s[{sGW}:{sGW+3}], 0 offen", 'g')
            vm(f"buffer_load_dwordx4 {vr(vGW+4,4)}, v{vT1}, s[{sGW}:{sGW+3}], 0 offen offset:16", 'g')
        if b == 11:
            wait_for(['g'])
            acc = vT1
            a(f"v_mov_b32 v{acc}, 0")
            for r in range(8): a(f"v_dot2_f32_bf16 v{acc}, v{vGX+r}, v{vGW+r}, v{acc}")
            a("s_nop 3")
            for mod in ["quad_perm:[1,0,3,2]", "quad_perm:[2,3,0,1]", "row_half_mirror", "row_mirror"]:
                a(f"v_add_f32_dpp v{acc}, v{acc}, v{acc} {mod} row_mask:0xf bank_mask:0xf")
            a(f"""
            v_mov_b32 v{vT2}, v{acc}
            v_mov_b32 v{vT3}, v{acc}
            v_permlane16_swap_b32 v{vT2}, v{vT3}
            v_add_f32 v{acc}, v{vT2}, v{vT3}
            v_mul_f32 v{acc}, {hex(f32bits(-LOG2E))}, v{acc}
            v_exp_f32 v{acc}, v{acc}
            v_add_f32 v{acc}, 1.0, v{acc}
            v_rcp_f32 v{acc}, v{acc}
            s_lshl_b32 s{sT0}, s{sN}, 2
            s_add_u32 s{sT0}, s{sT0}, {WS_G}
            v_lshrrev_b32 v{vT2}, 5, v0
            v_lshlrev_b32 v{vT2}, 2, v{vT2}
            s_mov_b32 exec_lo, 1
            s_mov_b32 exec_hi, 1
            """)
            vm(f"buffer_store_dword v{acc}, v{vT2}, {wsrd}, s{sT0} offen sc1", 'gs')
            a("s_mov_b64 exec, -1")
        if b == 28: epoch_load(a, vT0); ops.append('e')
        if b == 31:
            a(f"""
            v_lshlrev_b32 v{vT0}, 2, v0
            v_add_u32 v{vT0}, {CNT_BASE}, v{vT0}
            v_mov_b32 v{vT1}, 0
            ds_write_b32 v{vT0}, v{vT1}
            s_waitcnt lgkmcnt(0)
            """)
    assert CNT_BASE == WB + 2 * WSL
    a("s_barrier")
    pf.stamp(1)
    gemm_role(a, pf)
    a.label("L_comp")
    a.window = []
    vN16, vR, vC = 2, 4, 5
    vXr = [10, 11]
    vWr = list(range(12, 19))
    vF = 20
    FSZ = 36
    vACC = 96
    a(f"""
    v_and_b32 v{vN16}, 15, v0
    v_bfe_u32 v{vR}, v0, 2, 2
    v_and_b32 v{vC}, 3, v0
    v_lshrrev_b32 v{vT0}, 1, v{vN16}
    v_xor_b32 v{vT0}, v{vG}, v{vT0}
    v_lshlrev_b32 v{vT0}, 4, v{vT0}
    v_lshl_add_u32 v{vT0}, v{vN16}, 7, v{vT0}
    s_lshl_b32 s{sT0}, s{sW}, 12
    v_add_u32 v{vXr[0]}, s{sT0}, v{vT0}
    v_xor_b32 v{vXr[1]}, 64, v{vXr[0]}
    s_mov_b32 s{sC}, 0
    v_lshl_add_u32 v{vT1}, v{vG}, 3, v{vR}
    v_and_b32 v{vT2}, 1, v{vG}
    s_waitcnt lgkmcnt(0)
    s_cmp_ge_u32 s{sWAVE}, 4
    s_cbranch_scc1 L_ffn
    """)
    def frag(buf):
        b = vF + buf * FSZ
        return [b, b + 4], [b + 8 + 4 * i for i in range(7)]
    def role(name, nt, isq):
        def reads(s4):
            buf = s4 & 1
            X, W = frag(buf); L = []
            for t in range(2): L.append(f"ds_read_b128 {vr(X[t],4)}, v{vXr[s4 & 1]} offset:{(s4 >> 1)*XS + t*2048}")
            for ct in range(nt):
                for t2 in range(2):
                    if isq: va, off = vWr[ct & 1], 4 * t2 * 192 + ct * 32
                    else:   va, off = vWr[ct], 4 * t2 * 256
                    L.append(f"ds_read_b64_tr_b16 {vr(W[ct]+2*t2,2)}, v{va} offset:{s4*WSL + off}")
            return L
        def mfmas(buf):
            X, W = frag(buf); L = []
            for ct in range(nt):
                for t in range(2):
                    acc = vACC + (ct * 2 + t) * 4
                    if isq and ct >= 4: L.append(f"v_mfma_f32_16x16x32_bf16 {vr(acc,4)}, {vr(X[t],4)}, {vr(W[ct],4)}, {vr(acc,4)}")
                    else:               L.append(f"v_mfma_f32_16x16x32_bf16 {vr(acc,4)}, {vr(W[ct],4)}, {vr(X[t],4)}, {vr(acc,4)}")
            return L
        if isq:
            a(f"""
            v_mul_u32_u24 v{vT1}, 192, v{vT1}
            v_lshl_add_u32 v{vT1}, v{vC}, 3, v{vT1}
            v_add_u32 v{vT1}, {WB}, v{vT1}
            v_lshlrev_b32 v{vT2}, 5, v{vT2}
            v_add_u32 v{vWr[0]}, v{vT1}, v{vT2}
            v_sub_u32 v{vWr[1]}, v{vT1}, v{vT2}
            """)
            at.setup(a, 0)
            a("s_waitcnt vmcnt(0)")
            for r in range(48): a(f"v_mov_b32 v{vACC+r}, 0")
        else:
            vB = vF + FSZ
            a(f"""
            s_mov_b32 s{sB1}, s34
            s_mov_b32 s{sB1+1}, s35
            s_mov_b32 s{sB1+2}, {1792*2}
            s_mov_b32 s{sB1+3}, 0x00020000
            s_mov_b32 s{sW1}, s32
            s_mov_b32 s{sW1+1}, s33
            s_mov_b32 s{sW1+2}, {512*1792*2}
            s_mov_b32 s{sW1+3}, 0x00020000
            s_mul_i32 s{sT1}, s{sJ}, 224
            v_lshlrev_b32 v{vT3}, 3, v{vG}
            s_barrier
            s_barrier
            """)
            for ct in range(7):
                a(f"buffer_load_dwordx2 {vr(vB+2*ct,2)}, v{vT3}, s[{sB1}:{sB1+3}], s{sT1} offen offset:{ct*32}")
            a(f"""
            ; warm L2 with this column group's W1 strip: the 8 workgroups sharing it (i & 7) x 4 waves take 16 rows each
            s_and_b32 s{sT0}, s{sI}, 7
            s_lshl_b32 s{sT0}, s{sT0}, 2
            s_add_u32 s{sT0}, s{sT0}, s{sW}
            s_mul_i32 s{sT0}, s{sT0}, {16*3584}
            s_add_u32 s{sT0}, s{sT0}, s{sT1}
            v_mul_u32_u24 v{vT0}, 3584, v{vN16}
            v_mul_u32_u24 v{vT3}, 72, v{vG}
            v_add_u32 v{vT0}, v{vT0}, v{vT3}
            {'' if 'warm' not in EXP else f'buffer_load_dword v{vF}, v{vT0}, s[{sW1}:{sW1+3}], s{sT0} offen'}
            v_lshlrev_b32 v{vT1}, 8, v{vT1}
            v_lshl_add_u32 v{vT1}, v{vC}, 3, v{vT1}
            v_add_u32 v{vT1}, {WB}, v{vT1}
            v_lshl_add_u32 v{vT2}, v{vT2}, 2, v{vR}
            """)
            for ct in range(7):
                a(f"""
                v_add_u32 v{vT3}, {ct}, v{vT2}
                v_and_b32 v{vT3}, 7, v{vT3}
                v_lshl_add_u32 v{vWr[ct]}, v{vT3}, 5, v{vT1}
                """)
            a("s_barrier\ns_barrier")
            at.setup(a, 1)
            a(f"""
            s_barrier
            s_barrier
            v_mov_b32 v{vF+4}, -1
            v_mov_b32 v{vF+5}, -1
            v_mov_b32 v{vF+6}, -1
            v_mov_b32 v{vF+7}, -1
            s_lshl_b32 s{sT0}, s{at.sQB}, 2
            s_add_u32 s{sT0}, s{sT0}, s{sW}
            s_lshl_b32 s{sT0}, s{sT0}, 5
            s_add_u32 s{sT0}, s{sT0}, s{at.sH}
            s_lshl_b32 s{sT0}, s{sT0}, 10
            s_add_u32 s{sT0}, s{sT0}, {WS_O}
            s_sub_u32 s{sT1}, s{sT0}, 16384
            buffer_store_dwordx4 {vr(vF+4,4)}, v{at.vKo}, {wsrd}, s{sT0} offen sc1
            buffer_store_dwordx4 {vr(vF+4,4)}, v{at.vKo}, {wsrd}, s{sT1} offen sc1
            """)
            for u in range(6, 13): a("s_barrier")
            a("s_waitcnt vmcnt(0)")
            for ct in range(7):
                for t in range(2):
                    acc = vACC + (ct * 2 + t) * 4
                    a(f"""
                    v_lshlrev_b32 v{acc}, 16, v{vB+2*ct}
                    v_and_b32 v{acc+1}, 0xffff0000, v{vB+2*ct}
                    v_lshlrev_b32 v{acc+2}, 16, v{vB+2*ct+1}
                    v_and_b32 v{acc+3}, 0xffff0000, v{vB+2*ct+1}
                    """)
                if ct in (2, 5): a("s_barrier")
            a("s_barrier")
            a("s_setprio 1")
        a("s_barrier")
        pf.stamp(1)
        a("\n".join(reads(0)))
        a.raw(".p2align 6")
        a.label(f"L_{name}_loop")
        start = len(a.lines)
        def chunks(R, n): return ["\n".join(R[i:i+n]) for i in range(0, len(R), n)]
        for s4 in range(4):
            M = mfmas(s4 & 1)
            if s4 == 3:
                a(f"""
                s_add_u32 s{sC}, s{sC}, 1
                s_cmp_eq_u32 s{sC}, 4
                s_waitcnt lgkmcnt(0)
                s_cbranch_scc1 L_{name}_last
                """)
            else:
                a("s_waitcnt lgkmcnt(0)")
            G = ["s_barrier"] + chunks(reads((s4 + 1) & 3), int(os.environ.get("RPG", "2")))
            if s4 == 2: G.append("\n".join(f"v_add_u32 v{r}, {2*XS}, v{r}" for r in vXr))
            assert len(G) <= len(M)
            for i, m in enumerate(M):
                a(m)
                if i < len(G): a(G[i])
        a(f"s_branch L_{name}_loop")
        seam, inner = check_loop(a.lines[start:])
        assert seam == 0 and inner == 0, (seam, inner)
        a.label(f"L_{name}_last")
        a.window = []
        M = mfmas(1)
        a(M[0])
        epoch_load(a, vT1)
        a("s_barrier")
        for m in M[1:]: a(m)
        vP = vF + 4
        vL = at.vKo
        a(f"""
        s_lshl_b32 s{sD}, s{sI}, 2
        s_add_u32 s{sD}, s{sD}, s{sW}
        """)
        if isq:
            a(f"""
            s_lshl_b32 s{sT0}, s{sD}, 10
            s_lshl_b32 s{sT1}, s{sJ}, 18
            s_add_u32 s{sT1}, s{sT1}, s{sT0}
            s_lshl_b32 s{sN}, s{sJ}, 17
            s_add_u32 s{sN}, s{sN}, s{sT0}
            s_add_u32 s{sN}, s{sN}, {WS_V}
            s_mov_b32 s{sT2}, {hex(f32bits(QSCALE))}
            s_cmp_lt_u32 s{sJ}, 8
            s_cselect_b32 s{sK2}, s{sT2}, 1.0
            s_mov_b32 s{sK2+1}, s{sK2}
            s_barrier
            """)
            nb = 18
            for ct in range(6):
                p = vP + 4 * ct
                a0 = vACC + ct * 8
                if ct < 4:
                    for r in range(0, 8, 2): a(f"v_pk_mul_f32 {vr(a0+r,2)}, {vr(a0+r,2)}, s[{sK2}:{sK2+1}]")
                sw = "v_permlane32_swap_b32" if ct >= 4 else "v_permlane16_swap_b32"
                for r in range(4): a(f"v_cvt_pk_bf16_f32 v{p+r}, v{a0+2*r}, v{a0+2*r+1}")
                a(f"""
                s_add_u32 s{sT0}, s{sT1 if ct < 4 else sN}, {(ct & 3)*65536}
                {sw} v{p}, v{p+2}
                {sw} v{p+1}, v{p+3}
                buffer_store_dwordx4 {vr(p,4)}, v{vL}, {wsrd}, s{sT0} offen sc1
                """)
                if str(ct) in os.environ.get('ABAR', '2'): a("s_barrier"); nb += 1
            a(f"""
            s_lshl_b32 s{sN}, s{sJ}, 6
            s_add_u32 s{sN}, s{sN}, s{sD}
            s_lshl_b32 s{sN}, s{sN}, {FSH}
            s_add_u32 s{sN}, s{sN}, {WS_FQ}
            """)
            FB = int(os.environ.get('FLAGB', '22'))
            for b in range(nb, FB + 1): a("s_barrier")
            a("s_waitcnt vmcnt(0)")
            epoch_check(a, at.vT0, "a")
            a(f"""
            v_mov_b32 v{at.vT0}, 0
            s_mov_b64 exec, 1
            buffer_store_dwordx2 {vr(vEP,2)}, v{at.vT0}, {wsrd}, s{sN} offen sc1
            s_mov_b64 exec, -1
            """)
            for b in range(FB + 1, 31): a("s_barrier")
            at.poll_issue(a)
            a(f"""
            s_barrier
            s_barrier
            s_setprio 3
            L_a_try:
            s_waitcnt vmcnt(0)
            """)
            at.poll_test(a)
            a(f"s_cbranch_scc1 L_a_go")
            a(f"s_sleep {int(os.environ.get('QSLEEP', '4'))}")
            at.poll_issue(a)
            a(f"""
            s_sub_u32 s{sSP}, s{sSP}, 1
            s_cbranch_scc0 L_a_try
            s_mov_b32 s{sSP}, 0
            s_waitcnt vmcnt(0)
            L_a_go:
            """)
            at.first_loads(a, "a")
            a("s_branch L_at_body")
        else:
            a(f"""
            s_mul_i32 s{sN}, s{sD}, 112
            s_mul_i32 s{sT1}, s{sJ}, 7
            s_add_u32 s{sN}, s{sN}, s{sT1}
            s_lshl_b32 s{sN}, s{sN}, 10
            s_add_u32 s{sN}, s{sN}, {WS_A}
            s_add_u32 s{sD}, s{sN}, 4096
            s_mov_b32 s{sK2}, {hex(f32bits(LOG2E))}
            s_mov_b32 s{sK2+1}, {hex(f32bits(LOG2E))}
            s_setprio 2
            """)
            def astore(ct):
                return f"buffer_store_dwordx4 {vr(vP+4*ct,4)}, v{vL}, {wsrd}, s{sN if ct < 4 else sD} offen offset:{(ct&3)*1024} sc1"
            NPRE = int(os.environ.get('NPRE', '5'))
            for ct in range(7):
                p = vP + 4 * ct
                h = vACC + ct * 8
                e = vF + FSZ; d = e + 8
                if ct == NPRE - 2: at.poll_issue(a)
                for r in range(0, 8, 2): a(f"v_pk_mul_f32 {vr(e+r,2)}, {vr(h+r,2)}, s[{sK2}:{sK2+1}]")
                for r in range(8): a(f"v_exp_f32 v{e+r}, v{e+r}")
                for r in range(0, 8, 2): a(f"v_pk_add_f32 {vr(e+r,2)}, {vr(e+r,2)}, 1.0 op_sel_hi:[1,0]")
                for r in range(0, 8, 2): a(f"v_pk_fma_f32 {vr(d+r,2)}, {vr(e+r,2)}, {vr(e+r,2)}, 1.0 op_sel_hi:[1,1,0]")
                for r in range(8): a(f"v_rcp_f32 v{d+r}, v{d+r}")
                for r in range(0, 8, 2): a(f"v_pk_mul_f32 {vr(d+r,2)}, {vr(d+r,2)}, {vr(h+r,2)}")
                for r in range(0, 8, 2): a(f"v_pk_fma_f32 {vr(d+r,2)}, {vr(d+r,2)}, -2.0, {vr(h+r,2)} op_sel_hi:[1,0,1]")
                for r in range(4): a(f"v_cvt_pk_bf16_f32 v{p+r}, v{d+2*r}, v{d+2*r+1}")
                a(f"""
                v_permlane16_swap_b32 v{p}, v{p+2}
                v_permlane16_swap_b32 v{p+1}, v{p+3}
                """)
                if ct >= NPRE: a(astore(ct))
                if ct == NPRE - 1:
                    a("s_waitcnt vmcnt(0)")
                    epoch_check(a, at.vT0, "b")
                    a.label("L_b_try")
                    at.poll_test(a)
                    a("s_cbranch_scc1 L_b_go")
                    a("s_sleep 8")
                    at.poll_issue(a)
                    a(f"""
                    s_sub_u32 s{sSP}, s{sSP}, 1
                    s_waitcnt vmcnt(0)
                    s_cbranch_scc0 L_b_try
                    s_mov_b32 s{sSP}, 0
                    L_b_go:
                    """)
                    at.first_loads(a, "b")
                    for c2 in range(NPRE): a(astore(c2))
            a("s_nop 2")
    role("qkv", 6, True)
    a.label("L_ffn")
    a.window = []
    role("ffn", 7, False)
    at.body(a, pf)
    a.label("L_end")
    a("s_endpgm")
    NV = 160
    return a.text(), kernel_desc(NAME, NV, 88), f"; @launch grid=(256,1,1) block=(768,1,1) lds={LDS_BYTES}"
```

```python
import sys
import asmlib
if '--prof' in sys.argv:
    asmlib.PROF = True; sys.argv.remove('--prof')
aslist = '--list' in sys.argv
if aslist: sys.argv.remove('--list')
import mono10
from build import build
out = sys.argv[1] if len(sys.argv) > 1 else "v4.s"
t, d, l = mono10.gen()
if aslist: l = l.replace("; @launch grid", f"; @launch kernel={mono10.NAME} grid")
DOC = '''
; ---------------------------------------------------------------------------------------------------------------
; ---------------------------------------------------------------------------------------------------------------
'''
t = DOC + t
build([(t, d, l)], out)
```
